```python
import torch

def _softmax(x, axis=-1):
    return torch.softmax(x, dim=axis)
def _gelu(x):
    return torch.nn.functional.gelu(x, approximate="tanh")
def _silu(x):
    return torch.nn.functional.silu(x)
def _sigmoid(x):
    return torch.sigmoid(x)
def _layernorm(x, axis=-1, eps=1e-5):
    m = x.mean(dim=axis, keepdim=True)
    v = x.var(dim=axis, keepdim=True, unbiased=False)
    return (x - m) / torch.sqrt(v + eps)
def _scatter_add(tgt, idx, src, axis=0):
    return tgt.clone().index_add_(axis, idx, src)
def _segment_sum(src, seg, n):
    out = torch.zeros((n,) + src.shape[1:], dtype=src.dtype)
    return out.index_add_(0, seg, src)
def _pad(x, pw):
    flat = tuple(v for pair in reversed(pw) for v in pair)
    return torch.nn.functional.pad(x, flat)

kernel_name = 'concat_heads__mha_block_cached__gqa_block_cached__near_ridge'

def setup_inputs():

    _w = (lambda a: (lambda t: t.to(torch.bfloat16) if t.is_floating_point() else t)(torch.as_tensor(a)))
    def _A_setup():
        B, Sq, D = 8, 144, 512
        H, Sk, Dh = 32, 1024, 128
        return {
            "x": _w((lambda *s: torch.randn(*s, dtype=torch.bfloat16) * 0.8)(B, Sq, D)),
            "k_cache": _w((lambda *s: torch.randn(*s, dtype=torch.bfloat16) * 0.8)(B, H, Sk, Dh)),
            "v_cache": _w((lambda *s: torch.randn(*s, dtype=torch.bfloat16) * 0.05)(B, H, Sk, Dh)),
            "wq": _w((lambda *s: torch.randn(*s, dtype=torch.bfloat16) * 0.8)(D, H * Dh) * (D ** -0.5)),
            "wo": _w((lambda *s: torch.randn(*s, dtype=torch.bfloat16) * 0.05)(H * Dh, D) * ((H * Dh) ** -0.5)),
        }
    _A_in = _A_setup()

    def _B_setup():
        B, Sq, D = 8, 144, 512
        Hq, Hkv, Sk, Dh = 32, 32, 1024, 128
        assert Hq % Hkv == 0, (Hq, Hkv)
        return {
            "x": _w((lambda *s: torch.randn(*s, dtype=torch.bfloat16) * 0.8)(B, Sq, D)),
            "k_cache": _w((lambda *s: torch.randn(*s, dtype=torch.bfloat16) * 0.8)(B, Hkv, Sk, Dh)),
            "v_cache": _w((lambda *s: torch.randn(*s, dtype=torch.bfloat16) * 0.05)(B, Hkv, Sk, Dh)),
            "wq": _w((lambda *s: torch.randn(*s, dtype=torch.bfloat16) * 0.8)(D, Hq * Dh) * (D ** -0.5)),
            "wo": _w((lambda *s: torch.randn(*s, dtype=torch.bfloat16) * 0.05)(Hq * Dh, D) * ((Hq * Dh) ** -0.5)),
        }
    _B_in = _B_setup()

    return {
        "A_x": _A_in["x"],
        "A_k_cache": _A_in["k_cache"],
        "A_v_cache": _A_in["v_cache"],
        "A_wq": _A_in["wq"],
        "A_wo": _A_in["wo"],
        "B_x": _B_in["x"],
        "B_k_cache": _B_in["k_cache"],
        "B_v_cache": _B_in["v_cache"],
        "B_wq": _B_in["wq"],
        "B_wo": _B_in["wo"],
    }

def reference(A_x, A_k_cache, A_v_cache, A_wq, A_wo, B_x, B_k_cache, B_v_cache, B_wq, B_wo):
    def _A_ref(x, k_cache, v_cache, wq, wo):
        B, Sq, D = x.shape
        H, Dh = 32, 128
        q = (lambda x, *d: x.permute(*d))((x @ wq).reshape(B, Sq, H, Dh), 0, 2, 1, 3)
        scores = torch.einsum("bhqd,bhkd->bhqk", q, k_cache) * (Dh ** -0.5)
        p = _softmax(scores, axis=-1)
        o = torch.einsum("bhqk,bhkd->bhqd", p, v_cache)
        return (lambda x, *d: x.permute(*d))(o, 0, 2, 1, 3).reshape(B, Sq, H * Dh) @ wo

    def _B_ref(x, k_cache, v_cache, wq, wo):
        B, Sq, D = x.shape
        Hq, Dh = 32, 128
        Hkv = k_cache.shape[1]
        rep = Hq // Hkv
        q = (lambda x, *d: x.permute(*d))((x @ wq).reshape(B, Sq, Hq, Dh), 0, 2, 1, 3)
        k = (lambda x, n, axis: torch.repeat_interleave(x, n, dim=axis))(k_cache, rep, axis=1)
        v = (lambda x, n, axis: torch.repeat_interleave(x, n, dim=axis))(v_cache, rep, axis=1)
        scores = torch.einsum("bhqd,bhkd->bhqk", q, k) * (Dh ** -0.5)
        p = _softmax(scores, axis=-1)
        o = torch.einsum("bhqk,bhkd->bhqd", p, v)
        return (lambda x, *d: x.permute(*d))(o, 0, 2, 1, 3).reshape(B, Sq, Hq * Dh) @ wo

    a = _A_ref(A_x, A_k_cache, A_v_cache, A_wq, A_wo)
    b = _B_ref(B_x, B_k_cache, B_v_cache, B_wq, B_wo)
    return torch.concatenate([a, b], axis=-1)
```

```python
import re

def R(kind, lo, n=1):
    return f"{kind}{lo}" if n == 1 else f"{kind}[{lo}:{lo+n-1}]"

class Reg:
    def __init__(self, kind, lo, n=1):
        self.kind, self.lo, self.n = kind, lo, n
    def __str__(self):
        return R(self.kind, self.lo, self.n)
    def __getitem__(self, i):
        if isinstance(i, slice):
            a = i.start or 0; b = i.stop if i.stop is not None else self.n
            assert 0 <= a < b <= self.n, (a, b, self.n)
            return Reg(self.kind, self.lo + a, b - a)
        assert 0 <= i < self.n, (i, self.n)
        return Reg(self.kind, self.lo + i, 1)
    def set(self):
        return {(self.kind, self.lo + i) for i in range(self.n)}

def V(lo, n=1): return Reg('v', lo, n)
def A(lo, n=1): return Reg('a', lo, n)
def S(lo, n=1): return Reg('s', lo, n)

def regset(xs):
    s = set()
    for x in xs:
        if isinstance(x, Reg): s |= x.set()
        elif isinstance(x, str) and x in ('vcc', 'm0', 'exec', 'scc'): s.add((x, 0))
        elif isinstance(x, str) and x in ('vcc_lo', 'vcc_hi'): s.add(('vcc', 0))
    return s

TRANS = ('v_exp_f32', 'v_rcp_f32', 'v_log_f32', 'v_rsq_f32', 'v_sqrt_f32')

class Em:
    def __init__(self):
        self.lines = []
        self.hist = []
        self.lds_q = []
        self.vm_q = []
        self.nops = 0
    def raw(self, t): self.lines.append(t)
    def comment(self, t): self.lines.append("    ; " + t)
    def label(self, l):
        self.lines.append(l + ":")
    def _push(self, text, kind, reads, writes, extra=None, states=1):
        self.lines.append("    " + text)
        self.hist.append((kind, reads, writes, extra, states))
        if len(self.hist) > 40: self.hist.pop(0)
    def nop(self, n):
        while n > 0:
            k = min(n, 16)
            self._push(f"s_nop {k-1}", 'nop', set(), set(), None, k)
            self.nops += k
            n -= k
    def _need(self, kind, reads, writes, extra):
        need = 0; dist = 0
        for (pk, pr, pw, pe, st) in reversed(self.hist):
            req = 0
            isvalu = kind in ('valu', 'trans', 'perm', 'readlane')
            pvalu = pk in ('valu', 'trans', 'perm', 'readlane')
            vw = {r for r in pw if r[0] in ('v', 'a')}
            sw = {r for r in pw if r[0] in ('s', 'vcc')}
            if pvalu:
                if kind == 'mfma' and vw & reads: req = max(req, 2)
                if kind == 'perm' and vw & reads: req = max(req, 2)
                if kind == 'readlane' and vw & reads: req = max(req, 1)
                if pk == 'trans' and isvalu and kind != 'trans' and vw & reads: req = max(req, 1)
                if kind in ('vmem',) and sw & reads: req = max(req, 5)
                if isvalu and sw & reads: req = max(req, 2)
                if kind == 'salu' and sw & reads: req = max(req, 1)
            if pk == 'mfma':
                passes = pe['passes']; D = pw; big = {2: 5, 4: 8, 8: 12, 16: 20}[passes]
                if kind == 'mfma':
                    if D & extra['ab']: req = max(req, big)
                    c = extra['c']
                    if D & c and not (c == D and extra['passes'] == passes):
                        req = max(req, {2: 4, 4: 6, 8: 10, 16: 18}[passes])
                    if D & writes and not (c == D): req = max(req, big)
                elif isvalu or kind in ('vmem', 'ds'):
                    if D & (reads | writes): req = max(req, big)
                if isvalu and pe['c'] & writes: req = max(req, {2: 1, 4: 3, 8: 7, 16: 15}[passes])
            if pk == 'salu' and ('m0', 0) in pw and kind == 'vmem' and ('m0', 0) in reads: req = max(req, 1)
            if pk == 'vmem' and pe and pe.get('wide_store') and (pe['wide_store'] & writes):
                req = max(req, 2)
            if pk == 'ds' and pe and pe.get('wide_store') and (pe['wide_store'] & writes) and isvalu:
                req = max(req, 2)
            need = max(need, req - dist)
            dist += st
            if dist >= 24: break
        return need
    def ins(self, text, kind, reads=(), writes=(), extra=None):
        r = regset(reads); w = regset(writes)
        n = self._need(kind, r, w, extra)
        if n > 0: self.nop(n)
        self._push(text, kind, r, w, extra)
    def salu(self, op, dst, *srcs):
        ops = ([dst] if dst is not None else []) + list(srcs)
        self.ins(f"{op} " + ", ".join(str(x) for x in ops), 'salu', srcs, [dst] if dst is not None else [])
    def valu(self, op, dst, *srcs, rmw=False, mods=""):
        kind = 'trans' if op in TRANS else 'valu'
        rd = list(srcs) + ([dst] if rmw else [])
        self.ins(f"{op} {dst}, " + ", ".join(str(x) for x in srcs) + mods, kind, rd, [dst])
    def vcmp(self, op, dst, a, b):
        self.ins(f"{op} {dst}, {a}, {b}", 'valu', [a, b], [dst])
    def perm(self, op, a, b):
        self.ins(f"{op} {a}, {b}", 'perm', [a, b], [a, b])
    def readfirstlane(self, dst, src):
        self.ins(f"v_readfirstlane_b32 {dst}, {src}", 'readlane', [src], [dst])
    def mfma16(self, d, a, b, c):
        cs = regset([c]) if isinstance(c, Reg) else set()
        ex = {'passes': 4, 'ab': regset([a, b]), 'c': cs}
        self.ins(f"v_mfma_f32_16x16x32_bf16 {d}, {a}, {b}, {c}", 'mfma', [a, b] + ([c] if isinstance(c, Reg) else []), [d], ex)
    def mfma32(self, d, a, b, c):
        cs = regset([c]) if isinstance(c, Reg) else set()
        ex = {'passes': 8, 'ab': regset([a, b]), 'c': cs}
        self.ins(f"v_mfma_f32_32x32x16_bf16 {d}, {a}, {b}, {c}", 'mfma', [a, b] + ([c] if isinstance(c, Reg) else []), [d], ex)
    def ds_read(self, op, dst, addr, off=0, tag=None):
        assert 0 <= off <= 65535, off
        self.ins(f"{op} {dst}, {addr}" + (f" offset:{off}" if off else ""), 'ds', [addr], [dst])
        self.lds_q.append(tag)
    def ds_write(self, op, addr, src, off=0, tag=None):
        assert 0 <= off <= 65535, off
        self.ins(f"{op} {addr}, {src}" + (f" offset:{off}" if off else ""), 'ds', [addr, src], [], {'wide_store': regset([src]) if src.n >= 3 else set()})
        self.lds_q.append(tag)
    def dma(self, voff, srd, soff, off=0, pol="", tag=None):
        assert 0 <= off <= 4095
        self.ins(f"buffer_load_dwordx4 {voff}, {srd}, {soff} offen" + (f" offset:{off}" if off else "") + (f" {pol}" if pol else "") + " lds",
                 'vmem', [voff, srd, soff, 'm0'], [])
        self.vm_q.append(tag)
    def bload(self, op, dst, voff, srd, soff, off=0, pol="", tag=None):
        assert 0 <= off <= 4095
        self.ins(f"{op} {dst}, {voff}, {srd}, {soff} offen" + (f" offset:{off}" if off else "") + (f" {pol}" if pol else ""),
                 'vmem', [voff, srd, soff], [dst])
        self.vm_q.append(tag)
    def bstore(self, op, src, voff, srd, soff, off=0, pol="", tag=None):
        assert 0 <= off <= 4095
        self.ins(f"{op} {src}, {voff}, {srd}, {soff} offen" + (f" offset:{off}" if off else "") + (f" {pol}" if pol else ""),
                 'vmem', [src, voff, srd, soff], [], {'wide_store': regset([src]) if src.n >= 3 else set()})
        self.vm_q.append(tag)
    def _wait(self, vm=None, lg=None):
        t = "s_waitcnt" + (f" vmcnt({vm})" if vm is not None else "") + (f" lgkmcnt({lg})" if lg is not None else "")
        self._push(t, 'wait', set(), set())
    def wait_lds(self, tag):
        idx = [i for i, t in enumerate(self.lds_q) if t == tag]
        if not idx: return
        n = len(self.lds_q) - 1 - idx[-1]
        n = min(n, 15)
        self._wait(lg=n)
        self.lds_q = self.lds_q[len(self.lds_q) - n:] if n else []
    def wait_vm(self, tag, slack=0):
        idx = [i for i, t in enumerate(self.vm_q) if t == tag]
        if not idx: return
        n = len(self.vm_q) - 1 - idx[-1] - slack
        n = max(0, min(n, 63))
        self._wait(vm=n)
        self.vm_q = self.vm_q[len(self.vm_q) - n:] if n else []
    def wait_all_lds(self):
        self._wait(lg=0); self.lds_q = []
    def wait_all_vm(self):
        self._wait(vm=0); self.vm_q = []
    def wait_all(self):
        self._wait(vm=0, lg=0); self.vm_q = []; self.lds_q = []
    def barrier(self):
        self._push("s_barrier", 'other', set(), set())
    def branch(self, op, label):
        self._push(f"{op} {label}", 'other', set(), set())
    def other(self, t):
        self._push(t, 'other', set(), set())
    def flush_hazards(self, n=20):
        self.nop(n)
    def text(self):
        return "\n".join(self.lines) + "\n"
```

```python
import sys, struct
from collections import deque
from asmlib import *

NAME = "concat_heads__mha_block_cached__gqa_block_cached__near_ridge"
def f2u(x): return struct.unpack("<I", struct.pack("<f", x))[0]
QSCALE = 1.4426950408889634 / (128 ** 0.5)

class Cfg:
    kv_pol = "nt"
    xw_pol = ""
    warm_pol = ""
    warm = True
    o_st_pol = ""
    o_ld_pol = ""
    wo_pol = ""
    kv0_stage = 0
    k2_pd = 6
    k2_map = 1
    lthresh = 2.0 ** 40
    force_fallback = False
    stamps = False

def header(e, label):
    e.raw(f".globl {label}"); e.raw(".p2align 8"); e.raw(f".type {label},@function"); e.label(label)

def descriptor(label, vgpr, sgpr, accum):
    return f""".p2align 6
.amdhsa_kernel {label}
  .amdhsa_next_free_vgpr {vgpr}
  .amdhsa_next_free_sgpr {sgpr}
  .amdhsa_accum_offset {accum}
  .amdhsa_group_segment_fixed_size 0
  .amdhsa_kernarg_size 104
  .amdhsa_user_sgpr_count 2
  .amdhsa_user_sgpr_kernarg_segment_ptr 1
  .amdhsa_system_sgpr_workgroup_id_x 1
.end_amdhsa_kernel
"""

def load_kernargs(e):
    e.other("s_load_dwordx16 s[32:47], s[0:1], 0")
    e.other("s_load_dwordx8 s[48:55], s[0:1], 64")
    e.other("s_load_dwordx2 s[56:57], s[0:1], 96")

def srd_sel(e, d, a, b, size):
    e.salu("s_cselect_b32", S(d), S(b), S(a))
    e.salu("s_cselect_b32", S(d + 1), S(b + 1), S(a + 1))
    e.salu("s_mov_b32", S(d + 2), hex(size))
    e.salu("s_mov_b32", S(d + 3), "0x20000")

OWS_BYTES = 16 * 9 * 128 * 1024

def gen_k1(e, cfg, label):
    header(e, label)
    sX, sWQ, sK, sV, sWS = S(8, 4), S(12, 4), S(16, 4), S(20, 4), S(24, 4)
    sW, sXCD, sIDX, sT = S(28), S(29), S(30), S(31)
    sB, sH0, sXB, sWQB, sKVB, sKP, sVP, sRING = S(58), S(59), S(60), S(61), S(62), S(63), S(64), S(65)
    sT1, sT2, sKO, sVO, sCNT, sRETRY, sSC, sOB, sXL, sWL = S(66), S(67), S(68), S(69), S(70), S(71), S(72), S(73), S(74), S(75)
    sM0, sM1, sROT, sPAR = S(76, 2), S(78, 2), S(80), S(81)
    vL, vL16, vT0, vT1, vT2 = V(1), V(2), V(3), V(4), V(5)
    KA = [V(6 + i) for i in range(4)]; VA = [V(10 + i) for i in range(8)]
    oK = [V(18 + i) for i in range(4)]; oV = [V(22 + i) for i in range(2)]
    QA, oX, oWQ, XA = V(24), V(25), V(26), V(27)
    WA = [V(28), V(29)]; KBA = V(30); QW = V(31)
    Kf = [[V(32 + (kt * 4 + kk) * 4, 4) for kk in range(4)] for kt in range(2)]
    Vf = [V(64 + D * 4, 4) for D in range(8)]
    Kb = [V(96 + kk * 4, 4) for kk in range(4)]
    Sb = [V(96 + i * 8, 8) for i in range(3)]
    Pb = [V(120 + i * 4, 4) for i in range(3)]
    ONES = V(132, 4)
    Qf = [V(136 + kk * 4, 4) for kk in range(4)]
    def Oacc(t, D):
        return A((t * 8 + D) * 4, 4) if t < 8 else V(152 + D * 4, 4)
    Lb = [V(184 + t * 4, 4) for t in range(9)]
    NM = [V(220 + t * 4, 4) for t in range(9)]
    QACC = lambda D, qt: V(112 + (qt * 4 + D) * 4, 4)
    XF = lambda buf, qt: A(buf * 52 + qt * 4, 4)
    WF = lambda buf, D: A(buf * 52 + 36 + D * 4, 4)
    LQ = 65536; SLOT = 25600

    e.salu("s_cmp_ge_u32", None, S(2), 256)
    e.branch("s_cbranch_scc1", "L_k1_done")
    load_kernargs(e)
    e.valu("v_lshrrev_b32", vT0, 6, V(0))
    e.valu("v_and_b32", vL, 63, V(0))
    e.readfirstlane(sW, vT0)
    e.salu("s_and_b32", sXCD, S(2), 7)
    e.salu("s_lshr_b32", sIDX, S(2), 3)
    e.salu("s_lshr_b32", sB, sIDX, 2)
    e.salu("s_and_b32", sH0, sXCD, 3); e.salu("s_lshl_b32", sH0, sH0, 3)
    e.salu("s_and_b32", sT, sIDX, 3); e.salu("s_lshl_b32", sT, sT, 1); e.salu("s_add_u32", sH0, sH0, sT)
    e.valu("v_lshlrev_b32", vL16, 4, vL)
    e.salu("s_and_b32", sPAR, sW, 1)
    e.salu("s_mul_i32", sXB, sB, 147456); e.salu("s_lshl_b32", sT, sW, 14); e.salu("s_add_u32", sXB, sXB, sT)
    e.salu("s_lshl_b32", sWQB, sH0, 8); e.salu("s_lshl_b32", sT, sW, 7); e.salu("s_add_u32", sWQB, sWQB, sT)
    e.salu("s_lshl_b32", sKVB, sB, 5); e.salu("s_add_u32", sKVB, sKVB, sH0); e.salu("s_lshl_b32", sKVB, sKVB, 1)
    e.salu("s_add_u32", sKVB, sKVB, sW); e.salu("s_lshl_b32", sKVB, sKVB, 17)
    e.salu("s_lshl_b32", sROT, sIDX, 2); e.salu("s_add_u32", sROT, sROT, sW); e.salu("s_and_b32", sROT, sROT, 15)
    e.salu("s_lshl_b32", sROT, sROT, 13)
    e.salu("s_mov_b32", sKP, sROT); e.salu("s_mov_b32", sVP, sROT)
    e.salu("s_lshl_b32", sRING, sW, 14)
    e.salu("s_lshl_b32", sXL, sW, 10); e.salu("s_add_u32", sXL, sXL, LQ)
    e.salu("s_lshl_b32", sWL, sW, 12); e.salu("s_add_u32", sWL, sWL, LQ + 9216)
    e.salu("s_mov_b32", sRETRY, 0)
    e.salu("s_mov_b32", sSC, hex(f2u(QSCALE)))
    e.salu("s_lshr_b32", sT, sXCD, 2); e.salu("s_lshl_b32", sT, sT, 3); e.salu("s_add_u32", sT, sT, sB)
    e.salu("s_mul_i32", sOB, sT, 9 * 128); e.salu("s_lshl_b32", sT, sH0, 2); e.salu("s_add_u32", sOB, sOB, sT)
    e.salu("s_lshl_b32", sT, sW, 1); e.salu("s_add_u32", sOB, sOB, sT); e.salu("s_lshl_b32", sOB, sOB, 10)
    e.valu("v_and_b32", vT0, 15, vL); e.valu("v_lshrrev_b32", vT1, 4, vL)
    e.valu("v_lshlrev_b32", oX, 10, vT0); e.valu("v_lshl_add_u32", oX, vT1, 4, oX)
    e.valu("v_and_b32", vT2, 1, vT1); e.valu("v_lshlrev_b32", vT2, 2, vT2)
    e.valu("v_and_b32", oWQ, 7, vL); e.valu("v_xor_b32", oWQ, oWQ, vT2); e.valu("v_lshlrev_b32", oWQ, 4, oWQ)
    e.valu("v_lshrrev_b32", vT2, 3, vL); e.valu("v_lshl_add_u32", oWQ, vT2, 13, oWQ)
    e._wait(lg=0)
    e.salu("s_cmp_ge_u32", None, sXCD, 4)
    srd_sel(e, 8, 32, 42, 8 * 147456)
    srd_sel(e, 12, 38, 48, 512 * 8192)
    srd_sel(e, 16, 34, 44, 1 << 26)
    srd_sel(e, 20, 36, 46, 1 << 26)
    e.salu("s_mov_b32", S(24), S(56)); e.salu("s_mov_b32", S(25), S(57))
    e.salu("s_mov_b32", S(26), hex(OWS_BYTES)); e.salu("s_mov_b32", S(27), "0x20000")

    if cfg.warm:
        e.valu("v_lshrrev_b32", vT2, 3, vL); e.valu("v_lshlrev_b32", vT2, 13, vT2)
        e.valu("v_and_b32", QW, 7, vL); e.valu("v_lshl_add_u32", vT2, QW, 6, vT2)
        e.salu("s_lshl_b32", sT1, sB, 2); e.salu("s_add_u32", sT1, sT1, sW); e.salu("s_lshl_b32", sT1, sT1, 17)
        e.salu("s_lshl_b32", sT2, sH0, 8); e.salu("s_add_u32", sT1, sT1, sT2)
        e.salu("s_add_u32", sT2, sT1, 65536)
        e.bload("buffer_load_dword", V(96), vT2, sWQ, sT1, pol=cfg.warm_pol, tag="warm")
        e.bload("buffer_load_dword", V(97), vT2, sWQ, sT2, pol=cfg.warm_pol, tag="warm")
        e.valu("v_lshlrev_b32", vT2, 6, vL)
        e.salu("s_and_b32", sT1, sIDX, 3); e.salu("s_lshl_b32", sT1, sT1, 2); e.salu("s_add_u32", sT1, sT1, sW)
        e.salu("s_mul_i32", sT1, sT1, 9216); e.salu("s_mul_i32", sT2, sB, 147456); e.salu("s_add_u32", sT1, sT1, sT2)
        e.salu("s_add_u32", sT2, sT1, 4096)
        e.bload("buffer_load_dword", V(98), vT2, sX, sT1, pol=cfg.warm_pol, tag="warm")
        e.bload("buffer_load_dword", V(99), vT2, sX, sT2, pol=cfg.warm_pol, tag="warm")
        e.salu("s_add_u32", sT2, sT1, 5120)
        e.bload("buffer_load_dword", V(100), vT2, sX, sT2, pol=cfg.warm_pol, tag="warm")

    lab = [0]
    def stage_dma_items(st):
        slot = (st % 3) * SLOT
        items = []
        def xopt():
            lab[0] += 1; l = f"L_k1_x{lab[0]}"
            e.salu("s_cmp_lg_u32", None, sW, 0)
            e.branch("s_cbranch_scc1", l)
            e.salu("s_mov_b32", "m0", LQ + slot + 8 * 1024)
            e.salu("s_add_u32", sT1, sXB, 131072 + st * 64)
            e.dma(oX, sX, sT1, pol=cfg.xw_pol, tag=None)
            e.vm_q.pop()
            e.label(l)
        items.append(xopt)
        for i in range(2):
            def xp(i=i):
                e.salu("s_add_u32", "m0", sXL, slot + i * 4096)
                e.salu("s_add_u32", sT1, sXB, i * 65536 + st * 64)
                e.dma(oX, sX, sT1, pol=cfg.xw_pol, tag=("st", st))
            items.append(xp)
        for p in range(4):
            def wp(p=p):
                e.salu("s_add_u32", "m0", sWL, slot + p * 1024)
                e.salu("s_add_u32", sT1, sWQB, (32 * st + 8 * p) * 8192)
                e.dma(oWQ, sWQ, sT1, pol=cfg.xw_pol, tag=("st", st))
            items.append(wp)
        return items

    def kv_dma_items(which, step):
        srd, pos, so, voff, base = (sK, sKP, sKO, oK, 0) if which == "K" else (sV, sVP, sVO, oV, 8192)
        items = []
        for n in range(8):
            def f(n=n):
                if n == 0:
                    e.salu("s_add_u32", "m0", sRING, base)
                    e.salu("s_add_u32", so, sKVB, pos)
                if n == 4:
                    e.salu("s_add_u32", "m0", sRING, base + 4096)
                    e.salu("s_add_u32", so, so, 4096)
                e.dma(voff[n % len(voff)], srd, so, off=(n & 3) * 1024, pol=cfg.kv_pol, tag=(which, step))
                if n == 7:
                    e.salu("s_add_u32", pos, pos, 8192)
                    e.salu("s_and_b32", pos, pos, "0x1ffff")
            items.append(f)
        return items

    def setup_kv_lane_consts():
        e.valu("v_and_b32", vT0, 15, vL); e.valu("v_lshrrev_b32", vT1, 4, vL)
        e.valu("v_xor_b32", vT2, vT0, vT1)
        e.valu("v_lshlrev_b32", vT2, 4, vT2); e.valu("v_lshl_add_u32", oK[0], vT1, 8, vT2)
        for n in range(1, 4): e.valu("v_xor_b32", oK[n], n << 6, oK[0])
        e.valu("v_lshlrev_b32", vT2, 1, vT1); e.valu("v_xor_b32", vT2, vT0, vT2)
        e.valu("v_lshlrev_b32", vT2, 4, vT2); e.valu("v_lshl_add_u32", oV[0], vT1, 8, vT2)
        e.valu("v_xor_b32", oV[1], 128, oV[0])

    if cfg.kv0_stage < 0:
        setup_kv_lane_consts()
        for f in kv_dma_items("K", 0) + kv_dma_items("V", 0): f()
    for st in range(3):
        for f in stage_dma_items(st): f()
    if cfg.kv0_stage >= 0:
        setup_kv_lane_consts()
    e.valu("v_and_b32", vT0, 15, vL); e.valu("v_lshrrev_b32", vT1, 4, vL)
    e.valu("v_xor_b32", vT2, vT0, vT1); e.valu("v_lshlrev_b32", vT2, 4, vT2)
    e.valu("v_lshl_add_u32", vT2, vT0, 8, vT2); e.valu("v_add_u32", KA[0], sRING, vT2)
    for kk in range(1, 4): e.valu("v_xor_b32", KA[kk], kk << 6, KA[0])
    e.valu("v_lshlrev_b32", vT2, 4, vT1); e.valu("v_add_u32", KBA, sRING, vT2)
    e.valu("v_lshrrev_b32", vT0, 2, vL)
    e.valu("v_and_b32", vT2, 7, vT0); e.valu("v_lshlrev_b32", vT2, 5, vT2)
    e.valu("v_lshl_add_u32", vT2, vT0, 8, vT2)
    e.valu("v_and_b32", vT0, 3, vL); e.valu("v_lshl_add_u32", vT2, vT0, 3, vT2)
    e.salu("s_lshl_b32", sT1, sPAR, 7); e.salu("s_add_u32", sT2, sRING, 8192)
    e.valu("v_xor_b32", vT2, sT1, vT2); e.valu("v_add_u32", VA[0], sT2, vT2)
    for D in range(1, 8): e.valu("v_xor_b32", VA[D], D << 5, VA[0])
    e.salu("s_lshr_b32", sT1, sW, 1); e.salu("s_mul_i32", sT1, sT1, 36864); e.salu("s_add_u32", sT1, sT1, LQ)
    e.valu("v_add_u32", QA, sT1, vL16)
    e.salu("s_lshl_b32", sT2, sPAR, 11)
    e.valu("v_add_u32", QW, sT2, QA)
    e.valu("v_add_u32", XA, LQ, vL16)
    e.valu("v_lshrrev_b32", vT0, 2, vL); e.valu("v_and_b32", vT0, 3, vT0)
    e.valu("v_lshl_add_u32", vT2, vT1, 3, vT0); e.valu("v_lshlrev_b32", vT2, 7, vT2)
    e.valu("v_lshrrev_b32", vT0, 1, vT0); e.valu("v_lshl_add_u32", vT2, vT0, 6, vT2)
    e.valu("v_and_b32", vT0, 3, vL); e.valu("v_lshl_add_u32", vT2, vT0, 4, vT2)
    e.valu("v_add_u32", WA[0], sWL, vT2); e.valu("v_xor_b32", WA[1], 64, WA[0])

    def stage_read_items(st):
        slot = (st % 3) * SLOT; buf = st & 1
        items = []
        for D in range(4):
            for hi in range(2):
                items.append(lambda D=D, hi=hi: e.ds_read("ds_read_b64_tr_b16", WF(buf, D)[2 * hi:2 * hi + 2], WA[D >> 1],
                                                        slot + hi * 512 + (D & 1) * 8, tag="qf"))
        for qt in range(9):
            items.append(lambda qt=qt: e.ds_read("ds_read_b128", XF(buf, qt), XA, slot + qt * 1024, tag="qf"))
        return items

    def kv_frag_items(which, bcast=False):
        items = []
        if which == "K":
            for kk in range(4):
                for kt in range(2):
                    items.append(lambda kk=kk, kt=kt: e.ds_read("ds_read_b128", Kf[kt][kk], KA[kk], kt * 4096, tag="kf"))
            if bcast:
                for kk in range(4):
                    items.append(lambda kk=kk: e.ds_read("ds_read_b128", Kb[kk], KBA, kk * 64, tag="kf"))
        else:
            for D in range(8):
                for hi in range(2):
                    items.append(lambda D=D, hi=hi: e.ds_read("ds_read_b64_tr_b16", Vf[D][2 * hi:2 * hi + 2], VA[D], hi * 4096, tag="vf"))
        return items

    e.wait_vm(("st", 0)); e.barrier()
    for f in stage_read_items(0): f()
    for st in range(16):
        e.comment(f"q-proj stage {st}")
        if st + 1 < 16: e.wait_vm(("st", st + 1))
        e.wait_all_lds(); e.barrier()
        fill = deque()
        if st + 3 < 16: fill.extend(stage_dma_items(st + 3))
        if st == cfg.kv0_stage: fill.extend(kv_dma_items("K", 0) + kv_dma_items("V", 0))
        rd = deque(stage_read_items(st + 1)) if st + 1 < 16 else deque()
        if st == 14:
            rd.append(lambda: e.wait_vm(("V", 0)))
            rd.extend(kv_frag_items("K", True))
        if st == 15:
            rd.extend(kv_frag_items("V"))
            fill.extend(kv_dma_items("K", 1))
        buf = st & 1
        i = 0
        for qt in range(9):
            for D in range(4):
                e.mfma16(QACC(D, qt), WF(buf, D), XF(buf, qt), QACC(D, qt) if st else 0)
                if rd: rd.popleft()()
                if fill and (i % 2 == 1): fill.popleft()()
                i += 1
        while rd: rd.popleft()()
        while fill: fill.popleft()()
    e.wait_all_lds()
    for f in kv_dma_items("V", 1): f()
    for qt in range(9):
        for P in range(2):
            src = V(112 + (qt * 4 + 2 * P) * 4, 8)
            for i in range(8): e.valu("v_mul_f32", src[i], sSC, src[i])
            for i in range(4): e.valu("v_cvt_pk_bf16_f32", src[i], src[2 * i], src[2 * i + 1])
            e.ds_write("ds_write_b128", QW, src[0:4], (qt * 4 + P) * 1024)
    e.salu("s_mov_b32", sT1, "0x80008000")
    for kk in range(4):
        for i in range(4): e.valu("v_xor_b32", Kb[kk][i], sT1, Kb[kk][i])
    e.wait_all_lds(); e.barrier()
    for i in range(4): e.valu("v_mov_b32", ONES[i], "0x3f803f80")
    QT = [V(152 + i * 4, 4) for i in range(16)]
    def qread(i): e.ds_read("ds_read_b128", QT[i % 16], QA, i * 1024, tag=("q", i))
    for i in range(12): qread(i)
    for i in range(36):
        t, kk = divmod(i, 4)
        e.wait_lds(("q", i))
        e.mfma16(NM[t], Kb[kk], QT[i % 16], NM[t] if kk else 0)
        if i + 12 < 36: qread(i + 12)

    e.flush_hazards(8)
    e.label("L_k1_main")
    e.lds_q = []; e.vm_q = [("K", 1)] * 8 + [("V", 1)] * 8
    extras = deque()
    def q_reload(j, kk):
        t = j % 9
        e.ds_read("ds_read_b128", Qf[kk], QA, (t * 4 + kk) * 1024, tag=("Q", j))
    for kk in range(4): q_reload(0, kk)
    NT = 144
    def slot(j):
        e.comment(f"slot t={j % 9}")
        mf = []
        jq, jp = j + 1, j - 1
        if jq < NT:
            s, t = divmod(jq, 9)
            for kk in range(4):
                for kt in range(2):
                    def m(kk=kk, kt=kt):
                        d = Sb[jq % 3][4 * kt:4 * kt + 4]
                        e.mfma16(d, Kf[kt][kk], Qf[kk], d if kk else NM[t])
                    mf.append(m)
        else:
            mf += [None] * 8
        if jp >= 0:
            s2, t2 = divmod(jp, 9)
            for D in range(8):
                mf.append(lambda D=D: e.mfma16(Oacc(t2, D), Vf[D], Pb[jp % 3], Oacc(t2, D) if s2 else 0))
            mf.append(lambda: e.mfma16(Lb[t2], ONES, Pb[jp % 3], Lb[t2] if s2 else 0))
        else:
            mf += [None] * 9
        sm = 0 <= j < NT
        Sx, Px = Sb[j % 3], Pb[j % 3]
        E = lambda i: (lambda: e.valu("v_exp_f32", Sx[i], Sx[i])) if sm else None
        C = lambda i: (lambda: e.valu("v_cvt_pk_bf16_f32", Px[i], Sx[2 * i], Sx[2 * i + 1])) if sm else None
        Qr = lambda kk: (lambda: q_reload(jq + 1, kk)) if jq + 1 < NT else None
        gaps = [([E(0)], 0), ([Qr(0)], 1), ([E(1)], 0), ([Qr(1), C(0)], 0), ([E(2)], 0), ([Qr(2)], 1), ([E(3)], 0), ([Qr(3), C(1)], 0),
                ([E(4)], 0), ([], 2), ([E(5)], 0), ([C(2)], 1), ([E(6)], 0), ([], 2), ([E(7)], 0), ([C(3)], 1), ([], 2)]
        kre = deque(); vre = deque()
        if jq < NT and jq % 9 == 8 and jq // 9 + 1 < 16:
            kre = deque(kv_frag_items("K"))
        if jp >= 0 and jp % 9 == 8 and jp // 9 + 1 < 16:
            vre = deque(kv_frag_items("V"))
        for i in range(17):
            if i == 0 and jq < NT:
                if jq % 9 == 0 and jq > 0:
                    while extras: extras.popleft()()
                    e.wait_lds("kf")
                    if jq // 9 + 1 < 16: extras.extend(kv_dma_items("K", jq // 9 + 1))
                e.wait_lds(("Q", jq))
                if kre: e.wait_vm(("K", jq // 9 + 1))
            if i == 8 and jp >= 0:
                if jp % 9 == 0 and jp > 0:
                    while extras: extras.popleft()()
                    e.wait_lds("vf")
                    if jp // 9 + 1 < 16: extras.extend(kv_dma_items("V", jp // 9 + 1))
                if vre: e.wait_vm(("V", jp // 9 + 1))
            if mf[i]: mf[i]()
            if i < 8 and kre: extras.append(kre.popleft())
            if 8 <= i < 16 and vre:
                extras.append(vre.popleft()); extras.append(vre.popleft())
            base, cap = gaps[i]
            for f in base:
                if f: f()
            if len(extras) > 6: cap += 1
            for _ in range(cap):
                if extras: extras.popleft()()
    HEAD_END = 19; NIT = 12
    for j in range(-1, HEAD_END): slot(j)
    e.salu("s_mov_b32", sCNT, NIT)
    bodies = []
    save = e.lines
    for it in range(NIT):
        e.lines = []
        for j in range(HEAD_END + 9 * it, HEAD_END + 9 * it + 9): slot(j)
        bodies.append(e.lines)
    for it in range(1, NIT):
        assert bodies[it] == bodies[0], f"loop body {it} differs"
    e.lines = save
    e.label("L_k1_loop")
    e.lines += bodies[0]
    e.salu("s_sub_u32", sCNT, sCNT, 1)
    e.salu("s_cmp_lg_u32", None, sCNT, 0)
    e.branch("s_cbranch_scc1", "L_k1_loop")
    for j in range(HEAD_END + 9 * NIT, NT + 1): slot(j)
    assert not extras

    e.salu("s_mov_b32", sT1, hex(f2u(0.25 if cfg.force_fallback else cfg.lthresh)))
    e.salu("s_mov_b64", sM0, 0)
    for t in range(9):
        e.vcmp("v_cmp_nge_f32", sM1, sT1, Lb[t][0])
        e.salu("s_or_b64", sM0, sM0, sM1)
    e.salu("s_cmp_eq_u64", None, sM0, 0)
    e.branch("s_cbranch_scc1", "L_k1_epi")
    e.salu("s_cmp_lg_u32", None, sRETRY, 0)
    e.branch("s_cbranch_scc1", "L_k1_epi")
    e.salu("s_mov_b32", sRETRY, 1)
    e.wait_all()
    MX = [V(184 + t) for t in range(9)]
    for t in range(9): e.valu("v_mov_b32", MX[t], "0xff800000")
    e.salu("s_mov_b32", sCNT, 16)
    e.salu("s_mov_b32", sKP, 0)
    e.label("L_k1_maxloop")
    for f in kv_dma_items("K", 0): f()
    e.wait_all_vm()
    for f in kv_frag_items("K"): f()
    for t in range(9):
        for kk in range(4): e.ds_read("ds_read_b128", Qf[kk], QA, (t * 4 + kk) * 1024)
        e.wait_all_lds()
        for kk in range(4):
            for kt in range(2):
                d = Sb[0][4 * kt:4 * kt + 4]
                e.mfma16(d, Kf[kt][kk], Qf[kk], d if kk else 0)
        for i in range(4): e.valu("v_max3_f32", MX[t], Sb[0][2 * i], Sb[0][2 * i + 1], MX[t])
    e.salu("s_sub_u32", sCNT, sCNT, 1)
    e.salu("s_cmp_lg_u32", None, sCNT, 0)
    e.branch("s_cbranch_scc1", "L_k1_maxloop")
    for t in range(9):
        for op in ("v_permlane32_swap_b32", "v_permlane16_swap_b32"):
            e.valu("v_mov_b32", vT0, MX[t])
            e.perm(op, vT0, MX[t])
            e.valu("v_max_f32", MX[t], vT0, MX[t])
        for i in range(4): e.valu("v_sub_f32", NM[t][i], 0, MX[t])
    e.salu("s_mov_b32", sKP, sROT); e.salu("s_mov_b32", sVP, sROT)
    for f in kv_dma_items("K", 0) + kv_dma_items("V", 0): f()
    e.wait_all_vm()
    for f in kv_frag_items("K") + kv_frag_items("V"): f()
    e.wait_all_lds()
    for f in kv_dma_items("K", 1) + kv_dma_items("V", 1): f()
    e.flush_hazards(8)
    e.branch("s_branch", "L_k1_main")

    e.label("L_k1_epi")
    e.lds_q = []; e.vm_q = []
    e.flush_hazards(8)
    e.wait_all()
    e.barrier()
    LM = 147456
    vOW, vOR, vLW, vLR = V(6), V(7), V(8), V(9)
    e.salu("s_mul_i32", sT1, sW, 36864); e.valu("v_add_u32", vOW, sT1, vL16)
    e.salu("s_xor_b32", sT2, sW, 1); e.salu("s_mul_i32", sT1, sT2, 36864); e.valu("v_add_u32", vOR, sT1, vL16)
    e.valu("v_and_b32", vT0, 15, vL); e.valu("v_lshlrev_b32", vT0, 2, vT0)
    e.salu("s_mul_i32", sT1, sW, 1152); e.salu("s_add_u32", sT1, sT1, LM); e.valu("v_add_u32", vLW, sT1, vT0)
    e.salu("s_mul_i32", sT1, sT2, 1152); e.salu("s_add_u32", sT1, sT1, LM); e.valu("v_add_u32", vLR, sT1, vT0)
    for t in range(9):
        e.ds_write("ds_write_b32", vLW, Lb[t][0], t * 128)
        e.ds_write("ds_write_b32", vLW, NM[t][0], t * 128 + 64)
    for t in range(9):
        for i in range(4):
            e.ds_write("ds_write_b128", vOW, Oacc(t, 4 + i), (t * 4 + i) * 1024)
    e.wait_all_lds(); e.barrier()
    for t in range(9):
        e.ds_read("ds_read_b32", Lb[t][1], vLR, t * 128, tag="lm")
        e.ds_read("ds_read_b32", NM[t][1], vLR, t * 128 + 64, tag="lm")
    RB = lambda t: V(32 + (t % 4) * 16, 16)
    OB = lambda t: V(96 + (t % 2) * 16, 16)
    def rd(t):
        for i in range(4): e.ds_read("ds_read_b128", RB(t)[4 * i:4 * i + 4], vOR, (t * 4 + i) * 1024, tag=("o", t))
    rd(0); rd(1); rd(2)
    e.wait_lds("lm")
    for t in range(9):
        e.valu("v_min_f32", NM[t][2], NM[t][0], NM[t][1])
        e.valu("v_sub_f32", NM[t][0], NM[t][2], NM[t][0]); e.valu("v_sub_f32", NM[t][1], NM[t][2], NM[t][1])
        e.valu("v_exp_f32", NM[t][0], NM[t][0]); e.valu("v_exp_f32", NM[t][1], NM[t][1])
    for t in range(9):
        e.valu("v_mul_f32", Lb[t][0], Lb[t][0], NM[t][0])
        e.valu("v_fma_f32", Lb[t][0], Lb[t][1], NM[t][1], Lb[t][0])
        e.valu("v_rcp_f32", Lb[t][0], Lb[t][0])
    for t in range(9):
        e.valu("v_mul_f32", Lb[t][2], Lb[t][0], NM[t][0]); e.valu("v_mul_f32", Lb[t][3], Lb[t][0], NM[t][1])
    for t in range(9):
        if t + 3 < 9: rd(t + 3)
        o = OB(t)
        for i in range(16):
            own = Oacc(t, i // 4)[i % 4]
            if t < 8:
                e.valu("v_accvgpr_read_b32", o[i], own)
                e.valu("v_mul_f32", o[i], o[i], Lb[t][2])
            else:
                e.valu("v_mul_f32", o[i], own, Lb[t][2])
        e.wait_lds(("o", t))
        for i in range(16): e.valu("v_fma_f32", o[i], RB(t)[i], Lb[t][3], o[i])
        for i in range(8): e.valu("v_cvt_pk_bf16_f32", o[i], o[2 * i], o[2 * i + 1])
        e.salu("s_add_u32", sT1, sOB, t * 131072)
        e.bstore("buffer_store_dwordx4", o[0:4], vL16, sWS, sT1, pol=cfg.o_st_pol)
        e.bstore("buffer_store_dwordx4", o[4:8], vL16, sWS, sT1, off=1024, pol=cfg.o_st_pol)
    e.label("L_k1_done")
    e.other("s_endpgm")

def gen_k2(e, cfg, label):
    header(e, label)
    sWO, sWS, sOUT = S(8, 4), S(12, 4), S(16, 4)
    sW, sXCD, sIDX, sT, sT1, sT2 = S(28), S(29), S(30), S(31), S(20), S(21)
    sB, sRH, sNT, sOB, sWB, sRING, sBR, sOUTB = S(58), S(59), S(60), S(61), S(62), S(63), S(64), S(65)
    vL, vL16, vT0, vT1, vT2, oW, vST = V(1), V(2), V(3), V(4), V(5), V(6), V(7)
    WA = [V(8 + i) for i in range(4)]
    vXW = [V(12 + i) for i in range(3)]; vXR = V(15)
    PD = cfg.k2_pd
    WF = lambda buf, N: V(16 + buf * 16 + N * 4, 4)
    OF = lambda kb, qt: V(48 + ((kb % PD) * 5 + qt) * 4, 4)
    ACC = lambda qt, N: A((qt * 4 + N) * 4, 4)
    assert 48 + PD * 20 <= 256
    e.salu("s_cmp_ge_u32", None, S(2), 256)
    e.branch("s_cbranch_scc1", "L_k2_done")
    load_kernargs(e)
    e.valu("v_lshrrev_b32", vT0, 6, V(0))
    e.valu("v_and_b32", vL, 63, V(0))
    e.readfirstlane(sW, vT0)
    e.salu("s_and_b32", sXCD, S(2), 7)
    e.salu("s_lshr_b32", sIDX, S(2), 3)
    e.salu("s_lshr_b32", sBR, sXCD, 2)
    if cfg.k2_map == 1:
        e.salu("s_and_b32", sB, sXCD, 3); e.salu("s_lshl_b32", sB, sB, 1); e.salu("s_lshr_b32", sT, sIDX, 4); e.salu("s_add_u32", sB, sB, sT)
        e.salu("s_lshr_b32", sRH, sIDX, 3); e.salu("s_and_b32", sRH, sRH, 1)
        e.salu("s_and_b32", sNT, sIDX, 7)
    else:
        e.salu("s_and_b32", sB, sXCD, 2); e.salu("s_lshl_b32", sB, sB, 1); e.salu("s_lshr_b32", sT, sIDX, 3); e.salu("s_add_u32", sB, sB, sT)
        e.salu("s_lshr_b32", sRH, sIDX, 2); e.salu("s_and_b32", sRH, sRH, 1)
        e.salu("s_and_b32", sNT, sXCD, 1); e.salu("s_lshl_b32", sNT, sNT, 2); e.salu("s_and_b32", sT, sIDX, 3); e.salu("s_add_u32", sNT, sNT, sT)
    e.valu("v_lshlrev_b32", vL16, 4, vL)
    e.salu("s_lshl_b32", sT, sBR, 3); e.salu("s_add_u32", sT, sT, sB); e.salu("s_mul_i32", sT, sT, 9)
    e.salu("s_mul_i32", sT1, sRH, 5); e.salu("s_add_u32", sT, sT, sT1); e.salu("s_lshl_b32", sOB, sT, 17)
    e.salu("s_lshl_b32", sT, sW, 15); e.salu("s_add_u32", sOB, sOB, sT)
    e.salu("s_lshl_b32", sWB, sW, 20); e.salu("s_lshl_b32", sT, sNT, 7); e.salu("s_add_u32", sWB, sWB, sT)
    e.salu("s_mul_i32", sRING, sW, PD * 4096)
    e.salu("s_mul_i32", sOUTB, sB, 144); e.salu("s_mul_i32", sT, sRH, 80); e.salu("s_add_u32", sOUTB, sOUTB, sT)
    e.salu("s_lshl_b32", sOUTB, sOUTB, 11); e.salu("s_lshl_b32", sT, sBR, 10); e.salu("s_add_u32", sOUTB, sOUTB, sT)
    e.salu("s_lshl_b32", sT, sNT, 7); e.salu("s_add_u32", sOUTB, sOUTB, sT); e.salu("s_lshl_b32", sT, sW, 5); e.salu("s_add_u32", sOUTB, sOUTB, sT)
    e.valu("v_lshrrev_b32", vT1, 4, vL); e.valu("v_lshlrev_b32", vT2, 1, vT1)
    e.valu("v_and_b32", oW, 7, vL); e.valu("v_xor_b32", oW, oW, vT2); e.valu("v_lshlrev_b32", oW, 4, oW)
    e.valu("v_lshrrev_b32", vT2, 3, vL); e.valu("v_lshl_add_u32", oW, vT2, 10, oW)
    e.valu("v_lshrrev_b32", vT0, 2, vL); e.valu("v_lshlrev_b32", vT2, 7, vT0)
    e.valu("v_lshrrev_b32", vT0, 3, vL); e.valu("v_and_b32", vT0, 3, vT0); e.valu("v_lshl_add_u32", vT2, vT0, 5, vT2)
    e.valu("v_and_b32", vT0, 3, vL); e.valu("v_lshl_add_u32", vT2, vT0, 3, vT2)
    e.salu("s_lshl_b32", sT, sW, 5)
    e.valu("v_xor_b32", vT2, sT, vT2); e.valu("v_add_u32", WA[0], sRING, vT2)
    for N in range(1, 4): e.valu("v_xor_b32", WA[N], N << 5, WA[0])
    e.valu("v_and_b32", vT0, 15, vL); e.valu("v_lshlrev_b32", vST, 11, vT0); e.valu("v_lshl_add_u32", vST, vT1, 3, vST)
    XB = 4 * PD * 4096
    for N in range(1, 4):
        e.salu("s_xor_b32", sT, sW, N); e.salu("s_mul_i32", sT, sT, 15360); e.salu("s_add_u32", sT, sT, XB + (N - 1) * 5120)
        e.valu("v_add_u32", vXW[N - 1], sT, vL16)
    e.salu("s_mul_i32", sT, sW, 15360); e.salu("s_add_u32", sT, sT, XB)
    e.valu("v_add_u32", vXR, sT, vL16)
    e._wait(lg=0)
    e.salu("s_cmp_ge_u32", None, sXCD, 4)
    srd_sel(e, 8, 40, 50, 4096 * 1024)
    e.salu("s_mov_b32", S(12), S(56)); e.salu("s_mov_b32", S(13), S(57)); e.salu("s_mov_b32", S(14), hex(OWS_BYTES)); e.salu("s_mov_b32", S(15), "0x20000")
    e.salu("s_mov_b32", S(16), S(52)); e.salu("s_mov_b32", S(17), S(53)); e.salu("s_mov_b32", S(18), hex(8 * 144 * 2048)); e.salu("s_mov_b32", S(19), "0x20000")
    e.salu("s_cmp_lg_u32", None, sRH, 0)
    e.branch("s_cbranch_scc1", "L_k2_v4")
    for NQ in (5, 4):
        if NQ == 4: e.label("L_k2_v4")
        e.lds_q = []; e.vm_q = []
        def w_items(kb):
            its = []
            for p in range(4):
                def f(p=p):
                    e.salu("s_add_u32", "m0", sRING, (kb % PD) * 4096 + p * 1024)
                    e.salu("s_add_u32", sT1, sWB, (kb * 32 + p * 8) * 1024)
                    e.dma(oW, sWO, sT1, pol=cfg.wo_pol, tag=("w", kb))
                its.append(f)
            return its
        def o_items(kb):
            its = []
            for qt in range(NQ):
                def f(qt=qt):
                    e.salu("s_add_u32", sT2, sOB, qt * 131072 + kb * 1024)
                    e.bload("buffer_load_dwordx4", OF(kb, qt), vL16, sWS, sT2, pol=cfg.o_ld_pol, tag=("o", kb))
                its.append(f)
            return its
        def f_items(kb):
            return [lambda N=N, hi=hi: e.ds_read("ds_read_b64_tr_b16", WF(kb & 1, N)[2 * hi:2 * hi + 2], WA[N],
                                                (kb % PD) * 4096 + hi * 2048, tag=("f", kb)) for N in range(4) for hi in range(2)]
        for kb in range(PD):
            for f in w_items(kb) + o_items(kb): f()
        e.wait_vm(("w", 0))
        for f in f_items(0): f()
        for kb in range(32):
            e.comment(f"k block {kb}")
            e.wait_vm(("o", kb))
            if kb + 1 < 32: e.wait_vm(("w", kb + 1))
            e.wait_lds(("f", kb))
            rd = deque(f_items(kb + 1)) if kb + 1 < 32 else deque()
            wq = deque(w_items(kb + PD)) if kb + PD < 32 else deque()
            oq = deque(o_items(kb + PD)) if kb + PD < 32 else deque()
            for qt in range(NQ):
                for N in range(4):
                    e.mfma16(ACC(qt, N), WF(kb & 1, N), OF(kb, qt), ACC(qt, N) if kb else 0)
                    if wq: wq.popleft()()
                    elif rd: rd.popleft()()
                if oq and not wq: oq.popleft()()
            while rd: rd.popleft()()
            while oq: oq.popleft()()
        for N in range(1, 4):
            for qt in range(NQ):
                e.ds_write("ds_write_b128", vXW[N - 1], ACC(qt, N), qt * 1024)
        e.wait_all_lds(); e.barrier()
        RB = lambda qt, N: V(16 + (qt * 3 + N) * 4, 4)
        for qt in range(NQ):
            for N in range(3): e.ds_read("ds_read_b128", RB(qt, N), vXR, N * 5120 + qt * 1024, tag=("x", qt))
        for qt in range(NQ):
            o = V(96 + qt * 4, 4)
            for i in range(4): e.valu("v_accvgpr_read_b32", o[i], ACC(qt, 0)[i])
            e.wait_lds(("x", qt))
            for N in range(3):
                for i in range(4): e.valu("v_add_f32", o[i], o[i], RB(qt, N)[i])
            e.valu("v_cvt_pk_bf16_f32", o[0], o[0], o[1]); e.valu("v_cvt_pk_bf16_f32", o[1], o[2], o[3])
            e.salu("s_add_u32", sT1, sOUTB, qt * 32768)
            e.bstore("buffer_store_dwordx2", o[0:2], vST, sOUT, sT1)
        e.other("s_endpgm")
    e.label("L_k2_done")
    e.other("s_endpgm")
    return XB + 4 * 15360

def generate(cfg, fn):
    e = Em()
    e.raw('.amdgcn_target "amdgcn-amd-amdhsa--gfx950"'); e.raw(".text")
    gen_k1(e, cfg, "attn_kernel")
    e.hist = []
    lds2 = gen_k2(e, cfg, "oproj_kernel")
    top = ("; attention block: q-projection + attention (attn_kernel), output projection (oproj_kernel); generated by dev/gen.py\n"
           "; @launch kernel=attn_kernel grid=(256,1,1) block=(256,1,1) lds=163840\n"
           f"; @launch kernel=oproj_kernel grid=(256,1,1) block=(256,1,1) lds={lds2}\n")
    tail = '.section .rodata,"a"\n' + descriptor("attn_kernel", 512, 96, 256) + descriptor("oproj_kernel", 336, 96, 256)
    open(fn, "w").write(top + e.text() + tail)
    return e

if __name__ == "__main__":
    cfg = Cfg()
    fn = sys.argv[1] if len(sys.argv) > 1 else "k.s"
    for kv in sys.argv[2:]:
        k, v = kv.split("=", 1)
        cur = getattr(cfg, k)
        setattr(cfg, k, type(cur)(int(v)) if isinstance(cur, (bool, int)) and not isinstance(cur, float) else (float(v) if isinstance(cur, float) else v))
    e = generate(cfg, fn)
    print(fn, "lines", len(e.lines), "nop states", e.nops)
```

```python
import sys, struct
from collections import deque
from asmlib import *

NAME = "concat_heads__mha_block_cached__gqa_block_cached__near_ridge"
def f2u(x): return struct.unpack("<I", struct.pack("<f", x))[0]
QSCALE = 1.4426950408889634 / (128 ** 0.5)

class Cfg:
    kv_pol = "nt"
    xw_pol = "nt"
    wo_pol = ""
    lthresh = 2.0 ** 40
    force_fallback = False
    stamps = False
    poll_sleep = 2
    kv0_stage = 13
    sig_stage = 0
    poll_stage = 2
    rot = 2
    win = 12
    wing = 2
    wwarm = -1
    wwarm_pol = ""
    wwarm_full = 0
    ost_pol = "sc1"
    old_pol = "sc1"
    local = 0
    wbl2 = -1
    force_remote = 0
    loc_pol = ""
    ws_off = 0
    wwarm_q = -1
    la = 3

OWS_BYTES = 16 * 64 * 18432
PWS_OFF = OWS_BYTES
PWS_BYTES = 64 * 16 * 9216
WS_USED = OWS_BYTES + PWS_BYTES
STAMP_OFF = 32 << 20
NSTAMP = 16

def descriptor(label, vgpr, sgpr, accum):
    return f""".p2align 6
.amdhsa_kernel {label}
  .amdhsa_next_free_vgpr {vgpr}
  .amdhsa_next_free_sgpr {sgpr}
  .amdhsa_accum_offset {accum}
  .amdhsa_group_segment_fixed_size 0
  .amdhsa_kernarg_size 104
  .amdhsa_user_sgpr_count 2
  .amdhsa_user_sgpr_kernarg_segment_ptr 1
  .amdhsa_system_sgpr_workgroup_id_x 1
.end_amdhsa_kernel
"""

def gen(e, cfg, label):
    e.raw(f".globl {label}"); e.raw(".p2align 8"); e.raw(f".type {label},@function"); e.label(label)
    sX, sWQ, sK, sV, sWS, sWO, sOUT, sDBG = (S(4 * i + 4, 4) for i in range(8))
    names = ("W XCD IDX T T1 T2 B HP HG HH QH BR KVB KP KO LS XS WS2 XL WL CNT RETRY SC ROT OB OKP WB WKP OL PB FL1 FL2 SP WLG").split()
    sXE = S(3)
    sr = {n: S(36 + i) for i, n in enumerate(names)}
    assert 36 + len(names) <= 70
    g = type("G", (), {"s" + n: r for n, r in sr.items()})
    sM0, sM1 = S(70, 2), S(72, 2)
    KARG = 76
    def kp(i): return S(KARG + 2 * i), S(KARG + 2 * i + 1)
    sW, sT, sT1, sT2 = g.sW, g.sT, g.sT1, g.sT2
    vL, vL16, vT0, vT1, vT2 = V(1), V(2), V(3), V(4), V(5)
    KA = [V(6 + i) for i in range(4)]; VA = [V(10 + i) for i in range(8)]
    oK = [V(18 + i) for i in range(4)]; oV = [V(22 + i) for i in range(2)]
    oWo = [V(24 + i) for i in range(4)]
    XA = [V(28), V(29)]; WA = [V(30), V(31)]
    Sb = [V(32 + i * 8, 8) for i in range(2)]
    Kb = [V(32 + kk * 4, 4) for kk in range(4)]
    Pb = [V(48 + i * 4, 4) for i in range(2)]
    NM = [V(56 + t * 4, 4) for t in range(5)]
    oX = [V(76 + i) for i in range(5)]; oWQ = [V(81 + i) for i in range(4)]
    KBA, QA, QW = V(85), V(86), V(87)
    GWA = [V(88), V(89)]; GOA, GOW, vST, vFLG = V(90), V(91), V(92), V(93)
    Oacc = lambda t, D: V(96 + (t * 8 + D) * 4, 4)
    QACC = lambda D, qt: V(112 + (qt * 4 + D) * 4, 4)
    XF = lambda buf, qt: A(buf * 36 + qt * 4, 4)
    WF = lambda buf, D: A(108 + buf * 16 + D * 4, 4)
    Qf = lambda t, kk: A(64 + (t * 4 + kk) * 4, 4)
    Lb = [A(144 + t * 4, 4) for t in range(5)]
    ONES = A(164, 4)
    Kf = [[A(176 + (kt * 4 + kk) * 4, 4) for kk in range(4)] for kt in range(2)]
    Vf = [A(208 + D * 4, 4) for D in range(8)]
    GB = lambda buf, i: A(buf * 72 + i * 4, 4)
    GA = lambda buf, i: A(144 + buf * 16 + i * 4, 4)
    GC = lambda qt, ee: V(96 + (qt * 2 + ee) * 4, 4)
    LQ = 65536; XS0, WS0 = LQ, LQ + 36864
    OSL = 32768; LFLAG = 131072 - 64
    stamp_reg = V(94)

    def stamp(i):
        if cfg.stamps:
            e.other("s_memrealtime s[74:75]"); e._wait(lg=0); e.lds_q = []
            e.ins(f"v_writelane_b32 {stamp_reg}, s74, {i}", 'valu', [], [stamp_reg])
    def stamp_flush():
        if not cfg.stamps: return
        e.wait_all_vm(); stamp(NSTAMP - 1)
        e.salu("s_lshl_b32", sT, S(2), 2); e.salu("s_add_u32", sT, sT, sW); e.salu("s_lshl_b32", sT, sT, 8)
        e.salu("s_add_u32", sT, sT, STAMP_OFF)
        e.valu("v_lshlrev_b32", vT0, 2, vL)
        e.bstore("buffer_store_dword", stamp_reg, vT0, sWS, sT)

    e.salu("s_cmp_ge_u32", None, S(2), 256)
    e.branch("s_cbranch_scc1", "L_done")
    e.other(f"s_load_dwordx16 s[{KARG}:{KARG+15}], s[0:1], 0")
    e.other(f"s_load_dwordx8 s[{KARG+16}:{KARG+23}], s[0:1], 64")
    e.other(f"s_load_dwordx2 s[{KARG+24}:{KARG+25}], s[0:1], 96")
    e.valu("v_lshrrev_b32", vT0, 6, V(0))
    e.valu("v_and_b32", vL, 63, V(0))
    e.readfirstlane(sW, vT0)
    if cfg.stamps: e.valu("v_mov_b32", stamp_reg, 0)
    e.salu("s_and_b32", g.sXCD, S(2), 7)
    e.salu("s_lshr_b32", g.sIDX, S(2), 3)
    e.salu("s_lshr_b32", g.sB, g.sIDX, 2); e.salu("s_and_b32", g.sHP, g.sIDX, 3)
    e.salu("s_and_b32", g.sHG, g.sXCD, 3); e.salu("s_lshr_b32", g.sBR, g.sXCD, 2)
    e.salu("s_lshr_b32", g.sHH, sW, 1); e.salu("s_and_b32", g.sQH, sW, 1)
    e.valu("v_lshlrev_b32", vL16, 4, vL)
    e.valu("v_lshrrev_b32", vT1, 4, vL); e.valu("v_lshrrev_b32", vT0, 3, vL)
    e.salu("s_lshl_b32", sT, g.sHP, 1); e.salu("s_add_u32", sT, sT, g.sB); e.salu("s_and_b32", sT, sT, 7)
    e.salu("s_lshl_b32", g.sXS, sT, 7); e.salu("s_lshl_b32", g.sWS2, sT, 19)
    e.salu("s_mul_i32", sT, sW, 9); e.salu("s_lshr_b32", sT, sT, 1)
    e.salu("s_lshl_b32", g.sXL, sT, 10); e.salu("s_add_u32", g.sOL, g.sXL, OSL); e.salu("s_add_u32", g.sXL, g.sXL, XS0)
    e.salu("s_mul_i32", sT1, g.sB, 147456); e.salu("s_lshl_b32", sT2, sT, 13); e.salu("s_add_u32", sT1, sT1, sT2)
    e.salu("s_and_b32", sT, sT, 1); e.salu("s_lshl_b32", sT, sT, 6)
    e.valu("v_and_b32", vT2, 7, vL); e.valu("v_xor_b32", vT2, vT2, vT1); e.valu("v_lshlrev_b32", vT2, 4, vT2)
    e.valu("v_lshl_add_u32", vT2, vT0, 10, vT2); e.valu("v_xor_b32", vT2, sT, vT2)
    e.valu("v_add_u32", oX[0], sT1, vT2); e.valu("v_xor_b32", vT2, 64, oX[0])
    for i in range(1, 5): e.valu("v_add_u32", oX[i], i * 8192 - (i % 3) * 1024, vT2 if i & 1 else oX[0])
    e.salu("s_lshl_b32", sT1, g.sHG, 11); e.salu("s_lshl_b32", sT2, g.sHP, 9); e.salu("s_add_u32", sT1, sT1, sT2)
    e.salu("s_lshl_b32", sT2, sW, 7); e.salu("s_add_u32", sT1, sT1, sT2)
    e.valu("v_and_b32", vT2, 1, vT1); e.valu("v_lshlrev_b32", vT2, 2, vT2)
    e.valu("v_and_b32", oWQ[0], 7, vL); e.valu("v_xor_b32", vT2, oWQ[0], vT2); e.valu("v_lshlrev_b32", vT2, 4, vT2)
    e.valu("v_lshl_add_u32", vT2, vT0, 13, vT2); e.valu("v_add_u32", oWQ[0], sT1, vT2)
    for i in range(1, 4): e.valu("v_add_u32", oWQ[i], i * (65536 - 1024), oWQ[0])
    e.salu("s_lshl_b32", g.sWLG, sW, 12); e.salu("s_add_u32", g.sWL, g.sWLG, WS0)
    e._wait(lg=0)
    e.salu("s_cmp_lg_u32", None, g.sBR, 0)
    def srd(d, a, b, size):
        if b is None:
            e.salu("s_mov_b32", d[0], kp(a)[0]); e.salu("s_mov_b32", d[1], kp(a)[1])
        else:
            e.salu("s_cselect_b32", d[0], kp(b)[0], kp(a)[0]); e.salu("s_cselect_b32", d[1], kp(b)[1], kp(a)[1])
        e.salu("s_mov_b32", d[2], hex(size)); e.salu("s_mov_b32", d[3], "0x20000")
    srd(sX, 0, 5, 8 * 147456); srd(sWQ, 3, 8, 512 * 8192)
    srd(sK, 1, 6, 1 << 26); srd(sV, 2, 7, 1 << 26); srd(sWO, 4, 9, 4096 * 1024)
    stamp(0)

    def x_items(D, part, tag):
        its = [lambda: e.salu("s_add_u32", "m0", g.sXL, (D & 1) * 18432 + part * 3072)]
        for i in range(3 * part, min(5, 3 * part + 3)):
            its.append(lambda i=i: e.dma(oX[i], sX, g.sXS, off=(i % 3) * 1024, pol=cfg.xw_pol, tag=tag))
        if part == 1:
            its.append(lambda: e.salu("s_add_u32", g.sXS, g.sXS, 128))
            its.append(lambda: e.salu("s_and_b32", g.sXS, g.sXS, 1023))
        return its
    def w_items(st, tag):
        its = [lambda: e.salu("s_add_u32", "m0", g.sWL, (st % 3) * 16384)]
        for i in range(4):
            its.append(lambda i=i: e.dma(oWQ[i], sWQ, g.sWS2, off=i * 1024, pol=cfg.xw_pol, tag=tag))
        its.append(lambda: e.salu("s_add_u32", g.sWS2, g.sWS2, 1 << 18))
        its.append(lambda: e.salu("s_and_b32", g.sWS2, g.sWS2, "0x3fffff"))
        return its
    for f in (x_items(0, 0, "p0") + x_items(0, 1, "p0") + w_items(0, "p0") + w_items(1, "p1") +
              x_items(1, 0, "p2") + x_items(1, 1, "p2") + w_items(2, "p2")): f()

    srd(sWS, 12, None, 64 << 20 if cfg.stamps else WS_USED); srd(sOUT, 10, None, 8 * 144 * 2048); srd(sDBG, 11, None, 256)
    if cfg.ws_off:
        assert cfg.ws_off + WS_USED <= 287571968
        e.salu("s_add_u32", sWS[0], sWS[0], cfg.ws_off); e.salu("s_addc_u32", sWS[1], sWS[1], 0)
    e.salu("s_lshl_b32", sT, g.sHG, 3); e.salu("s_lshl_b32", sT1, g.sHP, 1); e.salu("s_add_u32", sT, sT, sT1); e.salu("s_add_u32", sT, sT, g.sHH)
    e.salu("s_lshl_b32", g.sKVB, g.sB, 5); e.salu("s_add_u32", g.sKVB, g.sKVB, sT); e.salu("s_lshl_b32", g.sKVB, g.sKVB, 18)
    e.salu("s_lshl_b32", sT1, g.sBR, 3); e.salu("s_add_u32", sT1, sT1, g.sB)
    e.salu("s_lshl_b32", sT2, sT1, 5); e.salu("s_add_u32", sT2, sT2, sT); e.salu("s_mul_i32", g.sOB, sT2, 36864)
    e.salu("s_mul_i32", sT2, g.sQH, 10240); e.salu("s_add_u32", g.sOB, g.sOB, sT2)
    e.salu("s_lshl_b32", sT2, sT1, 2); e.salu("s_add_u32", g.sFL1, sT2, g.sHG); e.salu("s_add_u32", g.sFL2, sT2, g.sHP)
    e.salu("s_mul_i32", g.sOKP, g.sFL1, 16 * 18432); e.salu("s_add_u32", g.sOKP, g.sOKP, g.sOL); e.salu("s_sub_u32", g.sOKP, g.sOKP, OSL)
    e.salu("s_mul_i32", g.sPB, g.sFL2, 16 * 9216); e.salu("s_add_u32", g.sPB, g.sPB, PWS_OFF)
    e.salu("s_lshl_b32", g.sFL1, g.sFL1, 2); e.salu("s_lshl_b32", g.sFL2, g.sFL2, 2)
    if cfg.local:
        e.other(f"s_getreg_b32 {sT}, hwreg(HW_REG_XCC_ID, 0, 4)")
        e.salu("s_mul_i32", sT1, sT, sT); e.salu("s_lshl_b32", sT1, sT1, 5); e.salu("s_add_u32", sT1, sT1, sT)
        e.salu("s_add_u32", sT1, sT1, 1 << 13)
        e.salu("s_lshl_b32", sXE, sT1, 2)
        e.salu("s_cmp_lt_u32", None, sT, 8); e.salu("s_cselect_b32", sT1, sT1, 0)
        e.salu("s_lshl_b32", sT1, sT1, 16)
        e.salu("s_cmp_lg_u32", None, sW, 0)
        e.branch("s_cbranch_scc1", "L_ann")
        e.valu("v_mov_b32", vT0, sT1); e.valu("v_mov_b32", vT1, 0)
        e.salu("s_mov_b64", "exec", 1)
        e.ins(f"buffer_atomic_add {vT0}, {vT1}, {sDBG}, {g.sFL1} offen sc1", 'vmem', [vT0, vT1, sDBG, g.sFL1], [])
        e.salu("s_mov_b64", "exec", -1)
        e.label("L_ann")
    e.salu("s_lshl_b32", g.sWB, g.sHG, 20); e.salu("s_lshl_b32", sT, g.sHP, 8); e.salu("s_add_u32", g.sWB, g.sWB, sT)
    if cfg.rot == 0:
        e.salu("s_lshl_b32", g.sROT, g.sIDX, 1); e.salu("s_add_u32", g.sROT, g.sROT, g.sHH)
    elif cfg.rot == 1:
        e.salu("s_lshl_b32", g.sROT, g.sIDX, 1); e.salu("s_add_u32", g.sROT, g.sROT, g.sHH); e.salu("s_lshl_b32", g.sROT, g.sROT, 1)
        e.salu("s_lshr_b32", sT, g.sIDX, 3); e.salu("s_and_b32", sT, sT, 1); e.salu("s_add_u32", g.sROT, g.sROT, sT)
    elif cfg.rot == 2:
        e.salu("s_lshl_b32", g.sROT, S(2), 1); e.salu("s_add_u32", g.sROT, g.sROT, g.sHH)
        e.salu("s_mul_i32", g.sROT, g.sROT, "0x9e3779b1"); e.salu("s_lshr_b32", g.sROT, g.sROT, 27)
    elif cfg.rot == 3:
        e.salu("s_lshl_b32", g.sROT, g.sHH, 4); e.salu("s_add_u32", g.sROT, g.sROT, g.sIDX)
    elif cfg.rot == 4:
        e.salu("s_lshl_b32", g.sROT, g.sB, 2); e.salu("s_add_u32", g.sROT, g.sROT, g.sHG)
    elif cfg.rot == 5:
        e.salu("s_mov_b32", g.sROT, 0)
    e.salu("s_and_b32", g.sROT, g.sROT, 31)
    e.salu("s_lshl_b32", g.sROT, g.sROT, 13)
    def kv_reset():
        e.salu("s_lshl_b32", sT, g.sQH, 13); e.salu("s_add_u32", g.sKP, g.sROT, sT); e.salu("s_and_b32", g.sKP, g.sKP, "0x3ffff")
        e.salu("s_lshl_b32", g.sLS, g.sQH, 15); e.salu("s_lshl_b32", sT, g.sHH, 14); e.salu("s_add_u32", g.sLS, g.sLS, sT)
    kv_reset()
    e.salu("s_mov_b32", g.sRETRY, 0)
    e.salu("s_mov_b32", g.sSC, hex(f2u(QSCALE)))
    e.valu("v_and_b32", vT0, 15, vL); e.valu("v_lshrrev_b32", vT1, 4, vL)
    e.valu("v_xor_b32", vT2, vT0, vT1)
    e.valu("v_lshlrev_b32", vT2, 4, vT2); e.valu("v_lshl_add_u32", oK[0], vT1, 8, vT2)
    for n in range(1, 4): e.valu("v_xor_b32", oK[n], n << 6, oK[0])
    e.valu("v_lshlrev_b32", vT2, 1, vT1); e.valu("v_xor_b32", vT2, vT0, vT2)
    e.valu("v_lshlrev_b32", vT2, 4, vT2); e.valu("v_lshl_add_u32", oV[0], vT1, 8, vT2)
    e.valu("v_xor_b32", oV[1], 128, oV[0])
    e.valu("v_lshlrev_b32", vT2, 2, vT1); e.valu("v_xor_b32", vT2, vT0, vT2)
    e.valu("v_lshlrev_b32", vT2, 4, vT2); e.valu("v_lshl_add_u32", oWo[0], vT1, 10, vT2)
    for i in range(1, 4): e.valu("v_add_u32", oWo[i], i * 3072, oWo[0])
    e.salu("s_lshl_b32", sT1, g.sHH, 14)
    def kv_addr_init():
        e.valu("v_and_b32", vT0, 15, vL); e.valu("v_lshrrev_b32", vT1, 4, vL)
        e.salu("s_lshl_b32", sT1, g.sHH, 14); e.salu("s_add_u32", sT2, sT1, 8192)
        e.valu("v_xor_b32", vT2, vT0, vT1); e.valu("v_lshlrev_b32", vT2, 4, vT2)
        e.valu("v_lshl_add_u32", vT2, vT0, 8, vT2); e.valu("v_add_u32", KA[0], sT1, vT2)
        for kk in range(1, 4): e.valu("v_xor_b32", KA[kk], kk << 6, KA[0])
        e.valu("v_lshlrev_b32", vT2, 4, vT1); e.valu("v_add_u32", KBA, sT1, vT2)
        e.valu("v_lshrrev_b32", vT0, 2, vL)
        e.valu("v_and_b32", vT2, 7, vT0); e.valu("v_lshlrev_b32", vT2, 5, vT2)
        e.valu("v_lshl_add_u32", vT2, vT0, 8, vT2)
        e.valu("v_and_b32", vT0, 3, vL); e.valu("v_lshl_add_u32", vT2, vT0, 3, vT2)
        e.valu("v_add_u32", VA[0], sT2, vT2)
        for D in range(1, 8): e.valu("v_xor_b32", VA[D], D << 5, VA[0])
    kv_addr_init()
    e.valu("v_and_b32", vT0, 15, vL)
    e.valu("v_lshrrev_b32", vT2, 1, vT0); e.valu("v_xor_b32", vT2, vT2, vT1); e.valu("v_lshlrev_b32", vT2, 4, vT2)
    e.valu("v_lshl_add_u32", vT2, vT0, 7, vT2); e.valu("v_add_u32", XA[0], XS0, vT2); e.valu("v_xor_b32", XA[1], 64, XA[0])
    e.valu("v_lshlrev_b32", vST, 11, vT0); e.valu("v_lshl_add_u32", vST, vT1, 4, vST)
    e.valu("v_lshrrev_b32", vT0, 2, vL); e.valu("v_and_b32", vT0, 3, vT0)
    e.valu("v_lshl_add_u32", vT2, vT1, 3, vT0); e.valu("v_lshlrev_b32", vT2, 7, vT2)
    e.valu("v_lshrrev_b32", WA[1], 1, vT0); e.valu("v_lshl_add_u32", vT2, WA[1], 6, vT2)
    e.valu("v_and_b32", WA[1], 3, vL); e.valu("v_lshl_add_u32", vT2, WA[1], 4, vT2)
    e.valu("v_add_u32", WA[0], g.sWL, vT2); e.valu("v_xor_b32", WA[1], 64, WA[0])
    e.valu("v_xor_b32", vT0, sW, vT0); e.valu("v_lshlrev_b32", vT0, 6, vT0)
    e.valu("v_and_b32", vT2, 3, vL); e.valu("v_lshl_add_u32", vT0, vT2, 4, vT0)
    e.valu("v_lshrrev_b32", vT2, 2, vL); e.valu("v_lshl_add_u32", GWA[1], vT2, 8, vT0)
    e.valu("v_add_u32", GWA[0], 131072, GWA[1])
    e.valu("v_add_u32", GOA, OSL, vL16)
    e.salu("s_mul_i32", sT1, g.sHH, 36864)
    e.salu("s_lshl_b32", sT2, g.sQH, 11); e.salu("s_add_u32", sT2, sT2, sT1); e.salu("s_add_u32", sT2, sT2, LQ)
    e.valu("v_add_u32", QW, sT2, vL16)
    e.salu("s_mul_i32", sT2, g.sQH, 20480); e.salu("s_add_u32", sT2, sT2, sT1); e.salu("s_add_u32", sT2, sT2, LQ)
    e.valu("v_add_u32", QA, sT2, vL16)
    e.salu("s_mul_i32", sT2, g.sQH, 10240); e.salu("s_add_u32", sT2, sT2, sT1); e.salu("s_add_u32", sT2, sT2, OSL)
    e.valu("v_add_u32", GOW, sT2, vL16)
    e.salu("s_lshl_b32", sT2, sW, 2); e.salu("s_add_u32", sT2, sT2, LFLAG)
    e.valu("v_mov_b32", vFLG, sT2)

    def wwarm_items(allw=False):
        if allw:
            return [lambda: e.salu("s_lshl_b32", sT, g.sB, 2), lambda: e.salu("s_add_u32", sT, sT, sW),
                    lambda: e.salu("s_lshl_b32", sT, sT, 15), lambda: e.salu("s_add_u32", sT, sT, g.sWB),
                    lambda: e.valu("v_lshrrev_b32", vT0, 1, vL), lambda: e.valu("v_lshlrev_b32", vT0, 10, vT0),
                    lambda: e.valu("v_and_b32", vT1, 1, vL), lambda: e.valu("v_lshl_add_u32", vT0, vT1, 7, vT0),
                    lambda: e.bload("buffer_load_dword", V(95), vT0, sWO, sT, pol=cfg.wwarm_pol, tag="ww")]
        its = [lambda: e.salu("s_lshl_b32", sT, g.sB, 1), lambda: e.salu("s_add_u32", sT, sT, g.sHH),
               lambda: e.salu("s_lshl_b32", sT, sT, 16), lambda: e.salu("s_add_u32", sT, sT, g.sWB)]
        if cfg.wwarm_full:
            for n in range(16):
                if n and n % 4 == 0: its.append(lambda: e.salu("s_add_u32", sT, sT, 16384))
                its.append(lambda n=n: e.bload("buffer_load_dwordx4", A(4 * n, 4), oWo[n & 3], sWO, sT, off=(n & 3) * 1024, pol=cfg.wwarm_pol))
        else:
            its += [lambda: e.valu("v_lshlrev_b32", vT0, 10, vL),
                    lambda: e.bload("buffer_load_dword", vT1, vT0, sWO, sT, pol=cfg.wwarm_pol),
                    lambda: e.bload("buffer_load_dword", vT2, vT0, sWO, sT, off=128, pol=cfg.wwarm_pol)]
        return its
    def window():
        if len(e.vm_q) > cfg.win - cfg.wing:
            n = cfg.win - cfg.wing
            e._wait(vm=n); e.vm_q = e.vm_q[len(e.vm_q) - n:]
    def kv_items(tag, adv=1, paced=False):
        its = []
        for srd_, voff, base in ((sK, oK, 0), (sV, oV, 8192)):
            for n in range(8):
                if n % 4 == 0:
                    its.append(lambda n=n, base=base: e.salu("s_add_u32", "m0", g.sLS, base + n * 1024))
                    if n == 0: its.append(lambda: e.salu("s_add_u32", g.sKO, g.sKVB, g.sKP))
                    else: its.append(lambda: e.salu("s_add_u32", g.sKO, g.sKO, 4096))
                if paced and cfg.win and n % cfg.wing == 0: its.append(window)
                its.append(lambda n=n, srd_=srd_, voff=voff: e.dma(voff[n % len(voff)], srd_, g.sKO, off=(n & 3) * 1024, pol=cfg.kv_pol, tag=tag))
        its.append(lambda: e.salu("s_add_u32", g.sKP, g.sKP, 8192))
        its.append(lambda: e.salu("s_and_b32", g.sKP, g.sKP, "0x3ffff"))
        if adv:
            its.append(lambda: e.salu("s_add_u32", g.sLS, g.sLS, 32768))
            its.append(lambda: e.salu("s_and_b32", g.sLS, g.sLS, "0x1ffff"))
        return its
    def k_reads(step):
        return [lambda kk=kk, kt=kt: e.ds_read("ds_read_b128", Kf[kt][kk], KA[kk], (step & 1) * 32768 + kt * 4096, tag="kf")
                for kk in range(4) for kt in range(2)]
    def v_reads(step):
        return [lambda D=D, hi=hi: e.ds_read("ds_read_b64_tr_b16", Vf[D][2 * hi:2 * hi + 2], VA[D], (step & 1) * 32768 + hi * 4096, tag="vf")
                for D in range(8) for hi in range(2)]
    def w_reads(st):
        return [lambda D=D, hi=hi: e.ds_read("ds_read_b64_tr_b16", WF(st & 1, D)[2 * hi:2 * hi + 2], WA[D >> 1],
                                            (st % 3) * 16384 + hi * 512 + (D & 1) * 8, tag="qf") for D in range(4) for hi in range(2)]
    def x_reads(D):
        return [lambda qt=qt, kh=kh: e.ds_read("ds_read_b128", XF((2 * D + kh) % 3, qt), XA[kh], (D & 1) * 18432 + qt * 2048, tag="qf")
                for kh in range(2) for qt in range(9)]
    def run_stage(mfs, rd, fill):
        nf, n, done = len(fill), len(mfs), 0
        for i, m in enumerate(mfs):
            m()
            if rd: rd.popleft()()
            while fill and done * n <= i * nf:
                fill.popleft()(); done += 1
        while rd: rd.popleft()()
        while fill: fill.popleft()()

    if cfg.wwarm_q == -1:
        for f in wwarm_items(True): f()
    e.wait_vm("p0"); e.barrier()
    stamp(1)
    for f in w_reads(0) + x_reads(0): f()
    kvq = deque(kv_items("kv01"))
    for st in range(16):
        e.comment(f"q-proj stage {st}")
        e.wait_vm({0: "p1", 1: "p2"}.get(st, ("iss", st - 2)))
        e.wait_all_lds(); e.barrier()
        fill = deque()
        if st // 2 + 2 < 8: fill.extend(x_items(st // 2 + 2, st & 1, ("iss", st)))
        if st + 3 < 16: fill.extend(w_items(st + 3, ("iss", st)))
        if st == cfg.wwarm_q: fill.extend(wwarm_items(True))
        if st >= cfg.kv0_stage:
            for _ in range(12 if st == cfg.kv0_stage else 16):
                if kvq: fill.append(kvq.popleft())
        rd = deque()
        if st + 1 < 16: rd.extend(w_reads(st + 1))
        if st & 1 and st + 1 < 16: rd.extend(x_reads((st + 1) // 2))
        mfs = [lambda qt=qt, D=D: e.mfma16(QACC(D, qt), WF(st & 1, D), XF(st % 3, qt), QACC(D, qt) if st else 0)
               for qt in range(9) for D in range(4)]
        run_stage(mfs, rd, fill)
    while kvq: kvq.popleft()()
    stamp(2)
    for qt in range(9):
        for P in range(2):
            src = V(112 + (qt * 4 + 2 * P) * 4, 8)
            for i in range(8): e.valu("v_mul_f32", src[i], g.sSC, src[i])
            for i in range(4): e.valu("v_cvt_pk_bf16_f32", src[i], src[2 * i], src[2 * i + 1])
            e.ds_write("ds_write_b128", QW, src[0:4], (qt * 4 + P) * 1024)
    e.valu("v_mov_b32", vT0, "0x3f803f80")
    for i in range(4): e.valu("v_accvgpr_write_b32", ONES[i], vT0)
    e.salu("s_cmp_lg_u32", None, g.sQH, 0)
    e.branch("s_cbranch_scc1", "L_r1")
    hist0 = list(e.hist)

    for role in (0, 1):
        NTW = 5 - role
        R = f"r{role}"
        e.hist = list(hist0)
        if role: e.label("L_r1")
        e.lds_q = ["x"]; e.vm_q = [("kv", 1)] * 16 if role else ["x"]
        if not role: e.wait_all_vm()
        e.wait_all_lds(); e.barrier()
        for kk in range(4): e.ds_read("ds_read_b128", Kb[kk], KBA, kk * 64, tag="kb")
        for t in range(NTW):
            for kk in range(4): e.ds_read("ds_read_b128", Qf(t, kk), QA, (t * 4 + kk) * 1024, tag=("q", min(t, 2)))
        e.salu("s_mov_b32", sT1, "0x80008000")
        e.wait_lds("kb")
        for kk in range(4):
            for i in range(4): e.valu("v_xor_b32", Kb[kk][i], sT1, Kb[kk][i])
        e.wait_all_lds(); e.barrier()
        rd = deque(k_reads(0) + v_reads(0))
        fill = deque()
        if role:
            for s_ in range(2, cfg.la): fill.extend(kv_items(("kv", s_)))
        run_stage([lambda t=t, kk=kk: e.mfma16(NM[t], Kb[kk], Qf(t, kk), NM[t] if kk else 0) for t in range(NTW) for kk in range(4)], rd, fill)
        e.wait_all_lds()
        stamp(3)
        e.flush_hazards(8)
        e.label(f"L_main_{R}")
        e.lds_q = []; e.vm_q = [("kv", s) for s in range(1, cfg.la) for _ in range(16)] if role else []
        NT = 32 * NTW
        extras = deque(); toggles = deque()
        def wo_pre(st, lds):
            its = [lambda: e.salu("s_lshl_b32", sT, g.sHP, 2), lambda: e.salu("s_add_u32", sT, sT, g.sHH),
                   lambda: e.salu("s_add_u32", sT, sT, st), lambda: e.salu("s_lshl_b32", sT, sT, 16),
                   lambda: e.salu("s_add_u32", g.sKO, g.sWB, sT), lambda: e.salu("s_lshl_b32", sT, g.sHH, 14)]
            for n in range(16):
                if n % 4 == 0:
                    its.append(lambda n=n: e.salu("s_add_u32", "m0", sT, lds + n * 1024))
                    if n: its.append(lambda: e.salu("s_add_u32", g.sKO, g.sKO, 16384))
                its.append(lambda n=n: e.dma(oWo[n & 3], sWO, g.sKO, off=(n & 3) * 1024, pol=cfg.wo_pol, tag="wo"))
            return its
        def slot(j):
            e.comment(f"slot t={j % NTW}")
            mf = []
            jq, jp = j + 1, j - 1
            if jq < NT:
                t = jq % NTW
                for kk in range(4):
                    for kt in range(2):
                        def m(kk=kk, kt=kt):
                            d = Sb[jq % 2][4 * kt:4 * kt + 4]
                            e.mfma16(d, Kf[kt][kk], Qf(t, kk), d if kk else NM[t])
                        mf.append(m)
            else:
                mf += [None] * 8
            if jp >= 0:
                s2, t2 = divmod(jp, NTW)
                for D in range(8):
                    mf.append(lambda D=D: e.mfma16(Oacc(t2, D), Vf[D], Pb[jp % 2], Oacc(t2, D) if s2 else 0))
                mf.append(lambda: e.mfma16(Lb[t2], ONES, Pb[jp % 2], Lb[t2] if s2 else 0))
            else:
                mf += [None] * 9
            sm = 0 <= j < NT
            Sx, Px = Sb[j % 2], Pb[j % 2]
            E = lambda i: (lambda: e.valu("v_exp_f32", Sx[i], Sx[i])) if sm else None
            C = lambda i: (lambda: e.valu("v_cvt_pk_bf16_f32", Px[i], Sx[2 * i], Sx[2 * i + 1])) if sm else None
            gaps = [([E(0)], 0), ([], 2), ([E(1)], 0), ([C(0)], 1), ([E(2)], 0), ([], 2), ([E(3)], 0), ([C(1)], 1),
                    ([E(4)], 0), ([], 2), ([E(5)], 0), ([C(2)], 1), ([E(6)], 0), ([], 2), ([E(7)], 0), ([C(3)], 1), ([], 2)]
            kre = deque(); vre = deque()
            lastq = jq < NT and jq % NTW == NTW - 1
            if lastq and jq // NTW + 1 < 32: kre = deque(k_reads(jq // NTW + 1))
            if jp >= 0 and jp % NTW == NTW - 1 and jp // NTW + 1 < 32: vre = deque(v_reads(jp // NTW + 1))
            def flush_reads():
                while rds: rds.popleft()()
            for i in range(17):
                if i == 0 and lastq:
                    s = jq // NTW
                    if role:
                        while extras: extras.popleft()()
                        if s + 1 < 32: e.wait_vm(("kv", s + 1))
                    e.barrier()
                    if not role and s == cfg.wwarm: extras.extend(wwarm_items())
                    if cfg.local and s == 27:
                        extras.extend([lambda: e.valu("v_mov_b32", vT2, 0),
                                       lambda: e.bload("buffer_load_dword", V(95), vT2, sDBG, g.sFL1, pol="sc1", tag="xw")])
                    if role:
                        if s + cfg.la < 32: extras.extend(kv_items(("kv", s + cfg.la), paced=True))
                        elif s + cfg.la == 32: extras.extend(wo_pre(0, 131072))
                        elif s + cfg.la == 33: extras.extend(wo_pre(2, 0))
                if i == 0 and jq < NT and jq % NTW == 0 and jq > 0:
                    flush_reads(); e.wait_lds("kf")
                    if (jq // NTW) % 2 == 1:
                        rds.extend([lambda r=r: e.valu("v_xor_b32", r, "0x10000", r) for r in KA])
                if i == 8 and jp > 0 and jp % NTW == 0:
                    flush_reads(); e.wait_lds("vf")
                    if (jp // NTW) % 2 == 1:
                        rds.extend([lambda r=r: e.valu("v_xor_b32", r, "0x10000", r) for r in VA])
                if mf[i]: mf[i]()
                if i < 8 and kre: rds.append(kre.popleft())
                if 8 <= i < 16 and vre:
                    rds.append(vre.popleft()); rds.append(vre.popleft())
                base, cap = gaps[i]
                for f in base:
                    if f: f()
                if len(rds) > 5: cap += 1
                for _ in range(cap):
                    if rds: rds.popleft()()
                    elif extras: extras.popleft()()
        rds = deque()
        H0 = 2 * NTW + 2; NIT = 12
        for j in range(-1, H0): slot(j)
        e.salu("s_mov_b32", g.sCNT, NIT)
        bodies = []; save = e.lines
        for it in range(NIT):
            e.lines = []
            for j in range(H0 + 2 * NTW * it, H0 + 2 * NTW * (it + 1)): slot(j)
            bodies.append(e.lines)
        for it in range(1, NIT): assert bodies[it] == bodies[0], f"loop body {it} differs"
        e.lines = save
        e.label(f"L_loop_{R}")
        e.lines += bodies[0]
        e.salu("s_sub_u32", g.sCNT, g.sCNT, 1)
        e.salu("s_cmp_lg_u32", None, g.sCNT, 0)
        e.branch("s_cbranch_scc1", f"L_loop_{R}")
        for j in range(H0 + 2 * NTW * NIT, NT + 1): slot(j)
        while rds: rds.popleft()()
        while extras: extras.popleft()()
        if not role: e.wait_all_vm()
        stamp(4)
        LV = [V(32 + 2 * t, 2) for t in range(5)]
        e.salu("s_mov_b32", sT1, hex(f2u(0.25 if cfg.force_fallback else cfg.lthresh)))
        e.salu("s_mov_b64", sM0, 0)
        for t in range(NTW): e.valu("v_accvgpr_read_b32", LV[t][0], Lb[t][0])
        for t in range(NTW):
            e.vcmp("v_cmp_nge_f32", sM1, sT1, LV[t][0])
            e.salu("s_or_b64", sM0, sM0, sM1)
        for t in range(NTW): e.valu("v_rcp_f32", LV[t][0], LV[t][0])
        e.salu("s_or_b32", sT, sM0[0], sM0[1])
        e.valu("v_mov_b32", vT0, sT)
        e.ds_write("ds_write_b32", vFLG, vT0)
        for t in range(NTW): e.valu("v_mov_b32", LV[t][1], LV[t][0])
        def o_epi(pol):
            for t in range(NTW):
                for blk in range(4):
                    o = V(96 + (t * 8 + 2 * blk) * 4, 8)
                    for i in range(4): e.valu("v_pk_mul_f32", o[2 * i:2 * i + 2], o[2 * i:2 * i + 2], LV[t])
                    for i in range(4): e.valu("v_cvt_pk_bf16_f32", o[i], o[2 * i], o[2 * i + 1])
                    off = (blk >> 1) * 18432 + (t * 2 + (blk & 1)) * 1024
                    e.ds_write("ds_write_b128", GOW, o[0:4], off)
                    e.salu("s_add_u32", sT1, g.sOB, off)
                    e.bstore("buffer_store_dwordx4", o[0:4], vL16, sWS, sT1, pol=pol, tag="ost")
        if cfg.local:
            e.wait_vm("xw")
            e.readfirstlane(sT, V(95))
            e.salu("s_lshr_b32", sT, sT, 16)
            if cfg.force_remote: e.salu("s_mov_b32", sT, 0)
            e.salu("s_cmp_eq_u32", None, sT, sXE)
            e.branch("s_cbranch_scc1", f"L_eloc_{R}")
            st_ = (list(e.hist), list(e.lds_q), list(e.vm_q))
            o_epi(cfg.ost_pol)
            e.branch("s_branch", f"L_ejoin_{R}")
            e.hist, e.lds_q, e.vm_q = st_
            e.label(f"L_eloc_{R}")
            o_epi(cfg.loc_pol)
            e.label(f"L_ejoin_{R}")
        else:
            o_epi(cfg.ost_pol)
        if role: e.wait_vm("wo")
        e.wait_all_lds(); e.barrier()
        e.valu("v_mov_b32", vT1, LFLAG)
        e.ds_read("ds_read_b128", V(32, 4), vT1)
        e.wait_all_lds()
        e.valu("v_or_b32", V(32), V(32), V(33)); e.valu("v_or3_b32", V(32), V(32), V(34), V(35))
        e.readfirstlane(sT, V(32))
        e.salu("s_cmp_eq_u32", None, sT, 0)
        e.branch("s_cbranch_scc1", "L_gemm")
        e.salu("s_cmp_lg_u32", None, g.sRETRY, 0)
        e.branch("s_cbranch_scc1", "L_gemm")
        e.salu("s_mov_b32", g.sRETRY, 1)
        e.wait_all()
        kv_addr_init()
        MX = [V(48 + t) for t in range(5)]
        for t in range(NTW): e.valu("v_mov_b32", MX[t], "0xff800000")
        e.salu("s_mov_b32", g.sCNT, 32)
        e.salu("s_mov_b32", g.sKP, 0); e.salu("s_lshl_b32", g.sLS, g.sHH, 14)
        e.label(f"L_max_{R}")
        e.barrier()
        if role:
            for f in kv_items("m", adv=0): f()
            e.wait_all_vm()
        e.barrier()
        for f in k_reads(0): f()
        e.wait_all_lds()
        for t in range(NTW):
            for kk in range(4):
                for kt in range(2):
                    d = Sb[0][4 * kt:4 * kt + 4]
                    e.mfma16(d, Kf[kt][kk], Qf(t, kk), d if kk else 0)
            for i in range(4): e.valu("v_max3_f32", MX[t], Sb[0][2 * i], Sb[0][2 * i + 1], MX[t])
        e.salu("s_sub_u32", g.sCNT, g.sCNT, 1)
        e.salu("s_cmp_lg_u32", None, g.sCNT, 0)
        e.branch("s_cbranch_scc1", f"L_max_{R}")
        for t in range(NTW):
            for op in ("v_permlane32_swap_b32", "v_permlane16_swap_b32"):
                e.valu("v_mov_b32", vT0, MX[t])
                e.perm(op, vT0, MX[t])
                e.valu("v_max_f32", MX[t], vT0, MX[t])
            for i in range(4): e.valu("v_sub_f32", NM[t][i], 0, MX[t])
        e.barrier()
        kv_reset()
        for f in kv_items("m"): f()
        if role:
            for s_ in range(2, cfg.la):
                for f in kv_items("m"): f()
        e.wait_all_vm(); e.barrier()
        for f in k_reads(0) + v_reads(0): f()
        e.wait_all_lds()
        e.flush_hazards(8)
        e.branch("s_branch", f"L_main_{R}")

    e.label("L_gemm")
    e.hist = []; e.lds_q = []; e.vm_q = ["ost"]
    stamp(5)
    WSL = [(0, 0), (0, 16384), (1, 0), (1, 16384)]
    def ga_reads(st):
        r, off = WSL[st % 4]
        return [lambda kb=kb, ee=ee, hi=hi: e.ds_read("ds_read_b64_tr_b16", GA(st & 1, kb * 2 + ee)[2 * hi:2 * hi + 2], GWA[r],
                                                     off + kb * 8192 + hi * 4096 + ee * 8, tag="g") for kb in range(2) for ee in range(2) for hi in range(2)]
    def gb_reads(st):
        return [lambda i=i: e.ds_read("ds_read_b128", GB(st & 1, i), GOA if st % 4 < 3 else GOW, (st % 4 % 3) * 18432 + i * 1024, tag="g")
                for i in range(18)]
    e.valu("v_add_u32", GOW, 3 * 18432, GOA)
    for f in ga_reads(0) + gb_reads(0): f()
    e.salu("s_lshl_b32", g.sWKP, g.sHP, 2); e.salu("s_add_u32", g.sWKP, g.sWKP, 4); e.salu("s_and_b32", g.sWKP, g.sWKP, 15)
    e.salu("s_mov_b32", g.sKP, g.sWKP)
    e.salu("s_lshl_b32", sT, sW, 14); e.salu("s_add_u32", g.sWB, g.sWB, sT)
    def gw_items(st, tag):
        r, off = WSL[st % 4]
        its = [lambda: e.salu("s_lshl_b32", sT, g.sWKP, 16), lambda: e.salu("s_add_u32", g.sKO, g.sWB, sT),
               lambda: e.salu("s_add_u32", "m0", g.sWLG, off + (131072 if r == 0 else 0))]
        for i in range(4): its.append(lambda i=i: e.dma(oWo[i], sWO, g.sKO, off=i * 1024, pol=cfg.wo_pol, tag=tag))
        its.append(lambda: e.salu("s_add_u32", g.sWKP, g.sWKP, 1)); its.append(lambda: e.salu("s_and_b32", g.sWKP, g.sWKP, 15))
        return its
    def go_items(st, tag):
        its = [lambda: e.salu("s_mul_i32", sT2, g.sKP, 18432), lambda: e.salu("s_add_u32", sT2, sT2, g.sOKP),
               lambda: e.salu("s_add_u32", "m0", g.sOL, (st % 4) * 18432)]
        for i in range(4): its.append(lambda i=i: e.dma(vL16, sWS, sT2, off=i * 1024, pol=cfg.old_pol, tag=tag))
        its.append(lambda: e.salu("s_add_u32", "m0", g.sOL, (st % 4) * 18432 + 4096))
        its.append(lambda: e.salu("s_add_u32", sT2, sT2, 4096))
        its.append(lambda: e.dma(vL16, sWS, sT2, pol=cfg.old_pol, tag=tag))
        its.append(lambda: e.salu("s_add_u32", g.sKP, g.sKP, 1)); its.append(lambda: e.salu("s_and_b32", g.sKP, g.sKP, 15))
        return its
    def signal(flag, val, lab):
        e.salu("s_cmp_lg_u32", None, sW, 0)
        e.branch("s_cbranch_scc1", lab)
        e.valu("v_mov_b32", vT0, val); e.valu("v_mov_b32", vT1, 0)
        e.salu("s_mov_b64", "exec", 1)
        e.ins(f"buffer_atomic_add {vT0}, {vT1}, {sDBG}, {flag} offen sc1", 'vmem', [vT0, vT1, sDBG, flag], [])
        e.salu("s_mov_b64", "exec", -1)
        e.label(lab)
    def poll(flag, shift, lab):
        e.valu("v_mov_b32", vT1, 0)
        e.salu("s_mov_b32", g.sSP, 1 << 20)
        e.label(lab)
        e.bload("buffer_load_dword", vT0, vT1, sDBG, flag, pol="sc1")
        e.wait_all_vm()
        e.readfirstlane(sT, vT0)
        e.salu("s_bfe_u32", sT, sT, hex(shift | (8 << 16)))
        e.salu("s_cmp_ge_u32", None, sT, 4)
        e.branch("s_cbranch_scc1", lab + "x")
        e.other(f"s_sleep {cfg.poll_sleep}")
        e.salu("s_sub_u32", g.sSP, g.sSP, 1)
        e.salu("s_cmp_lg_u32", None, g.sSP, 0)
        e.branch("s_cbranch_scc1", lab)
        e.label(lab + "x")
    PS = cfg.poll_stage
    for st in range(16):
        e.comment(f"o-proj stage {st}")
        if st == cfg.sig_stage: e.wait_all_vm()
        if st == PS:
            poll(g.sFL1, 0, "L_poll1")
            stamp(7)
        late = st == 3 and PS == 3
        if st + 1 < 16 and not late:
            e.wait_vm(("w", st + 1)); e.wait_vm(("o", st + 1))
        e.wait_all_lds(); e.barrier()
        if st == cfg.sig_stage:
            signal(g.sFL1, 1, "L_sig1"); stamp(6)
        if st in (4, 8, 12): stamp({4: 12, 8: 13, 12: 14}[st])
        if st == cfg.wbl2:
            e.salu("s_cmp_lg_u32", None, sW, 1)
            e.branch("s_cbranch_scc1", "L_wb")
            e.other("buffer_wbl2 sc1")
            e.label("L_wb")
        fill = deque()
        if st == PS:
            for s2 in range(4, st + 4): fill.extend(go_items(s2, ("o", s2)))
        if st >= PS and st + 4 < 16: fill.extend(go_items(st + 4, ("o", st + 4)))
        if st + 4 < 16: fill.extend(gw_items(st + 4, ("w", st + 4)))
        rd = deque(ga_reads(st + 1) + gb_reads(st + 1)) if st + 1 < 16 and not late else deque()
        mfs = [lambda qt=qt, kb=kb, ee=ee: e.mfma16(GC(qt, ee), GA(st & 1, kb * 2 + ee), GB(st & 1, qt * 2 + kb), GC(qt, ee) if (st or kb) else 0)
               for kb in range(2) for qt in range(9) for ee in range(2)]
        run_stage(mfs, rd, fill)
        if late:
            e.wait_vm(("w", 4)); e.wait_vm(("o", 4)); e.barrier()
            for f in ga_reads(4) + gb_reads(4): f()
    stamp(8)
    e.salu("s_cmp_eq_u32", None, sW, g.sHG)
    e.branch("s_cbranch_scc1", "L_fin")
    h1 = list(e.hist)
    e.salu("s_lshl_b32", sT, sW, 2); e.salu("s_add_u32", sT, sT, g.sHG); e.salu("s_mul_i32", sT, sT, 9216); e.salu("s_add_u32", sT2, sT, g.sPB)
    for qt in range(9):
        o = V(96 + qt * 8, 8)
        for i in range(4): e.valu("v_cvt_pk_bf16_f32", o[i], o[2 * i], o[2 * i + 1])
        if qt and qt % 4 == 0: e.salu("s_add_u32", sT2, sT2, 4096)
        e.bstore("buffer_store_dwordx4", o[0:4], vL16, sWS, sT2, off=(qt % 4) * 1024, pol="sc1")
    e.wait_all_vm(); e.barrier()
    stamp(9)
    stamp_flush()
    e.other("s_endpgm")
    e.label("L_fin")
    e.hist = h1
    e.barrier()
    e.valu("v_mov_b32", vT0, "0x100"); e.valu("v_mov_b32", vT1, 0)
    e.salu("s_mov_b64", "exec", 1)
    e.ins(f"buffer_atomic_add {vT0}, {vT1}, {sDBG}, {g.sFL2} offen sc1", 'vmem', [vT0, vT1, sDBG, g.sFL2], [])
    e.salu("s_mov_b64", "exec", -1)
    stamp(9)
    poll(g.sFL2, 8, "L_poll2")
    stamp(10)
    e.vm_q = []
    PB = lambda s, qt: (V(168 + (s * 9 + qt) * 4, 4) if s < 2 else V(32 + qt * 4, 4))
    for s in range(3):
        e.salu("s_add_u32", sT, g.sHG, s + 1); e.salu("s_and_b32", sT, sT, 3)
        e.salu("s_lshl_b32", sT1, sW, 2); e.salu("s_add_u32", sT, sT, sT1); e.salu("s_mul_i32", sT, sT, 9216); e.salu("s_add_u32", sT2, sT, g.sPB)
        for qt in range(9):
            if qt and qt % 4 == 0: e.salu("s_add_u32", sT2, sT2, 4096)
            e.bload("buffer_load_dwordx4", PB(s, qt), vL16, sWS, sT2, off=(qt % 4) * 1024, pol="sc1", tag=(s, qt))
    e.salu("s_mul_i32", sT2, g.sB, 144 * 2048); e.salu("s_lshl_b32", sT, g.sBR, 10); e.salu("s_add_u32", sT2, sT2, sT)
    e.salu("s_lshl_b32", sT, g.sHP, 8); e.salu("s_add_u32", sT2, sT2, sT); e.salu("s_lshl_b32", sT, sW, 6); e.salu("s_add_u32", sT2, sT2, sT)
    e.salu("s_mov_b32", sT1, "0xffff0000")
    for s in range(3):
        for qt in range(9):
            o = V(96 + qt * 8, 8); p = PB(s, qt)
            e.wait_vm((s, qt))
            for i in range(4):
                e.valu("v_lshlrev_b32", vT0, 16, p[i]); e.valu("v_and_b32", vT1, sT1, p[i])
                e.valu("v_add_f32", o[2 * i], o[2 * i], vT0); e.valu("v_add_f32", o[2 * i + 1], o[2 * i + 1], vT1)
    for qt in range(9):
        o = V(96 + qt * 8, 8)
        for i in range(4): e.valu("v_cvt_pk_bf16_f32", o[i], o[2 * i], o[2 * i + 1])
        e.bstore("buffer_store_dwordx4", o[0:4], vST, sOUT, sT2)
        if qt < 8: e.salu("s_add_u32", sT2, sT2, 32768)
    stamp(11)
    stamp_flush()
    e.label("L_done")
    e.other("s_endpgm")

def generate(cfg, fn):
    e = Em()
    e.raw('.amdgcn_target "amdgcn-amd-amdhsa--gfx950"'); e.raw(".text")
    gen(e, cfg, NAME + "_kernel")
    top = ("; attention block in one launch: q-projection, attention, output projection; generated by dev/gen2.py\n"
           "; @launch grid=(256,1,1) block=(256,1,1) lds=163840\n")
    tail = '.section .rodata,"a"\n' + descriptor(NAME + "_kernel", 512, 102, 256)
    open(fn, "w").write(top + e.text() + tail)
    return e

if __name__ == "__main__":
    cfg = Cfg()
    fn = sys.argv[1] if len(sys.argv) > 1 else "k.s"
    for kv in sys.argv[2:]:
        k, v = kv.split("=", 1)
        cur = getattr(cfg, k)
        setattr(cfg, k, type(cur)(int(v)) if isinstance(cur, (bool, int)) and not isinstance(cur, float) else (float(v) if isinstance(cur, float) else v))
    e = generate(cfg, fn)
    print(fn, "lines", len(e.lines), "nop states", e.nops)
```

```python
import sys, struct
from collections import deque
from asmlib import *

NAME = "concat_heads__mha_block_cached__gqa_block_cached__near_ridge"
def f2u(x): return struct.unpack("<I", struct.pack("<f", x))[0]
QSCALE = 1.4426950408889634 / (128 ** 0.5)

class Cfg:
    kv_pol = "nt"
    xw_pol = "nt"
    wo_pol = ""
    lthresh = 2.0 ** 40
    force_fallback = False
    stamps = False
    poll_sleep = 2
    kv0_stage = 13
    sig_stage = 0
    poll_stage = 2
    rot = 2
    win = 12
    wing = 2
    wwarm = -1
    wwarm_pol = ""
    wwarm_full = 0
    ost_pol = "sc1"
    old_pol = "sc1"
    local = 0
    wbl2 = -1
    force_remote = 0
    loc_pol = ""
    probe = -2
    probe_wg = -1
    ws_off = 0
    wwarm_q = -1
    la = 3

OWS_BYTES = 16 * 64 * 18432
PWS_OFF = OWS_BYTES
PWS_BYTES = 64 * 16 * 9216
WS_USED = OWS_BYTES + PWS_BYTES
STAMP_OFF = 32 << 20
NSTAMP = 16

def descriptor(label, vgpr, sgpr, accum):
    return f""".p2align 6
.amdhsa_kernel {label}
  .amdhsa_next_free_vgpr {vgpr}
  .amdhsa_next_free_sgpr {sgpr}
  .amdhsa_accum_offset {accum}
  .amdhsa_group_segment_fixed_size 0
  .amdhsa_kernarg_size 104
  .amdhsa_user_sgpr_count 2
  .amdhsa_user_sgpr_kernarg_segment_ptr 1
  .amdhsa_system_sgpr_workgroup_id_x 1
.end_amdhsa_kernel
"""

def gen(e, cfg, label):
    e.raw(f".globl {label}"); e.raw(".p2align 8"); e.raw(f".type {label},@function"); e.label(label)
    sX, sWQ, sK, sV, sWS, sWO, sOUT, sDBG = (S(4 * i + 4, 4) for i in range(8))
    names = ("W XCD IDX T T1 T2 B HP HG HH QH BR KVB KP KO LS XS WS2 XL WL CNT RETRY SC ROT OB OKP WB WKP OL PB FL1 FL2 SP WLG").split()
    sXE = S(3)
    sr = {n: S(36 + i) for i, n in enumerate(names)}
    assert 36 + len(names) <= 70
    g = type("G", (), {"s" + n: r for n, r in sr.items()})
    sM0, sM1 = S(70, 2), S(72, 2)
    KARG = 76
    def kp(i): return S(KARG + 2 * i), S(KARG + 2 * i + 1)
    sW, sT, sT1, sT2 = g.sW, g.sT, g.sT1, g.sT2
    vL, vL16, vT0, vT1, vT2 = V(1), V(2), V(3), V(4), V(5)
    KA = [V(6 + i) for i in range(4)]; VA = [V(10 + i) for i in range(8)]
    oK = [V(18 + i) for i in range(4)]; oV = [V(22 + i) for i in range(2)]
    oWo = [V(24 + i) for i in range(4)]
    XA = [V(28), V(29)]; WA = [V(30), V(31)]
    Sb = [V(32 + i * 8, 8) for i in range(2)]
    Kb = [V(32 + kk * 4, 4) for kk in range(4)]
    Pb = [V(48 + i * 4, 4) for i in range(2)]
    NM = [V(56 + t * 4, 4) for t in range(5)]
    oX = [V(76 + i) for i in range(5)]; oWQ = [V(81 + i) for i in range(4)]
    KBA, QA, QW = V(85), V(86), V(87)
    GWA = [V(88), V(89)]; GOA, GOW, vST, vFLG = V(90), V(91), V(92), V(93)
    Oacc = lambda t, D: V(96 + (t * 8 + D) * 4, 4)
    QACC = lambda D, qt: V(112 + (qt * 4 + D) * 4, 4)
    XF = lambda buf, qt: A(buf * 36 + qt * 4, 4)
    WF = lambda buf, D: A(108 + buf * 16 + D * 4, 4)
    Qf = lambda t, kk: A(64 + (t * 4 + kk) * 4, 4)
    Lb = [A(144 + t * 4, 4) for t in range(5)]
    ONES = A(164, 4)
    Kf = [[A(176 + (kt * 4 + kk) * 4, 4) for kk in range(4)] for kt in range(2)]
    Vf = [A(208 + D * 4, 4) for D in range(8)]
    GB = lambda buf, i: A(buf * 72 + i * 4, 4)
    GA = lambda buf, i: A(144 + buf * 16 + i * 4, 4)
    GC = lambda qt, ee: V(96 + (qt * 2 + ee) * 4, 4)
    LQ = 65536; XS0, WS0 = LQ, LQ + 36864
    OSL = 32768; LFLAG = 131072 - 64
    stamp_reg = V(94)

    pl = [0]
    def stamp(i):
        if cfg.stamps:
            e.other("s_memrealtime s[74:75]"); e._wait(lg=0); e.lds_q = []
            e.ins(f"v_writelane_b32 {stamp_reg}, s74, {i}", 'valu', [], [stamp_reg])
    def stamp_flush():
        if not cfg.stamps: return
        e.wait_all_vm(); stamp(NSTAMP - 1)
        if cfg.probe >= 0:
            pl[0] += 1
            e.nop(2)
            e.ins(f"v_readlane_b32 {sT1}, {stamp_reg}, {cfg.probe}", 'readlane', [stamp_reg], [sT1])
            e.nop(4)
            e.salu("s_cmp_eq_u32", None, sT1, 0)
            e.branch("s_cbranch_scc1", f"L_pe{pl[0]}")
            if cfg.probe_wg >= 0:
                e.salu("s_and_b32", sT, S(2), 7)
                e.salu("s_cmp_lg_u32", None, sT, cfg.probe_wg)
                e.branch("s_cbranch_scc1", f"L_pe{pl[0]}")
            e.salu("s_add_u32", sT1, sT1, 12000)
            e.label(f"L_pr{pl[0]}")
            e.other("s_memrealtime s[74:75]"); e._wait(lg=0)
            e.salu("s_sub_u32", sT, S(74), sT1)
            e.salu("s_cmp_lt_i32", None, sT, 0)
            e.branch("s_cbranch_scc1", f"L_pr{pl[0]}")
            e.label(f"L_pe{pl[0]}")
            return
        e.salu("s_lshl_b32", sT, S(2), 2); e.salu("s_add_u32", sT, sT, sW); e.salu("s_lshl_b32", sT, sT, 8)
        e.salu("s_add_u32", sT, sT, STAMP_OFF)
        e.valu("v_lshlrev_b32", vT0, 2, vL)
        e.bstore("buffer_store_dword", stamp_reg, vT0, sWS, sT)

    e.salu("s_cmp_ge_u32", None, S(2), 256)
    e.branch("s_cbranch_scc1", "L_done")
    e.other(f"s_load_dwordx16 s[{KARG}:{KARG+15}], s[0:1], 0")
    e.other(f"s_load_dwordx8 s[{KARG+16}:{KARG+23}], s[0:1], 64")
    e.other(f"s_load_dwordx2 s[{KARG+24}:{KARG+25}], s[0:1], 96")
    e.valu("v_lshrrev_b32", vT0, 6, V(0))
    e.valu("v_and_b32", vL, 63, V(0))
    e.readfirstlane(sW, vT0)
    if cfg.stamps: e.valu("v_mov_b32", stamp_reg, 0)
    e.salu("s_and_b32", g.sXCD, S(2), 7)
    e.salu("s_lshr_b32", g.sIDX, S(2), 3)
    e.salu("s_lshr_b32", g.sB, g.sIDX, 2); e.salu("s_and_b32", g.sHP, g.sIDX, 3)
    e.salu("s_and_b32", g.sHG, g.sXCD, 3); e.salu("s_lshr_b32", g.sBR, g.sXCD, 2)
    e.salu("s_lshr_b32", g.sHH, sW, 1); e.salu("s_and_b32", g.sQH, sW, 1)
    e.valu("v_lshlrev_b32", vL16, 4, vL)
    e.valu("v_lshrrev_b32", vT1, 4, vL); e.valu("v_lshrrev_b32", vT0, 3, vL)
    e.salu("s_lshl_b32", sT, g.sHP, 1); e.salu("s_add_u32", sT, sT, g.sB); e.salu("s_and_b32", sT, sT, 7)
    e.salu("s_lshl_b32", g.sXS, sT, 7); e.salu("s_lshl_b32", g.sWS2, sT, 19)
    e.salu("s_mul_i32", sT, sW, 9); e.salu("s_lshr_b32", sT, sT, 1)
    e.salu("s_lshl_b32", g.sXL, sT, 10); e.salu("s_add_u32", g.sOL, g.sXL, OSL); e.salu("s_add_u32", g.sXL, g.sXL, XS0)
    e.salu("s_mul_i32", sT1, g.sB, 147456); e.salu("s_lshl_b32", sT2, sT, 13); e.salu("s_add_u32", sT1, sT1, sT2)
    e.salu("s_and_b32", sT, sT, 1); e.salu("s_lshl_b32", sT, sT, 6)
    e.valu("v_and_b32", vT2, 7, vL); e.valu("v_xor_b32", vT2, vT2, vT1); e.valu("v_lshlrev_b32", vT2, 4, vT2)
    e.valu("v_lshl_add_u32", vT2, vT0, 10, vT2); e.valu("v_xor_b32", vT2, sT, vT2)
    e.valu("v_add_u32", oX[0], sT1, vT2); e.valu("v_xor_b32", vT2, 64, oX[0])
    for i in range(1, 5): e.valu("v_add_u32", oX[i], i * 8192 - (i % 3) * 1024, vT2 if i & 1 else oX[0])
    e.salu("s_lshl_b32", sT1, g.sHG, 11); e.salu("s_lshl_b32", sT2, g.sHP, 9); e.salu("s_add_u32", sT1, sT1, sT2)
    e.salu("s_lshl_b32", sT2, sW, 7); e.salu("s_add_u32", sT1, sT1, sT2)
    e.valu("v_and_b32", vT2, 1, vT1); e.valu("v_lshlrev_b32", vT2, 2, vT2)
    e.valu("v_and_b32", oWQ[0], 7, vL); e.valu("v_xor_b32", vT2, oWQ[0], vT2); e.valu("v_lshlrev_b32", vT2, 4, vT2)
    e.valu("v_lshl_add_u32", vT2, vT0, 13, vT2); e.valu("v_add_u32", oWQ[0], sT1, vT2)
    for i in range(1, 4): e.valu("v_add_u32", oWQ[i], i * (65536 - 1024), oWQ[0])
    e.salu("s_lshl_b32", g.sWLG, sW, 12); e.salu("s_add_u32", g.sWL, g.sWLG, WS0)
    e._wait(lg=0)
    e.salu("s_cmp_lg_u32", None, g.sBR, 0)
    def srd(d, a, b, size):
        if b is None:
            e.salu("s_mov_b32", d[0], kp(a)[0]); e.salu("s_mov_b32", d[1], kp(a)[1])
        else:
            e.salu("s_cselect_b32", d[0], kp(b)[0], kp(a)[0]); e.salu("s_cselect_b32", d[1], kp(b)[1], kp(a)[1])
        e.salu("s_mov_b32", d[2], hex(size)); e.salu("s_mov_b32", d[3], "0x20000")
    srd(sX, 0, 5, 8 * 147456); srd(sWQ, 3, 8, 512 * 8192)
    srd(sK, 1, 6, 1 << 26); srd(sV, 2, 7, 1 << 26); srd(sWO, 4, 9, 4096 * 1024)
    stamp(0)

    def x_items(D, part, tag):
        its = [lambda: e.salu("s_add_u32", "m0", g.sXL, (D & 1) * 18432 + part * 3072)]
        for i in range(3 * part, min(5, 3 * part + 3)):
            its.append(lambda i=i: e.dma(oX[i], sX, g.sXS, off=(i % 3) * 1024, pol=cfg.xw_pol, tag=tag))
        if part == 1:
            its.append(lambda: e.salu("s_add_u32", g.sXS, g.sXS, 128))
            its.append(lambda: e.salu("s_and_b32", g.sXS, g.sXS, 1023))
        return its
    def w_items(st, tag):
        its = [lambda: e.salu("s_add_u32", "m0", g.sWL, (st % 3) * 16384)]
        for i in range(4):
            its.append(lambda i=i: e.dma(oWQ[i], sWQ, g.sWS2, off=i * 1024, pol=cfg.xw_pol, tag=tag))
        its.append(lambda: e.salu("s_add_u32", g.sWS2, g.sWS2, 1 << 18))
        its.append(lambda: e.salu("s_and_b32", g.sWS2, g.sWS2, "0x3fffff"))
        return its
    for f in (x_items(0, 0, "p0") + x_items(0, 1, "p0") + w_items(0, "p0") + w_items(1, "p1") +
              x_items(1, 0, "p2") + x_items(1, 1, "p2") + w_items(2, "p2")): f()

    srd(sWS, 12, None, 64 << 20 if cfg.stamps else WS_USED); srd(sOUT, 10, None, 8 * 144 * 2048); srd(sDBG, 11, None, 256)
    if cfg.ws_off:
        assert cfg.ws_off + WS_USED <= 287571968
        e.salu("s_add_u32", sWS[0], sWS[0], cfg.ws_off); e.salu("s_addc_u32", sWS[1], sWS[1], 0)
    e.salu("s_lshl_b32", sT, g.sHG, 3); e.salu("s_lshl_b32", sT1, g.sHP, 1); e.salu("s_add_u32", sT, sT, sT1); e.salu("s_add_u32", sT, sT, g.sHH)
    e.salu("s_lshl_b32", g.sKVB, g.sB, 5); e.salu("s_add_u32", g.sKVB, g.sKVB, sT); e.salu("s_lshl_b32", g.sKVB, g.sKVB, 18)
    e.salu("s_lshl_b32", sT1, g.sBR, 3); e.salu("s_add_u32", sT1, sT1, g.sB)
    e.salu("s_lshl_b32", sT2, sT1, 5); e.salu("s_add_u32", sT2, sT2, sT); e.salu("s_mul_i32", g.sOB, sT2, 36864)
    e.salu("s_mul_i32", sT2, g.sQH, 10240); e.salu("s_add_u32", g.sOB, g.sOB, sT2)
    e.salu("s_lshl_b32", sT2, sT1, 2); e.salu("s_add_u32", g.sFL1, sT2, g.sHG); e.salu("s_add_u32", g.sFL2, sT2, g.sHP)
    e.salu("s_mul_i32", g.sOKP, g.sFL1, 16 * 18432); e.salu("s_add_u32", g.sOKP, g.sOKP, g.sOL); e.salu("s_sub_u32", g.sOKP, g.sOKP, OSL)
    e.salu("s_mul_i32", g.sPB, g.sFL2, 16 * 9216); e.salu("s_add_u32", g.sPB, g.sPB, PWS_OFF)
    e.salu("s_lshl_b32", g.sFL1, g.sFL1, 2); e.salu("s_lshl_b32", g.sFL2, g.sFL2, 2)
    if cfg.local:
        e.other(f"s_getreg_b32 {sT}, hwreg(HW_REG_XCC_ID, 0, 4)")
        e.salu("s_mul_i32", sT1, sT, sT); e.salu("s_lshl_b32", sT1, sT1, 5); e.salu("s_add_u32", sT1, sT1, sT)
        e.salu("s_add_u32", sT1, sT1, 1 << 13)
        e.salu("s_lshl_b32", sXE, sT1, 2)
        e.salu("s_cmp_lt_u32", None, sT, 8); e.salu("s_cselect_b32", sT1, sT1, 0)
        e.salu("s_lshl_b32", sT1, sT1, 16)
        e.salu("s_cmp_lg_u32", None, sW, 0)
        e.branch("s_cbranch_scc1", "L_ann")
        e.valu("v_mov_b32", vT0, sT1); e.valu("v_mov_b32", vT1, 0)
        e.salu("s_mov_b64", "exec", 1)
        e.ins(f"buffer_atomic_add {vT0}, {vT1}, {sDBG}, {g.sFL1} offen sc1", 'vmem', [vT0, vT1, sDBG, g.sFL1], [])
        e.salu("s_mov_b64", "exec", -1)
        e.label("L_ann")
    e.salu("s_lshl_b32", g.sWB, g.sHG, 20); e.salu("s_lshl_b32", sT, g.sHP, 8); e.salu("s_add_u32", g.sWB, g.sWB, sT)
    if cfg.rot == 0:
        e.salu("s_lshl_b32", g.sROT, g.sIDX, 1); e.salu("s_add_u32", g.sROT, g.sROT, g.sHH)
    elif cfg.rot == 1:
        e.salu("s_lshl_b32", g.sROT, g.sIDX, 1); e.salu("s_add_u32", g.sROT, g.sROT, g.sHH); e.salu("s_lshl_b32", g.sROT, g.sROT, 1)
        e.salu("s_lshr_b32", sT, g.sIDX, 3); e.salu("s_and_b32", sT, sT, 1); e.salu("s_add_u32", g.sROT, g.sROT, sT)
    elif cfg.rot == 2:
        e.salu("s_lshl_b32", g.sROT, S(2), 1); e.salu("s_add_u32", g.sROT, g.sROT, g.sHH)
        e.salu("s_mul_i32", g.sROT, g.sROT, "0x9e3779b1"); e.salu("s_lshr_b32", g.sROT, g.sROT, 27)
    elif cfg.rot == 3:
        e.salu("s_lshl_b32", g.sROT, g.sHH, 4); e.salu("s_add_u32", g.sROT, g.sROT, g.sIDX)
    elif cfg.rot == 4:
        e.salu("s_lshl_b32", g.sROT, g.sB, 2); e.salu("s_add_u32", g.sROT, g.sROT, g.sHG)
    elif cfg.rot == 5:
        e.salu("s_mov_b32", g.sROT, 0)
    e.salu("s_and_b32", g.sROT, g.sROT, 31)
    e.salu("s_lshl_b32", g.sROT, g.sROT, 13)
    def kv_reset():
        e.salu("s_lshl_b32", sT, g.sQH, 13); e.salu("s_add_u32", g.sKP, g.sROT, sT); e.salu("s_and_b32", g.sKP, g.sKP, "0x3ffff")
        e.salu("s_lshl_b32", g.sLS, g.sQH, 15); e.salu("s_lshl_b32", sT, g.sHH, 14); e.salu("s_add_u32", g.sLS, g.sLS, sT)
    kv_reset()
    e.salu("s_mov_b32", g.sRETRY, 0)
    e.salu("s_mov_b32", g.sSC, hex(f2u(QSCALE)))
    e.valu("v_and_b32", vT0, 15, vL); e.valu("v_lshrrev_b32", vT1, 4, vL)
    e.valu("v_xor_b32", vT2, vT0, vT1)
    e.valu("v_lshlrev_b32", vT2, 4, vT2); e.valu("v_lshl_add_u32", oK[0], vT1, 8, vT2)
    for n in range(1, 4): e.valu("v_xor_b32", oK[n], n << 6, oK[0])
    e.valu("v_lshlrev_b32", vT2, 1, vT1); e.valu("v_xor_b32", vT2, vT0, vT2)
    e.valu("v_lshlrev_b32", vT2, 4, vT2); e.valu("v_lshl_add_u32", oV[0], vT1, 8, vT2)
    e.valu("v_xor_b32", oV[1], 128, oV[0])
    e.valu("v_lshlrev_b32", vT2, 2, vT1); e.valu("v_xor_b32", vT2, vT0, vT2)
    e.valu("v_lshlrev_b32", vT2, 4, vT2); e.valu("v_lshl_add_u32", oWo[0], vT1, 10, vT2)
    for i in range(1, 4): e.valu("v_add_u32", oWo[i], i * 3072, oWo[0])
    e.salu("s_lshl_b32", sT1, g.sHH, 14)
    def kv_addr_init():
        e.valu("v_and_b32", vT0, 15, vL); e.valu("v_lshrrev_b32", vT1, 4, vL)
        e.salu("s_lshl_b32", sT1, g.sHH, 14); e.salu("s_add_u32", sT2, sT1, 8192)
        e.valu("v_xor_b32", vT2, vT0, vT1); e.valu("v_lshlrev_b32", vT2, 4, vT2)
        e.valu("v_lshl_add_u32", vT2, vT0, 8, vT2); e.valu("v_add_u32", KA[0], sT1, vT2)
        for kk in range(1, 4): e.valu("v_xor_b32", KA[kk], kk << 6, KA[0])
        e.valu("v_lshlrev_b32", vT2, 4, vT1); e.valu("v_add_u32", KBA, sT1, vT2)
        e.valu("v_lshrrev_b32", vT0, 2, vL)
        e.valu("v_and_b32", vT2, 7, vT0); e.valu("v_lshlrev_b32", vT2, 5, vT2)
        e.valu("v_lshl_add_u32", vT2, vT0, 8, vT2)
        e.valu("v_and_b32", vT0, 3, vL); e.valu("v_lshl_add_u32", vT2, vT0, 3, vT2)
        e.valu("v_add_u32", VA[0], sT2, vT2)
        for D in range(1, 8): e.valu("v_xor_b32", VA[D], D << 5, VA[0])
    kv_addr_init()
    e.valu("v_and_b32", vT0, 15, vL)
    e.valu("v_lshrrev_b32", vT2, 1, vT0); e.valu("v_xor_b32", vT2, vT2, vT1); e.valu("v_lshlrev_b32", vT2, 4, vT2)
    e.valu("v_lshl_add_u32", vT2, vT0, 7, vT2); e.valu("v_add_u32", XA[0], XS0, vT2); e.valu("v_xor_b32", XA[1], 64, XA[0])
    e.valu("v_lshlrev_b32", vST, 11, vT0); e.valu("v_lshl_add_u32", vST, vT1, 4, vST)
    e.valu("v_lshrrev_b32", vT0, 2, vL); e.valu("v_and_b32", vT0, 3, vT0)
    e.valu("v_lshl_add_u32", vT2, vT1, 3, vT0); e.valu("v_lshlrev_b32", vT2, 7, vT2)
    e.valu("v_lshrrev_b32", WA[1], 1, vT0); e.valu("v_lshl_add_u32", vT2, WA[1], 6, vT2)
    e.valu("v_and_b32", WA[1], 3, vL); e.valu("v_lshl_add_u32", vT2, WA[1], 4, vT2)
    e.valu("v_add_u32", WA[0], g.sWL, vT2); e.valu("v_xor_b32", WA[1], 64, WA[0])
    e.valu("v_xor_b32", vT0, sW, vT0); e.valu("v_lshlrev_b32", vT0, 6, vT0)
    e.valu("v_and_b32", vT2, 3, vL); e.valu("v_lshl_add_u32", vT0, vT2, 4, vT0)
    e.valu("v_lshrrev_b32", vT2, 2, vL); e.valu("v_lshl_add_u32", GWA[1], vT2, 8, vT0)
    e.valu("v_add_u32", GWA[0], 131072, GWA[1])
    e.valu("v_add_u32", GOA, OSL, vL16)
    e.salu("s_mul_i32", sT1, g.sHH, 36864)
    e.salu("s_lshl_b32", sT2, g.sQH, 11); e.salu("s_add_u32", sT2, sT2, sT1); e.salu("s_add_u32", sT2, sT2, LQ)
    e.valu("v_add_u32", QW, sT2, vL16)
    e.salu("s_mul_i32", sT2, g.sQH, 20480); e.salu("s_add_u32", sT2, sT2, sT1); e.salu("s_add_u32", sT2, sT2, LQ)
    e.valu("v_add_u32", QA, sT2, vL16)
    e.salu("s_mul_i32", sT2, g.sQH, 10240); e.salu("s_add_u32", sT2, sT2, sT1); e.salu("s_add_u32", sT2, sT2, OSL)
    e.valu("v_add_u32", GOW, sT2, vL16)
    e.salu("s_lshl_b32", sT2, sW, 2); e.salu("s_add_u32", sT2, sT2, LFLAG)
    e.valu("v_mov_b32", vFLG, sT2)

    def wwarm_items(allw=False):
        if allw:
            return [lambda: e.salu("s_lshl_b32", sT, g.sB, 2), lambda: e.salu("s_add_u32", sT, sT, sW),
                    lambda: e.salu("s_lshl_b32", sT, sT, 15), lambda: e.salu("s_add_u32", sT, sT, g.sWB),
                    lambda: e.valu("v_lshrrev_b32", vT0, 1, vL), lambda: e.valu("v_lshlrev_b32", vT0, 10, vT0),
                    lambda: e.valu("v_and_b32", vT1, 1, vL), lambda: e.valu("v_lshl_add_u32", vT0, vT1, 7, vT0),
                    lambda: e.bload("buffer_load_dword", V(95), vT0, sWO, sT, pol=cfg.wwarm_pol, tag="ww")]
        its = [lambda: e.salu("s_lshl_b32", sT, g.sB, 1), lambda: e.salu("s_add_u32", sT, sT, g.sHH),
               lambda: e.salu("s_lshl_b32", sT, sT, 16), lambda: e.salu("s_add_u32", sT, sT, g.sWB)]
        if cfg.wwarm_full:
            for n in range(16):
                if n and n % 4 == 0: its.append(lambda: e.salu("s_add_u32", sT, sT, 16384))
                its.append(lambda n=n: e.bload("buffer_load_dwordx4", A(4 * n, 4), oWo[n & 3], sWO, sT, off=(n & 3) * 1024, pol=cfg.wwarm_pol))
        else:
            its += [lambda: e.valu("v_lshlrev_b32", vT0, 10, vL),
                    lambda: e.bload("buffer_load_dword", vT1, vT0, sWO, sT, pol=cfg.wwarm_pol),
                    lambda: e.bload("buffer_load_dword", vT2, vT0, sWO, sT, off=128, pol=cfg.wwarm_pol)]
        return its
    def window():
        if len(e.vm_q) > cfg.win - cfg.wing:
            n = cfg.win - cfg.wing
            e._wait(vm=n); e.vm_q = e.vm_q[len(e.vm_q) - n:]
    def kv_items(tag, adv=1, paced=False):
        its = []
        for srd_, voff, base in ((sK, oK, 0), (sV, oV, 8192)):
            for n in range(8):
                if n % 4 == 0:
                    its.append(lambda n=n, base=base: e.salu("s_add_u32", "m0", g.sLS, base + n * 1024))
                    if n == 0: its.append(lambda: e.salu("s_add_u32", g.sKO, g.sKVB, g.sKP))
                    else: its.append(lambda: e.salu("s_add_u32", g.sKO, g.sKO, 4096))
                if paced and cfg.win and n % cfg.wing == 0: its.append(window)
                its.append(lambda n=n, srd_=srd_, voff=voff: e.dma(voff[n % len(voff)], srd_, g.sKO, off=(n & 3) * 1024, pol=cfg.kv_pol, tag=tag))
        its.append(lambda: e.salu("s_add_u32", g.sKP, g.sKP, 8192))
        its.append(lambda: e.salu("s_and_b32", g.sKP, g.sKP, "0x3ffff"))
        if adv:
            its.append(lambda: e.salu("s_add_u32", g.sLS, g.sLS, 32768))
            its.append(lambda: e.salu("s_and_b32", g.sLS, g.sLS, "0x1ffff"))
        return its
    def k_reads(step):
        return [lambda kk=kk, kt=kt: e.ds_read("ds_read_b128", Kf[kt][kk], KA[kk], (step & 1) * 32768 + kt * 4096, tag="kf")
                for kk in range(4) for kt in range(2)]
    def v_reads(step):
        return [lambda D=D, hi=hi: e.ds_read("ds_read_b64_tr_b16", Vf[D][2 * hi:2 * hi + 2], VA[D], (step & 1) * 32768 + hi * 4096, tag="vf")
                for D in range(8) for hi in range(2)]
    def w_reads(st):
        return [lambda D=D, hi=hi: e.ds_read("ds_read_b64_tr_b16", WF(st & 1, D)[2 * hi:2 * hi + 2], WA[D >> 1],
                                            (st % 3) * 16384 + hi * 512 + (D & 1) * 8, tag="qf") for D in range(4) for hi in range(2)]
    def x_reads(D):
        return [lambda qt=qt, kh=kh: e.ds_read("ds_read_b128", XF((2 * D + kh) % 3, qt), XA[kh], (D & 1) * 18432 + qt * 2048, tag="qf")
                for kh in range(2) for qt in range(9)]
    def run_stage(mfs, rd, fill):
        nf, n, done = len(fill), len(mfs), 0
        for i, m in enumerate(mfs):
            m()
            if rd: rd.popleft()()
            while fill and done * n <= i * nf:
                fill.popleft()(); done += 1
        while rd: rd.popleft()()
        while fill: fill.popleft()()

    if cfg.wwarm_q == -1:
        for f in wwarm_items(True): f()
    e.wait_vm("p0"); e.barrier()
    stamp(1)
    for f in w_reads(0) + x_reads(0): f()
    kvq = deque(kv_items("kv01"))
    for st in range(16):
        e.comment(f"q-proj stage {st}")
        e.wait_vm({0: "p1", 1: "p2"}.get(st, ("iss", st - 2)))
        e.wait_all_lds(); e.barrier()
        fill = deque()
        if st // 2 + 2 < 8: fill.extend(x_items(st // 2 + 2, st & 1, ("iss", st)))
        if st + 3 < 16: fill.extend(w_items(st + 3, ("iss", st)))
        if st == cfg.wwarm_q: fill.extend(wwarm_items(True))
        if st >= cfg.kv0_stage:
            for _ in range(12 if st == cfg.kv0_stage else 16):
                if kvq: fill.append(kvq.popleft())
        rd = deque()
        if st + 1 < 16: rd.extend(w_reads(st + 1))
        if st & 1 and st + 1 < 16: rd.extend(x_reads((st + 1) // 2))
        mfs = [lambda qt=qt, D=D: e.mfma16(QACC(D, qt), WF(st & 1, D), XF(st % 3, qt), QACC(D, qt) if st else 0)
               for qt in range(9) for D in range(4)]
        run_stage(mfs, rd, fill)
    while kvq: kvq.popleft()()
    stamp(2)
    for qt in range(9):
        for P in range(2):
            src = V(112 + (qt * 4 + 2 * P) * 4, 8)
            for i in range(8): e.valu("v_mul_f32", src[i], g.sSC, src[i])
            for i in range(4): e.valu("v_cvt_pk_bf16_f32", src[i], src[2 * i], src[2 * i + 1])
            e.ds_write("ds_write_b128", QW, src[0:4], (qt * 4 + P) * 1024)
    e.valu("v_mov_b32", vT0, "0x3f803f80")
    for i in range(4): e.valu("v_accvgpr_write_b32", ONES[i], vT0)
    e.salu("s_cmp_lg_u32", None, g.sQH, 0)
    e.branch("s_cbranch_scc1", "L_r1")
    hist0 = list(e.hist)

    for role in (0, 1):
        NTW = 5 - role
        R = f"r{role}"
        e.hist = list(hist0)
        if role: e.label("L_r1")
        e.lds_q = ["x"]; e.vm_q = [("kv", 1)] * 16 if role else ["x"]
        if not role: e.wait_all_vm()
        e.wait_all_lds(); e.barrier()
        for kk in range(4): e.ds_read("ds_read_b128", Kb[kk], KBA, kk * 64, tag="kb")
        for t in range(NTW):
            for kk in range(4): e.ds_read("ds_read_b128", Qf(t, kk), QA, (t * 4 + kk) * 1024, tag=("q", min(t, 2)))
        e.salu("s_mov_b32", sT1, "0x80008000")
        e.wait_lds("kb")
        for kk in range(4):
            for i in range(4): e.valu("v_xor_b32", Kb[kk][i], sT1, Kb[kk][i])
        e.wait_all_lds(); e.barrier()
        rd = deque(k_reads(0) + v_reads(0))
        fill = deque()
        if role:
            for s_ in range(2, cfg.la): fill.extend(kv_items(("kv", s_)))
        run_stage([lambda t=t, kk=kk: e.mfma16(NM[t], Kb[kk], Qf(t, kk), NM[t] if kk else 0) for t in range(NTW) for kk in range(4)], rd, fill)
        e.wait_all_lds()
        stamp(3)
        e.flush_hazards(8)
        e.label(f"L_main_{R}")
        e.lds_q = []; e.vm_q = [("kv", s) for s in range(1, cfg.la) for _ in range(16)] if role else []
        NT = 32 * NTW
        extras = deque(); toggles = deque()
        def wo_pre(st, lds):
            its = [lambda: e.salu("s_lshl_b32", sT, g.sHP, 2), lambda: e.salu("s_add_u32", sT, sT, g.sHH),
                   lambda: e.salu("s_add_u32", sT, sT, st), lambda: e.salu("s_lshl_b32", sT, sT, 16),
                   lambda: e.salu("s_add_u32", g.sKO, g.sWB, sT), lambda: e.salu("s_lshl_b32", sT, g.sHH, 14)]
            for n in range(16):
                if n % 4 == 0:
                    its.append(lambda n=n: e.salu("s_add_u32", "m0", sT, lds + n * 1024))
                    if n: its.append(lambda: e.salu("s_add_u32", g.sKO, g.sKO, 16384))
                its.append(lambda n=n: e.dma(oWo[n & 3], sWO, g.sKO, off=(n & 3) * 1024, pol=cfg.wo_pol, tag="wo"))
            return its
        def slot(j):
            e.comment(f"slot t={j % NTW}")
            mf = []
            jq, jp = j + 1, j - 1
            if jq < NT:
                t = jq % NTW
                for kk in range(4):
                    for kt in range(2):
                        def m(kk=kk, kt=kt):
                            d = Sb[jq % 2][4 * kt:4 * kt + 4]
                            e.mfma16(d, Kf[kt][kk], Qf(t, kk), d if kk else NM[t])
                        mf.append(m)
            else:
                mf += [None] * 8
            if jp >= 0:
                s2, t2 = divmod(jp, NTW)
                for D in range(8):
                    mf.append(lambda D=D: e.mfma16(Oacc(t2, D), Vf[D], Pb[jp % 2], Oacc(t2, D) if s2 else 0))
                mf.append(lambda: e.mfma16(Lb[t2], ONES, Pb[jp % 2], Lb[t2] if s2 else 0))
            else:
                mf += [None] * 9
            sm = 0 <= j < NT
            Sx, Px = Sb[j % 2], Pb[j % 2]
            E = lambda i: (lambda: e.valu("v_exp_f32", Sx[i], Sx[i])) if sm else None
            C = lambda i: (lambda: e.valu("v_cvt_pk_bf16_f32", Px[i], Sx[2 * i], Sx[2 * i + 1])) if sm else None
            gaps = [([E(0)], 0), ([], 2), ([E(1)], 0), ([C(0)], 1), ([E(2)], 0), ([], 2), ([E(3)], 0), ([C(1)], 1),
                    ([E(4)], 0), ([], 2), ([E(5)], 0), ([C(2)], 1), ([E(6)], 0), ([], 2), ([E(7)], 0), ([C(3)], 1), ([], 2)]
            kre = deque(); vre = deque()
            lastq = jq < NT and jq % NTW == NTW - 1
            if lastq and jq // NTW + 1 < 32: kre = deque(k_reads(jq // NTW + 1))
            if jp >= 0 and jp % NTW == NTW - 1 and jp // NTW + 1 < 32: vre = deque(v_reads(jp // NTW + 1))
            def flush_reads():
                while rds: rds.popleft()()
            for i in range(17):
                if i == 0 and lastq:
                    s = jq // NTW
                    if role:
                        while extras: extras.popleft()()
                        if s + 1 < 32: e.wait_vm(("kv", s + 1))
                    e.barrier()
                    if not role and s == cfg.wwarm: extras.extend(wwarm_items())
                    if cfg.local and s == 27:
                        extras.extend([lambda: e.valu("v_mov_b32", vT2, 0),
                                       lambda: e.bload("buffer_load_dword", V(95), vT2, sDBG, g.sFL1, pol="sc1", tag="xw")])
                    if role:
                        if s + cfg.la < 32: extras.extend(kv_items(("kv", s + cfg.la), paced=True))
                        elif s + cfg.la == 32: extras.extend(wo_pre(0, 131072))
                        elif s + cfg.la == 33: extras.extend(wo_pre(2, 0))
                if i == 0 and jq < NT and jq % NTW == 0 and jq > 0:
                    flush_reads(); e.wait_lds("kf")
                    if (jq // NTW) % 2 == 1:
                        rds.extend([lambda r=r: e.valu("v_xor_b32", r, "0x10000", r) for r in KA])
                if i == 8 and jp > 0 and jp % NTW == 0:
                    flush_reads(); e.wait_lds("vf")
                    if (jp // NTW) % 2 == 1:
                        rds.extend([lambda r=r: e.valu("v_xor_b32", r, "0x10000", r) for r in VA])
                if mf[i]: mf[i]()
                if i < 8 and kre: rds.append(kre.popleft())
                if 8 <= i < 16 and vre:
                    rds.append(vre.popleft()); rds.append(vre.popleft())
                base, cap = gaps[i]
                for f in base:
                    if f: f()
                if len(rds) > 5: cap += 1
                for _ in range(cap):
                    if rds: rds.popleft()()
                    elif extras: extras.popleft()()
        rds = deque()
        H0 = 2 * NTW + 2; NIT = 12
        for j in range(-1, H0): slot(j)
        e.salu("s_mov_b32", g.sCNT, NIT)
        bodies = []; save = e.lines
        for it in range(NIT):
            e.lines = []
            for j in range(H0 + 2 * NTW * it, H0 + 2 * NTW * (it + 1)): slot(j)
            bodies.append(e.lines)
        for it in range(1, NIT): assert bodies[it] == bodies[0], f"loop body {it} differs"
        e.lines = save
        e.label(f"L_loop_{R}")
        e.lines += bodies[0]
        e.salu("s_sub_u32", g.sCNT, g.sCNT, 1)
        e.salu("s_cmp_lg_u32", None, g.sCNT, 0)
        e.branch("s_cbranch_scc1", f"L_loop_{R}")
        for j in range(H0 + 2 * NTW * NIT, NT + 1): slot(j)
        while rds: rds.popleft()()
        while extras: extras.popleft()()
        if not role: e.wait_all_vm()
        stamp(4)
        LV = [V(32 + 2 * t, 2) for t in range(5)]
        e.salu("s_mov_b32", sT1, hex(f2u(0.25 if cfg.force_fallback else cfg.lthresh)))
        e.salu("s_mov_b64", sM0, 0)
        for t in range(NTW): e.valu("v_accvgpr_read_b32", LV[t][0], Lb[t][0])
        for t in range(NTW):
            e.vcmp("v_cmp_nge_f32", sM1, sT1, LV[t][0])
            e.salu("s_or_b64", sM0, sM0, sM1)
        for t in range(NTW): e.valu("v_rcp_f32", LV[t][0], LV[t][0])
        e.salu("s_or_b32", sT, sM0[0], sM0[1])
        e.valu("v_mov_b32", vT0, sT)
        e.ds_write("ds_write_b32", vFLG, vT0)
        for t in range(NTW): e.valu("v_mov_b32", LV[t][1], LV[t][0])
        def o_epi(pol):
            for t in range(NTW):
                for blk in range(4):
                    o = V(96 + (t * 8 + 2 * blk) * 4, 8)
                    for i in range(4): e.valu("v_pk_mul_f32", o[2 * i:2 * i + 2], o[2 * i:2 * i + 2], LV[t])
                    for i in range(4): e.valu("v_cvt_pk_bf16_f32", o[i], o[2 * i], o[2 * i + 1])
                    off = (blk >> 1) * 18432 + (t * 2 + (blk & 1)) * 1024
                    e.ds_write("ds_write_b128", GOW, o[0:4], off)
                    e.salu("s_add_u32", sT1, g.sOB, off)
                    e.bstore("buffer_store_dwordx4", o[0:4], vL16, sWS, sT1, pol=pol, tag="ost")
        if cfg.local:
            e.wait_vm("xw")
            e.readfirstlane(sT, V(95))
            e.salu("s_lshr_b32", sT, sT, 16)
            if cfg.force_remote: e.salu("s_mov_b32", sT, 0)
            e.salu("s_cmp_eq_u32", None, sT, sXE)
            e.branch("s_cbranch_scc1", f"L_eloc_{R}")
            st_ = (list(e.hist), list(e.lds_q), list(e.vm_q))
            o_epi(cfg.ost_pol)
            e.branch("s_branch", f"L_ejoin_{R}")
            e.hist, e.lds_q, e.vm_q = st_
            e.label(f"L_eloc_{R}")
            o_epi(cfg.loc_pol)
            e.label(f"L_ejoin_{R}")
        else:
            o_epi(cfg.ost_pol)
        if role: e.wait_vm("wo")
        e.wait_all_lds(); e.barrier()
        e.valu("v_mov_b32", vT1, LFLAG)
        e.ds_read("ds_read_b128", V(32, 4), vT1)
        e.wait_all_lds()
        e.valu("v_or_b32", V(32), V(32), V(33)); e.valu("v_or3_b32", V(32), V(32), V(34), V(35))
        e.readfirstlane(sT, V(32))
        e.salu("s_cmp_eq_u32", None, sT, 0)
        e.branch("s_cbranch_scc1", "L_gemm")
        e.salu("s_cmp_lg_u32", None, g.sRETRY, 0)
        e.branch("s_cbranch_scc1", "L_gemm")
        e.salu("s_mov_b32", g.sRETRY, 1)
        e.wait_all()
        kv_addr_init()
        MX = [V(48 + t) for t in range(5)]
        for t in range(NTW): e.valu("v_mov_b32", MX[t], "0xff800000")
        e.salu("s_mov_b32", g.sCNT, 32)
        e.salu("s_mov_b32", g.sKP, 0); e.salu("s_lshl_b32", g.sLS, g.sHH, 14)
        e.label(f"L_max_{R}")
        e.barrier()
        if role:
            for f in kv_items("m", adv=0): f()
            e.wait_all_vm()
        e.barrier()
        for f in k_reads(0): f()
        e.wait_all_lds()
        for t in range(NTW):
            for kk in range(4):
                for kt in range(2):
                    d = Sb[0][4 * kt:4 * kt + 4]
                    e.mfma16(d, Kf[kt][kk], Qf(t, kk), d if kk else 0)
            for i in range(4): e.valu("v_max3_f32", MX[t], Sb[0][2 * i], Sb[0][2 * i + 1], MX[t])
        e.salu("s_sub_u32", g.sCNT, g.sCNT, 1)
        e.salu("s_cmp_lg_u32", None, g.sCNT, 0)
        e.branch("s_cbranch_scc1", f"L_max_{R}")
        for t in range(NTW):
            for op in ("v_permlane32_swap_b32", "v_permlane16_swap_b32"):
                e.valu("v_mov_b32", vT0, MX[t])
                e.perm(op, vT0, MX[t])
                e.valu("v_max_f32", MX[t], vT0, MX[t])
            for i in range(4): e.valu("v_sub_f32", NM[t][i], 0, MX[t])
        e.barrier()
        kv_reset()
        for f in kv_items("m"): f()
        if role:
            for s_ in range(2, cfg.la):
                for f in kv_items("m"): f()
        e.wait_all_vm(); e.barrier()
        for f in k_reads(0) + v_reads(0): f()
        e.wait_all_lds()
        e.flush_hazards(8)
        e.branch("s_branch", f"L_main_{R}")

    e.label("L_gemm")
    e.hist = []; e.lds_q = []; e.vm_q = ["ost"]
    stamp(5)
    WSL = [(0, 0), (0, 16384), (1, 0), (1, 16384)]
    def ga_reads(st):
        r, off = WSL[st % 4]
        return [lambda kb=kb, ee=ee, hi=hi: e.ds_read("ds_read_b64_tr_b16", GA(st & 1, kb * 2 + ee)[2 * hi:2 * hi + 2], GWA[r],
                                                     off + kb * 8192 + hi * 4096 + ee * 8, tag="g") for kb in range(2) for ee in range(2) for hi in range(2)]
    def gb_reads(st):
        return [lambda i=i: e.ds_read("ds_read_b128", GB(st & 1, i), GOA if st % 4 < 3 else GOW, (st % 4 % 3) * 18432 + i * 1024, tag="g")
                for i in range(18)]
    e.valu("v_add_u32", GOW, 3 * 18432, GOA)
    for f in ga_reads(0) + gb_reads(0): f()
    e.salu("s_lshl_b32", g.sWKP, g.sHP, 2); e.salu("s_add_u32", g.sWKP, g.sWKP, 4); e.salu("s_and_b32", g.sWKP, g.sWKP, 15)
    e.salu("s_mov_b32", g.sKP, g.sWKP)
    e.salu("s_lshl_b32", sT, sW, 14); e.salu("s_add_u32", g.sWB, g.sWB, sT)
    def gw_items(st, tag):
        r, off = WSL[st % 4]
        its = [lambda: e.salu("s_lshl_b32", sT, g.sWKP, 16), lambda: e.salu("s_add_u32", g.sKO, g.sWB, sT),
               lambda: e.salu("s_add_u32", "m0", g.sWLG, off + (131072 if r == 0 else 0))]
        for i in range(4): its.append(lambda i=i: e.dma(oWo[i], sWO, g.sKO, off=i * 1024, pol=cfg.wo_pol, tag=tag))
        its.append(lambda: e.salu("s_add_u32", g.sWKP, g.sWKP, 1)); its.append(lambda: e.salu("s_and_b32", g.sWKP, g.sWKP, 15))
        return its
    def go_items(st, tag):
        its = [lambda: e.salu("s_mul_i32", sT2, g.sKP, 18432), lambda: e.salu("s_add_u32", sT2, sT2, g.sOKP),
               lambda: e.salu("s_add_u32", "m0", g.sOL, (st % 4) * 18432)]
        for i in range(4): its.append(lambda i=i: e.dma(vL16, sWS, sT2, off=i * 1024, pol=cfg.old_pol, tag=tag))
        its.append(lambda: e.salu("s_add_u32", "m0", g.sOL, (st % 4) * 18432 + 4096))
        its.append(lambda: e.salu("s_add_u32", sT2, sT2, 4096))
        its.append(lambda: e.dma(vL16, sWS, sT2, pol=cfg.old_pol, tag=tag))
        its.append(lambda: e.salu("s_add_u32", g.sKP, g.sKP, 1)); its.append(lambda: e.salu("s_and_b32", g.sKP, g.sKP, 15))
        return its
    def signal(flag, val, lab):
        e.salu("s_cmp_lg_u32", None, sW, 0)
        e.branch("s_cbranch_scc1", lab)
        e.valu("v_mov_b32", vT0, val); e.valu("v_mov_b32", vT1, 0)
        e.salu("s_mov_b64", "exec", 1)
        e.ins(f"buffer_atomic_add {vT0}, {vT1}, {sDBG}, {flag} offen sc1", 'vmem', [vT0, vT1, sDBG, flag], [])
        e.salu("s_mov_b64", "exec", -1)
        e.label(lab)
    def poll(flag, shift, lab):
        e.valu("v_mov_b32", vT1, 0)
        e.salu("s_mov_b32", g.sSP, 1 << 20)
        e.label(lab)
        e.bload("buffer_load_dword", vT0, vT1, sDBG, flag, pol="sc1")
        e.wait_all_vm()
        e.readfirstlane(sT, vT0)
        e.salu("s_bfe_u32", sT, sT, hex(shift | (8 << 16)))
        e.salu("s_cmp_ge_u32", None, sT, 4)
        e.branch("s_cbranch_scc1", lab + "x")
        e.other(f"s_sleep {cfg.poll_sleep}")
        e.salu("s_sub_u32", g.sSP, g.sSP, 1)
        e.salu("s_cmp_lg_u32", None, g.sSP, 0)
        e.branch("s_cbranch_scc1", lab)
        e.label(lab + "x")
    PS = cfg.poll_stage
    for st in range(16):
        e.comment(f"o-proj stage {st}")
        if st == cfg.sig_stage: e.wait_all_vm()
        if st == PS:
            poll(g.sFL1, 0, "L_poll1")
            stamp(7)
        late = st == 3 and PS == 3
        if st + 1 < 16 and not late:
            e.wait_vm(("w", st + 1)); e.wait_vm(("o", st + 1))
        e.wait_all_lds(); e.barrier()
        if st == cfg.sig_stage:
            signal(g.sFL1, 1, "L_sig1"); stamp(6)
        if st in (4, 8, 12): stamp({4: 12, 8: 13, 12: 14}[st])
        if st == cfg.wbl2:
            e.salu("s_cmp_lg_u32", None, sW, 1)
            e.branch("s_cbranch_scc1", "L_wb")
            e.other("buffer_wbl2 sc1")
            e.label("L_wb")
        fill = deque()
        if st == PS:
            for s2 in range(4, st + 4): fill.extend(go_items(s2, ("o", s2)))
        if st >= PS and st + 4 < 16: fill.extend(go_items(st + 4, ("o", st + 4)))
        if st + 4 < 16: fill.extend(gw_items(st + 4, ("w", st + 4)))
        rd = deque(ga_reads(st + 1) + gb_reads(st + 1)) if st + 1 < 16 and not late else deque()
        mfs = [lambda qt=qt, kb=kb, ee=ee: e.mfma16(GC(qt, ee), GA(st & 1, kb * 2 + ee), GB(st & 1, qt * 2 + kb), GC(qt, ee) if (st or kb) else 0)
               for kb in range(2) for qt in range(9) for ee in range(2)]
        run_stage(mfs, rd, fill)
        if late:
            e.wait_vm(("w", 4)); e.wait_vm(("o", 4)); e.barrier()
            for f in ga_reads(4) + gb_reads(4): f()
    stamp(8)
    e.salu("s_cmp_eq_u32", None, sW, g.sHG)
    e.branch("s_cbranch_scc1", "L_fin")
    h1 = list(e.hist)
    e.salu("s_lshl_b32", sT, sW, 2); e.salu("s_add_u32", sT, sT, g.sHG); e.salu("s_mul_i32", sT, sT, 9216); e.salu("s_add_u32", sT2, sT, g.sPB)
    for qt in range(9):
        o = V(96 + qt * 8, 8)
        for i in range(4): e.valu("v_cvt_pk_bf16_f32", o[i], o[2 * i], o[2 * i + 1])
        if qt and qt % 4 == 0: e.salu("s_add_u32", sT2, sT2, 4096)
        e.bstore("buffer_store_dwordx4", o[0:4], vL16, sWS, sT2, off=(qt % 4) * 1024, pol="sc1")
    e.wait_all_vm(); e.barrier()
    stamp(9)
    stamp_flush()
    e.other("s_endpgm")
    e.label("L_fin")
    e.hist = h1
    e.barrier()
    e.valu("v_mov_b32", vT0, "0x100"); e.valu("v_mov_b32", vT1, 0)
    e.salu("s_mov_b64", "exec", 1)
    e.ins(f"buffer_atomic_add {vT0}, {vT1}, {sDBG}, {g.sFL2} offen sc1", 'vmem', [vT0, vT1, sDBG, g.sFL2], [])
    e.salu("s_mov_b64", "exec", -1)
    stamp(9)
    poll(g.sFL2, 8, "L_poll2")
    stamp(10)
    e.vm_q = []
    PB = lambda s, qt: (V(168 + (s * 9 + qt) * 4, 4) if s < 2 else V(32 + qt * 4, 4))
    for s in range(3):
        e.salu("s_add_u32", sT, g.sHG, s + 1); e.salu("s_and_b32", sT, sT, 3)
        e.salu("s_lshl_b32", sT1, sW, 2); e.salu("s_add_u32", sT, sT, sT1); e.salu("s_mul_i32", sT, sT, 9216); e.salu("s_add_u32", sT2, sT, g.sPB)
        for qt in range(9):
            if qt and qt % 4 == 0: e.salu("s_add_u32", sT2, sT2, 4096)
            e.bload("buffer_load_dwordx4", PB(s, qt), vL16, sWS, sT2, off=(qt % 4) * 1024, pol="sc1", tag=(s, qt))
    e.salu("s_mul_i32", sT2, g.sB, 144 * 2048); e.salu("s_lshl_b32", sT, g.sBR, 10); e.salu("s_add_u32", sT2, sT2, sT)
    e.salu("s_lshl_b32", sT, g.sHP, 8); e.salu("s_add_u32", sT2, sT2, sT); e.salu("s_lshl_b32", sT, sW, 6); e.salu("s_add_u32", sT2, sT2, sT)
    e.salu("s_mov_b32", sT1, "0xffff0000")
    for s in range(3):
        for qt in range(9):
            o = V(96 + qt * 8, 8); p = PB(s, qt)
            e.wait_vm((s, qt))
            for i in range(4):
                e.valu("v_lshlrev_b32", vT0, 16, p[i]); e.valu("v_and_b32", vT1, sT1, p[i])
                e.valu("v_add_f32", o[2 * i], o[2 * i], vT0); e.valu("v_add_f32", o[2 * i + 1], o[2 * i + 1], vT1)
    for qt in range(9):
        o = V(96 + qt * 8, 8)
        for i in range(4): e.valu("v_cvt_pk_bf16_f32", o[i], o[2 * i], o[2 * i + 1])
        e.bstore("buffer_store_dwordx4", o[0:4], vST, sOUT, sT2)
        if qt < 8: e.salu("s_add_u32", sT2, sT2, 32768)
    stamp(11)
    stamp_flush()
    e.label("L_done")
    e.other("s_endpgm")

def generate(cfg, fn):
    e = Em()
    e.raw('.amdgcn_target "amdgcn-amd-amdhsa--gfx950"'); e.raw(".text")
    gen(e, cfg, NAME + "_kernel")
    top = ("; attention block in one launch: q-projection, attention, output projection; generated by dev/gen2.py\n"
           "; @launch grid=(256,1,1) block=(256,1,1) lds=163840\n")
    tail = '.section .rodata,"a"\n' + descriptor(NAME + "_kernel", 512, 102, 256)
    open(fn, "w").write(top + e.text() + tail)
    return e

if __name__ == "__main__":
    cfg = Cfg()
    fn = sys.argv[1] if len(sys.argv) > 1 else "k.s"
    for kv in sys.argv[2:]:
        k, v = kv.split("=", 1)
        cur = getattr(cfg, k)
        setattr(cfg, k, type(cur)(int(v)) if isinstance(cur, (bool, int)) and not isinstance(cur, float) else (float(v) if isinstance(cur, float) else v))
    e = generate(cfg, fn)
    print(fn, "lines", len(e.lines), "nop states", e.nops)
```

```python
import sys, struct
from collections import deque
from asmlib import *

NAME = "concat_heads__mha_block_cached__gqa_block_cached__near_ridge"
def f2u(x): return struct.unpack("<I", struct.pack("<f", x))[0]
QSCALE = 1.4426950408889634 / (128 ** 0.5)

class Cfg:
    kv_pol = "nt"
    xw_pol = "nt"
    wo_pol = ""
    lthresh = 2.0 ** 40
    force_fallback = False
    stamps = False
    poll_sleep = 2
    kv0_stage = 13
    sig_stage = 0
    poll_stage = 2
    rot = 2
    win = 12
    wing = 2
    wwarm = -1
    wwarm_pol = ""
    wwarm_full = 0
    ost_pol = "sc1"
    old_pol = "sc1"
    local = 0
    wbl2 = -1
    force_remote = 0
    loc_pol = ""
    codewarm = 1
    probe = -2
    probe_wg = -1
    ws_off = 0
    wwarm_q = -1
    la = 3

OWS_BYTES = 16 * 64 * 18432
PWS_OFF = OWS_BYTES
PWS_BYTES = 64 * 16 * 9216
WS_USED = OWS_BYTES + PWS_BYTES
STAMP_OFF = 32 << 20
NSTAMP = 16

def descriptor(label, vgpr, sgpr, accum):
    return f""".p2align 6
.amdhsa_kernel {label}
  .amdhsa_next_free_vgpr {vgpr}
  .amdhsa_next_free_sgpr {sgpr}
  .amdhsa_accum_offset {accum}
  .amdhsa_group_segment_fixed_size 0
  .amdhsa_kernarg_size 104
  .amdhsa_user_sgpr_count 2
  .amdhsa_user_sgpr_kernarg_segment_ptr 1
  .amdhsa_system_sgpr_workgroup_id_x 1
.end_amdhsa_kernel
"""

def gen(e, cfg, label):
    e.raw(f".globl {label}"); e.raw(".p2align 8"); e.raw(f".type {label},@function"); e.label(label)
    sX, sWQ, sK, sV, sWS, sWO, sOUT, sDBG = (S(4 * i + 4, 4) for i in range(8))
    names = ("W XCD IDX T T1 T2 B HP HG HH QH BR KVB KP KO LS XS WS2 XL WL CNT RETRY SC ROT OB OKP WB WKP OL PB FL1 FL2 SP WLG").split()
    sXE = S(3)
    sr = {n: S(36 + i) for i, n in enumerate(names)}
    assert 36 + len(names) <= 70
    g = type("G", (), {"s" + n: r for n, r in sr.items()})
    sM0, sM1 = S(70, 2), S(72, 2)
    KARG = 76
    def kp(i): return S(KARG + 2 * i), S(KARG + 2 * i + 1)
    sW, sT, sT1, sT2 = g.sW, g.sT, g.sT1, g.sT2
    vL, vL16, vT0, vT1, vT2 = V(1), V(2), V(3), V(4), V(5)
    KA = [V(6 + i) for i in range(4)]; VA = [V(10 + i) for i in range(8)]
    oK = [V(18 + i) for i in range(4)]; oV = [V(22 + i) for i in range(2)]
    oWo = [V(24 + i) for i in range(4)]
    XA = [V(28), V(29)]; WA = [V(30), V(31)]
    Sb = [V(32 + i * 8, 8) for i in range(2)]
    Kb = [V(32 + kk * 4, 4) for kk in range(4)]
    Pb = [V(48 + i * 4, 4) for i in range(2)]
    NM = [V(56 + t * 4, 4) for t in range(5)]
    oX = [V(76 + i) for i in range(5)]; oWQ = [V(81 + i) for i in range(4)]
    KBA, QA, QW = V(85), V(86), V(87)
    GWA = [V(88), V(89)]; GOA, GOW, vST, vFLG = V(90), V(91), V(92), V(93)
    Oacc = lambda t, D: V(96 + (t * 8 + D) * 4, 4)
    QACC = lambda D, qt: V(112 + (qt * 4 + D) * 4, 4)
    XF = lambda buf, qt: A(buf * 36 + qt * 4, 4)
    WF = lambda buf, D: A(108 + buf * 16 + D * 4, 4)
    Qf = lambda t, kk: A(64 + (t * 4 + kk) * 4, 4)
    Lb = [A(144 + t * 4, 4) for t in range(5)]
    ONES = A(164, 4)
    Kf = [[A(176 + (kt * 4 + kk) * 4, 4) for kk in range(4)] for kt in range(2)]
    Vf = [A(208 + D * 4, 4) for D in range(8)]
    GB = lambda buf, i: A(buf * 72 + i * 4, 4)
    GA = lambda buf, i: A(144 + buf * 16 + i * 4, 4)
    GC = lambda qt, ee: V(96 + (qt * 2 + ee) * 4, 4)
    LQ = 65536; XS0, WS0 = LQ, LQ + 36864
    OSL = 32768; LFLAG = 131072 - 64
    stamp_reg = V(94)

    pl = [0]
    def stamp(i):
        if cfg.stamps:
            e.other("s_memrealtime s[74:75]"); e._wait(lg=0); e.lds_q = []
            e.ins(f"v_writelane_b32 {stamp_reg}, s74, {i}", 'valu', [], [stamp_reg])
    def stamp_flush():
        if not cfg.stamps: return
        e.wait_all_vm(); stamp(NSTAMP - 1)
        if cfg.probe >= 0:
            pl[0] += 1
            e.nop(2)
            e.ins(f"v_readlane_b32 {sT1}, {stamp_reg}, {cfg.probe}", 'readlane', [stamp_reg], [sT1])
            e.nop(4)
            e.salu("s_cmp_eq_u32", None, sT1, 0)
            e.branch("s_cbranch_scc1", f"L_pe{pl[0]}")
            if cfg.probe_wg >= 0:
                e.salu("s_and_b32", sT, S(2), 7)
                e.salu("s_cmp_lg_u32", None, sT, cfg.probe_wg)
                e.branch("s_cbranch_scc1", f"L_pe{pl[0]}")
            e.salu("s_add_u32", sT1, sT1, 12000)
            e.label(f"L_pr{pl[0]}")
            e.other("s_memrealtime s[74:75]"); e._wait(lg=0)
            e.salu("s_sub_u32", sT, S(74), sT1)
            e.salu("s_cmp_lt_i32", None, sT, 0)
            e.branch("s_cbranch_scc1", f"L_pr{pl[0]}")
            e.label(f"L_pe{pl[0]}")
            return
        e.salu("s_lshl_b32", sT, S(2), 2); e.salu("s_add_u32", sT, sT, sW); e.salu("s_lshl_b32", sT, sT, 8)
        e.salu("s_add_u32", sT, sT, STAMP_OFF)
        e.valu("v_lshlrev_b32", vT0, 2, vL)
        e.bstore("buffer_store_dword", stamp_reg, vT0, sWS, sT)

    e.salu("s_cmp_ge_u32", None, S(2), 256)
    e.branch("s_cbranch_scc1", "L_done")
    e.other(f"s_load_dwordx16 s[{KARG}:{KARG+15}], s[0:1], 0")
    e.other(f"s_load_dwordx8 s[{KARG+16}:{KARG+23}], s[0:1], 64")
    e.other(f"s_load_dwordx2 s[{KARG+24}:{KARG+25}], s[0:1], 96")
    if cfg.codewarm:
        e.other("s_getpc_b64 s[70:71]")
        e.label("L_pc")
        e.valu("v_lshlrev_b32", V(6), 7, V(0))
        e.valu("v_mov_b32", V(9), S(71))
        for r in range(2):
            if r: e.valu("v_add_u32", V(6), 32768, V(6))
            e.valu("v_min_u32", V(6), "L_end-L_pc-4", V(6))
            e.ins(f"v_add_co_u32 v{10+2*r}, vcc, s70, v6", 'valu', [V(6)], [V(10 + 2 * r), 'vcc'])
            e.ins(f"v_addc_co_u32 v{11+2*r}, vcc, 0, v9, vcc", 'valu', [V(9), 'vcc'], [V(11 + 2 * r), 'vcc'])
            e.ins(f"global_load_dword v{96+r}, v[{10+2*r}:{11+2*r}], off", 'vmem', [V(10 + 2 * r, 2)], [V(96 + r)]); e.vm_q.append("cw")
    e.valu("v_lshrrev_b32", vT0, 6, V(0))
    e.valu("v_and_b32", vL, 63, V(0))
    e.readfirstlane(sW, vT0)
    if cfg.stamps: e.valu("v_mov_b32", stamp_reg, 0)
    e.salu("s_and_b32", g.sXCD, S(2), 7)
    e.salu("s_lshr_b32", g.sIDX, S(2), 3)
    e.salu("s_lshr_b32", g.sB, g.sIDX, 2); e.salu("s_and_b32", g.sHP, g.sIDX, 3)
    e.salu("s_and_b32", g.sHG, g.sXCD, 3); e.salu("s_lshr_b32", g.sBR, g.sXCD, 2)
    e.salu("s_lshr_b32", g.sHH, sW, 1); e.salu("s_and_b32", g.sQH, sW, 1)
    e.valu("v_lshlrev_b32", vL16, 4, vL)
    e.valu("v_lshrrev_b32", vT1, 4, vL); e.valu("v_lshrrev_b32", vT0, 3, vL)
    e.salu("s_lshl_b32", sT, g.sHP, 1); e.salu("s_add_u32", sT, sT, g.sB); e.salu("s_and_b32", sT, sT, 7)
    e.salu("s_lshl_b32", g.sXS, sT, 7); e.salu("s_lshl_b32", g.sWS2, sT, 19)
    e.salu("s_mul_i32", sT, sW, 9); e.salu("s_lshr_b32", sT, sT, 1)
    e.salu("s_lshl_b32", g.sXL, sT, 10); e.salu("s_add_u32", g.sOL, g.sXL, OSL); e.salu("s_add_u32", g.sXL, g.sXL, XS0)
    e.salu("s_mul_i32", sT1, g.sB, 147456); e.salu("s_lshl_b32", sT2, sT, 13); e.salu("s_add_u32", sT1, sT1, sT2)
    e.salu("s_and_b32", sT, sT, 1); e.salu("s_lshl_b32", sT, sT, 6)
    e.valu("v_and_b32", vT2, 7, vL); e.valu("v_xor_b32", vT2, vT2, vT1); e.valu("v_lshlrev_b32", vT2, 4, vT2)
    e.valu("v_lshl_add_u32", vT2, vT0, 10, vT2); e.valu("v_xor_b32", vT2, sT, vT2)
    e.valu("v_add_u32", oX[0], sT1, vT2); e.valu("v_xor_b32", vT2, 64, oX[0])
    for i in range(1, 5): e.valu("v_add_u32", oX[i], i * 8192 - (i % 3) * 1024, vT2 if i & 1 else oX[0])
    e.salu("s_lshl_b32", sT1, g.sHG, 11); e.salu("s_lshl_b32", sT2, g.sHP, 9); e.salu("s_add_u32", sT1, sT1, sT2)
    e.salu("s_lshl_b32", sT2, sW, 7); e.salu("s_add_u32", sT1, sT1, sT2)
    e.valu("v_and_b32", vT2, 1, vT1); e.valu("v_lshlrev_b32", vT2, 2, vT2)
    e.valu("v_and_b32", oWQ[0], 7, vL); e.valu("v_xor_b32", vT2, oWQ[0], vT2); e.valu("v_lshlrev_b32", vT2, 4, vT2)
    e.valu("v_lshl_add_u32", vT2, vT0, 13, vT2); e.valu("v_add_u32", oWQ[0], sT1, vT2)
    for i in range(1, 4): e.valu("v_add_u32", oWQ[i], i * (65536 - 1024), oWQ[0])
    e.salu("s_lshl_b32", g.sWLG, sW, 12); e.salu("s_add_u32", g.sWL, g.sWLG, WS0)
    e._wait(lg=0)
    e.salu("s_cmp_lg_u32", None, g.sBR, 0)
    def srd(d, a, b, size):
        if b is None:
            e.salu("s_mov_b32", d[0], kp(a)[0]); e.salu("s_mov_b32", d[1], kp(a)[1])
        else:
            e.salu("s_cselect_b32", d[0], kp(b)[0], kp(a)[0]); e.salu("s_cselect_b32", d[1], kp(b)[1], kp(a)[1])
        e.salu("s_mov_b32", d[2], hex(size)); e.salu("s_mov_b32", d[3], "0x20000")
    srd(sX, 0, 5, 8 * 147456); srd(sWQ, 3, 8, 512 * 8192)
    srd(sK, 1, 6, 1 << 26); srd(sV, 2, 7, 1 << 26); srd(sWO, 4, 9, 4096 * 1024)
    stamp(0)

    def x_items(D, part, tag):
        its = [lambda: e.salu("s_add_u32", "m0", g.sXL, (D & 1) * 18432 + part * 3072)]
        for i in range(3 * part, min(5, 3 * part + 3)):
            its.append(lambda i=i: e.dma(oX[i], sX, g.sXS, off=(i % 3) * 1024, pol=cfg.xw_pol, tag=tag))
        if part == 1:
            its.append(lambda: e.salu("s_add_u32", g.sXS, g.sXS, 128))
            its.append(lambda: e.salu("s_and_b32", g.sXS, g.sXS, 1023))
        return its
    def w_items(st, tag):
        its = [lambda: e.salu("s_add_u32", "m0", g.sWL, (st % 3) * 16384)]
        for i in range(4):
            its.append(lambda i=i: e.dma(oWQ[i], sWQ, g.sWS2, off=i * 1024, pol=cfg.xw_pol, tag=tag))
        its.append(lambda: e.salu("s_add_u32", g.sWS2, g.sWS2, 1 << 18))
        its.append(lambda: e.salu("s_and_b32", g.sWS2, g.sWS2, "0x3fffff"))
        return its
    for f in (x_items(0, 0, "p0") + x_items(0, 1, "p0") + w_items(0, "p0") + w_items(1, "p1") +
              x_items(1, 0, "p2") + x_items(1, 1, "p2") + w_items(2, "p2")): f()

    srd(sWS, 12, None, 64 << 20 if cfg.stamps else WS_USED); srd(sOUT, 10, None, 8 * 144 * 2048); srd(sDBG, 11, None, 256)
    if cfg.ws_off:
        assert cfg.ws_off + WS_USED <= 287571968
        e.salu("s_add_u32", sWS[0], sWS[0], cfg.ws_off); e.salu("s_addc_u32", sWS[1], sWS[1], 0)
    e.salu("s_lshl_b32", sT, g.sHG, 3); e.salu("s_lshl_b32", sT1, g.sHP, 1); e.salu("s_add_u32", sT, sT, sT1); e.salu("s_add_u32", sT, sT, g.sHH)
    e.salu("s_lshl_b32", g.sKVB, g.sB, 5); e.salu("s_add_u32", g.sKVB, g.sKVB, sT); e.salu("s_lshl_b32", g.sKVB, g.sKVB, 18)
    e.salu("s_lshl_b32", sT1, g.sBR, 3); e.salu("s_add_u32", sT1, sT1, g.sB)
    e.salu("s_lshl_b32", sT2, sT1, 5); e.salu("s_add_u32", sT2, sT2, sT); e.salu("s_mul_i32", g.sOB, sT2, 36864)
    e.salu("s_mul_i32", sT2, g.sQH, 10240); e.salu("s_add_u32", g.sOB, g.sOB, sT2)
    e.salu("s_lshl_b32", sT2, sT1, 2); e.salu("s_add_u32", g.sFL1, sT2, g.sHG); e.salu("s_add_u32", g.sFL2, sT2, g.sHP)
    e.salu("s_mul_i32", g.sOKP, g.sFL1, 16 * 18432); e.salu("s_add_u32", g.sOKP, g.sOKP, g.sOL); e.salu("s_sub_u32", g.sOKP, g.sOKP, OSL)
    e.salu("s_mul_i32", g.sPB, g.sFL2, 16 * 9216); e.salu("s_add_u32", g.sPB, g.sPB, PWS_OFF)
    e.salu("s_lshl_b32", g.sFL1, g.sFL1, 2); e.salu("s_lshl_b32", g.sFL2, g.sFL2, 2)
    if cfg.local:
        e.other(f"s_getreg_b32 {sT}, hwreg(HW_REG_XCC_ID, 0, 4)")
        e.salu("s_mul_i32", sT1, sT, sT); e.salu("s_lshl_b32", sT1, sT1, 5); e.salu("s_add_u32", sT1, sT1, sT)
        e.salu("s_add_u32", sT1, sT1, 1 << 13)
        e.salu("s_lshl_b32", sXE, sT1, 2)
        e.salu("s_cmp_lt_u32", None, sT, 8); e.salu("s_cselect_b32", sT1, sT1, 0)
        e.salu("s_lshl_b32", sT1, sT1, 16)
        e.salu("s_cmp_lg_u32", None, sW, 0)
        e.branch("s_cbranch_scc1", "L_ann")
        e.valu("v_mov_b32", vT0, sT1); e.valu("v_mov_b32", vT1, 0)
        e.salu("s_mov_b64", "exec", 1)
        e.ins(f"buffer_atomic_add {vT0}, {vT1}, {sDBG}, {g.sFL1} offen sc1", 'vmem', [vT0, vT1, sDBG, g.sFL1], [])
        e.salu("s_mov_b64", "exec", -1)
        e.label("L_ann")
    e.salu("s_lshl_b32", g.sWB, g.sHG, 20); e.salu("s_lshl_b32", sT, g.sHP, 8); e.salu("s_add_u32", g.sWB, g.sWB, sT)
    if cfg.rot == 0:
        e.salu("s_lshl_b32", g.sROT, g.sIDX, 1); e.salu("s_add_u32", g.sROT, g.sROT, g.sHH)
    elif cfg.rot == 1:
        e.salu("s_lshl_b32", g.sROT, g.sIDX, 1); e.salu("s_add_u32", g.sROT, g.sROT, g.sHH); e.salu("s_lshl_b32", g.sROT, g.sROT, 1)
        e.salu("s_lshr_b32", sT, g.sIDX, 3); e.salu("s_and_b32", sT, sT, 1); e.salu("s_add_u32", g.sROT, g.sROT, sT)
    elif cfg.rot == 2:
        e.salu("s_lshl_b32", g.sROT, S(2), 1); e.salu("s_add_u32", g.sROT, g.sROT, g.sHH)
        e.salu("s_mul_i32", g.sROT, g.sROT, "0x9e3779b1"); e.salu("s_lshr_b32", g.sROT, g.sROT, 27)
    elif cfg.rot == 3:
        e.salu("s_lshl_b32", g.sROT, g.sHH, 4); e.salu("s_add_u32", g.sROT, g.sROT, g.sIDX)
    elif cfg.rot == 4:
        e.salu("s_lshl_b32", g.sROT, g.sB, 2); e.salu("s_add_u32", g.sROT, g.sROT, g.sHG)
    elif cfg.rot == 5:
        e.salu("s_mov_b32", g.sROT, 0)
    e.salu("s_and_b32", g.sROT, g.sROT, 31)
    e.salu("s_lshl_b32", g.sROT, g.sROT, 13)
    def kv_reset():
        e.salu("s_lshl_b32", sT, g.sQH, 13); e.salu("s_add_u32", g.sKP, g.sROT, sT); e.salu("s_and_b32", g.sKP, g.sKP, "0x3ffff")
        e.salu("s_lshl_b32", g.sLS, g.sQH, 15); e.salu("s_lshl_b32", sT, g.sHH, 14); e.salu("s_add_u32", g.sLS, g.sLS, sT)
    kv_reset()
    e.salu("s_mov_b32", g.sRETRY, 0)
    e.salu("s_mov_b32", g.sSC, hex(f2u(QSCALE)))
    e.valu("v_and_b32", vT0, 15, vL); e.valu("v_lshrrev_b32", vT1, 4, vL)
    e.valu("v_xor_b32", vT2, vT0, vT1)
    e.valu("v_lshlrev_b32", vT2, 4, vT2); e.valu("v_lshl_add_u32", oK[0], vT1, 8, vT2)
    for n in range(1, 4): e.valu("v_xor_b32", oK[n], n << 6, oK[0])
    e.valu("v_lshlrev_b32", vT2, 1, vT1); e.valu("v_xor_b32", vT2, vT0, vT2)
    e.valu("v_lshlrev_b32", vT2, 4, vT2); e.valu("v_lshl_add_u32", oV[0], vT1, 8, vT2)
    e.valu("v_xor_b32", oV[1], 128, oV[0])
    e.valu("v_lshlrev_b32", vT2, 2, vT1); e.valu("v_xor_b32", vT2, vT0, vT2)
    e.valu("v_lshlrev_b32", vT2, 4, vT2); e.valu("v_lshl_add_u32", oWo[0], vT1, 10, vT2)
    for i in range(1, 4): e.valu("v_add_u32", oWo[i], i * 3072, oWo[0])
    e.salu("s_lshl_b32", sT1, g.sHH, 14)
    def kv_addr_init():
        e.valu("v_and_b32", vT0, 15, vL); e.valu("v_lshrrev_b32", vT1, 4, vL)
        e.salu("s_lshl_b32", sT1, g.sHH, 14); e.salu("s_add_u32", sT2, sT1, 8192)
        e.valu("v_xor_b32", vT2, vT0, vT1); e.valu("v_lshlrev_b32", vT2, 4, vT2)
        e.valu("v_lshl_add_u32", vT2, vT0, 8, vT2); e.valu("v_add_u32", KA[0], sT1, vT2)
        for kk in range(1, 4): e.valu("v_xor_b32", KA[kk], kk << 6, KA[0])
        e.valu("v_lshlrev_b32", vT2, 4, vT1); e.valu("v_add_u32", KBA, sT1, vT2)
        e.valu("v_lshrrev_b32", vT0, 2, vL)
        e.valu("v_and_b32", vT2, 7, vT0); e.valu("v_lshlrev_b32", vT2, 5, vT2)
        e.valu("v_lshl_add_u32", vT2, vT0, 8, vT2)
        e.valu("v_and_b32", vT0, 3, vL); e.valu("v_lshl_add_u32", vT2, vT0, 3, vT2)
        e.valu("v_add_u32", VA[0], sT2, vT2)
        for D in range(1, 8): e.valu("v_xor_b32", VA[D], D << 5, VA[0])
    kv_addr_init()
    e.valu("v_and_b32", vT0, 15, vL)
    e.valu("v_lshrrev_b32", vT2, 1, vT0); e.valu("v_xor_b32", vT2, vT2, vT1); e.valu("v_lshlrev_b32", vT2, 4, vT2)
    e.valu("v_lshl_add_u32", vT2, vT0, 7, vT2); e.valu("v_add_u32", XA[0], XS0, vT2); e.valu("v_xor_b32", XA[1], 64, XA[0])
    e.valu("v_lshlrev_b32", vST, 11, vT0); e.valu("v_lshl_add_u32", vST, vT1, 4, vST)
    e.valu("v_lshrrev_b32", vT0, 2, vL); e.valu("v_and_b32", vT0, 3, vT0)
    e.valu("v_lshl_add_u32", vT2, vT1, 3, vT0); e.valu("v_lshlrev_b32", vT2, 7, vT2)
    e.valu("v_lshrrev_b32", WA[1], 1, vT0); e.valu("v_lshl_add_u32", vT2, WA[1], 6, vT2)
    e.valu("v_and_b32", WA[1], 3, vL); e.valu("v_lshl_add_u32", vT2, WA[1], 4, vT2)
    e.valu("v_add_u32", WA[0], g.sWL, vT2); e.valu("v_xor_b32", WA[1], 64, WA[0])
    e.valu("v_xor_b32", vT0, sW, vT0); e.valu("v_lshlrev_b32", vT0, 6, vT0)
    e.valu("v_and_b32", vT2, 3, vL); e.valu("v_lshl_add_u32", vT0, vT2, 4, vT0)
    e.valu("v_lshrrev_b32", vT2, 2, vL); e.valu("v_lshl_add_u32", GWA[1], vT2, 8, vT0)
    e.valu("v_add_u32", GWA[0], 131072, GWA[1])
    e.valu("v_add_u32", GOA, OSL, vL16)
    e.salu("s_mul_i32", sT1, g.sHH, 36864)
    e.salu("s_lshl_b32", sT2, g.sQH, 11); e.salu("s_add_u32", sT2, sT2, sT1); e.salu("s_add_u32", sT2, sT2, LQ)
    e.valu("v_add_u32", QW, sT2, vL16)
    e.salu("s_mul_i32", sT2, g.sQH, 20480); e.salu("s_add_u32", sT2, sT2, sT1); e.salu("s_add_u32", sT2, sT2, LQ)
    e.valu("v_add_u32", QA, sT2, vL16)
    e.salu("s_mul_i32", sT2, g.sQH, 10240); e.salu("s_add_u32", sT2, sT2, sT1); e.salu("s_add_u32", sT2, sT2, OSL)
    e.valu("v_add_u32", GOW, sT2, vL16)
    e.salu("s_lshl_b32", sT2, sW, 2); e.salu("s_add_u32", sT2, sT2, LFLAG)
    e.valu("v_mov_b32", vFLG, sT2)

    def wwarm_items(allw=False):
        if allw:
            return [lambda: e.salu("s_lshl_b32", sT, g.sB, 2), lambda: e.salu("s_add_u32", sT, sT, sW),
                    lambda: e.salu("s_lshl_b32", sT, sT, 15), lambda: e.salu("s_add_u32", sT, sT, g.sWB),
                    lambda: e.valu("v_lshrrev_b32", vT0, 1, vL), lambda: e.valu("v_lshlrev_b32", vT0, 10, vT0),
                    lambda: e.valu("v_and_b32", vT1, 1, vL), lambda: e.valu("v_lshl_add_u32", vT0, vT1, 7, vT0),
                    lambda: e.bload("buffer_load_dword", V(95), vT0, sWO, sT, pol=cfg.wwarm_pol, tag="ww")]
        its = [lambda: e.salu("s_lshl_b32", sT, g.sB, 1), lambda: e.salu("s_add_u32", sT, sT, g.sHH),
               lambda: e.salu("s_lshl_b32", sT, sT, 16), lambda: e.salu("s_add_u32", sT, sT, g.sWB)]
        if cfg.wwarm_full:
            for n in range(16):
                if n and n % 4 == 0: its.append(lambda: e.salu("s_add_u32", sT, sT, 16384))
                its.append(lambda n=n: e.bload("buffer_load_dwordx4", A(4 * n, 4), oWo[n & 3], sWO, sT, off=(n & 3) * 1024, pol=cfg.wwarm_pol))
        else:
            its += [lambda: e.valu("v_lshlrev_b32", vT0, 10, vL),
                    lambda: e.bload("buffer_load_dword", vT1, vT0, sWO, sT, pol=cfg.wwarm_pol),
                    lambda: e.bload("buffer_load_dword", vT2, vT0, sWO, sT, off=128, pol=cfg.wwarm_pol)]
        return its
    def window():
        if len(e.vm_q) > cfg.win - cfg.wing:
            n = cfg.win - cfg.wing
            e._wait(vm=n); e.vm_q = e.vm_q[len(e.vm_q) - n:]
    def kv_items(tag, adv=1, paced=False):
        its = []
        for srd_, voff, base in ((sK, oK, 0), (sV, oV, 8192)):
            for n in range(8):
                if n % 4 == 0:
                    its.append(lambda n=n, base=base: e.salu("s_add_u32", "m0", g.sLS, base + n * 1024))
                    if n == 0: its.append(lambda: e.salu("s_add_u32", g.sKO, g.sKVB, g.sKP))
                    else: its.append(lambda: e.salu("s_add_u32", g.sKO, g.sKO, 4096))
                if paced and cfg.win and n % cfg.wing == 0: its.append(window)
                its.append(lambda n=n, srd_=srd_, voff=voff: e.dma(voff[n % len(voff)], srd_, g.sKO, off=(n & 3) * 1024, pol=cfg.kv_pol, tag=tag))
        its.append(lambda: e.salu("s_add_u32", g.sKP, g.sKP, 8192))
        its.append(lambda: e.salu("s_and_b32", g.sKP, g.sKP, "0x3ffff"))
        if adv:
            its.append(lambda: e.salu("s_add_u32", g.sLS, g.sLS, 32768))
            its.append(lambda: e.salu("s_and_b32", g.sLS, g.sLS, "0x1ffff"))
        return its
    def k_reads(step):
        return [lambda kk=kk, kt=kt: e.ds_read("ds_read_b128", Kf[kt][kk], KA[kk], (step & 1) * 32768 + kt * 4096, tag="kf")
                for kk in range(4) for kt in range(2)]
    def v_reads(step):
        return [lambda D=D, hi=hi: e.ds_read("ds_read_b64_tr_b16", Vf[D][2 * hi:2 * hi + 2], VA[D], (step & 1) * 32768 + hi * 4096, tag="vf")
                for D in range(8) for hi in range(2)]
    def w_reads(st):
        return [lambda D=D, hi=hi: e.ds_read("ds_read_b64_tr_b16", WF(st & 1, D)[2 * hi:2 * hi + 2], WA[D >> 1],
                                            (st % 3) * 16384 + hi * 512 + (D & 1) * 8, tag="qf") for D in range(4) for hi in range(2)]
    def x_reads(D):
        return [lambda qt=qt, kh=kh: e.ds_read("ds_read_b128", XF((2 * D + kh) % 3, qt), XA[kh], (D & 1) * 18432 + qt * 2048, tag="qf")
                for kh in range(2) for qt in range(9)]
    def run_stage(mfs, rd, fill):
        nf, n, done = len(fill), len(mfs), 0
        for i, m in enumerate(mfs):
            m()
            if rd: rd.popleft()()
            while fill and done * n <= i * nf:
                fill.popleft()(); done += 1
        while rd: rd.popleft()()
        while fill: fill.popleft()()

    if cfg.wwarm_q == -1:
        for f in wwarm_items(True): f()
    e.wait_vm("p0"); e.barrier()
    stamp(1)
    for f in w_reads(0) + x_reads(0): f()
    kvq = deque(kv_items("kv01"))
    for st in range(16):
        e.comment(f"q-proj stage {st}")
        e.wait_vm({0: "p1", 1: "p2"}.get(st, ("iss", st - 2)))
        e.wait_all_lds(); e.barrier()
        fill = deque()
        if st // 2 + 2 < 8: fill.extend(x_items(st // 2 + 2, st & 1, ("iss", st)))
        if st + 3 < 16: fill.extend(w_items(st + 3, ("iss", st)))
        if st == cfg.wwarm_q: fill.extend(wwarm_items(True))
        if st >= cfg.kv0_stage:
            for _ in range(12 if st == cfg.kv0_stage else 16):
                if kvq: fill.append(kvq.popleft())
        rd = deque()
        if st + 1 < 16: rd.extend(w_reads(st + 1))
        if st & 1 and st + 1 < 16: rd.extend(x_reads((st + 1) // 2))
        mfs = [lambda qt=qt, D=D: e.mfma16(QACC(D, qt), WF(st & 1, D), XF(st % 3, qt), QACC(D, qt) if st else 0)
               for qt in range(9) for D in range(4)]
        run_stage(mfs, rd, fill)
    while kvq: kvq.popleft()()
    stamp(2)
    for qt in range(9):
        for P in range(2):
            src = V(112 + (qt * 4 + 2 * P) * 4, 8)
            for i in range(8): e.valu("v_mul_f32", src[i], g.sSC, src[i])
            for i in range(4): e.valu("v_cvt_pk_bf16_f32", src[i], src[2 * i], src[2 * i + 1])
            e.ds_write("ds_write_b128", QW, src[0:4], (qt * 4 + P) * 1024)
    e.valu("v_mov_b32", vT0, "0x3f803f80")
    for i in range(4): e.valu("v_accvgpr_write_b32", ONES[i], vT0)
    e.salu("s_cmp_lg_u32", None, g.sQH, 0)
    e.branch("s_cbranch_scc1", "L_r1")
    hist0 = list(e.hist)

    for role in (0, 1):
        NTW = 5 - role
        R = f"r{role}"
        e.hist = list(hist0)
        if role: e.label("L_r1")
        e.lds_q = ["x"]; e.vm_q = [("kv", 1)] * 16 if role else ["x"]
        if not role: e.wait_all_vm()
        e.wait_all_lds(); e.barrier()
        for kk in range(4): e.ds_read("ds_read_b128", Kb[kk], KBA, kk * 64, tag="kb")
        for t in range(NTW):
            for kk in range(4): e.ds_read("ds_read_b128", Qf(t, kk), QA, (t * 4 + kk) * 1024, tag=("q", min(t, 2)))
        e.salu("s_mov_b32", sT1, "0x80008000")
        e.wait_lds("kb")
        for kk in range(4):
            for i in range(4): e.valu("v_xor_b32", Kb[kk][i], sT1, Kb[kk][i])
        e.wait_all_lds(); e.barrier()
        rd = deque(k_reads(0) + v_reads(0))
        fill = deque()
        if role:
            for s_ in range(2, cfg.la): fill.extend(kv_items(("kv", s_)))
        run_stage([lambda t=t, kk=kk: e.mfma16(NM[t], Kb[kk], Qf(t, kk), NM[t] if kk else 0) for t in range(NTW) for kk in range(4)], rd, fill)
        e.wait_all_lds()
        stamp(3)
        e.flush_hazards(8)
        e.label(f"L_main_{R}")
        e.lds_q = []; e.vm_q = [("kv", s) for s in range(1, cfg.la) for _ in range(16)] if role else []
        NT = 32 * NTW
        extras = deque(); toggles = deque()
        def wo_pre(st, lds):
            its = [lambda: e.salu("s_lshl_b32", sT, g.sHP, 2), lambda: e.salu("s_add_u32", sT, sT, g.sHH),
                   lambda: e.salu("s_add_u32", sT, sT, st), lambda: e.salu("s_lshl_b32", sT, sT, 16),
                   lambda: e.salu("s_add_u32", g.sKO, g.sWB, sT), lambda: e.salu("s_lshl_b32", sT, g.sHH, 14)]
            for n in range(16):
                if n % 4 == 0:
                    its.append(lambda n=n: e.salu("s_add_u32", "m0", sT, lds + n * 1024))
                    if n: its.append(lambda: e.salu("s_add_u32", g.sKO, g.sKO, 16384))
                its.append(lambda n=n: e.dma(oWo[n & 3], sWO, g.sKO, off=(n & 3) * 1024, pol=cfg.wo_pol, tag="wo"))
            return its
        def slot(j):
            e.comment(f"slot t={j % NTW}")
            mf = []
            jq, jp = j + 1, j - 1
            if jq < NT:
                t = jq % NTW
                for kk in range(4):
                    for kt in range(2):
                        def m(kk=kk, kt=kt):
                            d = Sb[jq % 2][4 * kt:4 * kt + 4]
                            e.mfma16(d, Kf[kt][kk], Qf(t, kk), d if kk else NM[t])
                        mf.append(m)
            else:
                mf += [None] * 8
            if jp >= 0:
                s2, t2 = divmod(jp, NTW)
                for D in range(8):
                    mf.append(lambda D=D: e.mfma16(Oacc(t2, D), Vf[D], Pb[jp % 2], Oacc(t2, D) if s2 else 0))
                mf.append(lambda: e.mfma16(Lb[t2], ONES, Pb[jp % 2], Lb[t2] if s2 else 0))
            else:
                mf += [None] * 9
            sm = 0 <= j < NT
            Sx, Px = Sb[j % 2], Pb[j % 2]
            E = lambda i: (lambda: e.valu("v_exp_f32", Sx[i], Sx[i])) if sm else None
            C = lambda i: (lambda: e.valu("v_cvt_pk_bf16_f32", Px[i], Sx[2 * i], Sx[2 * i + 1])) if sm else None
            gaps = [([E(0)], 0), ([], 2), ([E(1)], 0), ([C(0)], 1), ([E(2)], 0), ([], 2), ([E(3)], 0), ([C(1)], 1),
                    ([E(4)], 0), ([], 2), ([E(5)], 0), ([C(2)], 1), ([E(6)], 0), ([], 2), ([E(7)], 0), ([C(3)], 1), ([], 2)]
            kre = deque(); vre = deque()
            lastq = jq < NT and jq % NTW == NTW - 1
            if lastq and jq // NTW + 1 < 32: kre = deque(k_reads(jq // NTW + 1))
            if jp >= 0 and jp % NTW == NTW - 1 and jp // NTW + 1 < 32: vre = deque(v_reads(jp // NTW + 1))
            def flush_reads():
                while rds: rds.popleft()()
            for i in range(17):
                if i == 0 and lastq:
                    s = jq // NTW
                    if role:
                        while extras: extras.popleft()()
                        if s + 1 < 32: e.wait_vm(("kv", s + 1))
                    e.barrier()
                    if not role and s == cfg.wwarm: extras.extend(wwarm_items())
                    if cfg.local and s == 27:
                        extras.extend([lambda: e.valu("v_mov_b32", vT2, 0),
                                       lambda: e.bload("buffer_load_dword", V(95), vT2, sDBG, g.sFL1, pol="sc1", tag="xw")])
                    if role:
                        if s + cfg.la < 32: extras.extend(kv_items(("kv", s + cfg.la), paced=True))
                        elif s + cfg.la == 32: extras.extend(wo_pre(0, 131072))
                        elif s + cfg.la == 33: extras.extend(wo_pre(2, 0))
                if i == 0 and jq < NT and jq % NTW == 0 and jq > 0:
                    flush_reads(); e.wait_lds("kf")
                    if (jq // NTW) % 2 == 1:
                        rds.extend([lambda r=r: e.valu("v_xor_b32", r, "0x10000", r) for r in KA])
                if i == 8 and jp > 0 and jp % NTW == 0:
                    flush_reads(); e.wait_lds("vf")
                    if (jp // NTW) % 2 == 1:
                        rds.extend([lambda r=r: e.valu("v_xor_b32", r, "0x10000", r) for r in VA])
                if mf[i]: mf[i]()
                if i < 8 and kre: rds.append(kre.popleft())
                if 8 <= i < 16 and vre:
                    rds.append(vre.popleft()); rds.append(vre.popleft())
                base, cap = gaps[i]
                for f in base:
                    if f: f()
                if len(rds) > 5: cap += 1
                for _ in range(cap):
                    if rds: rds.popleft()()
                    elif extras: extras.popleft()()
        rds = deque()
        H0 = 2 * NTW + 2; NIT = 12
        for j in range(-1, H0): slot(j)
        e.salu("s_mov_b32", g.sCNT, NIT)
        bodies = []; save = e.lines
        for it in range(NIT):
            e.lines = []
            for j in range(H0 + 2 * NTW * it, H0 + 2 * NTW * (it + 1)): slot(j)
            bodies.append(e.lines)
        for it in range(1, NIT): assert bodies[it] == bodies[0], f"loop body {it} differs"
        e.lines = save
        e.label(f"L_loop_{R}")
        e.lines += bodies[0]
        e.salu("s_sub_u32", g.sCNT, g.sCNT, 1)
        e.salu("s_cmp_lg_u32", None, g.sCNT, 0)
        e.branch("s_cbranch_scc1", f"L_loop_{R}")
        for j in range(H0 + 2 * NTW * NIT, NT + 1): slot(j)
        while rds: rds.popleft()()
        while extras: extras.popleft()()
        if not role: e.wait_all_vm()
        stamp(4)
        LV = [V(32 + 2 * t, 2) for t in range(5)]
        e.salu("s_mov_b32", sT1, hex(f2u(0.25 if cfg.force_fallback else cfg.lthresh)))
        e.salu("s_mov_b64", sM0, 0)
        for t in range(NTW): e.valu("v_accvgpr_read_b32", LV[t][0], Lb[t][0])
        for t in range(NTW):
            e.vcmp("v_cmp_nge_f32", sM1, sT1, LV[t][0])
            e.salu("s_or_b64", sM0, sM0, sM1)
        for t in range(NTW): e.valu("v_rcp_f32", LV[t][0], LV[t][0])
        e.salu("s_or_b32", sT, sM0[0], sM0[1])
        e.valu("v_mov_b32", vT0, sT)
        e.ds_write("ds_write_b32", vFLG, vT0)
        for t in range(NTW): e.valu("v_mov_b32", LV[t][1], LV[t][0])
        def o_epi(pol):
            for t in range(NTW):
                for blk in range(4):
                    o = V(96 + (t * 8 + 2 * blk) * 4, 8)
                    for i in range(4): e.valu("v_pk_mul_f32", o[2 * i:2 * i + 2], o[2 * i:2 * i + 2], LV[t])
                    for i in range(4): e.valu("v_cvt_pk_bf16_f32", o[i], o[2 * i], o[2 * i + 1])
                    off = (blk >> 1) * 18432 + (t * 2 + (blk & 1)) * 1024
                    e.ds_write("ds_write_b128", GOW, o[0:4], off)
                    e.salu("s_add_u32", sT1, g.sOB, off)
                    e.bstore("buffer_store_dwordx4", o[0:4], vL16, sWS, sT1, pol=pol, tag="ost")
        if cfg.local:
            e.wait_vm("xw")
            e.readfirstlane(sT, V(95))
            e.salu("s_lshr_b32", sT, sT, 16)
            if cfg.force_remote: e.salu("s_mov_b32", sT, 0)
            e.salu("s_cmp_eq_u32", None, sT, sXE)
            e.branch("s_cbranch_scc1", f"L_eloc_{R}")
            st_ = (list(e.hist), list(e.lds_q), list(e.vm_q))
            o_epi(cfg.ost_pol)
            e.branch("s_branch", f"L_ejoin_{R}")
            e.hist, e.lds_q, e.vm_q = st_
            e.label(f"L_eloc_{R}")
            o_epi(cfg.loc_pol)
            e.label(f"L_ejoin_{R}")
        else:
            o_epi(cfg.ost_pol)
        if role: e.wait_vm("wo")
        e.wait_all_lds(); e.barrier()
        e.valu("v_mov_b32", vT1, LFLAG)
        e.ds_read("ds_read_b128", V(32, 4), vT1)
        e.wait_all_lds()
        e.valu("v_or_b32", V(32), V(32), V(33)); e.valu("v_or3_b32", V(32), V(32), V(34), V(35))
        e.readfirstlane(sT, V(32))
        e.salu("s_cmp_eq_u32", None, sT, 0)
        e.branch("s_cbranch_scc1", "L_gemm")
        e.salu("s_cmp_lg_u32", None, g.sRETRY, 0)
        e.branch("s_cbranch_scc1", "L_gemm")
        e.salu("s_mov_b32", g.sRETRY, 1)
        e.wait_all()
        kv_addr_init()
        MX = [V(48 + t) for t in range(5)]
        for t in range(NTW): e.valu("v_mov_b32", MX[t], "0xff800000")
        e.salu("s_mov_b32", g.sCNT, 32)
        e.salu("s_mov_b32", g.sKP, 0); e.salu("s_lshl_b32", g.sLS, g.sHH, 14)
        e.label(f"L_max_{R}")
        e.barrier()
        if role:
            for f in kv_items("m", adv=0): f()
            e.wait_all_vm()
        e.barrier()
        for f in k_reads(0): f()
        e.wait_all_lds()
        for t in range(NTW):
            for kk in range(4):
                for kt in range(2):
                    d = Sb[0][4 * kt:4 * kt + 4]
                    e.mfma16(d, Kf[kt][kk], Qf(t, kk), d if kk else 0)
            for i in range(4): e.valu("v_max3_f32", MX[t], Sb[0][2 * i], Sb[0][2 * i + 1], MX[t])
        e.salu("s_sub_u32", g.sCNT, g.sCNT, 1)
        e.salu("s_cmp_lg_u32", None, g.sCNT, 0)
        e.branch("s_cbranch_scc1", f"L_max_{R}")
        for t in range(NTW):
            for op in ("v_permlane32_swap_b32", "v_permlane16_swap_b32"):
                e.valu("v_mov_b32", vT0, MX[t])
                e.perm(op, vT0, MX[t])
                e.valu("v_max_f32", MX[t], vT0, MX[t])
            for i in range(4): e.valu("v_sub_f32", NM[t][i], 0, MX[t])
        e.barrier()
        kv_reset()
        for f in kv_items("m"): f()
        if role:
            for s_ in range(2, cfg.la):
                for f in kv_items("m"): f()
        e.wait_all_vm(); e.barrier()
        for f in k_reads(0) + v_reads(0): f()
        e.wait_all_lds()
        e.flush_hazards(8)
        e.branch("s_branch", f"L_main_{R}")

    e.label("L_gemm")
    e.hist = []; e.lds_q = []; e.vm_q = ["ost"]
    stamp(5)
    WSL = [(0, 0), (0, 16384), (1, 0), (1, 16384)]
    def ga_reads(st):
        r, off = WSL[st % 4]
        return [lambda kb=kb, ee=ee, hi=hi: e.ds_read("ds_read_b64_tr_b16", GA(st & 1, kb * 2 + ee)[2 * hi:2 * hi + 2], GWA[r],
                                                     off + kb * 8192 + hi * 4096 + ee * 8, tag="g") for kb in range(2) for ee in range(2) for hi in range(2)]
    def gb_reads(st):
        return [lambda i=i: e.ds_read("ds_read_b128", GB(st & 1, i), GOA if st % 4 < 3 else GOW, (st % 4 % 3) * 18432 + i * 1024, tag="g")
                for i in range(18)]
    e.valu("v_add_u32", GOW, 3 * 18432, GOA)
    for f in ga_reads(0) + gb_reads(0): f()
    e.salu("s_lshl_b32", g.sWKP, g.sHP, 2); e.salu("s_add_u32", g.sWKP, g.sWKP, 4); e.salu("s_and_b32", g.sWKP, g.sWKP, 15)
    e.salu("s_mov_b32", g.sKP, g.sWKP)
    e.salu("s_lshl_b32", sT, sW, 14); e.salu("s_add_u32", g.sWB, g.sWB, sT)
    def gw_items(st, tag):
        r, off = WSL[st % 4]
        its = [lambda: e.salu("s_lshl_b32", sT, g.sWKP, 16), lambda: e.salu("s_add_u32", g.sKO, g.sWB, sT),
               lambda: e.salu("s_add_u32", "m0", g.sWLG, off + (131072 if r == 0 else 0))]
        for i in range(4): its.append(lambda i=i: e.dma(oWo[i], sWO, g.sKO, off=i * 1024, pol=cfg.wo_pol, tag=tag))
        its.append(lambda: e.salu("s_add_u32", g.sWKP, g.sWKP, 1)); its.append(lambda: e.salu("s_and_b32", g.sWKP, g.sWKP, 15))
        return its
    def go_items(st, tag):
        its = [lambda: e.salu("s_mul_i32", sT2, g.sKP, 18432), lambda: e.salu("s_add_u32", sT2, sT2, g.sOKP),
               lambda: e.salu("s_add_u32", "m0", g.sOL, (st % 4) * 18432)]
        for i in range(4): its.append(lambda i=i: e.dma(vL16, sWS, sT2, off=i * 1024, pol=cfg.old_pol, tag=tag))
        its.append(lambda: e.salu("s_add_u32", "m0", g.sOL, (st % 4) * 18432 + 4096))
        its.append(lambda: e.salu("s_add_u32", sT2, sT2, 4096))
        its.append(lambda: e.dma(vL16, sWS, sT2, pol=cfg.old_pol, tag=tag))
        its.append(lambda: e.salu("s_add_u32", g.sKP, g.sKP, 1)); its.append(lambda: e.salu("s_and_b32", g.sKP, g.sKP, 15))
        return its
    def signal(flag, val, lab):
        e.salu("s_cmp_lg_u32", None, sW, 0)
        e.branch("s_cbranch_scc1", lab)
        e.valu("v_mov_b32", vT0, val); e.valu("v_mov_b32", vT1, 0)
        e.salu("s_mov_b64", "exec", 1)
        e.ins(f"buffer_atomic_add {vT0}, {vT1}, {sDBG}, {flag} offen sc1", 'vmem', [vT0, vT1, sDBG, flag], [])
        e.salu("s_mov_b64", "exec", -1)
        e.label(lab)
    def poll(flag, shift, lab):
        e.valu("v_mov_b32", vT1, 0)
        e.salu("s_mov_b32", g.sSP, 1 << 20)
        e.label(lab)
        e.bload("buffer_load_dword", vT0, vT1, sDBG, flag, pol="sc1")
        e.wait_all_vm()
        e.readfirstlane(sT, vT0)
        e.salu("s_bfe_u32", sT, sT, hex(shift | (8 << 16)))
        e.salu("s_cmp_ge_u32", None, sT, 4)
        e.branch("s_cbranch_scc1", lab + "x")
        e.other(f"s_sleep {cfg.poll_sleep}")
        e.salu("s_sub_u32", g.sSP, g.sSP, 1)
        e.salu("s_cmp_lg_u32", None, g.sSP, 0)
        e.branch("s_cbranch_scc1", lab)
        e.label(lab + "x")
    PS = cfg.poll_stage
    for st in range(16):
        e.comment(f"o-proj stage {st}")
        if st == cfg.sig_stage: e.wait_all_vm()
        if st == PS:
            poll(g.sFL1, 0, "L_poll1")
            stamp(7)
        late = st == 3 and PS == 3
        if st + 1 < 16 and not late:
            e.wait_vm(("w", st + 1)); e.wait_vm(("o", st + 1))
        e.wait_all_lds(); e.barrier()
        if st == cfg.sig_stage:
            signal(g.sFL1, 1, "L_sig1"); stamp(6)
        if st in (4, 8, 12): stamp({4: 12, 8: 13, 12: 14}[st])
        if st == cfg.wbl2:
            e.salu("s_cmp_lg_u32", None, sW, 1)
            e.branch("s_cbranch_scc1", "L_wb")
            e.other("buffer_wbl2 sc1")
            e.label("L_wb")
        fill = deque()
        if st == PS:
            for s2 in range(4, st + 4): fill.extend(go_items(s2, ("o", s2)))
        if st >= PS and st + 4 < 16: fill.extend(go_items(st + 4, ("o", st + 4)))
        if st + 4 < 16: fill.extend(gw_items(st + 4, ("w", st + 4)))
        rd = deque(ga_reads(st + 1) + gb_reads(st + 1)) if st + 1 < 16 and not late else deque()
        mfs = [lambda qt=qt, kb=kb, ee=ee: e.mfma16(GC(qt, ee), GA(st & 1, kb * 2 + ee), GB(st & 1, qt * 2 + kb), GC(qt, ee) if (st or kb) else 0)
               for kb in range(2) for qt in range(9) for ee in range(2)]
        run_stage(mfs, rd, fill)
        if late:
            e.wait_vm(("w", 4)); e.wait_vm(("o", 4)); e.barrier()
            for f in ga_reads(4) + gb_reads(4): f()
    stamp(8)
    e.salu("s_cmp_eq_u32", None, sW, g.sHG)
    e.branch("s_cbranch_scc1", "L_fin")
    h1 = list(e.hist)
    e.salu("s_lshl_b32", sT, sW, 2); e.salu("s_add_u32", sT, sT, g.sHG); e.salu("s_mul_i32", sT, sT, 9216); e.salu("s_add_u32", sT2, sT, g.sPB)
    for qt in range(9):
        o = V(96 + qt * 8, 8)
        for i in range(4): e.valu("v_cvt_pk_bf16_f32", o[i], o[2 * i], o[2 * i + 1])
        if qt and qt % 4 == 0: e.salu("s_add_u32", sT2, sT2, 4096)
        e.bstore("buffer_store_dwordx4", o[0:4], vL16, sWS, sT2, off=(qt % 4) * 1024, pol="sc1")
    e.wait_all_vm(); e.barrier()
    stamp(9)
    stamp_flush()
    e.other("s_endpgm")
    e.label("L_fin")
    e.hist = h1
    e.barrier()
    e.valu("v_mov_b32", vT0, "0x100"); e.valu("v_mov_b32", vT1, 0)
    e.salu("s_mov_b64", "exec", 1)
    e.ins(f"buffer_atomic_add {vT0}, {vT1}, {sDBG}, {g.sFL2} offen sc1", 'vmem', [vT0, vT1, sDBG, g.sFL2], [])
    e.salu("s_mov_b64", "exec", -1)
    stamp(9)
    poll(g.sFL2, 8, "L_poll2")
    stamp(10)
    e.vm_q = []
    PB = lambda s, qt: (V(168 + (s * 9 + qt) * 4, 4) if s < 2 else V(32 + qt * 4, 4))
    for s in range(3):
        e.salu("s_add_u32", sT, g.sHG, s + 1); e.salu("s_and_b32", sT, sT, 3)
        e.salu("s_lshl_b32", sT1, sW, 2); e.salu("s_add_u32", sT, sT, sT1); e.salu("s_mul_i32", sT, sT, 9216); e.salu("s_add_u32", sT2, sT, g.sPB)
        for qt in range(9):
            if qt and qt % 4 == 0: e.salu("s_add_u32", sT2, sT2, 4096)
            e.bload("buffer_load_dwordx4", PB(s, qt), vL16, sWS, sT2, off=(qt % 4) * 1024, pol="sc1", tag=(s, qt))
    e.salu("s_mul_i32", sT2, g.sB, 144 * 2048); e.salu("s_lshl_b32", sT, g.sBR, 10); e.salu("s_add_u32", sT2, sT2, sT)
    e.salu("s_lshl_b32", sT, g.sHP, 8); e.salu("s_add_u32", sT2, sT2, sT); e.salu("s_lshl_b32", sT, sW, 6); e.salu("s_add_u32", sT2, sT2, sT)
    e.salu("s_mov_b32", sT1, "0xffff0000")
    for s in range(3):
        for qt in range(9):
            o = V(96 + qt * 8, 8); p = PB(s, qt)
            e.wait_vm((s, qt))
            for i in range(4):
                e.valu("v_lshlrev_b32", vT0, 16, p[i]); e.valu("v_and_b32", vT1, sT1, p[i])
                e.valu("v_add_f32", o[2 * i], o[2 * i], vT0); e.valu("v_add_f32", o[2 * i + 1], o[2 * i + 1], vT1)
    for qt in range(9):
        o = V(96 + qt * 8, 8)
        for i in range(4): e.valu("v_cvt_pk_bf16_f32", o[i], o[2 * i], o[2 * i + 1])
        e.bstore("buffer_store_dwordx4", o[0:4], vST, sOUT, sT2)
        if qt < 8: e.salu("s_add_u32", sT2, sT2, 32768)
    stamp(11)
    stamp_flush()
    e.label("L_done")
    e.other("s_endpgm")
    e.label("L_end")

def generate(cfg, fn):
    e = Em()
    e.raw('.amdgcn_target "amdgcn-amd-amdhsa--gfx950"'); e.raw(".text")
    gen(e, cfg, NAME + "_kernel")
    top = ("; attention block in one launch: q-projection, attention, output projection; generated by dev/gen2.py\n"
           "; @launch grid=(256,1,1) block=(256,1,1) lds=163840\n")
    tail = '.section .rodata,"a"\n' + descriptor(NAME + "_kernel", 512, 102, 256)
    open(fn, "w").write(top + e.text() + tail)
    return e

if __name__ == "__main__":
    cfg = Cfg()
    fn = sys.argv[1] if len(sys.argv) > 1 else "k.s"
    for kv in sys.argv[2:]:
        k, v = kv.split("=", 1)
        cur = getattr(cfg, k)
        setattr(cfg, k, type(cur)(int(v)) if isinstance(cur, (bool, int)) and not isinstance(cur, float) else (float(v) if isinstance(cur, float) else v))
    e = generate(cfg, fn)
    print(fn, "lines", len(e.lines), "nop states", e.nops)
```

```python
import sys, struct
from collections import deque
from asmlib import *

NAME = "concat_heads__mha_block_cached__gqa_block_cached__near_ridge"
def f2u(x): return struct.unpack("<I", struct.pack("<f", x))[0]
QSCALE = 1.4426950408889634 / (128 ** 0.5)

class Cfg:
    kv_pol = "nt"
    xw_pol = "nt"
    wo_pol = ""
    lthresh = 2.0 ** 40
    force_fallback = False
    stamps = False
    poll_sleep = 2
    kv0_stage = 13
    sig_stage = 0
    poll_stage = 2
    rot = 2
    win = 12
    wing = 2
    wwarm = -1
    wwarm_pol = ""
    wwarm_full = 0
    ost_pol = "sc1"
    old_pol = "sc1"
    local = 0
    wbl2 = -1
    force_remote = 0
    loc_pol = ""
    codewarm = 0
    probe_a = 0
    probe_cyc = 0
    probe = -2
    probe_wg = -1
    ws_off = 0
    wwarm_q = -1
    la = 3

OWS_BYTES = 16 * 64 * 18432
PWS_OFF = OWS_BYTES
PWS_BYTES = 64 * 16 * 9216
WS_USED = OWS_BYTES + PWS_BYTES
STAMP_OFF = 32 << 20
NSTAMP = 16

def descriptor(label, vgpr, sgpr, accum):
    return f""".p2align 6
.amdhsa_kernel {label}
  .amdhsa_next_free_vgpr {vgpr}
  .amdhsa_next_free_sgpr {sgpr}
  .amdhsa_accum_offset {accum}
  .amdhsa_group_segment_fixed_size 0
  .amdhsa_kernarg_size 104
  .amdhsa_user_sgpr_count 2
  .amdhsa_user_sgpr_kernarg_segment_ptr 1
  .amdhsa_system_sgpr_workgroup_id_x 1
.end_amdhsa_kernel
"""

def gen(e, cfg, label):
    e.raw(f".globl {label}"); e.raw(".p2align 8"); e.raw(f".type {label},@function"); e.label(label)
    sX, sWQ, sK, sV, sWS, sWO, sOUT, sDBG = (S(4 * i + 4, 4) for i in range(8))
    names = ("W XCD IDX T T1 T2 B HP HG HH QH BR KVB KP KO LS XS WS2 XL WL CNT RETRY SC ROT OB OKP WB WKP OL PB FL1 FL2 SP WLG").split()
    sXE = S(3)
    sr = {n: S(36 + i) for i, n in enumerate(names)}
    assert 36 + len(names) <= 70
    g = type("G", (), {"s" + n: r for n, r in sr.items()})
    sM0, sM1 = S(70, 2), S(72, 2)
    KARG = 76
    def kp(i): return S(KARG + 2 * i), S(KARG + 2 * i + 1)
    sW, sT, sT1, sT2 = g.sW, g.sT, g.sT1, g.sT2
    vL, vL16, vT0, vT1, vT2 = V(1), V(2), V(3), V(4), V(5)
    KA = [V(6 + i) for i in range(4)]; VA = [V(10 + i) for i in range(8)]
    oK = [V(18 + i) for i in range(4)]; oV = [V(22 + i) for i in range(2)]
    oWo = [V(24 + i) for i in range(4)]
    XA = [V(28), V(29)]; WA = [V(30), V(31)]
    Sb = [V(32 + i * 8, 8) for i in range(2)]
    Kb = [V(32 + kk * 4, 4) for kk in range(4)]
    Pb = [V(48 + i * 4, 4) for i in range(2)]
    NM = [V(56 + t * 4, 4) for t in range(5)]
    oX = [V(76 + i) for i in range(5)]; oWQ = [V(81 + i) for i in range(4)]
    KBA, QA, QW = V(85), V(86), V(87)
    GWA = [V(88), V(89)]; GOA, GOW, vST, vFLG = V(90), V(91), V(92), V(93)
    Oacc = lambda t, D: V(96 + (t * 8 + D) * 4, 4)
    QACC = lambda D, qt: V(112 + (qt * 4 + D) * 4, 4)
    XF = lambda buf, qt: A(buf * 36 + qt * 4, 4)
    WF = lambda buf, D: A(108 + buf * 16 + D * 4, 4)
    Qf = lambda t, kk: A(64 + (t * 4 + kk) * 4, 4)
    Lb = [A(144 + t * 4, 4) for t in range(5)]
    ONES = A(164, 4)
    Kf = [[A(176 + (kt * 4 + kk) * 4, 4) for kk in range(4)] for kt in range(2)]
    Vf = [A(208 + D * 4, 4) for D in range(8)]
    GB = lambda buf, i: A(buf * 72 + i * 4, 4)
    GA = lambda buf, i: A(144 + buf * 16 + i * 4, 4)
    GC = lambda qt, ee: V(96 + (qt * 2 + ee) * 4, 4)
    LQ = 65536; XS0, WS0 = LQ, LQ + 36864
    OSL = 32768; LFLAG = 131072 - 64
    stamp_reg = V(94)

    pl = [0]
    def stamp(i):
        if cfg.stamps:
            e.other("s_memrealtime s[74:75]"); e._wait(lg=0); e.lds_q = []
            e.ins(f"v_writelane_b32 {stamp_reg}, s74, {i}", 'valu', [], [stamp_reg])
            e.other("s_memtime s[74:75]"); e._wait(lg=0)
            e.ins(f"v_writelane_b32 {stamp_reg}, s74, {i + 16}", 'valu', [], [stamp_reg])
    def stamp_flush():
        if not cfg.stamps: return
        e.wait_all_vm(); stamp(NSTAMP - 1)
        if cfg.probe >= 0:
            pl[0] += 1
            e.nop(2)
            e.ins(f"v_readlane_b32 {sT1}, {stamp_reg}, {cfg.probe}", 'readlane', [stamp_reg], [sT1])
            e.nop(4)
            e.salu("s_cmp_eq_u32", None, sT1, 0)
            e.branch("s_cbranch_scc1", f"L_pe{pl[0]}")
            if cfg.probe_wg >= 0:
                e.salu("s_and_b32", sT, S(2), 7)
                e.salu("s_cmp_lg_u32", None, sT, cfg.probe_wg)
                e.branch("s_cbranch_scc1", f"L_pe{pl[0]}")
            o_ = 16 if cfg.probe_cyc else 0
            e.ins(f"v_readlane_b32 {sT1}, {stamp_reg}, {cfg.probe + o_}", 'readlane', [stamp_reg], [sT1])
            e.ins(f"v_readlane_b32 {sT2}, {stamp_reg}, {cfg.probe_a + o_}", 'readlane', [stamp_reg], [sT2])
            e.ins(f"v_readlane_b32 {sT}, {stamp_reg}, 0", 'readlane', [stamp_reg], [sT])
            e.nop(4)
            e.salu("s_sub_u32", sT1, sT1, sT2)
            if cfg.probe_cyc: e.salu("s_lshr_b32", sT1, sT1, 4)
            e.salu("s_add_u32", sT1, sT1, sT)
            e.salu("s_add_u32", sT1, sT1, 12000)
            e.label(f"L_pr{pl[0]}")
            e.other("s_memrealtime s[74:75]"); e._wait(lg=0)
            e.salu("s_sub_u32", sT, S(74), sT1)
            e.salu("s_cmp_lt_i32", None, sT, 0)
            e.branch("s_cbranch_scc1", f"L_pr{pl[0]}")
            e.label(f"L_pe{pl[0]}")
            return
        e.salu("s_lshl_b32", sT, S(2), 2); e.salu("s_add_u32", sT, sT, sW); e.salu("s_lshl_b32", sT, sT, 8)
        e.salu("s_add_u32", sT, sT, STAMP_OFF)
        e.valu("v_lshlrev_b32", vT0, 2, vL)
        e.bstore("buffer_store_dword", stamp_reg, vT0, sWS, sT)

    e.salu("s_cmp_ge_u32", None, S(2), 256)
    e.branch("s_cbranch_scc1", "L_done")
    e.other(f"s_load_dwordx16 s[{KARG}:{KARG+15}], s[0:1], 0")
    e.other(f"s_load_dwordx8 s[{KARG+16}:{KARG+23}], s[0:1], 64")
    e.other(f"s_load_dwordx2 s[{KARG+24}:{KARG+25}], s[0:1], 96")
    if cfg.codewarm:
        e.other("s_getpc_b64 s[70:71]")
        e.label("L_pc")
        e.valu("v_lshlrev_b32", V(6), 7, V(0))
        e.valu("v_mov_b32", V(9), S(71))
        for r in range(2):
            if r: e.valu("v_add_u32", V(6), 32768, V(6))
            e.valu("v_min_u32", V(6), "L_end-L_pc-4", V(6))
            e.ins(f"v_add_co_u32 v{10+2*r}, vcc, s70, v6", 'valu', [V(6)], [V(10 + 2 * r), 'vcc'])
            e.ins(f"v_addc_co_u32 v{11+2*r}, vcc, 0, v9, vcc", 'valu', [V(9), 'vcc'], [V(11 + 2 * r), 'vcc'])
            e.ins(f"global_load_dword v{96+r}, v[{10+2*r}:{11+2*r}], off", 'vmem', [V(10 + 2 * r, 2)], [V(96 + r)]); e.vm_q.append("cw")
    e.valu("v_lshrrev_b32", vT0, 6, V(0))
    e.valu("v_and_b32", vL, 63, V(0))
    e.readfirstlane(sW, vT0)
    if cfg.stamps: e.valu("v_mov_b32", stamp_reg, 0)
    e.salu("s_and_b32", g.sXCD, S(2), 7)
    e.salu("s_lshr_b32", g.sIDX, S(2), 3)
    e.salu("s_lshr_b32", g.sB, g.sIDX, 2); e.salu("s_and_b32", g.sHP, g.sIDX, 3)
    e.salu("s_and_b32", g.sHG, g.sXCD, 3); e.salu("s_lshr_b32", g.sBR, g.sXCD, 2)
    e.salu("s_lshr_b32", g.sHH, sW, 1); e.salu("s_and_b32", g.sQH, sW, 1)
    e.valu("v_lshlrev_b32", vL16, 4, vL)
    e.valu("v_lshrrev_b32", vT1, 4, vL); e.valu("v_lshrrev_b32", vT0, 3, vL)
    e.salu("s_lshl_b32", sT, g.sHP, 1); e.salu("s_add_u32", sT, sT, g.sB); e.salu("s_and_b32", sT, sT, 7)
    e.salu("s_lshl_b32", g.sXS, sT, 7); e.salu("s_lshl_b32", g.sWS2, sT, 19)
    e.salu("s_mul_i32", sT, sW, 9); e.salu("s_lshr_b32", sT, sT, 1)
    e.salu("s_lshl_b32", g.sXL, sT, 10); e.salu("s_add_u32", g.sOL, g.sXL, OSL); e.salu("s_add_u32", g.sXL, g.sXL, XS0)
    e.salu("s_mul_i32", sT1, g.sB, 147456); e.salu("s_lshl_b32", sT2, sT, 13); e.salu("s_add_u32", sT1, sT1, sT2)
    e.salu("s_and_b32", sT, sT, 1); e.salu("s_lshl_b32", sT, sT, 6)
    e.valu("v_and_b32", vT2, 7, vL); e.valu("v_xor_b32", vT2, vT2, vT1); e.valu("v_lshlrev_b32", vT2, 4, vT2)
    e.valu("v_lshl_add_u32", vT2, vT0, 10, vT2); e.valu("v_xor_b32", vT2, sT, vT2)
    e.valu("v_add_u32", oX[0], sT1, vT2); e.valu("v_xor_b32", vT2, 64, oX[0])
    for i in range(1, 5): e.valu("v_add_u32", oX[i], i * 8192 - (i % 3) * 1024, vT2 if i & 1 else oX[0])
    e.salu("s_lshl_b32", sT1, g.sHG, 11); e.salu("s_lshl_b32", sT2, g.sHP, 9); e.salu("s_add_u32", sT1, sT1, sT2)
    e.salu("s_lshl_b32", sT2, sW, 7); e.salu("s_add_u32", sT1, sT1, sT2)
    e.valu("v_and_b32", vT2, 1, vT1); e.valu("v_lshlrev_b32", vT2, 2, vT2)
    e.valu("v_and_b32", oWQ[0], 7, vL); e.valu("v_xor_b32", vT2, oWQ[0], vT2); e.valu("v_lshlrev_b32", vT2, 4, vT2)
    e.valu("v_lshl_add_u32", vT2, vT0, 13, vT2); e.valu("v_add_u32", oWQ[0], sT1, vT2)
    for i in range(1, 4): e.valu("v_add_u32", oWQ[i], i * (65536 - 1024), oWQ[0])
    e.salu("s_lshl_b32", g.sWLG, sW, 12); e.salu("s_add_u32", g.sWL, g.sWLG, WS0)
    e._wait(lg=0)
    e.salu("s_cmp_lg_u32", None, g.sBR, 0)
    def srd(d, a, b, size):
        if b is None:
            e.salu("s_mov_b32", d[0], kp(a)[0]); e.salu("s_mov_b32", d[1], kp(a)[1])
        else:
            e.salu("s_cselect_b32", d[0], kp(b)[0], kp(a)[0]); e.salu("s_cselect_b32", d[1], kp(b)[1], kp(a)[1])
        e.salu("s_mov_b32", d[2], hex(size)); e.salu("s_mov_b32", d[3], "0x20000")
    srd(sX, 0, 5, 8 * 147456); srd(sWQ, 3, 8, 512 * 8192)
    srd(sK, 1, 6, 1 << 26); srd(sV, 2, 7, 1 << 26); srd(sWO, 4, 9, 4096 * 1024)
    stamp(0)

    def x_items(D, part, tag):
        its = [lambda: e.salu("s_add_u32", "m0", g.sXL, (D & 1) * 18432 + part * 3072)]
        for i in range(3 * part, min(5, 3 * part + 3)):
            its.append(lambda i=i: e.dma(oX[i], sX, g.sXS, off=(i % 3) * 1024, pol=cfg.xw_pol, tag=tag))
        if part == 1:
            its.append(lambda: e.salu("s_add_u32", g.sXS, g.sXS, 128))
            its.append(lambda: e.salu("s_and_b32", g.sXS, g.sXS, 1023))
        return its
    def w_items(st, tag):
        its = [lambda: e.salu("s_add_u32", "m0", g.sWL, (st % 3) * 16384)]
        for i in range(4):
            its.append(lambda i=i: e.dma(oWQ[i], sWQ, g.sWS2, off=i * 1024, pol=cfg.xw_pol, tag=tag))
        its.append(lambda: e.salu("s_add_u32", g.sWS2, g.sWS2, 1 << 18))
        its.append(lambda: e.salu("s_and_b32", g.sWS2, g.sWS2, "0x3fffff"))
        return its
    for f in (x_items(0, 0, "p0") + x_items(0, 1, "p0") + w_items(0, "p0") + w_items(1, "p1") +
              x_items(1, 0, "p2") + x_items(1, 1, "p2") + w_items(2, "p2")): f()

    srd(sWS, 12, None, 64 << 20 if cfg.stamps else WS_USED); srd(sOUT, 10, None, 8 * 144 * 2048); srd(sDBG, 11, None, 256)
    if cfg.ws_off:
        assert cfg.ws_off + WS_USED <= 287571968
        e.salu("s_add_u32", sWS[0], sWS[0], cfg.ws_off); e.salu("s_addc_u32", sWS[1], sWS[1], 0)
    e.salu("s_lshl_b32", sT, g.sHG, 3); e.salu("s_lshl_b32", sT1, g.sHP, 1); e.salu("s_add_u32", sT, sT, sT1); e.salu("s_add_u32", sT, sT, g.sHH)
    e.salu("s_lshl_b32", g.sKVB, g.sB, 5); e.salu("s_add_u32", g.sKVB, g.sKVB, sT); e.salu("s_lshl_b32", g.sKVB, g.sKVB, 18)
    e.salu("s_lshl_b32", sT1, g.sBR, 3); e.salu("s_add_u32", sT1, sT1, g.sB)
    e.salu("s_lshl_b32", sT2, sT1, 5); e.salu("s_add_u32", sT2, sT2, sT); e.salu("s_mul_i32", g.sOB, sT2, 36864)
    e.salu("s_mul_i32", sT2, g.sQH, 10240); e.salu("s_add_u32", g.sOB, g.sOB, sT2)
    e.salu("s_lshl_b32", sT2, sT1, 2); e.salu("s_add_u32", g.sFL1, sT2, g.sHG); e.salu("s_add_u32", g.sFL2, sT2, g.sHP)
    e.salu("s_mul_i32", g.sOKP, g.sFL1, 16 * 18432); e.salu("s_add_u32", g.sOKP, g.sOKP, g.sOL); e.salu("s_sub_u32", g.sOKP, g.sOKP, OSL)
    e.salu("s_mul_i32", g.sPB, g.sFL2, 16 * 9216); e.salu("s_add_u32", g.sPB, g.sPB, PWS_OFF)
    e.salu("s_lshl_b32", g.sFL1, g.sFL1, 2); e.salu("s_lshl_b32", g.sFL2, g.sFL2, 2)
    if cfg.local:
        e.other(f"s_getreg_b32 {sT}, hwreg(HW_REG_XCC_ID, 0, 4)")
        e.salu("s_mul_i32", sT1, sT, sT); e.salu("s_lshl_b32", sT1, sT1, 5); e.salu("s_add_u32", sT1, sT1, sT)
        e.salu("s_add_u32", sT1, sT1, 1 << 13)
        e.salu("s_lshl_b32", sXE, sT1, 2)
        e.salu("s_cmp_lt_u32", None, sT, 8); e.salu("s_cselect_b32", sT1, sT1, 0)
        e.salu("s_lshl_b32", sT1, sT1, 16)
        e.salu("s_cmp_lg_u32", None, sW, 0)
        e.branch("s_cbranch_scc1", "L_ann")
        e.valu("v_mov_b32", vT0, sT1); e.valu("v_mov_b32", vT1, 0)
        e.salu("s_mov_b64", "exec", 1)
        e.ins(f"buffer_atomic_add {vT0}, {vT1}, {sDBG}, {g.sFL1} offen sc1", 'vmem', [vT0, vT1, sDBG, g.sFL1], [])
        e.salu("s_mov_b64", "exec", -1)
        e.label("L_ann")
    e.salu("s_lshl_b32", g.sWB, g.sHG, 20); e.salu("s_lshl_b32", sT, g.sHP, 8); e.salu("s_add_u32", g.sWB, g.sWB, sT)
    if cfg.rot == 0:
        e.salu("s_lshl_b32", g.sROT, g.sIDX, 1); e.salu("s_add_u32", g.sROT, g.sROT, g.sHH)
    elif cfg.rot == 1:
        e.salu("s_lshl_b32", g.sROT, g.sIDX, 1); e.salu("s_add_u32", g.sROT, g.sROT, g.sHH); e.salu("s_lshl_b32", g.sROT, g.sROT, 1)
        e.salu("s_lshr_b32", sT, g.sIDX, 3); e.salu("s_and_b32", sT, sT, 1); e.salu("s_add_u32", g.sROT, g.sROT, sT)
    elif cfg.rot == 2:
        e.salu("s_lshl_b32", g.sROT, S(2), 1); e.salu("s_add_u32", g.sROT, g.sROT, g.sHH)
        e.salu("s_mul_i32", g.sROT, g.sROT, "0x9e3779b1"); e.salu("s_lshr_b32", g.sROT, g.sROT, 27)
    elif cfg.rot == 3:
        e.salu("s_lshl_b32", g.sROT, g.sHH, 4); e.salu("s_add_u32", g.sROT, g.sROT, g.sIDX)
    elif cfg.rot == 4:
        e.salu("s_lshl_b32", g.sROT, g.sB, 2); e.salu("s_add_u32", g.sROT, g.sROT, g.sHG)
    elif cfg.rot == 5:
        e.salu("s_mov_b32", g.sROT, 0)
    e.salu("s_and_b32", g.sROT, g.sROT, 31)
    e.salu("s_lshl_b32", g.sROT, g.sROT, 13)
    def kv_reset():
        e.salu("s_lshl_b32", sT, g.sQH, 13); e.salu("s_add_u32", g.sKP, g.sROT, sT); e.salu("s_and_b32", g.sKP, g.sKP, "0x3ffff")
        e.salu("s_lshl_b32", g.sLS, g.sQH, 15); e.salu("s_lshl_b32", sT, g.sHH, 14); e.salu("s_add_u32", g.sLS, g.sLS, sT)
    kv_reset()
    e.salu("s_mov_b32", g.sRETRY, 0)
    e.salu("s_mov_b32", g.sSC, hex(f2u(QSCALE)))
    e.valu("v_and_b32", vT0, 15, vL); e.valu("v_lshrrev_b32", vT1, 4, vL)
    e.valu("v_xor_b32", vT2, vT0, vT1)
    e.valu("v_lshlrev_b32", vT2, 4, vT2); e.valu("v_lshl_add_u32", oK[0], vT1, 8, vT2)
    for n in range(1, 4): e.valu("v_xor_b32", oK[n], n << 6, oK[0])
    e.valu("v_lshlrev_b32", vT2, 1, vT1); e.valu("v_xor_b32", vT2, vT0, vT2)
    e.valu("v_lshlrev_b32", vT2, 4, vT2); e.valu("v_lshl_add_u32", oV[0], vT1, 8, vT2)
    e.valu("v_xor_b32", oV[1], 128, oV[0])
    e.valu("v_lshlrev_b32", vT2, 2, vT1); e.valu("v_xor_b32", vT2, vT0, vT2)
    e.valu("v_lshlrev_b32", vT2, 4, vT2); e.valu("v_lshl_add_u32", oWo[0], vT1, 10, vT2)
    for i in range(1, 4): e.valu("v_add_u32", oWo[i], i * 3072, oWo[0])
    e.salu("s_lshl_b32", sT1, g.sHH, 14)
    def kv_addr_init():
        e.valu("v_and_b32", vT0, 15, vL); e.valu("v_lshrrev_b32", vT1, 4, vL)
        e.salu("s_lshl_b32", sT1, g.sHH, 14); e.salu("s_add_u32", sT2, sT1, 8192)
        e.valu("v_xor_b32", vT2, vT0, vT1); e.valu("v_lshlrev_b32", vT2, 4, vT2)
        e.valu("v_lshl_add_u32", vT2, vT0, 8, vT2); e.valu("v_add_u32", KA[0], sT1, vT2)
        for kk in range(1, 4): e.valu("v_xor_b32", KA[kk], kk << 6, KA[0])
        e.valu("v_lshlrev_b32", vT2, 4, vT1); e.valu("v_add_u32", KBA, sT1, vT2)
        e.valu("v_lshrrev_b32", vT0, 2, vL)
        e.valu("v_and_b32", vT2, 7, vT0); e.valu("v_lshlrev_b32", vT2, 5, vT2)
        e.valu("v_lshl_add_u32", vT2, vT0, 8, vT2)
        e.valu("v_and_b32", vT0, 3, vL); e.valu("v_lshl_add_u32", vT2, vT0, 3, vT2)
        e.valu("v_add_u32", VA[0], sT2, vT2)
        for D in range(1, 8): e.valu("v_xor_b32", VA[D], D << 5, VA[0])
    kv_addr_init()
    e.valu("v_and_b32", vT0, 15, vL)
    e.valu("v_lshrrev_b32", vT2, 1, vT0); e.valu("v_xor_b32", vT2, vT2, vT1); e.valu("v_lshlrev_b32", vT2, 4, vT2)
    e.valu("v_lshl_add_u32", vT2, vT0, 7, vT2); e.valu("v_add_u32", XA[0], XS0, vT2); e.valu("v_xor_b32", XA[1], 64, XA[0])
    e.valu("v_lshlrev_b32", vST, 11, vT0); e.valu("v_lshl_add_u32", vST, vT1, 4, vST)
    e.valu("v_lshrrev_b32", vT0, 2, vL); e.valu("v_and_b32", vT0, 3, vT0)
    e.valu("v_lshl_add_u32", vT2, vT1, 3, vT0); e.valu("v_lshlrev_b32", vT2, 7, vT2)
    e.valu("v_lshrrev_b32", WA[1], 1, vT0); e.valu("v_lshl_add_u32", vT2, WA[1], 6, vT2)
    e.valu("v_and_b32", WA[1], 3, vL); e.valu("v_lshl_add_u32", vT2, WA[1], 4, vT2)
    e.valu("v_add_u32", WA[0], g.sWL, vT2); e.valu("v_xor_b32", WA[1], 64, WA[0])
    e.valu("v_xor_b32", vT0, sW, vT0); e.valu("v_lshlrev_b32", vT0, 6, vT0)
    e.valu("v_and_b32", vT2, 3, vL); e.valu("v_lshl_add_u32", vT0, vT2, 4, vT0)
    e.valu("v_lshrrev_b32", vT2, 2, vL); e.valu("v_lshl_add_u32", GWA[1], vT2, 8, vT0)
    e.valu("v_add_u32", GWA[0], 131072, GWA[1])
    e.valu("v_add_u32", GOA, OSL, vL16)
    e.salu("s_mul_i32", sT1, g.sHH, 36864)
    e.salu("s_lshl_b32", sT2, g.sQH, 11); e.salu("s_add_u32", sT2, sT2, sT1); e.salu("s_add_u32", sT2, sT2, LQ)
    e.valu("v_add_u32", QW, sT2, vL16)
    e.salu("s_mul_i32", sT2, g.sQH, 20480); e.salu("s_add_u32", sT2, sT2, sT1); e.salu("s_add_u32", sT2, sT2, LQ)
    e.valu("v_add_u32", QA, sT2, vL16)
    e.salu("s_mul_i32", sT2, g.sQH, 10240); e.salu("s_add_u32", sT2, sT2, sT1); e.salu("s_add_u32", sT2, sT2, OSL)
    e.valu("v_add_u32", GOW, sT2, vL16)
    e.salu("s_lshl_b32", sT2, sW, 2); e.salu("s_add_u32", sT2, sT2, LFLAG)
    e.valu("v_mov_b32", vFLG, sT2)

    def wwarm_items(allw=False):
        if allw:
            return [lambda: e.salu("s_lshl_b32", sT, g.sB, 2), lambda: e.salu("s_add_u32", sT, sT, sW),
                    lambda: e.salu("s_lshl_b32", sT, sT, 15), lambda: e.salu("s_add_u32", sT, sT, g.sWB),
                    lambda: e.valu("v_lshrrev_b32", vT0, 1, vL), lambda: e.valu("v_lshlrev_b32", vT0, 10, vT0),
                    lambda: e.valu("v_and_b32", vT1, 1, vL), lambda: e.valu("v_lshl_add_u32", vT0, vT1, 7, vT0),
                    lambda: e.bload("buffer_load_dword", V(95), vT0, sWO, sT, pol=cfg.wwarm_pol, tag="ww")]
        its = [lambda: e.salu("s_lshl_b32", sT, g.sB, 1), lambda: e.salu("s_add_u32", sT, sT, g.sHH),
               lambda: e.salu("s_lshl_b32", sT, sT, 16), lambda: e.salu("s_add_u32", sT, sT, g.sWB)]
        if cfg.wwarm_full:
            for n in range(16):
                if n and n % 4 == 0: its.append(lambda: e.salu("s_add_u32", sT, sT, 16384))
                its.append(lambda n=n: e.bload("buffer_load_dwordx4", A(4 * n, 4), oWo[n & 3], sWO, sT, off=(n & 3) * 1024, pol=cfg.wwarm_pol))
        else:
            its += [lambda: e.valu("v_lshlrev_b32", vT0, 10, vL),
                    lambda: e.bload("buffer_load_dword", vT1, vT0, sWO, sT, pol=cfg.wwarm_pol),
                    lambda: e.bload("buffer_load_dword", vT2, vT0, sWO, sT, off=128, pol=cfg.wwarm_pol)]
        return its
    def window():
        if len(e.vm_q) > cfg.win - cfg.wing:
            n = cfg.win - cfg.wing
            e._wait(vm=n); e.vm_q = e.vm_q[len(e.vm_q) - n:]
    def kv_items(tag, adv=1, paced=False):
        its = []
        for srd_, voff, base in ((sK, oK, 0), (sV, oV, 8192)):
            for n in range(8):
                if n % 4 == 0:
                    its.append(lambda n=n, base=base: e.salu("s_add_u32", "m0", g.sLS, base + n * 1024))
                    if n == 0: its.append(lambda: e.salu("s_add_u32", g.sKO, g.sKVB, g.sKP))
                    else: its.append(lambda: e.salu("s_add_u32", g.sKO, g.sKO, 4096))
                if paced and cfg.win and n % cfg.wing == 0: its.append(window)
                its.append(lambda n=n, srd_=srd_, voff=voff: e.dma(voff[n % len(voff)], srd_, g.sKO, off=(n & 3) * 1024, pol=cfg.kv_pol, tag=tag))
        its.append(lambda: e.salu("s_add_u32", g.sKP, g.sKP, 8192))
        its.append(lambda: e.salu("s_and_b32", g.sKP, g.sKP, "0x3ffff"))
        if adv:
            its.append(lambda: e.salu("s_add_u32", g.sLS, g.sLS, 32768))
            its.append(lambda: e.salu("s_and_b32", g.sLS, g.sLS, "0x1ffff"))
        return its
    def k_reads(step):
        return [lambda kk=kk, kt=kt: e.ds_read("ds_read_b128", Kf[kt][kk], KA[kk], (step & 1) * 32768 + kt * 4096, tag="kf")
                for kk in range(4) for kt in range(2)]
    def v_reads(step):
        return [lambda D=D, hi=hi: e.ds_read("ds_read_b64_tr_b16", Vf[D][2 * hi:2 * hi + 2], VA[D], (step & 1) * 32768 + hi * 4096, tag="vf")
                for D in range(8) for hi in range(2)]
    def w_reads(st):
        return [lambda D=D, hi=hi: e.ds_read("ds_read_b64_tr_b16", WF(st & 1, D)[2 * hi:2 * hi + 2], WA[D >> 1],
                                            (st % 3) * 16384 + hi * 512 + (D & 1) * 8, tag="qf") for D in range(4) for hi in range(2)]
    def x_reads(D):
        return [lambda qt=qt, kh=kh: e.ds_read("ds_read_b128", XF((2 * D + kh) % 3, qt), XA[kh], (D & 1) * 18432 + qt * 2048, tag="qf")
                for kh in range(2) for qt in range(9)]
    def run_stage(mfs, rd, fill):
        nf, n, done = len(fill), len(mfs), 0
        for i, m in enumerate(mfs):
            m()
            if rd: rd.popleft()()
            while fill and done * n <= i * nf:
                fill.popleft()(); done += 1
        while rd: rd.popleft()()
        while fill: fill.popleft()()

    if cfg.wwarm_q == -1:
        for f in wwarm_items(True): f()
    e.wait_vm("p0"); e.barrier()
    stamp(1)
    for f in w_reads(0) + x_reads(0): f()
    kvq = deque(kv_items("kv01"))
    for st in range(16):
        e.comment(f"q-proj stage {st}")
        e.wait_vm({0: "p1", 1: "p2"}.get(st, ("iss", st - 2)))
        e.wait_all_lds(); e.barrier()
        fill = deque()
        if st // 2 + 2 < 8: fill.extend(x_items(st // 2 + 2, st & 1, ("iss", st)))
        if st + 3 < 16: fill.extend(w_items(st + 3, ("iss", st)))
        if st == cfg.wwarm_q: fill.extend(wwarm_items(True))
        if st >= cfg.kv0_stage:
            for _ in range(12 if st == cfg.kv0_stage else 16):
                if kvq: fill.append(kvq.popleft())
        rd = deque()
        if st + 1 < 16: rd.extend(w_reads(st + 1))
        if st & 1 and st + 1 < 16: rd.extend(x_reads((st + 1) // 2))
        mfs = [lambda qt=qt, D=D: e.mfma16(QACC(D, qt), WF(st & 1, D), XF(st % 3, qt), QACC(D, qt) if st else 0)
               for qt in range(9) for D in range(4)]
        run_stage(mfs, rd, fill)
    while kvq: kvq.popleft()()
    stamp(2)
    for qt in range(9):
        for P in range(2):
            src = V(112 + (qt * 4 + 2 * P) * 4, 8)
            for i in range(8): e.valu("v_mul_f32", src[i], g.sSC, src[i])
            for i in range(4): e.valu("v_cvt_pk_bf16_f32", src[i], src[2 * i], src[2 * i + 1])
            e.ds_write("ds_write_b128", QW, src[0:4], (qt * 4 + P) * 1024)
    e.valu("v_mov_b32", vT0, "0x3f803f80")
    for i in range(4): e.valu("v_accvgpr_write_b32", ONES[i], vT0)
    e.salu("s_cmp_lg_u32", None, g.sQH, 0)
    e.branch("s_cbranch_scc1", "L_r1")
    hist0 = list(e.hist)

    for role in (0, 1):
        NTW = 5 - role
        R = f"r{role}"
        e.hist = list(hist0)
        if role: e.label("L_r1")
        e.lds_q = ["x"]; e.vm_q = [("kv", 1)] * 16 if role else ["x"]
        if not role: e.wait_all_vm()
        e.wait_all_lds(); e.barrier()
        for kk in range(4): e.ds_read("ds_read_b128", Kb[kk], KBA, kk * 64, tag="kb")
        for t in range(NTW):
            for kk in range(4): e.ds_read("ds_read_b128", Qf(t, kk), QA, (t * 4 + kk) * 1024, tag=("q", min(t, 2)))
        e.salu("s_mov_b32", sT1, "0x80008000")
        e.wait_lds("kb")
        for kk in range(4):
            for i in range(4): e.valu("v_xor_b32", Kb[kk][i], sT1, Kb[kk][i])
        e.wait_all_lds(); e.barrier()
        rd = deque(k_reads(0) + v_reads(0))
        fill = deque()
        if role:
            for s_ in range(2, cfg.la): fill.extend(kv_items(("kv", s_)))
        run_stage([lambda t=t, kk=kk: e.mfma16(NM[t], Kb[kk], Qf(t, kk), NM[t] if kk else 0) for t in range(NTW) for kk in range(4)], rd, fill)
        e.wait_all_lds()
        stamp(3)
        e.flush_hazards(8)
        e.label(f"L_main_{R}")
        e.lds_q = []; e.vm_q = [("kv", s) for s in range(1, cfg.la) for _ in range(16)] if role else []
        NT = 32 * NTW
        extras = deque(); toggles = deque()
        def wo_pre(st, lds):
            its = [lambda: e.salu("s_lshl_b32", sT, g.sHP, 2), lambda: e.salu("s_add_u32", sT, sT, g.sHH),
                   lambda: e.salu("s_add_u32", sT, sT, st), lambda: e.salu("s_lshl_b32", sT, sT, 16),
                   lambda: e.salu("s_add_u32", g.sKO, g.sWB, sT), lambda: e.salu("s_lshl_b32", sT, g.sHH, 14)]
            for n in range(16):
                if n % 4 == 0:
                    its.append(lambda n=n: e.salu("s_add_u32", "m0", sT, lds + n * 1024))
                    if n: its.append(lambda: e.salu("s_add_u32", g.sKO, g.sKO, 16384))
                its.append(lambda n=n: e.dma(oWo[n & 3], sWO, g.sKO, off=(n & 3) * 1024, pol=cfg.wo_pol, tag="wo"))
            return its
        def slot(j):
            e.comment(f"slot t={j % NTW}")
            mf = []
            jq, jp = j + 1, j - 1
            if jq < NT:
                t = jq % NTW
                for kk in range(4):
                    for kt in range(2):
                        def m(kk=kk, kt=kt):
                            d = Sb[jq % 2][4 * kt:4 * kt + 4]
                            e.mfma16(d, Kf[kt][kk], Qf(t, kk), d if kk else NM[t])
                        mf.append(m)
            else:
                mf += [None] * 8
            if jp >= 0:
                s2, t2 = divmod(jp, NTW)
                for D in range(8):
                    mf.append(lambda D=D: e.mfma16(Oacc(t2, D), Vf[D], Pb[jp % 2], Oacc(t2, D) if s2 else 0))
                mf.append(lambda: e.mfma16(Lb[t2], ONES, Pb[jp % 2], Lb[t2] if s2 else 0))
            else:
                mf += [None] * 9
            sm = 0 <= j < NT
            Sx, Px = Sb[j % 2], Pb[j % 2]
            E = lambda i: (lambda: e.valu("v_exp_f32", Sx[i], Sx[i])) if sm else None
            C = lambda i: (lambda: e.valu("v_cvt_pk_bf16_f32", Px[i], Sx[2 * i], Sx[2 * i + 1])) if sm else None
            gaps = [([E(0)], 0), ([], 2), ([E(1)], 0), ([C(0)], 1), ([E(2)], 0), ([], 2), ([E(3)], 0), ([C(1)], 1),
                    ([E(4)], 0), ([], 2), ([E(5)], 0), ([C(2)], 1), ([E(6)], 0), ([], 2), ([E(7)], 0), ([C(3)], 1), ([], 2)]
            kre = deque(); vre = deque()
            lastq = jq < NT and jq % NTW == NTW - 1
            if lastq and jq // NTW + 1 < 32: kre = deque(k_reads(jq // NTW + 1))
            if jp >= 0 and jp % NTW == NTW - 1 and jp // NTW + 1 < 32: vre = deque(v_reads(jp // NTW + 1))
            def flush_reads():
                while rds: rds.popleft()()
            for i in range(17):
                if i == 0 and lastq:
                    s = jq // NTW
                    if role:
                        while extras: extras.popleft()()
                        if s + 1 < 32: e.wait_vm(("kv", s + 1))
                    e.barrier()
                    if not role and s == cfg.wwarm: extras.extend(wwarm_items())
                    if cfg.local and s == 27:
                        extras.extend([lambda: e.valu("v_mov_b32", vT2, 0),
                                       lambda: e.bload("buffer_load_dword", V(95), vT2, sDBG, g.sFL1, pol="sc1", tag="xw")])
                    if role:
                        if s + cfg.la < 32: extras.extend(kv_items(("kv", s + cfg.la), paced=True))
                        elif s + cfg.la == 32: extras.extend(wo_pre(0, 131072))
                        elif s + cfg.la == 33: extras.extend(wo_pre(2, 0))
                if i == 0 and jq < NT and jq % NTW == 0 and jq > 0:
                    flush_reads(); e.wait_lds("kf")
                    if (jq // NTW) % 2 == 1:
                        rds.extend([lambda r=r: e.valu("v_xor_b32", r, "0x10000", r) for r in KA])
                if i == 8 and jp > 0 and jp % NTW == 0:
                    flush_reads(); e.wait_lds("vf")
                    if (jp // NTW) % 2 == 1:
                        rds.extend([lambda r=r: e.valu("v_xor_b32", r, "0x10000", r) for r in VA])
                if mf[i]: mf[i]()
                if i < 8 and kre: rds.append(kre.popleft())
                if 8 <= i < 16 and vre:
                    rds.append(vre.popleft()); rds.append(vre.popleft())
                base, cap = gaps[i]
                for f in base:
                    if f: f()
                if len(rds) > 5: cap += 1
                for _ in range(cap):
                    if rds: rds.popleft()()
                    elif extras: extras.popleft()()
        rds = deque()
        H0 = 2 * NTW + 2; NIT = 12
        for j in range(-1, H0): slot(j)
        e.salu("s_mov_b32", g.sCNT, NIT)
        bodies = []; save = e.lines
        for it in range(NIT):
            e.lines = []
            for j in range(H0 + 2 * NTW * it, H0 + 2 * NTW * (it + 1)): slot(j)
            bodies.append(e.lines)
        for it in range(1, NIT): assert bodies[it] == bodies[0], f"loop body {it} differs"
        e.lines = save
        e.label(f"L_loop_{R}")
        e.lines += bodies[0]
        e.salu("s_sub_u32", g.sCNT, g.sCNT, 1)
        e.salu("s_cmp_lg_u32", None, g.sCNT, 0)
        e.branch("s_cbranch_scc1", f"L_loop_{R}")
        for j in range(H0 + 2 * NTW * NIT, NT + 1): slot(j)
        while rds: rds.popleft()()
        while extras: extras.popleft()()
        if not role: e.wait_all_vm()
        stamp(4)
        LV = [V(32 + 2 * t, 2) for t in range(5)]
        e.salu("s_mov_b32", sT1, hex(f2u(0.25 if cfg.force_fallback else cfg.lthresh)))
        e.salu("s_mov_b64", sM0, 0)
        for t in range(NTW): e.valu("v_accvgpr_read_b32", LV[t][0], Lb[t][0])
        for t in range(NTW):
            e.vcmp("v_cmp_nge_f32", sM1, sT1, LV[t][0])
            e.salu("s_or_b64", sM0, sM0, sM1)
        for t in range(NTW): e.valu("v_rcp_f32", LV[t][0], LV[t][0])
        e.salu("s_or_b32", sT, sM0[0], sM0[1])
        e.valu("v_mov_b32", vT0, sT)
        e.ds_write("ds_write_b32", vFLG, vT0)
        for t in range(NTW): e.valu("v_mov_b32", LV[t][1], LV[t][0])
        def o_epi(pol):
            for t in range(NTW):
                for blk in range(4):
                    o = V(96 + (t * 8 + 2 * blk) * 4, 8)
                    for i in range(4): e.valu("v_pk_mul_f32", o[2 * i:2 * i + 2], o[2 * i:2 * i + 2], LV[t])
                    for i in range(4): e.valu("v_cvt_pk_bf16_f32", o[i], o[2 * i], o[2 * i + 1])
                    off = (blk >> 1) * 18432 + (t * 2 + (blk & 1)) * 1024
                    e.ds_write("ds_write_b128", GOW, o[0:4], off)
                    e.salu("s_add_u32", sT1, g.sOB, off)
                    e.bstore("buffer_store_dwordx4", o[0:4], vL16, sWS, sT1, pol=pol, tag="ost")
        if cfg.local:
            e.wait_vm("xw")
            e.readfirstlane(sT, V(95))
            e.salu("s_lshr_b32", sT, sT, 16)
            if cfg.force_remote: e.salu("s_mov_b32", sT, 0)
            e.salu("s_cmp_eq_u32", None, sT, sXE)
            e.branch("s_cbranch_scc1", f"L_eloc_{R}")
            st_ = (list(e.hist), list(e.lds_q), list(e.vm_q))
            o_epi(cfg.ost_pol)
            e.branch("s_branch", f"L_ejoin_{R}")
            e.hist, e.lds_q, e.vm_q = st_
            e.label(f"L_eloc_{R}")
            o_epi(cfg.loc_pol)
            e.label(f"L_ejoin_{R}")
        else:
            o_epi(cfg.ost_pol)
        if role: e.wait_vm("wo")
        e.wait_all_lds(); e.barrier()
        e.valu("v_mov_b32", vT1, LFLAG)
        e.ds_read("ds_read_b128", V(32, 4), vT1)
        e.wait_all_lds()
        e.valu("v_or_b32", V(32), V(32), V(33)); e.valu("v_or3_b32", V(32), V(32), V(34), V(35))
        e.readfirstlane(sT, V(32))
        e.salu("s_cmp_eq_u32", None, sT, 0)
        e.branch("s_cbranch_scc1", "L_gemm")
        e.salu("s_cmp_lg_u32", None, g.sRETRY, 0)
        e.branch("s_cbranch_scc1", "L_gemm")
        e.salu("s_mov_b32", g.sRETRY, 1)
        e.wait_all()
        kv_addr_init()
        MX = [V(48 + t) for t in range(5)]
        for t in range(NTW): e.valu("v_mov_b32", MX[t], "0xff800000")
        e.salu("s_mov_b32", g.sCNT, 32)
        e.salu("s_mov_b32", g.sKP, 0); e.salu("s_lshl_b32", g.sLS, g.sHH, 14)
        e.label(f"L_max_{R}")
        e.barrier()
        if role:
            for f in kv_items("m", adv=0): f()
            e.wait_all_vm()
        e.barrier()
        for f in k_reads(0): f()
        e.wait_all_lds()
        for t in range(NTW):
            for kk in range(4):
                for kt in range(2):
                    d = Sb[0][4 * kt:4 * kt + 4]
                    e.mfma16(d, Kf[kt][kk], Qf(t, kk), d if kk else 0)
            for i in range(4): e.valu("v_max3_f32", MX[t], Sb[0][2 * i], Sb[0][2 * i + 1], MX[t])
        e.salu("s_sub_u32", g.sCNT, g.sCNT, 1)
        e.salu("s_cmp_lg_u32", None, g.sCNT, 0)
        e.branch("s_cbranch_scc1", f"L_max_{R}")
        for t in range(NTW):
            for op in ("v_permlane32_swap_b32", "v_permlane16_swap_b32"):
                e.valu("v_mov_b32", vT0, MX[t])
                e.perm(op, vT0, MX[t])
                e.valu("v_max_f32", MX[t], vT0, MX[t])
            for i in range(4): e.valu("v_sub_f32", NM[t][i], 0, MX[t])
        e.barrier()
        kv_reset()
        for f in kv_items("m"): f()
        if role:
            for s_ in range(2, cfg.la):
                for f in kv_items("m"): f()
        e.wait_all_vm(); e.barrier()
        for f in k_reads(0) + v_reads(0): f()
        e.wait_all_lds()
        e.flush_hazards(8)
        e.branch("s_branch", f"L_main_{R}")

    e.label("L_gemm")
    e.hist = []; e.lds_q = []; e.vm_q = ["ost"]
    stamp(5)
    WSL = [(0, 0), (0, 16384), (1, 0), (1, 16384)]
    def ga_reads(st):
        r, off = WSL[st % 4]
        return [lambda kb=kb, ee=ee, hi=hi: e.ds_read("ds_read_b64_tr_b16", GA(st & 1, kb * 2 + ee)[2 * hi:2 * hi + 2], GWA[r],
                                                     off + kb * 8192 + hi * 4096 + ee * 8, tag="g") for kb in range(2) for ee in range(2) for hi in range(2)]
    def gb_reads(st):
        return [lambda i=i: e.ds_read("ds_read_b128", GB(st & 1, i), GOA if st % 4 < 3 else GOW, (st % 4 % 3) * 18432 + i * 1024, tag="g")
                for i in range(18)]
    e.valu("v_add_u32", GOW, 3 * 18432, GOA)
    for f in ga_reads(0) + gb_reads(0): f()
    e.salu("s_lshl_b32", g.sWKP, g.sHP, 2); e.salu("s_add_u32", g.sWKP, g.sWKP, 4); e.salu("s_and_b32", g.sWKP, g.sWKP, 15)
    e.salu("s_mov_b32", g.sKP, g.sWKP)
    e.salu("s_lshl_b32", sT, sW, 14); e.salu("s_add_u32", g.sWB, g.sWB, sT)
    def gw_items(st, tag):
        r, off = WSL[st % 4]
        its = [lambda: e.salu("s_lshl_b32", sT, g.sWKP, 16), lambda: e.salu("s_add_u32", g.sKO, g.sWB, sT),
               lambda: e.salu("s_add_u32", "m0", g.sWLG, off + (131072 if r == 0 else 0))]
        for i in range(4): its.append(lambda i=i: e.dma(oWo[i], sWO, g.sKO, off=i * 1024, pol=cfg.wo_pol, tag=tag))
        its.append(lambda: e.salu("s_add_u32", g.sWKP, g.sWKP, 1)); its.append(lambda: e.salu("s_and_b32", g.sWKP, g.sWKP, 15))
        return its
    def go_items(st, tag):
        its = [lambda: e.salu("s_mul_i32", sT2, g.sKP, 18432), lambda: e.salu("s_add_u32", sT2, sT2, g.sOKP),
               lambda: e.salu("s_add_u32", "m0", g.sOL, (st % 4) * 18432)]
        for i in range(4): its.append(lambda i=i: e.dma(vL16, sWS, sT2, off=i * 1024, pol=cfg.old_pol, tag=tag))
        its.append(lambda: e.salu("s_add_u32", "m0", g.sOL, (st % 4) * 18432 + 4096))
        its.append(lambda: e.salu("s_add_u32", sT2, sT2, 4096))
        its.append(lambda: e.dma(vL16, sWS, sT2, pol=cfg.old_pol, tag=tag))
        its.append(lambda: e.salu("s_add_u32", g.sKP, g.sKP, 1)); its.append(lambda: e.salu("s_and_b32", g.sKP, g.sKP, 15))
        return its
    def signal(flag, val, lab):
        e.salu("s_cmp_lg_u32", None, sW, 0)
        e.branch("s_cbranch_scc1", lab)
        e.valu("v_mov_b32", vT0, val); e.valu("v_mov_b32", vT1, 0)
        e.salu("s_mov_b64", "exec", 1)
        e.ins(f"buffer_atomic_add {vT0}, {vT1}, {sDBG}, {flag} offen sc1", 'vmem', [vT0, vT1, sDBG, flag], [])
        e.salu("s_mov_b64", "exec", -1)
        e.label(lab)
    def poll(flag, shift, lab):
        e.valu("v_mov_b32", vT1, 0)
        e.salu("s_mov_b32", g.sSP, 1 << 20)
        e.label(lab)
        e.bload("buffer_load_dword", vT0, vT1, sDBG, flag, pol="sc1")
        e.wait_all_vm()
        e.readfirstlane(sT, vT0)
        e.salu("s_bfe_u32", sT, sT, hex(shift | (8 << 16)))
        e.salu("s_cmp_ge_u32", None, sT, 4)
        e.branch("s_cbranch_scc1", lab + "x")
        e.other(f"s_sleep {cfg.poll_sleep}")
        e.salu("s_sub_u32", g.sSP, g.sSP, 1)
        e.salu("s_cmp_lg_u32", None, g.sSP, 0)
        e.branch("s_cbranch_scc1", lab)
        e.label(lab + "x")
    PS = cfg.poll_stage
    for st in range(16):
        e.comment(f"o-proj stage {st}")
        if st == cfg.sig_stage: e.wait_all_vm()
        if st == PS:
            poll(g.sFL1, 0, "L_poll1")
            stamp(7)
        late = st == 3 and PS == 3
        if st + 1 < 16 and not late:
            e.wait_vm(("w", st + 1)); e.wait_vm(("o", st + 1))
        e.wait_all_lds(); e.barrier()
        if st == cfg.sig_stage:
            signal(g.sFL1, 1, "L_sig1"); stamp(6)
        if st in (4, 8, 12): stamp({4: 12, 8: 13, 12: 14}[st])
        if st == cfg.wbl2:
            e.salu("s_cmp_lg_u32", None, sW, 1)
            e.branch("s_cbranch_scc1", "L_wb")
            e.other("buffer_wbl2 sc1")
            e.label("L_wb")
        fill = deque()
        if st == PS:
            for s2 in range(4, st + 4): fill.extend(go_items(s2, ("o", s2)))
        if st >= PS and st + 4 < 16: fill.extend(go_items(st + 4, ("o", st + 4)))
        if st + 4 < 16: fill.extend(gw_items(st + 4, ("w", st + 4)))
        rd = deque(ga_reads(st + 1) + gb_reads(st + 1)) if st + 1 < 16 and not late else deque()
        mfs = [lambda qt=qt, kb=kb, ee=ee: e.mfma16(GC(qt, ee), GA(st & 1, kb * 2 + ee), GB(st & 1, qt * 2 + kb), GC(qt, ee) if (st or kb) else 0)
               for kb in range(2) for qt in range(9) for ee in range(2)]
        run_stage(mfs, rd, fill)
        if late:
            e.wait_vm(("w", 4)); e.wait_vm(("o", 4)); e.barrier()
            for f in ga_reads(4) + gb_reads(4): f()
    stamp(8)
    e.salu("s_cmp_eq_u32", None, sW, g.sHG)
    e.branch("s_cbranch_scc1", "L_fin")
    h1 = list(e.hist)
    e.salu("s_lshl_b32", sT, sW, 2); e.salu("s_add_u32", sT, sT, g.sHG); e.salu("s_mul_i32", sT, sT, 9216); e.salu("s_add_u32", sT2, sT, g.sPB)
    for qt in range(9):
        o = V(96 + qt * 8, 8)
        for i in range(4): e.valu("v_cvt_pk_bf16_f32", o[i], o[2 * i], o[2 * i + 1])
        if qt and qt % 4 == 0: e.salu("s_add_u32", sT2, sT2, 4096)
        e.bstore("buffer_store_dwordx4", o[0:4], vL16, sWS, sT2, off=(qt % 4) * 1024, pol="sc1")
    e.wait_all_vm(); e.barrier()
    stamp(9)
    stamp_flush()
    e.other("s_endpgm")
    e.label("L_fin")
    e.hist = h1
    e.barrier()
    e.valu("v_mov_b32", vT0, "0x100"); e.valu("v_mov_b32", vT1, 0)
    e.salu("s_mov_b64", "exec", 1)
    e.ins(f"buffer_atomic_add {vT0}, {vT1}, {sDBG}, {g.sFL2} offen sc1", 'vmem', [vT0, vT1, sDBG, g.sFL2], [])
    e.salu("s_mov_b64", "exec", -1)
    stamp(9)
    poll(g.sFL2, 8, "L_poll2")
    stamp(10)
    e.vm_q = []
    PB = lambda s, qt: (V(168 + (s * 9 + qt) * 4, 4) if s < 2 else V(32 + qt * 4, 4))
    for s in range(3):
        e.salu("s_add_u32", sT, g.sHG, s + 1); e.salu("s_and_b32", sT, sT, 3)
        e.salu("s_lshl_b32", sT1, sW, 2); e.salu("s_add_u32", sT, sT, sT1); e.salu("s_mul_i32", sT, sT, 9216); e.salu("s_add_u32", sT2, sT, g.sPB)
        for qt in range(9):
            if qt and qt % 4 == 0: e.salu("s_add_u32", sT2, sT2, 4096)
            e.bload("buffer_load_dwordx4", PB(s, qt), vL16, sWS, sT2, off=(qt % 4) * 1024, pol="sc1", tag=(s, qt))
    e.salu("s_mul_i32", sT2, g.sB, 144 * 2048); e.salu("s_lshl_b32", sT, g.sBR, 10); e.salu("s_add_u32", sT2, sT2, sT)
    e.salu("s_lshl_b32", sT, g.sHP, 8); e.salu("s_add_u32", sT2, sT2, sT); e.salu("s_lshl_b32", sT, sW, 6); e.salu("s_add_u32", sT2, sT2, sT)
    e.salu("s_mov_b32", sT1, "0xffff0000")
    for s in range(3):
        for qt in range(9):
            o = V(96 + qt * 8, 8); p = PB(s, qt)
            e.wait_vm((s, qt))
            for i in range(4):
                e.valu("v_lshlrev_b32", vT0, 16, p[i]); e.valu("v_and_b32", vT1, sT1, p[i])
                e.valu("v_add_f32", o[2 * i], o[2 * i], vT0); e.valu("v_add_f32", o[2 * i + 1], o[2 * i + 1], vT1)
    for qt in range(9):
        o = V(96 + qt * 8, 8)
        for i in range(4): e.valu("v_cvt_pk_bf16_f32", o[i], o[2 * i], o[2 * i + 1])
        e.bstore("buffer_store_dwordx4", o[0:4], vST, sOUT, sT2)
        if qt < 8: e.salu("s_add_u32", sT2, sT2, 32768)
    stamp(11)
    stamp_flush()
    e.label("L_done")
    e.other("s_endpgm")
    e.label("L_end")

def generate(cfg, fn):
    e = Em()
    e.raw('.amdgcn_target "amdgcn-amd-amdhsa--gfx950"'); e.raw(".text")
    gen(e, cfg, NAME + "_kernel")
    top = ("; attention block in one launch: q-projection, attention, output projection; generated by dev/gen2.py\n"
           "; @launch grid=(256,1,1) block=(256,1,1) lds=163840\n")
    tail = '.section .rodata,"a"\n' + descriptor(NAME + "_kernel", 512, 102, 256)
    open(fn, "w").write(top + e.text() + tail)
    return e

if __name__ == "__main__":
    cfg = Cfg()
    fn = sys.argv[1] if len(sys.argv) > 1 else "k.s"
    for kv in sys.argv[2:]:
        k, v = kv.split("=", 1)
        cur = getattr(cfg, k)
        setattr(cfg, k, type(cur)(int(v)) if isinstance(cur, (bool, int)) and not isinstance(cur, float) else (float(v) if isinstance(cur, float) else v))
    e = generate(cfg, fn)
    print(fn, "lines", len(e.lines), "nop states", e.nops)
```

```python
import sys, struct
from collections import deque
from asmlib import *

NAME = "concat_heads__mha_block_cached__gqa_block_cached__near_ridge"
def f2u(x): return struct.unpack("<I", struct.pack("<f", x))[0]
QSCALE = 1.4426950408889634 / (128 ** 0.5)

class Cfg:
    kv_pol = "nt"
    xw_pol = ""
    wo_pol = ""
    lthresh = 2.0 ** 40
    force_fallback = 0
    stamps = False
    poll_sleep = 2
    kv0_stage = 13
    win = 12
    wing = 2
    chunk0 = 4
    swap = 1
    alt = 1
    out_pol = ""
    rotmul = "0x9e3779b1"
    trickle = 3
    trickle0 = 3
    sig_trip = 5
    warm_trip = 3
    cw = 3
    cw_trip = 2
    sig1_step = 35
    pre_step = 60
    warm = 2
    dbg_hot = 0
    sig_stage = 2
    poll_stage = 6
    probe = -2
    probe_a = 0
    probe_cyc = 0
    probe_wg = -1

OWS_BYTES = 16 * 64 * 18432
PWS_OFF = OWS_BYTES
PWS_BYTES = 64 * 16 * 9216
FLG_OFF = OWS_BYTES + PWS_BYTES
WS_USED = FLG_OFF + 128 * 256
STAMP_OFF = 32 << 20
NSTAMP = 16

def descriptor(label, vgpr, sgpr, accum):
    return f""".p2align 6
.amdhsa_kernel {label}
  .amdhsa_next_free_vgpr {vgpr}
  .amdhsa_next_free_sgpr {sgpr}
  .amdhsa_accum_offset {accum}
  .amdhsa_group_segment_fixed_size 0
  .amdhsa_kernarg_size 104
  .amdhsa_user_sgpr_count 2
  .amdhsa_user_sgpr_kernarg_segment_ptr 1
  .amdhsa_system_sgpr_workgroup_id_x 1
.end_amdhsa_kernel
"""

def gen(e, cfg, label):
    e.raw(f".globl {label}"); e.raw(".p2align 8"); e.raw(f".type {label},@function"); e.label(label)
    sX, sWQ, sK, sV, sWS, sWO, sOUT, sDBG = (S(4 * i + 4, 4) for i in range(8))
    sLD = sX
    names = ("W XCD IDX T T1 T2 B HP HG BR KVB KP KO LS XS WS2 XL WL CNT RETRY SC ROT OB OKP WB OL PB FL1 FL2 SP WLG FAIL PUB KVB0").split()
    sr = {n: S(36 + i) for i, n in enumerate(names)}
    assert 36 + len(names) <= 70
    g = type("G", (), {"s" + n: r for n, r in sr.items()})
    sM0, sM1 = S(70, 2), S(72, 2)
    KARG = 76
    def kp(i): return S(KARG + 2 * i), S(KARG + 2 * i + 1)
    sW, sT, sT1, sT2 = g.sW, g.sT, g.sT1, g.sT2
    sU0, sU1 = S(76), S(77)
    sWBw, sOKw = S(79), S(80)
    sPC = S(82, 2)
    sF1, sF2 = S(84), S(85)
    sTAG = S(81)
    TG = V(108, 2)
    sSW2, sOB1 = S(3), S(78)
    vL, vL16, vT0, vT1, vT2 = V(1), V(2), V(3), V(4), V(5)
    KA = [V(6 + i) for i in range(4)]; VA = [V(10 + i) for i in range(8)]
    oK = [V(18 + i) for i in range(4)]; oV = [V(22 + i) for i in range(2)]
    oWo = [V(24 + i) for i in range(4)]
    XA = [V(28), V(29)]; WA = [V(30), V(31)]
    oLD = [V(28 + i) for i in range(4)]
    Sb = [V(32 + i * 8, 8) for i in range(2)]
    Pb = [V(48 + i * 4, 4) for i in range(2)]
    NM = lambda h, t: V(56 + (h * 3 + t) * 4, 4)
    oX = [V(56 + i) for i in range(5)]; oWQ = [V(61 + i) for i in range(4)]
    Kb = [V(80 + kk * 4, 4) for kk in range(4)]
    KBA, QA, QW = V(96), V(97), V(98)
    GWA = [V(99), V(100)]; GOA = [V(101), V(102)]; vST, vFLG, stamp_reg, vD0, vD1 = V(103), V(104), V(105), V(106), V(107)
    Oacc = lambda t, D: V(160 + (t * 8 + D) * 4, 4)
    QACC = lambda D, qt: V(112 + (qt * 4 + D) * 4, 4)
    XF = lambda buf, qt: A(buf * 36 + qt * 4, 4)
    WF = lambda buf, D: A(108 + buf * 16 + D * 4, 4)
    Qf = lambda h, t, kk: A((h * 12 + t * 4 + kk) * 4, 4)
    Lb = [A(96 + t * 4, 4) for t in range(3)]
    ONES = A(108, 4)
    Kf = lambda b, kt, kk: A(112 + b * 32 + (kt * 4 + kk) * 4, 4)
    Vf = lambda b, D: A(176 + b * 32 + D * 4, 4)
    GB = lambda buf, i: A(buf * 72 + i * 4, 4)
    GA = lambda buf, i: A(144 + buf * 16 + i * 4, 4)
    GC = lambda qt, ee: V(112 + (qt * 2 + ee) * 4, 4)
    LQ = 65536; XS0, WS0 = LQ, LQ + 36864
    GSL = [69632, 104448, 0, 34816]; LFLAG = 163840 - 64

    pl = [0]
    def stamp(i):
        if cfg.stamps:
            e.other("s_memrealtime s[74:75]"); e._wait(lg=0); e.lds_q = []
            e.ins(f"v_writelane_b32 {stamp_reg}, s74, {i}", 'valu', [], [stamp_reg])
            if cfg.probe_cyc:
                e.other("s_memtime s[74:75]"); e._wait(lg=0)
                e.ins(f"v_writelane_b32 {stamp_reg}, s74, {i + 16}", 'valu', [], [stamp_reg])
    def stamp_flush():
        if not cfg.stamps: return
        e.wait_all_vm(); stamp(NSTAMP - 1)
        if cfg.probe >= 0:
            pl[0] += 1
            e.nop(2)
            e.ins(f"v_readlane_b32 {sT1}, {stamp_reg}, {cfg.probe}", 'readlane', [stamp_reg], [sT1])
            e.nop(4)
            e.salu("s_cmp_eq_u32", None, sT1, 0)
            e.branch("s_cbranch_scc1", f"L_pe{pl[0]}")
            if cfg.probe_wg >= 0:
                e.salu("s_and_b32", sT, S(2), 7)
                e.salu("s_cmp_lg_u32", None, sT, cfg.probe_wg)
                e.branch("s_cbranch_scc1", f"L_pe{pl[0]}")
            o_ = 16 if cfg.probe_cyc else 0
            e.ins(f"v_readlane_b32 {sT1}, {stamp_reg}, {cfg.probe + o_}", 'readlane', [stamp_reg], [sT1])
            e.ins(f"v_readlane_b32 {sT2}, {stamp_reg}, {cfg.probe_a + o_}", 'readlane', [stamp_reg], [sT2])
            e.ins(f"v_readlane_b32 {sT}, {stamp_reg}, 0", 'readlane', [stamp_reg], [sT])
            e.nop(4)
            e.salu("s_sub_u32", sT1, sT1, sT2)
            if cfg.probe_cyc: e.salu("s_lshr_b32", sT1, sT1, 4)
            e.salu("s_add_u32", sT1, sT1, sT)
            e.salu("s_add_u32", sT1, sT1, 12000)
            e.label(f"L_pr{pl[0]}")
            e.other("s_memrealtime s[74:75]"); e._wait(lg=0)
            e.salu("s_sub_u32", sT, S(74), sT1)
            e.salu("s_cmp_lt_i32", None, sT, 0)
            e.branch("s_cbranch_scc1", f"L_pr{pl[0]}")
            e.label(f"L_pe{pl[0]}")
            return
        e.salu("s_lshl_b32", sT, S(2), 2); e.salu("s_add_u32", sT, sT, sW); e.salu("s_lshl_b32", sT, sT, 8)
        e.salu("s_add_u32", sT, sT, STAMP_OFF)
        e.valu("v_lshlrev_b32", vT0, 2, vL)
        e.bstore("buffer_store_dword", stamp_reg, vT0, sWS, sT)

    e.salu("s_cmp_ge_u32", None, S(2), 256)
    e.branch("s_cbranch_scc1", "L_done")
    e.other(f"s_load_dwordx16 s[{KARG}:{KARG+15}], s[0:1], 0")
    e.other(f"s_load_dwordx8 s[{KARG+16}:{KARG+23}], s[0:1], 64")
    e.other(f"s_load_dwordx2 s[{KARG+24}:{KARG+25}], s[0:1], 96")
    e.other("s_memrealtime s[72:73]")
    e.valu("v_lshrrev_b32", vT0, 6, V(0))
    e.valu("v_and_b32", vL, 63, V(0))
    e.readfirstlane(sW, vT0)
    if cfg.stamps: e.valu("v_mov_b32", stamp_reg, 0)
    e.salu("s_and_b32", g.sXCD, S(2), 7)
    e.salu("s_lshr_b32", g.sIDX, S(2), 3)
    e.salu("s_lshr_b32", g.sB, g.sIDX, 2); e.salu("s_and_b32", g.sHP, g.sIDX, 3)
    e.salu("s_and_b32", g.sHG, g.sXCD, 3); e.salu("s_lshr_b32", g.sBR, g.sXCD, 2)
    e.valu("v_lshlrev_b32", vL16, 4, vL)
    e.valu("v_lshrrev_b32", vT1, 4, vL); e.valu("v_lshrrev_b32", vT0, 3, vL)
    e.salu("s_lshl_b32", sT, g.sHP, 1); e.salu("s_add_u32", sT, sT, g.sB); e.salu("s_and_b32", sT, sT, 7)
    e.salu("s_lshl_b32", g.sXS, sT, 7); e.salu("s_lshl_b32", g.sWS2, sT, 19)
    e.salu("s_mul_i32", sT, sW, 9); e.salu("s_lshr_b32", sT, sT, 1)
    e.salu("s_lshl_b32", g.sOL, sT, 10); e.salu("s_add_u32", g.sXL, g.sOL, XS0)
    e.salu("s_mul_i32", sT1, g.sB, 147456); e.salu("s_lshl_b32", sT2, sT, 13); e.salu("s_add_u32", sT1, sT1, sT2)
    e.salu("s_and_b32", sT, sT, 1); e.salu("s_lshl_b32", sT, sT, 6)
    e.valu("v_and_b32", vT2, 7, vL); e.valu("v_xor_b32", vT2, vT2, vT1); e.valu("v_lshlrev_b32", vT2, 4, vT2)
    e.valu("v_lshl_add_u32", vT2, vT0, 10, vT2); e.valu("v_xor_b32", vT2, sT, vT2)
    e.valu("v_add_u32", oX[0], sT1, vT2); e.valu("v_xor_b32", vT2, 64, oX[0])
    for i in range(1, 5): e.valu("v_add_u32", oX[i], i * 8192 - (i % 3) * 1024, vT2 if i & 1 else oX[0])
    e.salu("s_lshl_b32", sT1, g.sHG, 11); e.salu("s_lshl_b32", sT2, g.sHP, 9); e.salu("s_add_u32", sT1, sT1, sT2)
    e.salu("s_lshl_b32", sT2, sW, 7); e.salu("s_add_u32", sT1, sT1, sT2)
    e.valu("v_and_b32", vT2, 1, vT1); e.valu("v_lshlrev_b32", vT2, 2, vT2)
    e.valu("v_and_b32", oWQ[0], 7, vL); e.valu("v_xor_b32", vT2, oWQ[0], vT2); e.valu("v_lshlrev_b32", vT2, 4, vT2)
    e.valu("v_lshl_add_u32", vT2, vT0, 13, vT2); e.valu("v_add_u32", oWQ[0], sT1, vT2)
    for i in range(1, 4): e.valu("v_add_u32", oWQ[i], i * (65536 - 1024), oWQ[0])
    e.salu("s_lshl_b32", g.sWLG, sW, 12); e.salu("s_add_u32", g.sWL, g.sWLG, WS0)
    e._wait(lg=0)
    if cfg.stamps: e.ins(f"v_writelane_b32 {stamp_reg}, s72, 14", 'valu', [], [stamp_reg])
    e.salu("s_cmp_lg_u32", None, g.sBR, 0)
    def srd(d, a, b, size):
        if b is None:
            e.salu("s_mov_b32", d[0], kp(a)[0]); e.salu("s_mov_b32", d[1], kp(a)[1])
        else:
            e.salu("s_cselect_b32", d[0], kp(b)[0], kp(a)[0]); e.salu("s_cselect_b32", d[1], kp(b)[1], kp(a)[1])
        e.salu("s_mov_b32", d[2], hex(size)); e.salu("s_mov_b32", d[3], "0x20000")
    srd(sX, 0, 5, 8 * 147456); srd(sWQ, 3, 8, 512 * 8192)
    srd(sK, 1, 6, 1 << 26); srd(sV, 2, 7, 1 << 26); srd(sWO, 4, 9, 4096 * 1024)
    srd(sDBG, 11, None, 256)
    e.salu("s_cmp_lg_u32", None, sW, 3)
    e.branch("s_cbranch_scc1", "1f")
    e.salu("s_or_b32", S(72), S(72), 1)
    e.salu("s_lshl_b32", sT, g.sBR, 3); e.salu("s_add_u32", sT, sT, g.sB); e.salu("s_lshl_b32", sT, sT, 4)
    e.valu("v_mov_b32", TG[0], S(72)); e.valu("v_mov_b32", TG[1], 0); e.valu("v_mov_b32", V(110), 0)
    e.salu("s_mov_b64", "exec", 1)
    e.ins(f"buffer_atomic_cmpswap {TG}, v110, {sDBG}, {sT} offen sc0 sc1", 'vmem', [TG, V(110), sDBG, sT], [TG[0]])
    e.salu("s_mov_b64", "exec", -1)
    e.label("1")
    stamp(0)

    def x_items(D, part, tag):
        its = [lambda: e.salu("s_add_u32", "m0", g.sXL, (D & 1) * 18432 + part * 3072)]
        for i in range(3 * part, min(5, 3 * part + 3)):
            its.append(lambda i=i: e.dma(oX[i], sX, g.sXS, off=(i % 3) * 1024, pol=cfg.xw_pol, tag=tag))
        if part == 1:
            its.append(lambda: e.salu("s_add_u32", g.sXS, g.sXS, 128))
            its.append(lambda: e.salu("s_and_b32", g.sXS, g.sXS, 1023))
        return its
    def w_items(st, tag):
        its = [lambda: e.salu("s_add_u32", "m0", g.sWL, (st % 3) * 16384)]
        for i in range(4):
            its.append(lambda i=i: e.dma(oWQ[i], sWQ, g.sWS2, off=i * 1024, pol=cfg.xw_pol, tag=tag))
        its.append(lambda: e.salu("s_add_u32", g.sWS2, g.sWS2, 1 << 18))
        its.append(lambda: e.salu("s_and_b32", g.sWS2, g.sWS2, "0x3fffff"))
        return its
    for f in (x_items(0, 0, "p0") + x_items(0, 1, "p0") + w_items(0, "p0") + w_items(1, "p1") +
              x_items(1, 0, "p2") + x_items(1, 1, "p2") + w_items(2, "p2")): f()

    srd(sWS, 12, None, 64 << 20 if cfg.stamps else WS_USED); srd(sOUT, 10, None, 8 * 144 * 2048)
    e.salu("s_lshl_b32", sT, g.sHG, 3); e.salu("s_lshl_b32", sT1, g.sHP, 1); e.salu("s_add_u32", sT, sT, sT1)
    e.salu("s_lshl_b32", g.sKVB0, g.sB, 5); e.salu("s_add_u32", g.sKVB0, g.sKVB0, sT); e.salu("s_lshl_b32", g.sKVB0, g.sKVB0, 18)
    e.salu("s_lshl_b32", sT1, g.sBR, 3); e.salu("s_add_u32", sT1, sT1, g.sB)
    e.salu("s_lshl_b32", sT2, sT1, 5); e.salu("s_add_u32", sT2, sT2, sT); e.salu("s_mul_i32", g.sOB, sT2, 36864)
    e.salu("s_add_u32", g.sOB, g.sOB, g.sWLG)
    if cfg.swap == 1: e.salu("s_xor_b32", sSW2, g.sB, g.sHG)
    elif cfg.swap == 2:
        e.salu("s_lshr_b32", sSW2, g.sB, 1); e.salu("s_xor_b32", sSW2, sSW2, g.sB); e.salu("s_lshr_b32", sT2, g.sHG, 1); e.salu("s_xor_b32", sSW2, sSW2, sT2)
    e.salu("s_and_b32", sSW2, sSW2, 1 if cfg.swap else 0)
    e.salu("s_lshl_b32", sT2, sSW2, 18); e.salu("s_add_u32", g.sKVB0, g.sKVB0, sT2)
    e.salu("s_mul_i32", sT2, sSW2, 36864); e.salu("s_add_u32", sOB1, g.sOB, 36864); e.salu("s_sub_u32", sOB1, sOB1, sT2); e.salu("s_add_u32", g.sOB, g.sOB, sT2)
    e.salu("s_lshl_b32", sSW2, sSW2, 1)
    e.salu("s_lshl_b32", sT2, sT1, 2); e.salu("s_add_u32", g.sFL1, sT2, g.sHG); e.salu("s_add_u32", g.sFL2, sT2, g.sHP)
    e.salu("s_mul_i32", g.sOKP, g.sFL1, 16 * 18432)
    e.salu("s_mul_i32", g.sPB, g.sFL2, 16 * 9216); e.salu("s_add_u32", g.sPB, g.sPB, PWS_OFF)
    e.salu("s_lshl_b32", sF1, g.sFL1, 8); e.salu("s_add_u32", sF1, sF1, FLG_OFF)
    e.salu("s_lshl_b32", sF2, g.sFL2, 8); e.salu("s_add_u32", sF2, sF2, FLG_OFF + 64 * 256)
    e.salu("s_lshl_b32", g.sFL1, g.sFL1, 2); e.salu("s_lshl_b32", g.sFL2, g.sFL2, 2)
    e.salu("s_lshl_b32", g.sWB, g.sHG, 20); e.salu("s_lshl_b32", sT, g.sHP, 8); e.salu("s_add_u32", g.sWB, g.sWB, sT)
    e.salu("s_lshl_b32", sT, sW, 14); e.salu("s_add_u32", sWBw, g.sWB, sT)
    e.salu("s_add_u32", sOKw, g.sOKP, g.sOL)
    e.other(f"s_getpc_b64 {sPC}")
    e.label("L_pc")
    e.salu("s_mul_i32", g.sROT, S(2), cfg.rotmul); e.salu("s_lshr_b32", g.sROT, g.sROT, 27); e.salu("s_lshl_b32", g.sROT, g.sROT, 13)
    e.salu("s_mov_b32", g.sRETRY, 0); e.salu("s_mov_b32", g.sPUB, 0)
    e.salu("s_mov_b32", g.sSC, hex(f2u(QSCALE)))
    e.valu("v_and_b32", vT0, 15, vL); e.valu("v_lshrrev_b32", vT1, 4, vL)
    e.valu("v_xor_b32", vT2, vT0, vT1)
    e.valu("v_lshlrev_b32", vT2, 4, vT2); e.valu("v_lshl_add_u32", oK[0], vT1, 8, vT2)
    for n in range(1, 4): e.valu("v_xor_b32", oK[n], n << 6, oK[0])
    e.valu("v_lshlrev_b32", vT2, 1, vT1); e.valu("v_xor_b32", vT2, vT0, vT2)
    e.valu("v_lshlrev_b32", vT2, 4, vT2); e.valu("v_lshl_add_u32", oV[0], vT1, 8, vT2)
    e.valu("v_xor_b32", oV[1], 128, oV[0])
    e.valu("v_lshlrev_b32", vT2, 2, vT1); e.valu("v_xor_b32", vT2, vT0, vT2)
    e.valu("v_lshlrev_b32", vT2, 4, vT2); e.valu("v_lshl_add_u32", oWo[0], vT1, 10, vT2)
    for i in range(1, 4): e.valu("v_add_u32", oWo[i], i * 3072, oWo[0])
    def kv_addr_init():
        e.valu("v_and_b32", vT0, 15, vL); e.valu("v_lshrrev_b32", vT1, 4, vL)
        e.valu("v_xor_b32", vT2, vT0, vT1); e.valu("v_lshlrev_b32", vT2, 4, vT2)
        e.valu("v_lshl_add_u32", KA[0], vT0, 8, vT2)
        for kk in range(1, 4): e.valu("v_xor_b32", KA[kk], kk << 6, KA[0])
        e.valu("v_lshlrev_b32", KBA, 4, vT1)
        e.valu("v_lshrrev_b32", vT0, 2, vL)
        e.valu("v_and_b32", vT2, 7, vT0); e.valu("v_lshlrev_b32", vT2, 5, vT2)
        e.valu("v_lshl_add_u32", vT2, vT0, 8, vT2)
        e.valu("v_and_b32", vT0, 3, vL); e.valu("v_lshl_add_u32", vT2, vT0, 3, vT2)
        e.valu("v_add_u32", VA[0], 8192, vT2)
        for D in range(1, 8): e.valu("v_xor_b32", VA[D], D << 5, VA[0])
    kv_addr_init()
    e.valu("v_and_b32", vT0, 15, vL)
    e.valu("v_lshrrev_b32", vT2, 1, vT0); e.valu("v_xor_b32", vT2, vT2, vT1); e.valu("v_lshlrev_b32", vT2, 4, vT2)
    e.valu("v_lshl_add_u32", vT2, vT0, 7, vT2); e.valu("v_add_u32", XA[0], XS0, vT2); e.valu("v_xor_b32", XA[1], 64, XA[0])
    e.valu("v_lshlrev_b32", vST, 11, vT0); e.valu("v_lshl_add_u32", vST, vT1, 4, vST)
    e.valu("v_lshrrev_b32", vT0, 2, vL); e.valu("v_and_b32", vT0, 3, vT0)
    e.valu("v_lshl_add_u32", vT2, vT1, 3, vT0); e.valu("v_lshlrev_b32", vT2, 7, vT2)
    e.valu("v_lshrrev_b32", WA[1], 1, vT0); e.valu("v_lshl_add_u32", vT2, WA[1], 6, vT2)
    e.valu("v_and_b32", WA[1], 3, vL); e.valu("v_lshl_add_u32", vT2, WA[1], 4, vT2)
    e.valu("v_add_u32", WA[0], g.sWL, vT2); e.valu("v_xor_b32", WA[1], 64, WA[0])
    e.valu("v_xor_b32", vT0, sW, vT0); e.valu("v_lshlrev_b32", vT0, 6, vT0)
    e.valu("v_and_b32", vT2, 3, vL); e.valu("v_lshl_add_u32", vT0, vT2, 4, vT0)
    e.valu("v_lshrrev_b32", vT2, 2, vL); e.valu("v_lshl_add_u32", GWA[1], vT2, 8, vT0)
    e.valu("v_add_u32", GWA[0], GSL[0], GWA[1])
    e.valu("v_add_u32", GOA[1], 16384, vL16); e.valu("v_add_u32", GOA[0], GSL[0] + 16384, vL16)
    e.salu("s_lshr_b32", sT1, sW, 1); e.salu("s_mul_i32", sT1, sT1, 36864)
    e.salu("s_and_b32", sT2, sW, 1); e.salu("s_lshl_b32", sT2, sT2, 11); e.salu("s_add_u32", sT2, sT2, sT1); e.salu("s_add_u32", sT2, sT2, LQ)
    e.valu("v_add_u32", QW, sT2, vL16)
    e.salu("s_lshl_b32", sT2, sW, 13); e.salu("s_add_u32", sT2, sT2, LQ)
    e.valu("v_add_u32", QA, sT2, vL16)
    e.salu("s_lshl_b32", sT2, sW, 2); e.salu("s_add_u32", sT2, sT2, LFLAG)
    e.valu("v_mov_b32", vFLG, sT2)

    def kv4_setup():
        e.salu("s_lshl_b32", sT, sW, 13); e.salu("s_add_u32", g.sKP, g.sROT, sT); e.salu("s_and_b32", g.sKP, g.sKP, "0x3ffff")
        e.salu("s_add_u32", g.sKP, g.sKP, g.sKVB0); e.salu("s_lshl_b32", g.sLS, sW, 14)
    def kv4_items(tag, base=None):
        its = []
        for srd_, voff, b_ in ((sK, oK, 0), (sV, oV, 8192)):
            for n in range(8):
                if n % 4 == 0:
                    its.append(lambda n=n, b_=b_: e.salu("s_add_u32", "m0", g.sLS, b_ + n * 1024))
                    its.append(lambda n=n: e.salu("s_add_u32", g.sKO, g.sKP, n * 1024))
                its.append(lambda n=n, srd_=srd_, voff=voff: e.dma(voff[n % len(voff)], srd_, g.sKO, off=(n & 3) * 1024, pol=cfg.kv_pol, tag=tag))
        return its
    kv4_setup()
    def window():
        if cfg.win and len(e.vm_q) > cfg.win - cfg.wing:
            n = cfg.win - cfg.wing
            e._wait(vm=n); e.vm_q = e.vm_q[len(e.vm_q) - n:]
    def ld_setup():
        e.salu("s_cmp_eq_u32", None, sW, 2)
        e.salu("s_cselect_b32", sLD[0], sV[0], sK[0]); e.salu("s_cselect_b32", sLD[1], sV[1], sK[1])
        e.salu("s_mov_b32", sLD[2], hex(1 << 26)); e.salu("s_mov_b32", sLD[3], "0x20000")
        e.salu("s_cselect_b32", g.sLS, 8192, 0)
        e.salu("s_cselect_b64", "vcc", -1, 0)
        e.nop(2)
        for n in range(4): e.ins(f"v_cndmask_b32 {oLD[n]}, {oK[n]}, {oV[n & 1]}, vcc", 'valu', [oK[n], oV[n & 1], 'vcc'], [oLD[n]])
        e.salu("s_add_u32", g.sKP, g.sROT, 4 * 8192); e.salu("s_and_b32", g.sKP, g.sKP, "0x3ffff")
        e.salu("s_mov_b32", g.sKVB, g.sKVB0)
    def ld_items(step):
        its = []
        if step == 32: its.append(lambda: e.salu("s_xor_b32", g.sKVB, g.sKVB, 262144))
        for n in range(8):
            if n == 0:
                its.append(lambda: e.salu("s_add_u32", "m0", g.sLS, (step & 3) * 16384)); its.append(lambda: e.salu("s_add_u32", g.sKO, g.sKVB, g.sKP))
            if n == 4:
                its.append(lambda: e.salu("s_add_u32", "m0", g.sLS, (step & 3) * 16384 + 4096)); its.append(lambda: e.salu("s_add_u32", g.sKO, g.sKO, 4096))
            if n % cfg.wing == 0: its.append(window)
            its.append(lambda n=n: e.dma(oLD[n & 3], sLD, g.sKO, off=(n & 3) * 1024, pol=cfg.kv_pol, tag=("kv", step)))
        its.append(lambda: e.salu("s_add_u32", g.sKP, g.sKP, 0 if cfg.dbg_hot else 8192)); its.append(lambda: e.salu("s_and_b32", g.sKP, g.sKP, "0x3ffff"))
        return its
    def k_reads(step):
        return [lambda kk=kk, kt=kt: e.ds_read("ds_read_b128", Kf(step & 1, kt, kk), KA[kk], (step & 3) * 16384 + kt * 4096, tag="kf")
                for kk in range(4) for kt in range(2)]
    def v_reads(step):
        return [lambda D=D, hi=hi: e.ds_read("ds_read_b64_tr_b16", Vf(step & 1, D)[2 * hi:2 * hi + 2], VA[D], (step & 3) * 16384 + hi * 4096, tag="vf")
                for D in range(8) for hi in range(2)]
    def kb_reads():
        return [lambda kk=kk: e.ds_read("ds_read_b128", Kb[kk], KBA, kk * 64, tag="kf") for kk in range(4)]
    def w_reads(st):
        return [lambda D=D, hi=hi: e.ds_read("ds_read_b64_tr_b16", WF(st & 1, D)[2 * hi:2 * hi + 2], WA[D >> 1],
                                            (st % 3) * 16384 + hi * 512 + (D & 1) * 8, tag="qf") for D in range(4) for hi in range(2)]
    def x_reads(D):
        return [lambda qt=qt, kh=kh: e.ds_read("ds_read_b128", XF((2 * D + kh) % 3, qt), XA[kh], (D & 1) * 18432 + qt * 2048, tag="qf")
                for kh in range(2) for qt in range(9)]
    def run_stage(mfs, rd, fill, span=None):
        nf, n, done = len(fill), span or len(mfs), 0
        for i, m in enumerate(mfs):
            m()
            if rd: rd.popleft()()
            while fill and done * n <= i * nf:
                fill.popleft()(); done += 1
        while rd: rd.popleft()()
        while fill: fill.popleft()()
    GORD = [(dp, 0, i) for dp in range(4) for i in range(2)] + [(0, 1, 0), (0, 1, 1)] + [(dp, 1, i) for i in range(2) for dp in (1, 2, 3)]
    def kpl_items(st, dst):
        dp, h, i = GORD[st]
        return [lambda: e.salu("s_add_u32", dst, g.sHP, dp), lambda: e.salu("s_and_b32", dst, dst, 3),
                lambda: e.salu("s_lshl_b32", dst, dst, 2), lambda: e.salu("s_add_u32", dst, dst, 2 * h + i),
                lambda: e.salu("s_xor_b32", dst, dst, sSW2)]
    def full_stage_items(st, tag, lds=None, kadd=None):
        its = kpl_items(st, sU0)
        if kadd is not None: its.append(lambda: e.salu("s_add_u32", sU0, sU0, kadd))
        its += [lambda: e.salu("s_lshl_b32", sU1, sU0, 16), lambda: e.salu("s_add_u32", sU1, sU1, g.sWB),
                lambda: e.salu("s_mul_i32", sU0, sU0, 18432), lambda: e.salu("s_add_u32", sU0, sU0, g.sOKP)]
        def m0(off):
            if lds is None: e.salu("s_mov_b32", "m0", GSL[st % 4] + off)
            else: e.salu("s_add_u32", "m0", lds, GSL[st % 4] + off)
        for n in range(16):
            if n % 4 == 0:
                its.append(lambda n=n: m0(n * 1024))
                if n: its.append(lambda: e.salu("s_add_u32", sU1, sU1, 16384))
            its.append(lambda n=n: e.dma(oWo[n & 3], sWO, sU1, off=(n & 3) * 1024, pol=cfg.wo_pol, tag=tag))
        for n in range(18):
            if n % 4 == 0:
                its.append(lambda n=n: m0(16384 + n * 1024))
                if n: its.append(lambda: e.salu("s_add_u32", sU0, sU0, 4096))
            its.append(lambda n=n: e.dma(vL16, sWS, sU0, off=(n & 3) * 1024, pol="sc1", tag=tag))
        return its
    def gw_items(st):
        its = kpl_items(st, sU1)
        its += [lambda: e.salu("s_lshl_b32", sU1, sU1, 16), lambda: e.salu("s_add_u32", sU1, sU1, sWBw),
                lambda: e.salu("s_add_u32", "m0", g.sWLG, GSL[st % 4])]
        for i in range(4): its.append(lambda i=i: e.dma(oWo[i], sWO, sU1, off=i * 1024, pol=cfg.wo_pol, tag=("g", st)))
        return its
    def go_items(st):
        its = kpl_items(st, sU0)
        its += [lambda: e.salu("s_mul_i32", sU0, sU0, 18432), lambda: e.salu("s_add_u32", sU0, sU0, sOKw),
                lambda: e.salu("s_add_u32", "m0", g.sOL, GSL[st % 4] + 16384)]
        for i in range(4): its.append(lambda i=i: e.dma(vL16, sWS, sU0, off=i * 1024, pol="sc1", tag=("g", st)))
        its += [lambda: e.salu("s_add_u32", "m0", g.sOL, GSL[st % 4] + 16384 + 4096), lambda: e.salu("s_add_u32", sU0, sU0, 4096),
                lambda: e.dma(vL16, sWS, sU0, pol="sc1", tag=("g", st))]
        return its
    def code_touch():
        e.salu("s_lshl_b32", sT, g.sIDX, 12)
        e.valu("v_lshlrev_b32", V(109), 6, vL)
        e.valu("v_add_u32", V(109), sT, V(109))
        e.valu("v_min_u32", V(109), "L_end-L_pc-4", V(109))
        e.ins(f"v_add_co_u32 v110, vcc, {sPC[0]}, v109", 'valu', [V(109)], [V(110), 'vcc'])
        e.valu("v_mov_b32", V(111), sPC[1])
        e.ins(f"v_addc_co_u32 v111, vcc, 0, v111, vcc", 'valu', [V(111), 'vcc'], [V(111), 'vcc'])
        e.ins(f"global_load_dword {vD1}, v[110:111], off", 'vmem', [V(110, 2)], [vD1]); e.vm_q.append("cw")
    def warm_items():
        its = [lambda: e.salu("s_lshl_b32", sU0, g.sB, 17), lambda: e.salu("s_add_u32", sU0, sU0, g.sWB),
               lambda: e.valu("v_lshlrev_b32", vT2, 10, vL)]
        for n in range(4):
            if n == 2: its.append(lambda: e.salu("s_add_u32", sU0, sU0, 65536))
            its.append(lambda n=n: e.bload("buffer_load_dword", vD1, vT2, sWO, sU0, off=(n & 1) * 128, pol=cfg.wo_pol, tag="pre"))
        return its
    def atomic_add(flag, val):
        e.valu("v_mov_b32", vT0, val); e.valu("v_mov_b32", vT1, 0)
        e.salu("s_mov_b64", "exec", 1)
        e.ins(f"buffer_atomic_add {vT0}, {vT1}, {sDBG}, {flag} offen sc1", 'vmem', [vT0, vT1, sDBG, flag], [])
        e.salu("s_mov_b64", "exec", -1)
    def flag_store(line, off, who):
        e.salu("s_lshl_b32", sT, who, 3)
        e.valu("v_mov_b32", V(110), sTAG); e.valu("v_not_b32", V(111), sTAG); e.valu("v_mov_b32", vT1, sT)
        e.salu("s_mov_b64", "exec", 1)
        e.ins(f"buffer_store_dwordx2 v[110:111], {vT1}, {sWS}, {line} offen offset:{off} sc1", 'vmem', [V(110, 2), vT1, sWS, line], [])
        e.salu("s_mov_b64", "exec", -1)
    def flag_load(line, off, tag):
        e.valu("v_and_b32", vT2, 3, vL); e.valu("v_lshlrev_b32", vT2, 3, vT2)
        e.bload("buffer_load_dwordx2", TG, vT2, sWS, line, off=off, pol="sc1", tag=tag)
    def flag_test():
        e.valu("v_not_b32", TG[1], TG[1])
        e.valu("v_xor_b32", TG[0], sTAG, TG[0]); e.valu("v_xor_b32", TG[1], sTAG, TG[1]); e.valu("v_or_b32", TG[0], TG[0], TG[1])
        e.vcmp("v_cmp_ne_u32", "vcc", 0, TG[0])
        e.salu("s_cmp_eq_u64", None, "vcc", 0)
    def poll(line, off, lab):
        e.salu("s_mov_b32", g.sSP, 1 << 20)
        e.label(lab)
        flag_load(line, off, None)
        e.wait_all_vm()
        flag_test()
        e.branch("s_cbranch_scc1", lab + "x")
        e.other(f"s_sleep {cfg.poll_sleep}")
        e.salu("s_sub_u32", g.sSP, g.sSP, 1)
        e.salu("s_cmp_lg_u32", None, g.sSP, 0)
        e.branch("s_cbranch_scc1", lab)
        e.label(lab + "x")
    def read_fail(n):
        e.valu("v_mov_b32", vT1, LFLAG)
        for i in range(n): e.ds_read("ds_read_b128", V(80 + 4 * i, 4), vT1, 16 * i)
        e.wait_all_lds()
        e.valu("v_or_b32", V(80), V(80), V(81)); e.valu("v_or3_b32", V(80), V(80), V(82), V(83))
        if n == 2:
            e.valu("v_or3_b32", V(80), V(80), V(84), V(85)); e.valu("v_or3_b32", V(80), V(80), V(86), V(87))
        e.readfirstlane(sT, V(80))

    if cfg.cw & 2:
        e.salu("s_cmp_lg_u32", None, sW, 2)
        e.branch("s_cbranch_scc1", "1f")
        q_ = list(e.vm_q)
        code_touch()
        e.vm_q = q_
        e.label("1")
    e.wait_vm("p0"); e.barrier()
    stamp(1)
    for f in w_reads(0) + x_reads(0): f()
    kvq = deque(kv4_items("kv4"))
    for st in range(16):
        e.comment(f"q-proj stage {st}")
        e.wait_vm({0: "p1", 1: "p2"}.get(st, ("iss", st - 2)))
        e.wait_all_lds(); e.barrier()
        fill = deque()
        if st // 2 + 2 < 8: fill.extend(x_items(st // 2 + 2, st & 1, ("iss", st)))
        if st + 3 < 16: fill.extend(w_items(st + 3, ("iss", st)))
        if st >= cfg.kv0_stage:
            for _ in range(12):
                if kvq: fill.append(kvq.popleft())
        rd = deque()
        if st + 1 < 16: rd.extend(w_reads(st + 1))
        if st & 1 and st + 1 < 16: rd.extend(x_reads((st + 1) // 2))
        mfs = [lambda qt=qt, D=D: e.mfma16(QACC(D, qt), WF(st & 1, D), XF(st % 3, qt), QACC(D, qt) if st else 0)
               for qt in range(9) for D in range(4)]
        run_stage(mfs, rd, fill)
    while kvq: kvq.popleft()()
    stamp(2)
    e.valu("v_mov_b32", V(32), g.sSC); e.valu("v_mov_b32", V(33), g.sSC)
    for qt in range(9):
        for P in range(2):
            src = V(112 + (qt * 4 + 2 * P) * 4, 8)
            for i in range(4): e.valu("v_pk_mul_f32", src[2 * i:2 * i + 2], src[2 * i:2 * i + 2], V(32, 2))
            for i in range(4): e.valu("v_cvt_pk_bf16_f32", src[i], src[2 * i], src[2 * i + 1])
            e.ds_write("ds_write_b128", QW, src[0:4], (qt * 4 + P) * 1024)
    e.valu("v_mov_b32", vT0, "0x3f803f80")
    for i in range(4): e.valu("v_accvgpr_write_b32", ONES[i], vT0)
    ld_setup()
    e.salu("s_cmp_eq_u32", None, sW, 3)
    e.branch("s_cbranch_scc1", "L_rC")
    e.salu("s_cmp_lg_u32", None, sW, 0)
    e.branch("s_cbranch_scc1", "L_rB")
    hist0 = list(e.hist)

    X8 = 139264
    CAPS = [0, 2, 0, 1, 0, 2, 0, 1, 0, 2, 0, 1, 0, 2, 0, 1, 2]
    for R in "ABC":
        NTW = 2 if R == "B" else 3
        toff = lambda t: ({"A": 8, "C": 2}[R] if t == 2 else t)
        e.hist = list(hist0)
        if R != "A": e.label(f"L_r{R}")
        e.lds_q = ["x"]; e.vm_q = ["x"]
        if R == "A": e.wait_all_vm()
        e.salu("s_mul_i32", sT, sSW2, 18432)
        e.valu("v_add_u32", vT2, 36864, QA); e.valu("v_subrev_u32", vT2, sT, vT2); e.valu("v_add_u32", vT1, sT, QA)
        e.valu("v_add_u32", vD0, X8, vL16)
        e.wait_all_lds(); e.barrier()
        for f in kb_reads(): f()
        for h in range(2):
            for t in range(NTW):
                for kk in range(4): e.ds_read("ds_read_b128", Qf(h, t, kk), vT2 if h else vT1, (toff(t) * 4 + kk) * 1024, tag="q")
            if h == 0:
                for f in k_reads(0): f()
        for f in v_reads(0): f()
        e.wait_all_lds()
        def prepass(h):
            e.comment("stand-in for the row max: minus the score of the first key, per row")
            e.salu("s_cmp_lg_u32", None, g.sRETRY, 0)
            e.branch("s_cbranch_scc1", f"L_np{h}{R}")
            e.salu("s_mov_b32", sT1, "0x80008000")
            for kk in range(4):
                for i in range(4): e.valu("v_xor_b32", Kb[kk][i], sT1, Kb[kk][i])
            for t in range(NTW):
                for kk in range(4): e.mfma16(NM(h, t), Kb[kk], Qf(h, t, kk), NM(h, t) if kk else 0)
            e.label(f"L_np{h}{R}")
        if R == "C":
            e.wait_all_vm()
            e.readfirstlane(sT, TG[0])
            e.salu("s_cmp_eq_u32", None, sT, 0)
            e.salu("s_cselect_b32", sT, S(72), sT)
            e.valu("v_mov_b32", vT0, sT); e.valu("v_mov_b32", vT1, LFLAG)
            e.ds_write("ds_write_b32", vT1, vT0, 32)
            e.wait_all_lds()
        stamp(3)
        e.label(f"L_main_{R}")
        e.lds_q = []; e.vm_q = [] if R == "A" else [("kv", 1)] * 16
        e.salu("s_mov_b32", g.sFAIL, 0)
        seq = [(s, t) for s in range(32) for t in range(3 if (R == "A" and s % 2 == 0) or (R == "C" and s % 2 == 1) else 2)]
        if not cfg.alt: seq = [(s, t) for s in range(32) for t in range(3 if R == "A" else 2)]
        NT = len(seq)
        first = {s: j for j, (s, t) in reversed(list(enumerate(seq)))}; first[32] = NT
        bpos = {}
        for s in range(1, 33):
            if s % 2 == 0 or R == "B" or not cfg.alt: bpos[(first[s], 0)] = s
            elif R == "A": bpos[(first[s] - 1, 8)] = s
            else: bpos[(first[s], 8)] = s
        def cap_left(j, i):
            n = k = 0
            while True:
                n += CAPS[i]; k += CAPS[i] > 0
                i += 1
                if i == 17: i = 0; j += 1
                if (j, i) in bpos or j > NT: return n, k
        extras = deque(); rds = deque(); lastk = [None]; later = deque()
        def beta(sg):
            while rds: rds.popleft()()
            if sg < 61:
                while extras: extras.popleft()()
            if sg + 1 < 64: e.wait_vm(("kv", sg + 1))
            hook = 36 <= sg < 60 and sg % 4 == 0
            if hook:
                if R == "B": assert sg == 36 or "ost0" not in e.vm_q
                else: e.wait_all_vm()
            if R == "C" and sg == 63:
                while extras: extras.popleft()()
                e.wait_vm("fl0")
                flag_test()
                e.branch("s_cbranch_scc1", "L_poll0x")
                e.salu("s_cmp_lg_u32", None, g.sFAIL, 0)
                e.branch("s_cbranch_scc1", "L_poll0x")
                q_ = list(e.vm_q)
                poll(sF1, 0, "L_poll0")
                e.vm_q = q_
            if e.lds_q: e.wait_all_lds()
            if not cfg.dbg_hot & 2: e.barrier()
            for _ in range(cfg.trickle):
                if later and sg > 32: extras.extend(later.popleft())
            if R == "B" and not cfg.dbg_hot & 8:
                if sg + 4 < 64: extras.extend(ld_items(sg + 4))
                if sg == 60:
                    extras.append(lambda: e.salu("s_sub_u32", sT1, sW, 1)); extras.append(lambda: e.salu("s_mul_i32", sT2, sT1, 34816))
                    extras.extend(full_stage_items(0, "pre", lds=sT2, kadd=sT1))
            if sg == 63: extras.extend(gw_items(2) + go_items(2) + gw_items(3) + go_items(3))
            if R == "A" and cfg.cw and sg % 4 == 0 and 4 <= sg % 32 < 28:
                e.salu("s_cmp_lg_u32", None, g.sCNT, cfg.cw_trip)
                e.branch("s_cbranch_scc1", "1f")
                q_ = list(e.vm_q)
                code_touch()
                e.vm_q = q_
                e.label("1")
            if R == "C":
                if hook:
                    e.salu("s_cmp_lg_u32", None, g.sCNT, cfg.sig_trip)
                    e.branch("s_cbranch_scc1", "1f")
                    read_fail(1)
                    e.salu("s_andn2_b32", g.sFAIL, sT, g.sRETRY)
                    e.salu("s_or_b32", sT, g.sFAIL, g.sPUB)
                    e.salu("s_cmp_lg_u32", None, sT, 0)
                    e.branch("s_cbranch_scc1", "1f")
                    flag_store(sF1, 0, g.sHP)
                    e.label("1")
                    if cfg.warm == 2:
                        e.salu("s_cmp_lg_u32", None, g.sCNT, cfg.warm_trip)
                        e.branch("s_cbranch_scc1", "2f")
                        for f in warm_items(): f()
                        e.label("2")
                if sg == cfg.pre_step:
                    flag_load(sF1, 0, "fl0")
                if sg == cfg.pre_step and cfg.warm == 1: extras.extend(warm_items())
                if sg % 32 == 0 and sg and cfg.alt:
                    rds.append(lambda: e.ds_read("ds_read_b32", V(144), vD0, 8192, tag="x8"))
                    rds.extend([lambda D=D: e.ds_read("ds_read_b128", V(112 + 4 * D, 4), vD0, D * 1024, tag="x8") for D in range(8)])
            if sg + 1 < 64 and not cfg.dbg_hot & 4:
                kr = k_reads(sg + 1); rds.extend(kr); lastk[0] = kr[-1]
                if sg + 1 == 32: rds.extend(kb_reads())
        def slot(h, j):
            e.comment(f"slot")
            mf = []
            jq, jp = j + 1, j - 1
            if jq < NT:
                s, t = seq[jq]
                for kk in range(4):
                    for kt in range(2):
                        def m(kk=kk, kt=kt):
                            d = Sb[jq % 2][4 * kt:4 * kt + 4]
                            e.mfma16(d, Kf(s & 1, kt, kk), Qf(h, t, kk), d if kk else NM(h, t))
                        mf.append(m)
            else:
                mf += [None] * 8
            if jp >= 0:
                s2, t2 = seq[jp]
                acc = any(t_ == t2 for _, t_ in seq[:jp])
                for D in range(8):
                    mf.append(lambda D=D: e.mfma16(Oacc(t2, D), Vf(s2 & 1, D), Pb[jp % 2], Oacc(t2, D) if acc else 0))
                mf.append(lambda: e.mfma16(Lb[t2], ONES, Pb[jp % 2], Lb[t2] if acc else 0))
            else:
                mf += [None] * 9
            sm = 0 <= j < NT
            Sx, Px = Sb[j % 2], Pb[j % 2]
            E = lambda i: (lambda: e.valu("v_exp_f32", Sx[i], Sx[i])) if sm else None
            C = lambda i: (lambda: e.valu("v_cvt_pk_bf16_f32", Px[i], Sx[2 * i], Sx[2 * i + 1])) if sm else None
            base = [E(0), None, E(1), C(0), E(2), None, E(3), C(1), E(4), None, E(5), C(2), E(6), None, E(7), C(3), None]
            vre = deque()
            sfirst = [s_ for s_, j_ in first.items() if j_ == j and s_ > 0]
            if sfirst and 32 * h + sfirst[0] + 1 < 64 and not cfg.dbg_hot & 4: vre = deque(v_reads(32 * h + sfirst[0] + 1))
            if R == "A" and j == NT - 1 and cfg.alt:
                rds.extend([lambda D=D: e.ds_write("ds_write_b128", vD0, Oacc(2, D), D * 1024) for D in range(8)])
                rds.append(lambda: e.ds_write("ds_write_b32", vD0, Lb[2][0], 8192))
            for i in range(17):
                if (j, i) in bpos: beta(32 * h + bpos[(j, i)])
                if i == 0 and jq < NT and jq > 0 and seq[jq][1] == 0:
                    while lastk[0] in rds: rds.popleft()()
                    e.wait_lds("kf")
                if mf[i]: mf[i]()
                if 8 <= i < 16 and vre:
                    rds.append(vre.popleft()); rds.append(vre.popleft())
                if base[i]: base[i]()
                cap = CAPS[i] if sm else 2
                if CAPS[i]:
                    nq = len(rds) + len(vre) + min(len(extras), 20)
                    nxt = [s_ for s_, j_ in first.items() if j_ == j + 1]
                    if R == "A" and nxt and nxt[0] % 2 == 1 and i >= 8 and cfg.alt: nq += 16
                    left, k = cap_left(j, i)
                    left -= 3
                    if nq > left: cap += -(-(nq - left) // max(1, k - 1))
                for c in range(cap):
                    if rds and (not extras or c != 1): rds.popleft()()
                    elif extras: extras.popleft()()
        def epilogue(h):
            NE = 2 if R != ("C" if cfg.alt else "A") else 3
            LV = [V(32 + 2 * t, 2) for t in range(3)]
            bad = cfg.force_fallback >> h & 1
            if h == 0:
                e.valu("v_mov_b32", vT0, LFLAG)
                e.ds_read("ds_read_b32", TG[0], vT0, 32, tag="tg")
            e.salu("s_mov_b32", sT, hex(f2u(0.25 if bad else cfg.lthresh)))
            e.salu("s_mov_b64", sM0, 0)
            for t in range(NE): e.valu("v_accvgpr_read_b32", LV[t][0], Lb[t][0])
            if R == "C" and cfg.alt:
                e.wait_lds("x8")
                e.valu("v_add_f32", LV[2][0], LV[2][0], V(144))
            for t in range(NE):
                e.vcmp("v_cmp_nge_f32", sM1, sT, LV[t][0])
                e.salu("s_or_b64", sM0, sM0, sM1)
            for t in range(NE): e.valu("v_rcp_f32", LV[t][0], LV[t][0])
            e.salu("s_or_b32", sT, sM0[0], sM0[1])
            e.valu("v_mov_b32", vT0, sT)
            e.ds_write("ds_write_b32", vFLG, vT0, 16 * h)
            for t in range(NE): e.valu("v_mov_b32", LV[t][1], LV[t][0])
            if h == 0:
                e.salu("s_cmp_lg_u32", None, g.sPUB, 0)
                e.salu("s_cselect_b32", sM0[0], "0x40000000", g.sOB)
            if R == "C" and cfg.alt:
                for i in range(16): e.valu("v_pk_add_f32", V(224 + 2 * i, 2), V(224 + 2 * i, 2), V(112 + 2 * i, 2))
            n = 0
            for bh in range(2):
                for t in range(NE):
                    for bl in range(2):
                        blk = 2 * bh + bl
                        o = V(160 + (t * 8 + 2 * blk) * 4, 8)
                        d = V(112 + 4 * n, 4) if h == 0 else o[0:4]
                        n += 1
                        for i in range(4): e.valu("v_pk_mul_f32", o[2 * i:2 * i + 2], o[2 * i:2 * i + 2], LV[t])
                        for i in range(4): e.valu("v_cvt_pk_bf16_f32", d[i], o[2 * i], o[2 * i + 1])
                        st_ = [lambda bh=bh, t=t: e.salu("s_add_u32", sT, sM0[0] if h == 0 else sOB1, bh * 18432 + toff(t) * 2048),
                               lambda d=d, bl=bl: e.bstore("buffer_store_dwordx4", d, vL16, sWS, sT, off=bl * 1024, pol="sc1", tag=f"ost{h}")]
                        if h == 0 and cfg.trickle and n > cfg.trickle0: later.append(st_)
                        else:
                            for f in st_: f()
                        for _ in range(3):
                            if rds: rds.popleft()()
                            elif extras: extras.popleft()()
        for h in range(2):
            if h == 0:
                beta(0); rds.extend(v_reads(1))
            prepass(h)
            chunks = []; save = e.lines
            bounds = [-1] + [first[s] for s in range(cfg.chunk0, 32, 4)] + [NT + 1]
            for a_, b_ in zip(bounds[:-1], bounds[1:]):
                e.lines = []
                for j in range(a_, b_): slot(h, j)
                chunks.append(e.lines)
            e.lines = save
            i = 0; nl = 0
            while i < len(chunks):
                k = i
                while k + 1 < len(chunks) and chunks[k + 1] == chunks[i]: k += 1
                if k > i:
                    nl += 1; lab = f"L_loop_{R}{h}{nl}"
                    e.lines.append(f"    s_mov_b32 {g.sCNT}, {k - i + 1}")
                    e.lines.append(lab + ":")
                    e.lines += chunks[i]
                    e.lines += [f"    s_sub_u32 {g.sCNT}, {g.sCNT}, 1", f"    s_cmp_lg_u32 {g.sCNT}, 0", f"    s_cbranch_scc1 {lab}"]
                else:
                    e.lines += chunks[i]
                i = k + 1
            if h:
                while extras: extras.popleft()()
            stamp(4 if h else 12)
            epilogue(h)
            if h == 0:
                e.wait_lds("tg")
                e.readfirstlane(sTAG, TG[0])
                stamp(13)
        while extras: extras.popleft()()
        e.wait_vm("pre")
        e.wait_all_lds(); e.barrier()
        read_fail(2)
        e.salu("s_andn2_b32", sT, sT, g.sRETRY)
        e.salu("s_cmp_eq_u32", None, sT, 0)
        e.branch("s_cbranch_scc1", "L_gemm")
        read_fail(1)
        e.salu("s_cmp_eq_u32", None, sT, 0)
        e.salu("s_cselect_b32", g.sPUB, 1, 0)
        e.salu("s_mov_b32", g.sRETRY, -1)
        e.wait_all()
        kv_addr_init()
        for h in range(2):
            MX = [V(48 + t) for t in range(3)]
            for t in range(NTW): e.valu("v_mov_b32", MX[t], "0xff800000")
            e.salu("s_mov_b32", g.sCNT, 32)
            e.salu("s_xor_b32", g.sKP, g.sKVB0, h * 262144); e.salu("s_mov_b32", g.sLS, 0)
            e.label(f"L_max_{R}{h}")
            e.barrier()
            if R == "A":
                for f in kv4_items("m")[:12]: f()
                e.wait_all_vm()
            e.salu("s_add_u32", g.sKP, g.sKP, 8192)
            e.barrier()
            for f in k_reads(0): f()
            e.wait_all_lds()
            for t in range(NTW):
                for kk in range(4):
                    for kt in range(2):
                        d = Sb[0][4 * kt:4 * kt + 4]
                        e.mfma16(d, Kf(0, kt, kk), Qf(h, t, kk), d if kk else 0)
                for i in range(4): e.valu("v_max3_f32", MX[t], Sb[0][2 * i], Sb[0][2 * i + 1], MX[t])
            e.salu("s_sub_u32", g.sCNT, g.sCNT, 1)
            e.salu("s_cmp_lg_u32", None, g.sCNT, 0)
            e.branch("s_cbranch_scc1", f"L_max_{R}{h}")
            for t in range(NTW):
                for op in ("v_permlane32_swap_b32", "v_permlane16_swap_b32"):
                    e.valu("v_mov_b32", vT0, MX[t])
                    e.perm(op, vT0, MX[t])
                    e.valu("v_max_f32", MX[t], vT0, MX[t])
                for i in range(4): e.valu("v_sub_f32", NM(h, t)[i], 0, MX[t])
        e.barrier()
        kv4_setup()
        for f in kv4_items("m"): f()
        ld_setup()
        e.wait_all_vm(); e.barrier()
        for f in k_reads(0) + v_reads(0): f()
        e.wait_all_lds()
        e.flush_hazards(8)
        e.branch("s_branch", f"L_main_{R}")

    e.label("L_gemm")
    e.hist = []; e.lds_q = []; e.vm_q = ["ost"]
    stamp(5)
    def ga_reads(st):
        return [lambda kb=kb, ee=ee, hi=hi: e.ds_read("ds_read_b64_tr_b16", GA(st & 1, kb * 2 + ee)[2 * hi:2 * hi + 2], GWA[st >> 1 & 1],
                                                     (st & 1) * 34816 + kb * 8192 + hi * 4096 + ee * 8, tag="g") for kb in range(2) for ee in range(2) for hi in range(2)]
    def gb_reads(st):
        return [lambda i=i: e.ds_read("ds_read_b128", GB(st & 1, i), GOA[st >> 1 & 1], (st & 1) * 34816 + i * 1024, tag="g") for i in range(18)]
    for f in ga_reads(0) + gb_reads(0): f()
    e.vm_q = [("g", 2)] * 9 + [("g", 3)] * 9 + ["ost"] * 8
    PS = cfg.poll_stage
    assert cfg.sig_stage <= 4 and 6 <= PS <= 8
    for st in range(16):
        e.comment(f"o-proj stage {st}")
        if st == cfg.sig_stage: e.wait_all_vm()
        if st == PS:
            e.salu("s_cmp_lg_u32", None, sW, 0)
            e.branch("s_cbranch_scc1", "L_poll1x")
            q_ = list(e.vm_q)
            e.wait_vm("fl1")
            flag_test()
            e.branch("s_cbranch_scc1", "L_poll1x")
            poll(sF1, 32, "L_poll1")
            e.vm_q = q_
        if st + 1 < 16: e.wait_vm(("g", st + 1))
        e.wait_all_lds(); e.barrier()
        if st == cfg.sig_stage:
            e.salu("s_cmp_lg_u32", None, sW, 3)
            e.branch("s_cbranch_scc1", "L_sig1")
            flag_store(sF1, 32, g.sHP)
            e.label("L_sig1")
            stamp(6)
        if st == PS: stamp(7)
        fill = deque()
        if st == PS - 1:
            fill.append(lambda: flag_load(sF1, 32, "fl1"))
        if st == PS:
            for s2 in range(10, st + 4): fill.extend(go_items(s2))
        if st + 4 < 16:
            if st + 4 < 10 or st >= PS: fill.extend(go_items(st + 4))
            fill.extend(gw_items(st + 4))
        rd = deque(ga_reads(st + 1) + gb_reads(st + 1)) if st + 1 < 16 else deque()
        mfs = [lambda qt=qt, kb=kb, ee=ee: e.mfma16(GC(qt, ee), GA(st & 1, kb * 2 + ee), GB(st & 1, qt * 2 + kb), GC(qt, ee) if (st or kb) else 0)
               for kb in range(2) for qt in range(9) for ee in range(2)]
        run_stage(mfs, rd, fill, span=20 if st + 1 == cfg.sig_stage else None)
    stamp(8)
    e.salu("s_cmp_eq_u32", None, sW, g.sHG)
    e.branch("s_cbranch_scc1", "L_fin")
    h1 = list(e.hist)
    e.salu("s_lshl_b32", sT, sW, 2); e.salu("s_add_u32", sT, sT, g.sHG); e.salu("s_mul_i32", sT, sT, 9216); e.salu("s_add_u32", sT2, sT, g.sPB)
    for qt in range(9):
        o = V(112 + qt * 8, 8)
        for i in range(4): e.valu("v_cvt_pk_bf16_f32", o[i], o[2 * i], o[2 * i + 1])
        if qt and qt % 4 == 0: e.salu("s_add_u32", sT2, sT2, 4096)
        e.bstore("buffer_store_dwordx4", o[0:4], vL16, sWS, sT2, off=(qt % 4) * 1024, pol="sc1")
    e.wait_all_vm(); e.barrier()
    stamp(9)
    stamp_flush()
    e.other("s_endpgm")
    e.label("L_fin")
    e.hist = h1
    e.barrier()
    flag_store(sF2, 0, g.sHG)
    stamp(9)
    poll(sF2, 0, "L_poll2")
    stamp(10)
    e.vm_q = []
    PB = lambda s, qt: (V(184 + (s * 9 + qt) * 4, 4) if s < 2 else V(32 + qt * 4, 4))
    for s in range(3):
        e.salu("s_add_u32", sT, g.sHG, s + 1); e.salu("s_and_b32", sT, sT, 3)
        e.salu("s_lshl_b32", sT1, sW, 2); e.salu("s_add_u32", sT, sT, sT1); e.salu("s_mul_i32", sT, sT, 9216); e.salu("s_add_u32", sT2, sT, g.sPB)
        for qt in range(9):
            if qt and qt % 4 == 0: e.salu("s_add_u32", sT2, sT2, 4096)
            e.bload("buffer_load_dwordx4", PB(s, qt), vL16, sWS, sT2, off=(qt % 4) * 1024, pol="sc1", tag=(s, qt))
    e.salu("s_mul_i32", sT2, g.sB, 144 * 2048); e.salu("s_lshl_b32", sT, g.sBR, 10); e.salu("s_add_u32", sT2, sT2, sT)
    e.salu("s_lshl_b32", sT, g.sHP, 8); e.salu("s_add_u32", sT2, sT2, sT); e.salu("s_lshl_b32", sT, sW, 6); e.salu("s_add_u32", sT2, sT2, sT)
    e.salu("s_mov_b32", sT1, "0xffff0000")
    for s in range(3):
        for qt in range(9):
            o = V(112 + qt * 8, 8); p = PB(s, qt)
            e.wait_vm((s, qt))
            for i in range(4):
                e.valu("v_lshlrev_b32", vT0, 16, p[i]); e.valu("v_and_b32", vT1, sT1, p[i])
                e.valu("v_add_f32", o[2 * i], o[2 * i], vT0); e.valu("v_add_f32", o[2 * i + 1], o[2 * i + 1], vT1)
            if s == 2:
                for i in range(4): e.valu("v_cvt_pk_bf16_f32", o[i], o[2 * i], o[2 * i + 1])
                e.bstore("buffer_store_dwordx4", o[0:4], vST, sOUT, sT2, pol=cfg.out_pol)
                if qt < 8: e.salu("s_add_u32", sT2, sT2, 32768)
    stamp(11)
    stamp_flush()
    e.label("L_done")
    e.other("s_endpgm")
    e.label("L_end")

def generate(cfg, fn):
    e = Em()
    e.raw('.amdgcn_target "amdgcn-amd-amdhsa--gfx950"'); e.raw(".text")
    gen(e, cfg, NAME + "_kernel")
    top = ("; attention block in one launch: q-projection, attention, output projection; generated by dev/gen3.py\n"
           "; @launch grid=(256,1,1) block=(256,1,1) lds=163840\n")
    tail = '.section .rodata,"a"\n' + descriptor(NAME + "_kernel", 512, 102, 256)
    open(fn, "w").write(top + e.text() + tail)
    return e

if __name__ == "__main__":
    cfg = Cfg()
    fn = sys.argv[1] if len(sys.argv) > 1 else "k.s"
    for kv in sys.argv[2:]:
        k, v = kv.split("=", 1)
        cur = getattr(cfg, k)
        setattr(cfg, k, type(cur)(int(v)) if isinstance(cur, (bool, int)) and not isinstance(cur, float) else (float(v) if isinstance(cur, float) else v))
    e = generate(cfg, fn)
    print(fn, "lines", len(e.lines), "nop states", e.nops)
```

```python
import sys, struct
from collections import deque
from asmlib import *

NAME = "concat_heads__mha_block_cached__gqa_block_cached__near_ridge"
def f2u(x): return struct.unpack("<I", struct.pack("<f", x))[0]
QSCALE = 1.4426950408889634 / (128 ** 0.5)

class Cfg:
    kv_pol = "nt"
    xw_pol = ""
    wo_pol = ""
    lthresh = 2.0 ** 40
    force_fallback = 0
    stamps = False
    poll_sleep = 2
    kv0_stage = 13
    win = 12
    wing = 2
    win2 = 0
    dbg_tail = 0
    ost_pol = "sc1"
    chunk0 = 4
    swap = 1
    alt = 1
    out_pol = "sc1"
    rotmul = "0x9e3779b1"
    trickle = 0
    trickle0 = 3
    sig_trip = 5
    warm_trip = 3
    warm_w = 1
    qst = 0
    warm_o = 0
    warm_opol = "sc1"
    cw = 3
    cw_trip = 2
    sig1_step = 35
    pre_step = 60
    warm = 1
    dbg_hot = 0
    st_stage = 0
    sig_stage = 5
    poll_stage = 8
    probe = -2
    probe_a = 0
    probe_cyc = 0
    probe_wg = -1

OWS_BYTES = 16 * 64 * 18432
PWS_OFF = OWS_BYTES
PWS_BYTES = 64 * 16 * 9216
FLG_OFF = OWS_BYTES + PWS_BYTES
WS_USED = FLG_OFF + 128 * 256
STAMP_OFF = 32 << 20
NSTAMP = 16

def descriptor(label, vgpr, sgpr, accum):
    return f""".p2align 6
.amdhsa_kernel {label}
  .amdhsa_next_free_vgpr {vgpr}
  .amdhsa_next_free_sgpr {sgpr}
  .amdhsa_accum_offset {accum}
  .amdhsa_group_segment_fixed_size 0
  .amdhsa_kernarg_size 104
  .amdhsa_user_sgpr_count 2
  .amdhsa_user_sgpr_kernarg_segment_ptr 1
  .amdhsa_system_sgpr_workgroup_id_x 1
.end_amdhsa_kernel
"""

def gen(e, cfg, label):
    e.raw(f".globl {label}"); e.raw(".p2align 8"); e.raw(f".type {label},@function"); e.label(label)
    sX, sWQ, sK, sV, sWS, sWO, sOUT, sDBG = (S(4 * i + 4, 4) for i in range(8))
    sLD = sX
    names = ("W XCD IDX T T1 T2 B HP HG BR KVB KP KO LS XS WS2 XL WL CNT RETRY SC ROT OB OKP WB OL PB FL1 FL2 SP WLG FAIL PUB KVB0").split()
    sr = {n: S(36 + i) for i, n in enumerate(names)}
    assert 36 + len(names) <= 70
    g = type("G", (), {"s" + n: r for n, r in sr.items()})
    sM0, sM1 = S(70, 2), S(72, 2)
    KARG = 76
    def kp(i): return S(KARG + 2 * i), S(KARG + 2 * i + 1)
    sW, sT, sT1, sT2 = g.sW, g.sT, g.sT1, g.sT2
    sU0, sU1 = S(76), S(77)
    sWBw, sOKw = S(79), S(80)
    sPC = S(82, 2)
    sF1, sF2 = S(84), S(85)
    sTAG = S(81)
    TG = V(108, 2)
    sSW2, sOB1 = S(3), S(78)
    vL, vL16, vT0, vT1, vT2 = V(1), V(2), V(3), V(4), V(5)
    KA = [V(6 + i) for i in range(4)]; VA = [V(10 + i) for i in range(8)]
    oK = [V(18 + i) for i in range(4)]; oV = [V(22 + i) for i in range(2)]
    oWo = [V(24 + i) for i in range(4)]
    XA = [V(28), V(29)]; WA = [V(30), V(31)]
    oLD = [V(28 + i) for i in range(4)]
    Sb = [V(32 + i * 8, 8) for i in range(2)]
    Pb = [V(48 + i * 4, 4) for i in range(2)]
    NM = lambda h, t: V(56 + (h * 3 + t) * 4, 4)
    oX = [V(56 + i) for i in range(5)]; oWQ = [V(61 + i) for i in range(4)]
    Kb = [V(80 + kk * 4, 4) for kk in range(4)]
    KBA, QA, QW = V(96), V(97), V(98)
    GWA = [V(99), V(100)]; GOA = [V(101), V(102)]; vST, vFLG, stamp_reg, vD0, vD1 = V(103), V(104), V(105), V(106), V(107)
    vOW = V(98)
    Oacc = lambda t, D: V(160 + (t * 8 + D) * 4, 4)
    OPK = lambda t, blk: V(208 + (t * 4 + blk) * 4, 4)
    QACC = lambda D, qt: V(112 + (qt * 4 + D) * 4, 4)
    XF = lambda buf, qt: A(buf * 36 + qt * 4, 4)
    WF = lambda buf, D: A(108 + buf * 16 + D * 4, 4)
    Qf = lambda h, t, kk: A((h * 12 + t * 4 + kk) * 4, 4)
    Lb = [A(96 + t * 4, 4) for t in range(3)]
    ONES = A(108, 4)
    Kf = lambda b, kt, kk: A(112 + b * 32 + (kt * 4 + kk) * 4, 4)
    Vf = lambda b, D: A(176 + b * 32 + D * 4, 4)
    GB = lambda buf, i: A(buf * 72 + i * 4, 4)
    GA = lambda buf, i: A(144 + buf * 16 + i * 4, 4)
    GC = lambda qt, ee: V(112 + (qt * 2 + ee) * 4, 4)
    LQ = 65536; XS0, WS0 = LQ, LQ + 36864
    GSL = [69632, 104448, 0, 34816]; LFLAG = 163840 - 64

    pl = [0]
    def stamp(i, q=False):
        if cfg.qst and not q and i in (6, 7, 9, 10, 11): return
        if cfg.stamps:
            e.other("s_memrealtime s[74:75]"); e._wait(lg=0); e.lds_q = []
            e.ins(f"v_writelane_b32 {stamp_reg}, s74, {i}", 'valu', [], [stamp_reg])
            if cfg.probe_cyc:
                e.other("s_memtime s[74:75]"); e._wait(lg=0)
                e.ins(f"v_writelane_b32 {stamp_reg}, s74, {i + 16}", 'valu', [], [stamp_reg])
    def stamp_flush():
        if not cfg.stamps: return
        e.wait_all_vm(); stamp(NSTAMP - 1)
        if cfg.probe >= 0:
            pl[0] += 1
            e.nop(2)
            e.ins(f"v_readlane_b32 {sT1}, {stamp_reg}, {cfg.probe}", 'readlane', [stamp_reg], [sT1])
            e.nop(4)
            e.salu("s_cmp_eq_u32", None, sT1, 0)
            e.branch("s_cbranch_scc1", f"L_pe{pl[0]}")
            if cfg.probe_wg >= 0:
                e.salu("s_and_b32", sT, S(2), 7)
                e.salu("s_cmp_lg_u32", None, sT, cfg.probe_wg)
                e.branch("s_cbranch_scc1", f"L_pe{pl[0]}")
            o_ = 16 if cfg.probe_cyc else 0
            e.ins(f"v_readlane_b32 {sT1}, {stamp_reg}, {cfg.probe + o_}", 'readlane', [stamp_reg], [sT1])
            e.ins(f"v_readlane_b32 {sT2}, {stamp_reg}, {cfg.probe_a + o_}", 'readlane', [stamp_reg], [sT2])
            e.ins(f"v_readlane_b32 {sT}, {stamp_reg}, 0", 'readlane', [stamp_reg], [sT])
            e.nop(4)
            e.salu("s_sub_u32", sT1, sT1, sT2)
            if cfg.probe_cyc: e.salu("s_lshr_b32", sT1, sT1, 4)
            e.salu("s_add_u32", sT1, sT1, sT)
            e.salu("s_add_u32", sT1, sT1, 12000)
            e.label(f"L_pr{pl[0]}")
            e.other("s_memrealtime s[74:75]"); e._wait(lg=0)
            e.salu("s_sub_u32", sT, S(74), sT1)
            e.salu("s_cmp_lt_i32", None, sT, 0)
            e.branch("s_cbranch_scc1", f"L_pr{pl[0]}")
            e.label(f"L_pe{pl[0]}")
            return
        e.salu("s_lshl_b32", sT, S(2), 2); e.salu("s_add_u32", sT, sT, sW); e.salu("s_lshl_b32", sT, sT, 8)
        e.salu("s_add_u32", sT, sT, STAMP_OFF)
        e.valu("v_lshlrev_b32", vT0, 2, vL)
        e.bstore("buffer_store_dword", stamp_reg, vT0, sWS, sT)

    e.salu("s_cmp_ge_u32", None, S(2), 256)
    e.branch("s_cbranch_scc1", "L_done")
    e.other(f"s_load_dwordx16 s[{KARG}:{KARG+15}], s[0:1], 0")
    e.other(f"s_load_dwordx8 s[{KARG+16}:{KARG+23}], s[0:1], 64")
    e.other(f"s_load_dwordx2 s[{KARG+24}:{KARG+25}], s[0:1], 96")
    e.other("s_memrealtime s[72:73]")
    e.valu("v_lshrrev_b32", vT0, 6, V(0))
    e.valu("v_and_b32", vL, 63, V(0))
    e.readfirstlane(sW, vT0)
    if cfg.stamps: e.valu("v_mov_b32", stamp_reg, 0)
    e.salu("s_and_b32", g.sXCD, S(2), 7)
    e.salu("s_lshr_b32", g.sIDX, S(2), 3)
    e.salu("s_lshr_b32", g.sB, g.sIDX, 2); e.salu("s_and_b32", g.sHP, g.sIDX, 3)
    e.salu("s_and_b32", g.sHG, g.sXCD, 3); e.salu("s_lshr_b32", g.sBR, g.sXCD, 2)
    e.valu("v_lshlrev_b32", vL16, 4, vL)
    e.valu("v_lshrrev_b32", vT1, 4, vL); e.valu("v_lshrrev_b32", vT0, 3, vL)
    e.salu("s_lshl_b32", sT, g.sHP, 1); e.salu("s_add_u32", sT, sT, g.sB); e.salu("s_and_b32", sT, sT, 7)
    e.salu("s_lshl_b32", g.sXS, sT, 7); e.salu("s_lshl_b32", g.sWS2, sT, 19)
    e.salu("s_mul_i32", sT, sW, 9); e.salu("s_lshr_b32", sT, sT, 1)
    e.salu("s_lshl_b32", g.sOL, sT, 10); e.salu("s_add_u32", g.sXL, g.sOL, XS0)
    e.salu("s_mul_i32", sT1, g.sB, 147456); e.salu("s_lshl_b32", sT2, sT, 13); e.salu("s_add_u32", sT1, sT1, sT2)
    e.salu("s_and_b32", sT, sT, 1); e.salu("s_lshl_b32", sT, sT, 6)
    e.valu("v_and_b32", vT2, 7, vL); e.valu("v_xor_b32", vT2, vT2, vT1); e.valu("v_lshlrev_b32", vT2, 4, vT2)
    e.valu("v_lshl_add_u32", vT2, vT0, 10, vT2); e.valu("v_xor_b32", vT2, sT, vT2)
    e.valu("v_add_u32", oX[0], sT1, vT2); e.valu("v_xor_b32", vT2, 64, oX[0])
    for i in range(1, 5): e.valu("v_add_u32", oX[i], i * 8192 - (i % 3) * 1024, vT2 if i & 1 else oX[0])
    e.salu("s_lshl_b32", sT1, g.sHG, 11); e.salu("s_lshl_b32", sT2, g.sHP, 9); e.salu("s_add_u32", sT1, sT1, sT2)
    e.salu("s_lshl_b32", sT2, sW, 7); e.salu("s_add_u32", sT1, sT1, sT2)
    e.valu("v_and_b32", vT2, 1, vT1); e.valu("v_lshlrev_b32", vT2, 2, vT2)
    e.valu("v_and_b32", oWQ[0], 7, vL); e.valu("v_xor_b32", vT2, oWQ[0], vT2); e.valu("v_lshlrev_b32", vT2, 4, vT2)
    e.valu("v_lshl_add_u32", vT2, vT0, 13, vT2); e.valu("v_add_u32", oWQ[0], sT1, vT2)
    for i in range(1, 4): e.valu("v_add_u32", oWQ[i], i * (65536 - 1024), oWQ[0])
    e.salu("s_lshl_b32", g.sWLG, sW, 12); e.salu("s_add_u32", g.sWL, g.sWLG, WS0)
    e._wait(lg=0)
    e.salu("s_cmp_lg_u32", None, g.sBR, 0)
    def srd(d, a, b, size):
        if b is None:
            e.salu("s_mov_b32", d[0], kp(a)[0]); e.salu("s_mov_b32", d[1], kp(a)[1])
        else:
            e.salu("s_cselect_b32", d[0], kp(b)[0], kp(a)[0]); e.salu("s_cselect_b32", d[1], kp(b)[1], kp(a)[1])
        e.salu("s_mov_b32", d[2], hex(size)); e.salu("s_mov_b32", d[3], "0x20000")
    srd(sX, 0, 5, 8 * 147456); srd(sWQ, 3, 8, 512 * 8192)
    srd(sK, 1, 6, 1 << 26); srd(sV, 2, 7, 1 << 26); srd(sWO, 4, 9, 4096 * 1024)
    srd(sDBG, 11, None, 256)
    e.salu("s_cmp_lg_u32", None, sW, 3)
    e.branch("s_cbranch_scc1", "1f")
    e.salu("s_or_b32", S(72), S(72), 1)
    e.salu("s_lshl_b32", sT, g.sBR, 3); e.salu("s_add_u32", sT, sT, g.sB); e.salu("s_lshl_b32", sT, sT, 4)
    e.valu("v_mov_b32", TG[0], S(72)); e.valu("v_mov_b32", TG[1], 0); e.valu("v_mov_b32", V(110), 0)
    e.salu("s_mov_b64", "exec", 1)
    e.ins(f"buffer_atomic_cmpswap {TG}, v110, {sDBG}, {sT} offen sc0 sc1", 'vmem', [TG, V(110), sDBG, sT], [TG[0]])
    e.salu("s_mov_b64", "exec", -1)
    e.label("1")
    stamp(0)

    def x_items(D, part, tag):
        its = [lambda: e.salu("s_add_u32", "m0", g.sXL, (D & 1) * 18432 + part * 3072)]
        for i in range(3 * part, min(5, 3 * part + 3)):
            its.append(lambda i=i: e.dma(oX[i], sX, g.sXS, off=(i % 3) * 1024, pol=cfg.xw_pol, tag=tag))
        if part == 1:
            its.append(lambda: e.salu("s_add_u32", g.sXS, g.sXS, 128))
            its.append(lambda: e.salu("s_and_b32", g.sXS, g.sXS, 1023))
        return its
    def w_items(st, tag):
        its = [lambda: e.salu("s_add_u32", "m0", g.sWL, (st % 3) * 16384)]
        for i in range(4):
            its.append(lambda i=i: e.dma(oWQ[i], sWQ, g.sWS2, off=i * 1024, pol=cfg.xw_pol, tag=tag))
        its.append(lambda: e.salu("s_add_u32", g.sWS2, g.sWS2, 1 << 18))
        its.append(lambda: e.salu("s_and_b32", g.sWS2, g.sWS2, "0x3fffff"))
        return its
    for f in (x_items(0, 0, "p0") + x_items(0, 1, "p0") + w_items(0, "p0") + w_items(1, "p1") +
              x_items(1, 0, "p2") + x_items(1, 1, "p2") + w_items(2, "p2")): f()

    srd(sWS, 12, None, 64 << 20 if cfg.stamps else WS_USED); srd(sOUT, 10, None, 8 * 144 * 2048)
    e.salu("s_lshl_b32", sT, g.sHG, 3); e.salu("s_lshl_b32", sT1, g.sHP, 1); e.salu("s_add_u32", sT, sT, sT1)
    e.salu("s_lshl_b32", g.sKVB0, g.sB, 5); e.salu("s_add_u32", g.sKVB0, g.sKVB0, sT); e.salu("s_lshl_b32", g.sKVB0, g.sKVB0, 18)
    e.salu("s_lshl_b32", sT1, g.sBR, 3); e.salu("s_add_u32", sT1, sT1, g.sB)
    e.salu("s_lshl_b32", sT2, sT1, 5); e.salu("s_add_u32", sT2, sT2, sT); e.salu("s_mul_i32", g.sOB, sT2, 36864)
    e.salu("s_add_u32", g.sOB, g.sOB, g.sWLG)
    if cfg.swap == 1: e.salu("s_xor_b32", sSW2, g.sB, g.sHG)
    elif cfg.swap == 2:
        e.salu("s_lshr_b32", sSW2, g.sB, 1); e.salu("s_xor_b32", sSW2, sSW2, g.sB); e.salu("s_lshr_b32", sT2, g.sHG, 1); e.salu("s_xor_b32", sSW2, sSW2, sT2)
    e.salu("s_and_b32", sSW2, sSW2, 1 if cfg.swap else 0)
    e.salu("s_lshl_b32", sT2, sSW2, 18); e.salu("s_add_u32", g.sKVB0, g.sKVB0, sT2)
    e.salu("s_mul_i32", sT2, sSW2, 36864); e.salu("s_add_u32", sOB1, g.sOB, 36864); e.salu("s_sub_u32", sOB1, sOB1, sT2); e.salu("s_add_u32", g.sOB, g.sOB, sT2)
    e.salu("s_lshl_b32", sSW2, sSW2, 1)
    if cfg.dbg_tail & 1: e.salu("s_mov_b32", sOB1, "0x40000000")
    e.salu("s_lshl_b32", sT2, sT1, 2); e.salu("s_add_u32", g.sFL1, sT2, g.sHG); e.salu("s_add_u32", g.sFL2, sT2, g.sHP)
    e.salu("s_mul_i32", g.sOKP, g.sFL1, 16 * 18432)
    e.salu("s_mul_i32", g.sPB, g.sFL2, 16 * 9216); e.salu("s_add_u32", g.sPB, g.sPB, PWS_OFF)
    e.salu("s_lshl_b32", sF1, g.sFL1, 8); e.salu("s_add_u32", sF1, sF1, FLG_OFF)
    e.salu("s_lshl_b32", sF2, g.sFL2, 8); e.salu("s_add_u32", sF2, sF2, FLG_OFF + 64 * 256)
    e.salu("s_lshl_b32", g.sFL1, g.sFL1, 2); e.salu("s_lshl_b32", g.sFL2, g.sFL2, 2)
    e.salu("s_lshl_b32", g.sWB, g.sHG, 20); e.salu("s_lshl_b32", sT, g.sHP, 8); e.salu("s_add_u32", g.sWB, g.sWB, sT)
    e.salu("s_lshl_b32", sT, sW, 14); e.salu("s_add_u32", sWBw, g.sWB, sT)
    e.salu("s_add_u32", sOKw, g.sOKP, g.sOL)
    if cfg.dbg_tail & 2: e.salu("s_mov_b32", sOKw, "0x40000000"); e.salu("s_mov_b32", sWBw, "0x40000000")
    if cfg.dbg_tail & 4: e.salu("s_mov_b32", g.sOKP, "0x40000000"); e.salu("s_mov_b32", g.sWB, "0x40000000")
    e.other(f"s_getpc_b64 {sPC}")
    e.label("L_pc")
    e.salu("s_mul_i32", g.sROT, S(2), cfg.rotmul); e.salu("s_lshr_b32", g.sROT, g.sROT, 27); e.salu("s_lshl_b32", g.sROT, g.sROT, 13)
    e.salu("s_mov_b32", g.sRETRY, 0); e.salu("s_mov_b32", g.sPUB, 0)
    e.salu("s_mov_b32", g.sSC, hex(f2u(QSCALE)))
    e.valu("v_and_b32", vT0, 15, vL); e.valu("v_lshrrev_b32", vT1, 4, vL)
    e.valu("v_xor_b32", vT2, vT0, vT1)
    e.valu("v_lshlrev_b32", vT2, 4, vT2); e.valu("v_lshl_add_u32", oK[0], vT1, 8, vT2)
    for n in range(1, 4): e.valu("v_xor_b32", oK[n], n << 6, oK[0])
    e.valu("v_lshlrev_b32", vT2, 1, vT1); e.valu("v_xor_b32", vT2, vT0, vT2)
    e.valu("v_lshlrev_b32", vT2, 4, vT2); e.valu("v_lshl_add_u32", oV[0], vT1, 8, vT2)
    e.valu("v_xor_b32", oV[1], 128, oV[0])
    e.valu("v_lshlrev_b32", vT2, 2, vT1); e.valu("v_xor_b32", vT2, vT0, vT2)
    e.valu("v_lshlrev_b32", vT2, 4, vT2); e.valu("v_lshl_add_u32", oWo[0], vT1, 10, vT2)
    for i in range(1, 4): e.valu("v_add_u32", oWo[i], i * 3072, oWo[0])
    def kv_addr_init():
        e.valu("v_and_b32", vT0, 15, vL); e.valu("v_lshrrev_b32", vT1, 4, vL)
        e.valu("v_xor_b32", vT2, vT0, vT1); e.valu("v_lshlrev_b32", vT2, 4, vT2)
        e.valu("v_lshl_add_u32", KA[0], vT0, 8, vT2)
        for kk in range(1, 4): e.valu("v_xor_b32", KA[kk], kk << 6, KA[0])
        e.valu("v_lshlrev_b32", KBA, 4, vT1)
        e.valu("v_lshrrev_b32", vT0, 2, vL)
        e.valu("v_and_b32", vT2, 7, vT0); e.valu("v_lshlrev_b32", vT2, 5, vT2)
        e.valu("v_lshl_add_u32", vT2, vT0, 8, vT2)
        e.valu("v_and_b32", vT0, 3, vL); e.valu("v_lshl_add_u32", vT2, vT0, 3, vT2)
        e.valu("v_add_u32", VA[0], 8192, vT2)
        for D in range(1, 8): e.valu("v_xor_b32", VA[D], D << 5, VA[0])
    kv_addr_init()
    e.valu("v_and_b32", vT0, 15, vL)
    e.valu("v_lshrrev_b32", vT2, 1, vT0); e.valu("v_xor_b32", vT2, vT2, vT1); e.valu("v_lshlrev_b32", vT2, 4, vT2)
    e.valu("v_lshl_add_u32", vT2, vT0, 7, vT2); e.valu("v_add_u32", XA[0], XS0, vT2); e.valu("v_xor_b32", XA[1], 64, XA[0])
    e.valu("v_lshlrev_b32", vST, 11, vT0); e.valu("v_lshl_add_u32", vST, vT1, 4, vST)
    e.valu("v_lshrrev_b32", vT0, 2, vL); e.valu("v_and_b32", vT0, 3, vT0)
    e.valu("v_lshl_add_u32", vT2, vT1, 3, vT0); e.valu("v_lshlrev_b32", vT2, 7, vT2)
    e.valu("v_lshrrev_b32", WA[1], 1, vT0); e.valu("v_lshl_add_u32", vT2, WA[1], 6, vT2)
    e.valu("v_and_b32", WA[1], 3, vL); e.valu("v_lshl_add_u32", vT2, WA[1], 4, vT2)
    e.valu("v_add_u32", WA[0], g.sWL, vT2); e.valu("v_xor_b32", WA[1], 64, WA[0])
    e.valu("v_xor_b32", vT0, sW, vT0); e.valu("v_lshlrev_b32", vT0, 6, vT0)
    e.valu("v_and_b32", vT2, 3, vL); e.valu("v_lshl_add_u32", vT0, vT2, 4, vT0)
    e.valu("v_lshrrev_b32", vT2, 2, vL); e.valu("v_lshl_add_u32", GWA[1], vT2, 8, vT0)
    e.valu("v_add_u32", GWA[0], GSL[0], GWA[1])
    e.valu("v_add_u32", GOA[1], 16384, vL16); e.valu("v_add_u32", GOA[0], GSL[0] + 16384, vL16)
    e.salu("s_lshr_b32", sT1, sW, 1); e.salu("s_mul_i32", sT1, sT1, 36864)
    e.salu("s_and_b32", sT2, sW, 1); e.salu("s_lshl_b32", sT2, sT2, 11); e.salu("s_add_u32", sT2, sT2, sT1); e.salu("s_add_u32", sT2, sT2, LQ)
    e.valu("v_add_u32", QW, sT2, vL16)
    e.salu("s_lshl_b32", sT2, sW, 13); e.salu("s_add_u32", sT2, sT2, LQ)
    e.valu("v_add_u32", QA, sT2, vL16)
    e.salu("s_lshl_b32", sT2, sW, 2); e.salu("s_add_u32", sT2, sT2, LFLAG)
    e.valu("v_mov_b32", vFLG, sT2)

    def kv4_setup():
        e.salu("s_lshl_b32", sT, sW, 13); e.salu("s_add_u32", g.sKP, g.sROT, sT); e.salu("s_and_b32", g.sKP, g.sKP, "0x3ffff")
        e.salu("s_add_u32", g.sKP, g.sKP, g.sKVB0); e.salu("s_lshl_b32", g.sLS, sW, 14)
    def kv4_items(tag, base=None):
        its = []
        for srd_, voff, b_ in ((sK, oK, 0), (sV, oV, 8192)):
            for n in range(8):
                if n % 4 == 0:
                    its.append(lambda n=n, b_=b_: e.salu("s_add_u32", "m0", g.sLS, b_ + n * 1024))
                    its.append(lambda n=n: e.salu("s_add_u32", g.sKO, g.sKP, n * 1024))
                its.append(lambda n=n, srd_=srd_, voff=voff: e.dma(voff[n % len(voff)], srd_, g.sKO, off=(n & 3) * 1024, pol=cfg.kv_pol, tag=tag))
        return its
    kv4_setup()
    def window():
        if cfg.win2:
            e.branch("s_cbranch_vccnz", "4f")
            e._wait(vm=cfg.win2 - cfg.wing)
            e.label("4")
        if cfg.win and len(e.vm_q) > cfg.win - cfg.wing:
            n = cfg.win - cfg.wing
            e._wait(vm=n); e.vm_q = e.vm_q[len(e.vm_q) - n:]
    def ld_setup():
        e.salu("s_cmp_eq_u32", None, sW, 2)
        e.salu("s_cselect_b32", sLD[0], sV[0], sK[0]); e.salu("s_cselect_b32", sLD[1], sV[1], sK[1])
        e.salu("s_mov_b32", sLD[2], hex(1 << 26)); e.salu("s_mov_b32", sLD[3], "0x20000")
        e.salu("s_cselect_b32", g.sLS, 8192, 0)
        e.salu("s_cselect_b64", "vcc", -1, 0)
        e.nop(2)
        for n in range(4): e.ins(f"v_cndmask_b32 {oLD[n]}, {oK[n]}, {oV[n & 1]}, vcc", 'valu', [oK[n], oV[n & 1], 'vcc'], [oLD[n]])
        e.salu("s_add_u32", g.sKP, g.sROT, 4 * 8192); e.salu("s_and_b32", g.sKP, g.sKP, "0x3ffff")
        e.salu("s_mov_b32", g.sKVB, g.sKVB0)
        if cfg.win2:
            e.other(f"s_getreg_b32 {sT}, hwreg(HW_REG_XCC_ID, 0, 1)")
            e.salu("s_cmp_lg_u32", None, sT, 0)
            e.salu("s_cselect_b64", "vcc", -1, 0)
    def ld_items(step):
        its = []
        if step == 32: its.append(lambda: e.salu("s_xor_b32", g.sKVB, g.sKVB, 262144))
        for n in range(8):
            if n == 0:
                its.append(lambda: e.salu("s_add_u32", "m0", g.sLS, (step & 3) * 16384)); its.append(lambda: e.salu("s_add_u32", g.sKO, g.sKVB, g.sKP))
            if n == 4:
                its.append(lambda: e.salu("s_add_u32", "m0", g.sLS, (step & 3) * 16384 + 4096)); its.append(lambda: e.salu("s_add_u32", g.sKO, g.sKO, 4096))
            if n % cfg.wing == 0: its.append(window)
            its.append(lambda n=n: e.dma(oLD[n & 3], sLD, g.sKO, off=(n & 3) * 1024, pol=cfg.kv_pol, tag=("kv", step)))
        its.append(lambda: e.salu("s_add_u32", g.sKP, g.sKP, 0 if cfg.dbg_hot else 8192)); its.append(lambda: e.salu("s_and_b32", g.sKP, g.sKP, "0x3ffff"))
        return its
    def k_reads(step):
        return [lambda kk=kk, kt=kt: e.ds_read("ds_read_b128", Kf(step & 1, kt, kk), KA[kk], (step & 3) * 16384 + kt * 4096, tag="kf")
                for kk in range(4) for kt in range(2)]
    def v_reads(step):
        return [lambda D=D, hi=hi: e.ds_read("ds_read_b64_tr_b16", Vf(step & 1, D)[2 * hi:2 * hi + 2], VA[D], (step & 3) * 16384 + hi * 4096, tag="vf")
                for D in range(8) for hi in range(2)]
    def kb_reads():
        return [lambda kk=kk: e.ds_read("ds_read_b128", Kb[kk], KBA, kk * 64, tag="kf") for kk in range(4)]
    def w_reads(st):
        return [lambda D=D, hi=hi: e.ds_read("ds_read_b64_tr_b16", WF(st & 1, D)[2 * hi:2 * hi + 2], WA[D >> 1],
                                            (st % 3) * 16384 + hi * 512 + (D & 1) * 8, tag="qf") for D in range(4) for hi in range(2)]
    def x_reads(D):
        return [lambda qt=qt, kh=kh: e.ds_read("ds_read_b128", XF((2 * D + kh) % 3, qt), XA[kh], (D & 1) * 18432 + qt * 2048, tag="qf")
                for kh in range(2) for qt in range(9)]
    def run_stage(mfs, rd, fill, span=None):
        nf, n, done = len(fill), span or len(mfs), 0
        for i, m in enumerate(mfs):
            m()
            if rd: rd.popleft()()
            while fill and done * n <= i * nf:
                fill.popleft()(); done += 1
        while rd: rd.popleft()()
        while fill: fill.popleft()()
    GORD = [(dp, 0, i) for dp in range(4) for i in range(2)] + [(0, 1, 0), (0, 1, 1)] + [(dp, 1, i) for i in range(2) for dp in (1, 2, 3)]
    def kpl_items(st, dst):
        dp, h, i = GORD[st]
        return [lambda: e.salu("s_add_u32", dst, g.sHP, dp), lambda: e.salu("s_and_b32", dst, dst, 3),
                lambda: e.salu("s_lshl_b32", dst, dst, 2), lambda: e.salu("s_add_u32", dst, dst, 2 * h + i),
                lambda: e.salu("s_xor_b32", dst, dst, sSW2)]
    def full_w_items(st):
        its = kpl_items(st, sU1)
        its += [lambda: e.salu("s_lshl_b32", sU1, sU1, 16), lambda: e.salu("s_add_u32", sU1, sU1, g.sWB)]
        for n in range(16):
            if n % 4 == 0:
                its.append(lambda n=n: e.salu("s_mov_b32", "m0", GSL[st % 4] + n * 1024))
                if n: its.append(lambda: e.salu("s_add_u32", sU1, sU1, 16384))
            its.append(lambda n=n: e.dma(oWo[n & 3], sWO, sU1, off=(n & 3) * 1024, pol=cfg.wo_pol, tag="pre"))
        return its
    def gw_items(st):
        its = kpl_items(st, sU1)
        its += [lambda: e.salu("s_lshl_b32", sU1, sU1, 16), lambda: e.salu("s_add_u32", sU1, sU1, sWBw),
                lambda: e.salu("s_add_u32", "m0", g.sWLG, GSL[st % 4])]
        for i in range(4): its.append(lambda i=i: e.dma(oWo[i], sWO, sU1, off=i * 1024, pol=cfg.wo_pol, tag=("g", st)))
        return its
    def go_items(st):
        its = kpl_items(st, sU0)
        its += [lambda: e.salu("s_mul_i32", sU0, sU0, 18432), lambda: e.salu("s_add_u32", sU0, sU0, sOKw),
                lambda: e.salu("s_add_u32", "m0", g.sOL, GSL[st % 4] + 16384)]
        for i in range(4): its.append(lambda i=i: e.dma(vL16, sWS, sU0, off=i * 1024, pol="sc1", tag=("g", st)))
        its += [lambda: e.salu("s_add_u32", "m0", g.sOL, GSL[st % 4] + 16384 + 4096), lambda: e.salu("s_add_u32", sU0, sU0, 4096),
                lambda: e.dma(vL16, sWS, sU0, pol="sc1", tag=("g", st))]
        return its
    def code_touch():
        e.salu("s_lshl_b32", sT, g.sIDX, 12)
        e.valu("v_lshlrev_b32", V(109), 6, vL)
        e.valu("v_add_u32", V(109), sT, V(109))
        e.valu("v_min_u32", V(109), "L_end-L_pc-4", V(109))
        e.ins(f"v_add_co_u32 v110, vcc, {sPC[0]}, v109", 'valu', [V(109)], [V(110), 'vcc'])
        e.valu("v_mov_b32", V(111), sPC[1])
        e.ins(f"v_addc_co_u32 v111, vcc, 0, v111, vcc", 'valu', [V(111), 'vcc'], [V(111), 'vcc'])
        e.ins(f"global_load_dword {vD1}, v[110:111], off", 'vmem', [V(110, 2)], [vD1]); e.vm_q.append("cw")
    def warm_items():
        its = [lambda: e.salu("s_lshl_b32", sU0, g.sB, 17), lambda: e.salu("s_add_u32", sU0, sU0, g.sWB),
               lambda: e.valu("v_lshlrev_b32", vT2, 10, vL)]
        for n in range(4):
            if n == 2: its.append(lambda: e.salu("s_add_u32", sU0, sU0, 65536))
            its.append(lambda n=n: e.bload("buffer_load_dword", vD1, vT2, sWO, sU0, off=(n & 1) * 128, pol=cfg.wo_pol, tag="pre"))
        if not cfg.warm_w: its = []
        its += [lambda: e.salu("s_sub_u32", sU0, g.sOB, g.sWLG), lambda: e.valu("v_lshlrev_b32", vT2, 7, vL)]
        for n in range(5 if cfg.warm_o else 0):
            if n: its.append(lambda n=n: e.salu("s_add_u32", sU0, sU0, 8192 if n < 4 else 4096))
            its.append(lambda: e.bload("buffer_load_dword", vD1, vT2, sWS, sU0, pol=cfg.warm_opol, tag="pre"))
        return its
    def atomic_add(flag, val):
        e.valu("v_mov_b32", vT0, val); e.valu("v_mov_b32", vT1, 0)
        e.salu("s_mov_b64", "exec", 1)
        e.ins(f"buffer_atomic_add {vT0}, {vT1}, {sDBG}, {flag} offen sc1", 'vmem', [vT0, vT1, sDBG, flag], [])
        e.salu("s_mov_b64", "exec", -1)
    def flag_store(line, off, who):
        e.salu("s_lshl_b32", sT, who, 3)
        e.valu("v_mov_b32", V(110), sTAG); e.valu("v_not_b32", V(111), sTAG); e.valu("v_mov_b32", vT1, sT)
        e.salu("s_mov_b64", "exec", 1)
        e.ins(f"buffer_store_dwordx2 v[110:111], {vT1}, {sWS}, {line} offen offset:{off} sc1", 'vmem', [V(110, 2), vT1, sWS, line], [])
        e.salu("s_mov_b64", "exec", -1)
    def flag_load(line, off, tag):
        e.valu("v_and_b32", vT2, 3, vL); e.valu("v_lshlrev_b32", vT2, 3, vT2)
        e.bload("buffer_load_dwordx2", TG, vT2, sWS, line, off=off, pol="sc1", tag=tag)
    def flag_test():
        e.valu("v_not_b32", TG[1], TG[1])
        e.valu("v_xor_b32", TG[0], sTAG, TG[0]); e.valu("v_xor_b32", TG[1], sTAG, TG[1]); e.valu("v_or_b32", TG[0], TG[0], TG[1])
        e.vcmp("v_cmp_ne_u32", "vcc", 0, TG[0])
        e.salu("s_cmp_eq_u64", None, "vcc", 0)
    def poll(line, off, lab):
        e.salu("s_mov_b32", g.sSP, 1 << 20)
        e.label(lab)
        flag_load(line, off, None)
        e.wait_all_vm()
        flag_test()
        e.branch("s_cbranch_scc1", lab + "x")
        e.other(f"s_sleep {cfg.poll_sleep}")
        e.salu("s_sub_u32", g.sSP, g.sSP, 1)
        e.salu("s_cmp_lg_u32", None, g.sSP, 0)
        e.branch("s_cbranch_scc1", lab)
        e.label(lab + "x")
    def read_fail(n):
        e.valu("v_mov_b32", vT1, LFLAG)
        for i in range(n): e.ds_read("ds_read_b128", V(80 + 4 * i, 4), vT1, 16 * i)
        e.wait_all_lds()
        e.valu("v_or_b32", V(80), V(80), V(81)); e.valu("v_or3_b32", V(80), V(80), V(82), V(83))
        if n == 2:
            e.valu("v_or3_b32", V(80), V(80), V(84), V(85)); e.valu("v_or3_b32", V(80), V(80), V(86), V(87))
        e.readfirstlane(sT, V(80))

    if cfg.cw & 2:
        e.salu("s_cmp_lg_u32", None, sW, 2)
        e.branch("s_cbranch_scc1", "1f")
        q_ = list(e.vm_q)
        code_touch()
        e.vm_q = q_
        e.label("1")
    e.wait_vm("p0"); e.barrier()
    stamp(1)
    for f in w_reads(0) + x_reads(0): f()
    kvq = deque(kv4_items("kv4"))
    for st in range(16):
        e.comment(f"q-proj stage {st}")
        e.wait_vm({0: "p1", 1: "p2"}.get(st, ("iss", st - 2)))
        e.wait_all_lds(); e.barrier()
        if cfg.qst and st in (1, 3, 6, 9, 13): stamp({1: 6, 3: 7, 6: 9, 9: 10, 13: 11}[st], True)
        fill = deque()
        if st // 2 + 2 < 8: fill.extend(x_items(st // 2 + 2, st & 1, ("iss", st)))
        if st + 3 < 16: fill.extend(w_items(st + 3, ("iss", st)))
        if st >= cfg.kv0_stage:
            for _ in range(12):
                if kvq: fill.append(kvq.popleft())
        rd = deque()
        if st + 1 < 16: rd.extend(w_reads(st + 1))
        if st & 1 and st + 1 < 16: rd.extend(x_reads((st + 1) // 2))
        mfs = [lambda qt=qt, D=D: e.mfma16(QACC(D, qt), WF(st & 1, D), XF(st % 3, qt), QACC(D, qt) if st else 0)
               for qt in range(9) for D in range(4)]
        run_stage(mfs, rd, fill)
    while kvq: kvq.popleft()()
    stamp(2)
    e.valu("v_mov_b32", V(32), g.sSC); e.valu("v_mov_b32", V(33), g.sSC)
    for qt in range(9):
        for P in range(2):
            src = V(112 + (qt * 4 + 2 * P) * 4, 8)
            for i in range(4): e.valu("v_pk_mul_f32", src[2 * i:2 * i + 2], src[2 * i:2 * i + 2], V(32, 2))
            for i in range(4): e.valu("v_cvt_pk_bf16_f32", src[i], src[2 * i], src[2 * i + 1])
            e.ds_write("ds_write_b128", QW, src[0:4], (qt * 4 + P) * 1024)
    e.valu("v_mov_b32", vT0, "0x3f803f80")
    for i in range(4): e.valu("v_accvgpr_write_b32", ONES[i], vT0)
    ld_setup()
    e.salu("s_cmp_eq_u32", None, sW, 3)
    e.branch("s_cbranch_scc1", "L_rC")
    e.salu("s_cmp_lg_u32", None, sW, 0)
    e.branch("s_cbranch_scc1", "L_rB")
    hist0 = list(e.hist)

    X8 = 139264
    CAPS = [0, 2, 0, 1, 0, 2, 0, 1, 0, 2, 0, 1, 0, 2, 0, 1, 2]
    for R in "ABC":
        NTW = 2 if R == "B" else 3
        toff = lambda t: ({"A": 8, "C": 2}[R] if t == 2 else t)
        e.hist = list(hist0)
        if R != "A": e.label(f"L_r{R}")
        e.lds_q = ["x"]; e.vm_q = ["x"]
        if R == "A": e.wait_all_vm()
        e.salu("s_mul_i32", sT, sSW2, 18432)
        e.valu("v_add_u32", vT2, 36864, QA); e.valu("v_subrev_u32", vT2, sT, vT2); e.valu("v_add_u32", vT1, sT, QA)
        e.valu("v_add_u32", vD0, X8, vL16)
        e.valu("v_add_u32", vOW, g.sWLG, GOA[0])
        e.wait_all_lds(); e.barrier()
        for f in kb_reads(): f()
        for h in range(2):
            for t in range(NTW):
                for kk in range(4): e.ds_read("ds_read_b128", Qf(h, t, kk), vT2 if h else vT1, (toff(t) * 4 + kk) * 1024, tag="q")
            if h == 0:
                for f in k_reads(0): f()
        for f in v_reads(0): f()
        e.wait_all_lds()
        def prepass(h):
            e.comment("stand-in for the row max: minus the score of the first key, per row")
            e.salu("s_cmp_lg_u32", None, g.sRETRY, 0)
            e.branch("s_cbranch_scc1", f"L_np{h}{R}")
            e.salu("s_mov_b32", sT1, "0x80008000")
            for kk in range(4):
                for i in range(4): e.valu("v_xor_b32", Kb[kk][i], sT1, Kb[kk][i])
            for t in range(NTW):
                for kk in range(4): e.mfma16(NM(h, t), Kb[kk], Qf(h, t, kk), NM(h, t) if kk else 0)
            e.label(f"L_np{h}{R}")
        if R == "C":
            e.wait_all_vm()
            e.readfirstlane(sT, TG[0])
            e.salu("s_cmp_eq_u32", None, sT, 0)
            e.salu("s_cselect_b32", sT, S(72), sT)
            e.valu("v_mov_b32", vT0, sT); e.valu("v_mov_b32", vT1, LFLAG)
            e.ds_write("ds_write_b32", vT1, vT0, 32)
            e.wait_all_lds()
        stamp(3)
        e.label(f"L_main_{R}")
        e.lds_q = []; e.vm_q = [] if R == "A" else [("kv", 1)] * 16
        e.salu("s_mov_b32", g.sFAIL, 0)
        seq = [(s, t) for s in range(32) for t in range(3 if (R == "A" and s % 2 == 0) or (R == "C" and s % 2 == 1) else 2)]
        if not cfg.alt: seq = [(s, t) for s in range(32) for t in range(3 if R == "A" else 2)]
        NT = len(seq)
        first = {s: j for j, (s, t) in reversed(list(enumerate(seq)))}; first[32] = NT
        bpos = {}
        for s in range(1, 33):
            if s % 2 == 0 or R == "B" or not cfg.alt: bpos[(first[s], 0)] = s
            elif R == "A": bpos[(first[s] - 1, 8)] = s
            else: bpos[(first[s], 8)] = s
        def cap_left(j, i):
            n = k = 0
            while True:
                n += CAPS[i]; k += CAPS[i] > 0
                i += 1
                if i == 17: i = 0; j += 1
                if (j, i) in bpos or j > NT: return n, k
        extras = deque(); rds = deque(); lastk = [None]; later = deque()
        def beta(sg):
            while rds: rds.popleft()()
            if sg < 61:
                while extras: extras.popleft()()
            if sg + 1 < 64: e.wait_vm(("kv", sg + 1))
            hook = 36 <= sg < 60 and sg % 4 == 0
            if hook:
                if R == "B": assert sg == 36 or "ost0" not in e.vm_q
                else: e.wait_all_vm()
            if R == "C" and sg == 63:
                while extras: extras.popleft()()
                e.wait_vm("fl0")
                flag_test()
                e.branch("s_cbranch_scc1", "L_poll0x")
                e.salu("s_cmp_lg_u32", None, g.sFAIL, 0)
                e.branch("s_cbranch_scc1", "L_poll0x")
                q_ = list(e.vm_q)
                poll(sF1, 0, "L_poll0")
                e.vm_q = q_
            if e.lds_q: e.wait_all_lds()
            if not cfg.dbg_hot & 2: e.barrier()
            for _ in range(cfg.trickle):
                if later and sg > 32: extras.extend(later.popleft())
            if R == "B" and not cfg.dbg_hot & 8:
                if sg + 4 < 64: extras.extend(ld_items(sg + 4))
            if R == "A" and sg in (33, 34): extras.extend(full_w_items(sg - 33))
            if sg == 63: extras.extend(gw_items(2) + go_items(2) + gw_items(3) + go_items(3))
            if R == "A" and cfg.cw and sg % 4 == 0 and 4 <= sg % 32 < 28:
                e.salu("s_cmp_lg_u32", None, g.sCNT, cfg.cw_trip)
                e.branch("s_cbranch_scc1", "1f")
                q_ = list(e.vm_q)
                code_touch()
                e.vm_q = q_
                e.label("1")
            if R == "C":
                if hook:
                    e.salu("s_cmp_lg_u32", None, g.sCNT, cfg.sig_trip)
                    e.branch("s_cbranch_scc1", "1f")
                    read_fail(1)
                    e.salu("s_andn2_b32", g.sFAIL, sT, g.sRETRY)
                    e.salu("s_or_b32", sT, g.sFAIL, g.sPUB)
                    e.salu("s_cmp_lg_u32", None, sT, 0)
                    e.branch("s_cbranch_scc1", "1f")
                    flag_store(sF1, 0, g.sHP)
                    e.label("1")
                    if cfg.warm == 2:
                        e.salu("s_cmp_lg_u32", None, g.sCNT, cfg.warm_trip)
                        e.branch("s_cbranch_scc1", "2f")
                        for f in warm_items(): f()
                        e.label("2")
                if sg == cfg.pre_step:
                    flag_load(sF1, 0, "fl0")
                if sg == cfg.pre_step and cfg.warm == 1: extras.extend(warm_items())
                if sg % 32 == 0 and sg and cfg.alt:
                    rds.append(lambda: e.ds_read("ds_read_b32", V(144), vD0, 8192, tag="x8"))
                    rds.extend([lambda D=D: e.ds_read("ds_read_b128", V(112 + 4 * D, 4), vD0, D * 1024, tag="x8") for D in range(8)])
            if sg + 1 < 64 and not cfg.dbg_hot & 4:
                kr = k_reads(sg + 1); rds.extend(kr); lastk[0] = kr[-1]
                if sg + 1 == 32: rds.extend(kb_reads())
        def slot(h, j):
            e.comment(f"slot")
            mf = []
            jq, jp = j + 1, j - 1
            if jq < NT:
                s, t = seq[jq]
                for kk in range(4):
                    for kt in range(2):
                        def m(kk=kk, kt=kt):
                            d = Sb[jq % 2][4 * kt:4 * kt + 4]
                            e.mfma16(d, Kf(s & 1, kt, kk), Qf(h, t, kk), d if kk else NM(h, t))
                        mf.append(m)
            else:
                mf += [None] * 8
            if jp >= 0:
                s2, t2 = seq[jp]
                acc = any(t_ == t2 for _, t_ in seq[:jp])
                for D in range(8):
                    mf.append(lambda D=D: e.mfma16(Oacc(t2, D), Vf(s2 & 1, D), Pb[jp % 2], Oacc(t2, D) if acc else 0))
                mf.append(lambda: e.mfma16(Lb[t2], ONES, Pb[jp % 2], Lb[t2] if acc else 0))
            else:
                mf += [None] * 9
            sm = 0 <= j < NT
            Sx, Px = Sb[j % 2], Pb[j % 2]
            E = lambda i: (lambda: e.valu("v_exp_f32", Sx[i], Sx[i])) if sm else None
            C = lambda i: (lambda: e.valu("v_cvt_pk_bf16_f32", Px[i], Sx[2 * i], Sx[2 * i + 1])) if sm else None
            base = [E(0), None, E(1), C(0), E(2), None, E(3), C(1), E(4), None, E(5), C(2), E(6), None, E(7), C(3), None]
            vre = deque()
            sfirst = [s_ for s_, j_ in first.items() if j_ == j and s_ > 0]
            if sfirst and 32 * h + sfirst[0] + 1 < 64 and not cfg.dbg_hot & 4: vre = deque(v_reads(32 * h + sfirst[0] + 1))
            if R == "A" and j == NT - 1 and cfg.alt:
                rds.extend([lambda D=D: e.ds_write("ds_write_b128", vD0, Oacc(2, D), D * 1024) for D in range(8)])
                rds.append(lambda: e.ds_write("ds_write_b32", vD0, Lb[2][0], 8192))
            for i in range(17):
                if (j, i) in bpos: beta(32 * h + bpos[(j, i)])
                if i == 0 and jq < NT and jq > 0 and seq[jq][1] == 0:
                    while lastk[0] in rds: rds.popleft()()
                    e.wait_lds("kf")
                if mf[i]: mf[i]()
                if 8 <= i < 16 and vre:
                    rds.append(vre.popleft()); rds.append(vre.popleft())
                if base[i]: base[i]()
                cap = CAPS[i] if sm else 2
                if CAPS[i]:
                    nq = len(rds) + len(vre) + min(len(extras), 20)
                    nxt = [s_ for s_, j_ in first.items() if j_ == j + 1]
                    if R == "A" and nxt and nxt[0] % 2 == 1 and i >= 8 and cfg.alt: nq += 16
                    left, k = cap_left(j, i)
                    left -= 3
                    if nq > left: cap += -(-(nq - left) // max(1, k - 1))
                for c in range(cap):
                    if rds and (not extras or c != 1): rds.popleft()()
                    elif extras: extras.popleft()()
        def epilogue(h):
            NE = 2 if R != ("C" if cfg.alt else "A") else 3
            LV = [V(32 + 2 * t, 2) for t in range(3)]
            bad = cfg.force_fallback >> h & 1
            if h == 0:
                e.valu("v_mov_b32", vT0, LFLAG)
                e.ds_read("ds_read_b32", TG[0], vT0, 32, tag="tg")
            e.salu("s_mov_b32", sT, hex(f2u(0.25 if bad else cfg.lthresh)))
            e.salu("s_mov_b64", sM0, 0)
            for t in range(NE): e.valu("v_accvgpr_read_b32", LV[t][0], Lb[t][0])
            if R == "C" and cfg.alt:
                e.wait_lds("x8")
                e.valu("v_add_f32", LV[2][0], LV[2][0], V(144))
            for t in range(NE):
                e.vcmp("v_cmp_nge_f32", sM1, sT, LV[t][0])
                e.salu("s_or_b64", sM0, sM0, sM1)
            for t in range(NE): e.valu("v_rcp_f32", LV[t][0], LV[t][0])
            e.salu("s_or_b32", sT, sM0[0], sM0[1])
            e.valu("v_mov_b32", vT0, sT)
            e.ds_write("ds_write_b32", vFLG, vT0, 16 * h)
            for t in range(NE): e.valu("v_mov_b32", LV[t][1], LV[t][0])
            if h == 0:
                e.salu("s_cmp_lg_u32", None, g.sPUB, 0)
                e.salu("s_cselect_b32", sM0[0], "0x40000000", g.sOB)
            if R == "C" and cfg.alt:
                for i in range(16): e.valu("v_pk_add_f32", V(224 + 2 * i, 2), V(224 + 2 * i, 2), V(112 + 2 * i, 2))
            if h == 1:
                for t in reversed(range(NE)):
                    for blk in reversed(range(4)):
                        o = V(160 + (t * 8 + 2 * blk) * 4, 8); d = OPK(t, blk)
                        for i in range(4): e.valu("v_pk_mul_f32", o[2 * i:2 * i + 2], o[2 * i:2 * i + 2], LV[t])
                        for i in reversed(range(4)): e.valu("v_cvt_pk_bf16_f32", d[i], o[2 * i], o[2 * i + 1])
                return
            n = 0
            for bh in range(2):
                for t in range(NE):
                    for bl in range(2):
                        blk = 2 * bh + bl
                        o = V(160 + (t * 8 + 2 * blk) * 4, 8)
                        d = V(112 + 4 * n, 4)
                        n += 1
                        for i in range(4): e.valu("v_pk_mul_f32", o[2 * i:2 * i + 2], o[2 * i:2 * i + 2], LV[t])
                        for i in range(4): e.valu("v_cvt_pk_bf16_f32", d[i], o[2 * i], o[2 * i + 1])
                        e.ds_write("ds_write_b128", vOW, d, bh * 34816 + toff(t) * 2048 + bl * 1024)
                        st_ = [lambda bh=bh, t=t: e.salu("s_add_u32", sT, sM0[0], bh * 18432 + toff(t) * 2048),
                               lambda d=d, bl=bl: e.bstore("buffer_store_dwordx4", d, vL16, sWS, sT, off=bl * 1024, pol=cfg.ost_pol, tag="ost0")]
                        if cfg.trickle and n > cfg.trickle0: later.append(st_)
                        else:
                            for f in st_: f()
                        for _ in range(3):
                            if rds: rds.popleft()()
                            elif extras: extras.popleft()()
        for h in range(2):
            if h == 0:
                beta(0); rds.extend(v_reads(1))
            prepass(h)
            chunks = []; save = e.lines
            bounds = [-1] + [first[s] for s in range(cfg.chunk0, 32, 4)] + [NT + 1]
            for a_, b_ in zip(bounds[:-1], bounds[1:]):
                e.lines = []
                for j in range(a_, b_): slot(h, j)
                chunks.append(e.lines)
            e.lines = save
            i = 0; nl = 0
            while i < len(chunks):
                k = i
                while k + 1 < len(chunks) and chunks[k + 1] == chunks[i]: k += 1
                if k > i:
                    nl += 1; lab = f"L_loop_{R}{h}{nl}"
                    e.lines.append(f"    s_mov_b32 {g.sCNT}, {k - i + 1}")
                    e.lines.append(lab + ":")
                    e.lines += chunks[i]
                    e.lines += [f"    s_sub_u32 {g.sCNT}, {g.sCNT}, 1", f"    s_cmp_lg_u32 {g.sCNT}, 0", f"    s_cbranch_scc1 {lab}"]
                else:
                    e.lines += chunks[i]
                i = k + 1
            if h:
                while extras: extras.popleft()()
            stamp(4 if h else 12)
            epilogue(h)
            if h == 0:
                e.wait_lds("tg")
                e.readfirstlane(sTAG, TG[0])
                stamp(13)
        while extras: extras.popleft()()
        e.wait_vm("pre")
        e.wait_all_lds(); e.barrier()
        read_fail(2)
        e.salu("s_andn2_b32", sT, sT, g.sRETRY)
        e.salu("s_cmp_eq_u32", None, sT, 0)
        e.branch("s_cbranch_scc1", "L_gemm")
        read_fail(1)
        e.salu("s_cmp_eq_u32", None, sT, 0)
        e.salu("s_cselect_b32", g.sPUB, 1, 0)
        e.salu("s_mov_b32", g.sRETRY, -1)
        e.wait_all()
        kv_addr_init()
        for h in range(2):
            MX = [V(48 + t) for t in range(3)]
            for t in range(NTW): e.valu("v_mov_b32", MX[t], "0xff800000")
            e.salu("s_mov_b32", g.sCNT, 32)
            e.salu("s_xor_b32", g.sKP, g.sKVB0, h * 262144); e.salu("s_mov_b32", g.sLS, 0)
            e.label(f"L_max_{R}{h}")
            e.barrier()
            if R == "A":
                for f in kv4_items("m")[:12]: f()
                e.wait_all_vm()
            e.salu("s_add_u32", g.sKP, g.sKP, 8192)
            e.barrier()
            for f in k_reads(0): f()
            e.wait_all_lds()
            for t in range(NTW):
                for kk in range(4):
                    for kt in range(2):
                        d = Sb[0][4 * kt:4 * kt + 4]
                        e.mfma16(d, Kf(0, kt, kk), Qf(h, t, kk), d if kk else 0)
                for i in range(4): e.valu("v_max3_f32", MX[t], Sb[0][2 * i], Sb[0][2 * i + 1], MX[t])
            e.salu("s_sub_u32", g.sCNT, g.sCNT, 1)
            e.salu("s_cmp_lg_u32", None, g.sCNT, 0)
            e.branch("s_cbranch_scc1", f"L_max_{R}{h}")
            for t in range(NTW):
                for op in ("v_permlane32_swap_b32", "v_permlane16_swap_b32"):
                    e.valu("v_mov_b32", vT0, MX[t])
                    e.perm(op, vT0, MX[t])
                    e.valu("v_max_f32", MX[t], vT0, MX[t])
                for i in range(4): e.valu("v_sub_f32", NM(h, t)[i], 0, MX[t])
        e.barrier()
        kv4_setup()
        for f in kv4_items("m"): f()
        ld_setup()
        e.wait_all_vm(); e.barrier()
        for f in k_reads(0) + v_reads(0): f()
        e.wait_all_lds()
        e.flush_hazards(8)
        e.branch("s_branch", f"L_main_{R}")

    e.label("L_gemm")
    e.hist = []; e.lds_q = []; e.vm_q = ["ost"]
    stamp(5)
    def ga_reads(st):
        return [lambda kb=kb, ee=ee, hi=hi: e.ds_read("ds_read_b64_tr_b16", GA(st & 1, kb * 2 + ee)[2 * hi:2 * hi + 2], GWA[st >> 1 & 1],
                                                     (st & 1) * 34816 + kb * 8192 + hi * 4096 + ee * 8, tag="g") for kb in range(2) for ee in range(2) for hi in range(2)]
    def gb_reads(st):
        return [lambda i=i: e.ds_read("ds_read_b128", GB(st & 1, i), GOA[st >> 1 & 1], (st & 1) * 34816 + i * 1024, tag="g") for i in range(18)]
    for f in ga_reads(0) + gb_reads(0): f()
    e.vm_q = [("g", 2)] * 9 + [("g", 3)] * 9
    PS = cfg.poll_stage
    assert cfg.st_stage < cfg.sig_stage < PS and 6 <= PS <= 8
    def o2_items(kind, bh):
        def one(t, bl):
            if kind == "st":
                if bl == 0: e.salu("s_add_u32", sT, sOB1, bh * 18432 + t * 2048)
                e.bstore("buffer_store_dwordx4", OPK(t, 2 * bh + bl), vL16, sWS, sT, off=bl * 1024, pol=cfg.ost_pol, tag="ost")
            else:
                e.ds_write("ds_write_b128", vOW, OPK(t, 2 * bh + bl), bh * 34816 + t * 2048 + bl * 1024)
        def third():
            e.salu("s_cmp_lg_u32", None, sW, 3)
            e.branch("s_cbranch_scc1", "5f")
            q_ = (list(e.vm_q), list(e.lds_q))
            one(2, 0); one(2, 1)
            e.vm_q, e.lds_q = q_
            e.label("5")
        return [third] + [lambda t=t, bl=bl: one(t, bl) for t in range(2) for bl in range(2)]
    for st in range(16):
        e.comment(f"o-proj stage {st}")
        if st == cfg.sig_stage: e.wait_all_vm()
        if st == PS:
            e.salu("s_cmp_lg_u32", None, sW, 0)
            e.branch("s_cbranch_scc1", "L_poll1x")
            q_ = list(e.vm_q)
            e.wait_vm("fl1")
            flag_test()
            e.branch("s_cbranch_scc1", "L_poll1x")
            poll(sF1, 32, "L_poll1")
            e.vm_q = q_
        if st + 1 < 16: e.wait_vm(("g", st + 1))
        e.wait_all_lds(); e.barrier()
        if st == cfg.sig_stage:
            e.salu("s_cmp_lg_u32", None, sW, 3)
            e.branch("s_cbranch_scc1", "L_sig1")
            flag_store(sF1, 32, g.sHP)
            e.label("L_sig1")
            stamp(6)
        if st == PS: stamp(7)
        if st == 2: stamp(14)
        fill = deque()
        if st == PS - 1:
            fill.append(lambda: flag_load(sF1, 32, "fl1"))
        if st == PS:
            for s2 in range(10, st + 4): fill.extend(go_items(s2))
        if st == cfg.st_stage: fill.extend(o2_items("st", 0) + o2_items("st", 1))
        if st + 4 < 16:
            if st + 4 in (8, 9): fill.extend(o2_items("lds", st - 4))
            elif st + 4 < 8 or st >= PS: fill.extend(go_items(st + 4))
            fill.extend(gw_items(st + 4))
        rd = deque(ga_reads(st + 1) + gb_reads(st + 1)) if st + 1 < 16 else deque()
        mfs = [lambda qt=qt, kb=kb, ee=ee: e.mfma16(GC(qt, ee), GA(st & 1, kb * 2 + ee), GB(st & 1, qt * 2 + kb), GC(qt, ee) if (st or kb) else 0)
               for kb in range(2) for qt in range(9) for ee in range(2)]
        run_stage(mfs, rd, fill, span=20 if st + 1 == cfg.sig_stage else None)
    stamp(8)
    e.salu("s_cmp_eq_u32", None, sW, g.sHG)
    e.branch("s_cbranch_scc1", "L_fin")
    h1 = list(e.hist)
    e.salu("s_lshl_b32", sT, sW, 2); e.salu("s_add_u32", sT, sT, g.sHG); e.salu("s_mul_i32", sT, sT, 9216); e.salu("s_add_u32", sT2, sT, g.sPB)
    for qt in range(9):
        o = V(112 + qt * 8, 8)
        for i in range(4): e.valu("v_cvt_pk_bf16_f32", o[i], o[2 * i], o[2 * i + 1])
        if qt and qt % 4 == 0: e.salu("s_add_u32", sT2, sT2, 4096)
        e.bstore("buffer_store_dwordx4", o[0:4], vL16, sWS, sT2, off=(qt % 4) * 1024, pol="sc1")
    e.wait_all_vm(); e.barrier()
    stamp(9)
    stamp_flush()
    e.other("s_endpgm")
    e.label("L_fin")
    e.hist = h1
    e.barrier()
    flag_store(sF2, 0, g.sHG)
    stamp(9)
    poll(sF2, 0, "L_poll2")
    stamp(10)
    e.vm_q = []
    PB = lambda s, qt: (V(184 + (s * 9 + qt) * 4, 4) if s < 2 else V(32 + qt * 4, 4))
    for s in range(3):
        e.salu("s_add_u32", sT, g.sHG, s + 1); e.salu("s_and_b32", sT, sT, 3)
        e.salu("s_lshl_b32", sT1, sW, 2); e.salu("s_add_u32", sT, sT, sT1); e.salu("s_mul_i32", sT, sT, 9216); e.salu("s_add_u32", sT2, sT, g.sPB)
        for qt in range(9):
            if qt and qt % 4 == 0: e.salu("s_add_u32", sT2, sT2, 4096)
            e.bload("buffer_load_dwordx4", PB(s, qt), vL16, sWS, sT2, off=(qt % 4) * 1024, pol="sc1", tag=(s, qt))
    e.salu("s_mul_i32", sT2, g.sB, 144 * 2048); e.salu("s_lshl_b32", sT, g.sBR, 10); e.salu("s_add_u32", sT2, sT2, sT)
    e.salu("s_lshl_b32", sT, g.sHP, 8); e.salu("s_add_u32", sT2, sT2, sT); e.salu("s_lshl_b32", sT, sW, 6); e.salu("s_add_u32", sT2, sT2, sT)
    e.salu("s_mov_b32", sT1, "0xffff0000")
    for s in range(3):
        for qt in range(9):
            o = V(112 + qt * 8, 8); p = PB(s, qt)
            e.wait_vm((s, qt))
            for i in range(4):
                e.valu("v_lshlrev_b32", vT0, 16, p[i]); e.valu("v_and_b32", vT1, sT1, p[i])
                e.valu("v_add_f32", o[2 * i], o[2 * i], vT0); e.valu("v_add_f32", o[2 * i + 1], o[2 * i + 1], vT1)
            if s == 2:
                for i in range(4): e.valu("v_cvt_pk_bf16_f32", o[i], o[2 * i], o[2 * i + 1])
                e.bstore("buffer_store_dwordx4", o[0:4], vST, sOUT, sT2, pol=cfg.out_pol)
                if qt < 8: e.salu("s_add_u32", sT2, sT2, 32768)
    stamp(11)
    stamp_flush()
    e.label("L_done")
    e.other("s_endpgm")
    e.label("L_end")

def generate(cfg, fn):
    e = Em()
    e.raw('.amdgcn_target "amdgcn-amd-amdhsa--gfx950"'); e.raw(".text")
    gen(e, cfg, NAME + "_kernel")
    top = ("; attention block in one launch: q-projection, attention, output projection; generated by dev/gen5.py\n"
           "; @launch grid=(256,1,1) block=(256,1,1) lds=163840\n")
    tail = '.section .rodata,"a"\n' + descriptor(NAME + "_kernel", 512, 102, 256)
    open(fn, "w").write(top + e.text() + tail)
    return e

if __name__ == "__main__":
    cfg = Cfg()
    fn = sys.argv[1] if len(sys.argv) > 1 else "k.s"
    for kv in sys.argv[2:]:
        k, v = kv.split("=", 1)
        cur = getattr(cfg, k)
        setattr(cfg, k, type(cur)(int(v)) if isinstance(cur, (bool, int)) and not isinstance(cur, float) else (float(v) if isinstance(cur, float) else v))
    e = generate(cfg, fn)
    print(fn, "lines", len(e.lines), "nop states", e.nops)
```

```python
import sys, struct
from collections import deque
from asmlib import *

NAME = "concat_heads__mha_block_cached__gqa_block_cached__near_ridge"
def f2u(x): return struct.unpack("<I", struct.pack("<f", x))[0]
QSCALE = 1.4426950408889634 / (128 ** 0.5)

class Cfg:
    kv_pol = "nt"
    xw_pol = ""
    wo_pol = ""
    lthresh = 2.0 ** 40
    force_fallback = 0
    stamps = False
    poll_sleep = 2
    kv0_stage = 13
    win = 12
    wing = 2
    win2 = 0
    dbg_tail = 0
    ost_pol = "sc1"
    chunk0 = 4
    swap = 1
    alt = 1
    out_pol = "sc1"
    rotmul = "0x9e3779b1"
    trickle = 0
    trickle0 = 3
    sig_trip = 5
    warm_trip = 3
    warm_w = 1
    qst = 0
    fb = 0
    open_trip = 1
    warm0 = -1
    warm_per = 4
    qov = 3
    kv0_rate = 2
    warm_o = 0
    warm_opol = "sc1"
    cw = 3
    cw_trip = 2
    sig1_step = 35
    pre_step = 62
    warm = 1
    dbg_hot = 0
    st_stage = 0
    sig_stage = 5
    poll_stage = 8
    probe = -2
    probe_a = 0
    probe_cyc = 0
    probe_wg = -1

OWS_BYTES = 16 * 64 * 18432
PWS_OFF = OWS_BYTES
PWS_BYTES = 64 * 16 * 9216
FLG_OFF = OWS_BYTES + PWS_BYTES
PRG_OFF = FLG_OFF + (64 + 256) * 256
WS_USED = PRG_OFF + 16 * 256
STAMP_OFF = 32 << 20
NSTAMP = 16

def descriptor(label, vgpr, sgpr, accum):
    return f""".p2align 6
.amdhsa_kernel {label}
  .amdhsa_next_free_vgpr {vgpr}
  .amdhsa_next_free_sgpr {sgpr}
  .amdhsa_accum_offset {accum}
  .amdhsa_group_segment_fixed_size 0
  .amdhsa_kernarg_size 104
  .amdhsa_user_sgpr_count 2
  .amdhsa_user_sgpr_kernarg_segment_ptr 1
  .amdhsa_system_sgpr_workgroup_id_x 1
.end_amdhsa_kernel
"""

def gen(e, cfg, label):
    e.raw(f".globl {label}"); e.raw(".p2align 8"); e.raw(f".type {label},@function"); e.label(label)
    sX, sWQ, sK, sV, sWS, sWO, sOUT, sDBG = (S(4 * i + 4, 4) for i in range(8))
    sLD = sX
    names = ("W XCD IDX T T1 T2 B HP HG BR KVB KP KO LS XS WS2 XL WL CNT RETRY SC ROT OB OKP WB OL PB FL1 FL2 SP WLG FAIL PUB KVB0").split()
    sr = {n: S(36 + i) for i, n in enumerate(names)}
    assert 36 + len(names) <= 70
    g = type("G", (), {"s" + n: r for n, r in sr.items()})
    sM0, sM1 = S(70, 2), S(72, 2)
    KARG = 76
    def kp(i): return S(KARG + 2 * i), S(KARG + 2 * i + 1)
    sW, sT, sT1, sT2 = g.sW, g.sT, g.sT1, g.sT2
    sU0, sU1 = S(76), S(77)
    sWBw, sOKw = S(79), S(80)
    sPC = S(82, 2)
    sPL, sTRIP, sPS = S(86), S(87), S(88)
    sF1, sF2 = S(84), S(85)
    sTAG = S(81)
    TG = V(108, 2)
    sSW2, sOB1 = S(3), S(78)
    vL, vL16, vT0, vT1, vT2 = V(1), V(2), V(3), V(4), V(5)
    KA = [V(6 + i) for i in range(4)]; VA = [V(10 + i) for i in range(8)]
    oK = [V(18 + i) for i in range(4)]; oV = [V(22 + i) for i in range(2)]
    oWo = [V(24 + i) for i in range(4)]
    XA = [V(28), V(29)]; WA = [V(30), V(31)]
    oLD = [V(28 + i) for i in range(4)]
    Sb = [V(32 + i * 8, 8) for i in range(2)]
    Pb = [V(48 + i * 4, 4) for i in range(2)]
    NM = lambda h, t: V(56 + (h * 3 + t) * 4, 4)
    oX = [V(56 + i) for i in range(5)]; oWQ = [V(61 + i) for i in range(4)]
    Kb = [V(80 + kk * 4, 4) for kk in range(4)]
    KBA, QA, QW = V(96), V(97), V(98)
    GWA = [V(99), V(100)]; GOA = [V(101), V(102)]; vST, vFLG, stamp_reg, vD0, vD1 = V(103), V(104), V(105), V(106), V(107)
    PG = V(28, 2)
    vOW = V(98)
    Oacc = lambda t, D: V(160 + (t * 8 + D) * 4, 4)
    OPK = lambda t, blk: V(208 + (t * 4 + blk) * 4, 4)
    QACC = lambda D, qt: V(112 + (qt * 4 + D) * 4, 4)
    XF = lambda buf, qt: A(buf * 36 + qt * 4, 4)
    WF = lambda buf, D: A(108 + buf * 16 + D * 4, 4)
    Qf = lambda h, t, kk: A((h * 12 + t * 4 + kk) * 4, 4)
    Lb = [A(96 + t * 4, 4) for t in range(3)]
    ONES = A(108, 4)
    Kf = lambda b, kt, kk: A(112 + b * 32 + (kt * 4 + kk) * 4, 4)
    Vf = lambda b, D: A(176 + b * 32 + D * 4, 4)
    GB = lambda buf, i: A((0 if buf else 112) + i * 4, 4)
    GA = lambda buf, i: A((72 if buf else 184) + i * 4, 4)
    GC = lambda qt, ee: V(112 + (qt * 2 + ee) * 4, 4)
    LQ = 65536; XS0, WS0 = LQ, LQ + 36864
    GSL = [69632, 104448, 0, 34816]; LFLAG = 163840 - 64

    pl = [0]
    def stamp(i, q=False):
        if cfg.qst and not q and i in (6, 7, 9, 10, 11): return
        if cfg.stamps:
            e.other("s_memrealtime s[74:75]"); e._wait(lg=0); e.lds_q = []
            e.ins(f"v_writelane_b32 {stamp_reg}, s74, {i}", 'valu', [], [stamp_reg])
            if cfg.probe_cyc:
                e.other("s_memtime s[74:75]"); e._wait(lg=0)
                e.ins(f"v_writelane_b32 {stamp_reg}, s74, {i + 16}", 'valu', [], [stamp_reg])
    def stamp_flush():
        if not cfg.stamps: return
        e.wait_all_vm(); stamp(NSTAMP - 1)
        if cfg.probe >= 0:
            pl[0] += 1
            e.nop(2)
            e.ins(f"v_readlane_b32 {sT1}, {stamp_reg}, {cfg.probe}", 'readlane', [stamp_reg], [sT1])
            e.nop(4)
            e.salu("s_cmp_eq_u32", None, sT1, 0)
            e.branch("s_cbranch_scc1", f"L_pe{pl[0]}")
            if cfg.probe_wg >= 0:
                e.salu("s_and_b32", sT, S(2), 7)
                e.salu("s_cmp_lg_u32", None, sT, cfg.probe_wg)
                e.branch("s_cbranch_scc1", f"L_pe{pl[0]}")
            o_ = 16 if cfg.probe_cyc else 0
            e.ins(f"v_readlane_b32 {sT1}, {stamp_reg}, {cfg.probe + o_}", 'readlane', [stamp_reg], [sT1])
            e.ins(f"v_readlane_b32 {sT2}, {stamp_reg}, {cfg.probe_a + o_}", 'readlane', [stamp_reg], [sT2])
            e.ins(f"v_readlane_b32 {sT}, {stamp_reg}, 0", 'readlane', [stamp_reg], [sT])
            e.nop(4)
            e.salu("s_sub_u32", sT1, sT1, sT2)
            if cfg.probe_cyc: e.salu("s_lshr_b32", sT1, sT1, 4)
            e.salu("s_add_u32", sT1, sT1, sT)
            e.salu("s_add_u32", sT1, sT1, 12000)
            e.label(f"L_pr{pl[0]}")
            e.other("s_memrealtime s[74:75]"); e._wait(lg=0)
            e.salu("s_sub_u32", sT, S(74), sT1)
            e.salu("s_cmp_lt_i32", None, sT, 0)
            e.branch("s_cbranch_scc1", f"L_pr{pl[0]}")
            e.label(f"L_pe{pl[0]}")
            return
        e.salu("s_lshl_b32", sT, S(2), 2); e.salu("s_add_u32", sT, sT, sW); e.salu("s_lshl_b32", sT, sT, 8)
        e.salu("s_add_u32", sT, sT, STAMP_OFF)
        e.valu("v_lshlrev_b32", vT0, 2, vL)
        e.bstore("buffer_store_dword", stamp_reg, vT0, sWS, sT)

    e.salu("s_cmp_ge_u32", None, S(2), 256)
    e.branch("s_cbranch_scc1", "L_done")
    e.other(f"s_load_dwordx16 s[{KARG}:{KARG+15}], s[0:1], 0")
    e.other(f"s_load_dwordx8 s[{KARG+16}:{KARG+23}], s[0:1], 64")
    e.other(f"s_load_dwordx2 s[{KARG+24}:{KARG+25}], s[0:1], 96")
    e.other("s_memrealtime s[72:73]")
    e.valu("v_lshrrev_b32", vT0, 6, V(0))
    e.valu("v_and_b32", vL, 63, V(0))
    e.readfirstlane(sW, vT0)
    if cfg.stamps: e.valu("v_mov_b32", stamp_reg, 0)
    e.salu("s_and_b32", g.sXCD, S(2), 7)
    e.salu("s_lshr_b32", g.sIDX, S(2), 3)
    e.salu("s_lshr_b32", g.sB, g.sIDX, 2); e.salu("s_and_b32", g.sHP, g.sIDX, 3)
    e.salu("s_and_b32", g.sHG, g.sXCD, 3); e.salu("s_lshr_b32", g.sBR, g.sXCD, 2)
    e.valu("v_lshlrev_b32", vL16, 4, vL)
    e.valu("v_lshrrev_b32", vT1, 4, vL); e.valu("v_lshrrev_b32", vT0, 3, vL)
    e.salu("s_lshl_b32", sT, g.sHP, 1); e.salu("s_add_u32", sT, sT, g.sB); e.salu("s_and_b32", sT, sT, 7)
    e.salu("s_lshl_b32", g.sXS, sT, 7); e.salu("s_lshl_b32", g.sWS2, sT, 19)
    e.salu("s_mul_i32", sT, sW, 9); e.salu("s_lshr_b32", sT, sT, 1)
    e.salu("s_lshl_b32", g.sOL, sT, 10); e.salu("s_add_u32", g.sXL, g.sOL, XS0)
    e.salu("s_mul_i32", sT1, g.sB, 147456); e.salu("s_lshl_b32", sT2, sT, 13); e.salu("s_add_u32", sT1, sT1, sT2)
    e.salu("s_and_b32", sT, sT, 1); e.salu("s_lshl_b32", sT, sT, 6)
    e.valu("v_and_b32", vT2, 7, vL); e.valu("v_xor_b32", vT2, vT2, vT1); e.valu("v_lshlrev_b32", vT2, 4, vT2)
    e.valu("v_lshl_add_u32", vT2, vT0, 10, vT2); e.valu("v_xor_b32", vT2, sT, vT2)
    e.valu("v_add_u32", oX[0], sT1, vT2); e.valu("v_xor_b32", vT2, 64, oX[0])
    for i in range(1, 5): e.valu("v_add_u32", oX[i], i * 8192 - (i % 3) * 1024, vT2 if i & 1 else oX[0])
    e.salu("s_lshl_b32", sT1, g.sHG, 11); e.salu("s_lshl_b32", sT2, g.sHP, 9); e.salu("s_add_u32", sT1, sT1, sT2)
    e.salu("s_lshl_b32", sT2, sW, 7); e.salu("s_add_u32", sT1, sT1, sT2)
    e.valu("v_and_b32", vT2, 1, vT1); e.valu("v_lshlrev_b32", vT2, 2, vT2)
    e.valu("v_and_b32", oWQ[0], 7, vL); e.valu("v_xor_b32", vT2, oWQ[0], vT2); e.valu("v_lshlrev_b32", vT2, 4, vT2)
    e.valu("v_lshl_add_u32", vT2, vT0, 13, vT2); e.valu("v_add_u32", oWQ[0], sT1, vT2)
    for i in range(1, 4): e.valu("v_add_u32", oWQ[i], i * (65536 - 1024), oWQ[0])
    e.salu("s_lshl_b32", g.sWLG, sW, 12); e.salu("s_add_u32", g.sWL, g.sWLG, WS0)
    e._wait(lg=0)
    e.salu("s_cmp_lg_u32", None, g.sBR, 0)
    def srd(d, a, b, size):
        if b is None:
            e.salu("s_mov_b32", d[0], kp(a)[0]); e.salu("s_mov_b32", d[1], kp(a)[1])
        else:
            e.salu("s_cselect_b32", d[0], kp(b)[0], kp(a)[0]); e.salu("s_cselect_b32", d[1], kp(b)[1], kp(a)[1])
        e.salu("s_mov_b32", d[2], hex(size)); e.salu("s_mov_b32", d[3], "0x20000")
    srd(sX, 0, 5, 8 * 147456); srd(sWQ, 3, 8, 512 * 8192)
    srd(sK, 1, 6, 1 << 26); srd(sV, 2, 7, 1 << 26); srd(sWO, 4, 9, 4096 * 1024)
    srd(sDBG, 11, None, 256)
    e.salu("s_cmp_lg_u32", None, sW, 3)
    e.branch("s_cbranch_scc1", "1f")
    e.salu("s_or_b32", S(72), S(72), 1)
    e.salu("s_lshl_b32", sT, g.sBR, 3); e.salu("s_add_u32", sT, sT, g.sB); e.salu("s_lshl_b32", sT, sT, 4)
    e.valu("v_mov_b32", TG[0], S(72)); e.valu("v_mov_b32", TG[1], 0); e.valu("v_mov_b32", V(110), 0)
    e.salu("s_mov_b64", "exec", 1)
    e.ins(f"buffer_atomic_cmpswap {TG}, v110, {sDBG}, {sT} offen sc0 sc1", 'vmem', [TG, V(110), sDBG, sT], [TG[0]])
    e.salu("s_mov_b64", "exec", -1)
    e.label("1")
    stamp(0)

    def x_items(D, part, tag):
        its = [lambda: e.salu("s_add_u32", "m0", g.sXL, (D & 1) * 18432 + part * 3072)]
        for i in range(3 * part, min(5, 3 * part + 3)):
            its.append(lambda i=i: e.dma(oX[i], sX, g.sXS, off=(i % 3) * 1024, pol=cfg.xw_pol, tag=tag))
        if part == 1:
            its.append(lambda: e.salu("s_add_u32", g.sXS, g.sXS, 128))
            its.append(lambda: e.salu("s_and_b32", g.sXS, g.sXS, 1023))
        return its
    def w_items(st, tag):
        its = [lambda: e.salu("s_add_u32", "m0", g.sWL, (st % 3) * 16384)]
        for i in range(4):
            its.append(lambda i=i: e.dma(oWQ[i], sWQ, g.sWS2, off=i * 1024, pol=cfg.xw_pol, tag=tag))
        its.append(lambda: e.salu("s_add_u32", g.sWS2, g.sWS2, 1 << 18))
        its.append(lambda: e.salu("s_and_b32", g.sWS2, g.sWS2, "0x3fffff"))
        return its
    for f in (x_items(0, 0, "p0") + x_items(0, 1, "p0") + w_items(0, "p0") + w_items(1, "p1") +
              x_items(1, 0, "p2") + x_items(1, 1, "p2") + w_items(2, "p2")): f()

    srd(sWS, 12, None, 64 << 20 if cfg.stamps else WS_USED); srd(sOUT, 10, None, 8 * 144 * 2048)
    e.salu("s_lshl_b32", sT, g.sHG, 3); e.salu("s_lshl_b32", sT1, g.sHP, 1); e.salu("s_add_u32", sT, sT, sT1)
    e.salu("s_lshl_b32", g.sKVB0, g.sB, 5); e.salu("s_add_u32", g.sKVB0, g.sKVB0, sT); e.salu("s_lshl_b32", g.sKVB0, g.sKVB0, 18)
    e.salu("s_lshl_b32", sT1, g.sBR, 3); e.salu("s_add_u32", sT1, sT1, g.sB)
    e.salu("s_lshl_b32", sT2, sT1, 5); e.salu("s_add_u32", sT2, sT2, sT); e.salu("s_mul_i32", g.sOB, sT2, 36864)
    e.salu("s_add_u32", g.sOB, g.sOB, g.sWLG)
    if cfg.swap == 1: e.salu("s_xor_b32", sSW2, g.sB, g.sHG)
    elif cfg.swap == 2:
        e.salu("s_lshr_b32", sSW2, g.sB, 1); e.salu("s_xor_b32", sSW2, sSW2, g.sB); e.salu("s_lshr_b32", sT2, g.sHG, 1); e.salu("s_xor_b32", sSW2, sSW2, sT2)
    e.salu("s_and_b32", sSW2, sSW2, 1 if cfg.swap else 0)
    e.salu("s_lshl_b32", sT2, sSW2, 18); e.salu("s_add_u32", g.sKVB0, g.sKVB0, sT2)
    e.salu("s_mul_i32", sT2, sSW2, 36864); e.salu("s_add_u32", sOB1, g.sOB, 36864); e.salu("s_sub_u32", sOB1, sOB1, sT2); e.salu("s_add_u32", g.sOB, g.sOB, sT2)
    e.salu("s_lshl_b32", sSW2, sSW2, 1)
    if cfg.dbg_tail & 1: e.salu("s_mov_b32", sOB1, "0x40000000")
    e.salu("s_lshl_b32", sT2, sT1, 2); e.salu("s_add_u32", g.sFL1, sT2, g.sHG); e.salu("s_add_u32", g.sFL2, sT2, g.sHP)
    e.salu("s_mul_i32", g.sOKP, g.sFL1, 16 * 18432)
    e.salu("s_mul_i32", g.sPB, g.sFL2, 16 * 9216); e.salu("s_add_u32", g.sPB, g.sPB, PWS_OFF)
    e.salu("s_lshl_b32", sF1, g.sFL1, 8); e.salu("s_add_u32", sF1, sF1, FLG_OFF)
    e.salu("s_lshl_b32", sF2, g.sFL2, 10); e.salu("s_add_u32", sF2, sF2, FLG_OFF + 64 * 256)
    e.salu("s_lshl_b32", sPL, sT1, 8); e.salu("s_add_u32", sPL, sPL, PRG_OFF)
    e.salu("s_lshl_b32", sPS, g.sHG, 2); e.salu("s_add_u32", sPS, sPS, g.sHP); e.salu("s_lshl_b32", sPS, sPS, 3)
    e.salu("s_mov_b32", sTRIP, 0)
    e.salu("s_lshl_b32", g.sWB, g.sHG, 20); e.salu("s_lshl_b32", sT, g.sHP, 8); e.salu("s_add_u32", g.sWB, g.sWB, sT)
    e.salu("s_lshl_b32", sT, sW, 14); e.salu("s_add_u32", sWBw, g.sWB, sT)
    e.salu("s_add_u32", sOKw, g.sOKP, g.sOL)
    if cfg.dbg_tail & 2: e.salu("s_mov_b32", sOKw, "0x40000000"); e.salu("s_mov_b32", sWBw, "0x40000000")
    if cfg.dbg_tail & 4: e.salu("s_mov_b32", g.sOKP, "0x40000000"); e.salu("s_mov_b32", g.sWB, "0x40000000")
    e.other(f"s_getpc_b64 {sPC}")
    e.label("L_pc")
    e.salu("s_mul_i32", g.sROT, S(2), cfg.rotmul); e.salu("s_lshr_b32", g.sROT, g.sROT, 27); e.salu("s_lshl_b32", g.sROT, g.sROT, 13)
    e.salu("s_mov_b32", g.sRETRY, 0); e.salu("s_mov_b32", g.sPUB, 0)
    e.salu("s_mov_b32", g.sSC, hex(f2u(QSCALE)))
    e.valu("v_and_b32", vT0, 15, vL); e.valu("v_lshrrev_b32", vT1, 4, vL)
    e.valu("v_xor_b32", vT2, vT0, vT1)
    e.valu("v_lshlrev_b32", vT2, 4, vT2); e.valu("v_lshl_add_u32", oK[0], vT1, 8, vT2)
    for n in range(1, 4): e.valu("v_xor_b32", oK[n], n << 6, oK[0])
    e.valu("v_lshlrev_b32", vT2, 1, vT1); e.valu("v_xor_b32", vT2, vT0, vT2)
    e.valu("v_lshlrev_b32", vT2, 4, vT2); e.valu("v_lshl_add_u32", oV[0], vT1, 8, vT2)
    e.valu("v_xor_b32", oV[1], 128, oV[0])
    e.valu("v_lshlrev_b32", vT2, 2, vT1); e.valu("v_xor_b32", vT2, vT0, vT2)
    e.valu("v_lshlrev_b32", vT2, 4, vT2); e.valu("v_lshl_add_u32", oWo[0], vT1, 10, vT2)
    for i in range(1, 4): e.valu("v_add_u32", oWo[i], i * 3072, oWo[0])
    def kv_addr_init():
        e.valu("v_and_b32", vT0, 15, vL); e.valu("v_lshrrev_b32", vT1, 4, vL)
        e.valu("v_xor_b32", vT2, vT0, vT1); e.valu("v_lshlrev_b32", vT2, 4, vT2)
        e.valu("v_lshl_add_u32", KA[0], vT0, 8, vT2)
        for kk in range(1, 4): e.valu("v_xor_b32", KA[kk], kk << 6, KA[0])
        e.valu("v_lshlrev_b32", KBA, 4, vT1)
        e.valu("v_lshrrev_b32", vT0, 2, vL)
        e.valu("v_and_b32", vT2, 7, vT0); e.valu("v_lshlrev_b32", vT2, 5, vT2)
        e.valu("v_lshl_add_u32", vT2, vT0, 8, vT2)
        e.valu("v_and_b32", vT0, 3, vL); e.valu("v_lshl_add_u32", vT2, vT0, 3, vT2)
        e.valu("v_add_u32", VA[0], 8192, vT2)
        for D in range(1, 8): e.valu("v_xor_b32", VA[D], D << 5, VA[0])
    kv_addr_init()
    e.valu("v_and_b32", vT0, 15, vL)
    e.valu("v_lshrrev_b32", vT2, 1, vT0); e.valu("v_xor_b32", vT2, vT2, vT1); e.valu("v_lshlrev_b32", vT2, 4, vT2)
    e.valu("v_lshl_add_u32", vT2, vT0, 7, vT2); e.valu("v_add_u32", XA[0], XS0, vT2); e.valu("v_xor_b32", XA[1], 64, XA[0])
    e.valu("v_lshlrev_b32", vST, 11, vT0); e.valu("v_lshl_add_u32", vST, vT1, 4, vST)
    e.valu("v_lshrrev_b32", vT0, 2, vL); e.valu("v_and_b32", vT0, 3, vT0)
    e.valu("v_lshl_add_u32", vT2, vT1, 3, vT0); e.valu("v_lshlrev_b32", vT2, 7, vT2)
    e.valu("v_lshrrev_b32", WA[1], 1, vT0); e.valu("v_lshl_add_u32", vT2, WA[1], 6, vT2)
    e.valu("v_and_b32", WA[1], 3, vL); e.valu("v_lshl_add_u32", vT2, WA[1], 4, vT2)
    e.valu("v_add_u32", WA[0], g.sWL, vT2); e.valu("v_xor_b32", WA[1], 64, WA[0])
    e.valu("v_xor_b32", vT0, sW, vT0); e.valu("v_lshlrev_b32", vT0, 6, vT0)
    e.valu("v_and_b32", vT2, 3, vL); e.valu("v_lshl_add_u32", vT0, vT2, 4, vT0)
    e.valu("v_lshrrev_b32", vT2, 2, vL); e.valu("v_lshl_add_u32", GWA[1], vT2, 8, vT0)
    e.valu("v_add_u32", GWA[0], GSL[0], GWA[1])
    e.valu("v_add_u32", GOA[1], 16384, vL16); e.valu("v_add_u32", GOA[0], GSL[0] + 16384, vL16)
    e.salu("s_lshr_b32", sT1, sW, 1); e.salu("s_mul_i32", sT1, sT1, 36864)
    e.salu("s_and_b32", sT2, sW, 1); e.salu("s_lshl_b32", sT2, sT2, 11); e.salu("s_add_u32", sT2, sT2, sT1); e.salu("s_add_u32", sT2, sT2, LQ)
    e.valu("v_add_u32", QW, sT2, vL16)
    e.salu("s_lshl_b32", sT2, sW, 13); e.salu("s_add_u32", sT2, sT2, LQ)
    e.valu("v_add_u32", QA, sT2, vL16)
    e.salu("s_lshl_b32", sT2, sW, 2); e.salu("s_add_u32", sT2, sT2, LFLAG)
    e.valu("v_mov_b32", vFLG, sT2)

    def kv4_setup():
        e.salu("s_lshl_b32", sT, sW, 13); e.salu("s_add_u32", g.sKP, g.sROT, sT); e.salu("s_and_b32", g.sKP, g.sKP, "0x3ffff")
        e.salu("s_add_u32", g.sKP, g.sKP, g.sKVB0); e.salu("s_lshl_b32", g.sLS, sW, 14)
    def kv4_items(tag, base=None):
        its = []
        for srd_, voff, b_ in ((sK, oK, 0), (sV, oV, 8192)):
            for n in range(8):
                if n % 4 == 0:
                    its.append(lambda n=n, b_=b_: e.salu("s_add_u32", "m0", g.sLS, b_ + n * 1024))
                    its.append(lambda n=n: e.salu("s_add_u32", g.sKO, g.sKP, n * 1024))
                its.append(lambda n=n, srd_=srd_, voff=voff: e.dma(voff[n % len(voff)], srd_, g.sKO, off=(n & 3) * 1024, pol=cfg.kv_pol, tag=tag))
        return its
    oKq = [V(32), V(33)]
    def kvq_setup():
        e.salu("s_and_b32", sT, sW, 1); e.salu("s_lshl_b32", sT, sT, 7)
        e.valu("v_xor_b32", oKq[0], sT, oK[0]); e.valu("v_xor_b32", oKq[1], sT, oK[1])
        e.salu("s_lshl_b32", g.sLS, sW, 11); e.salu("s_add_u32", g.sKVB, g.sKVB0, g.sLS); e.salu("s_mov_b32", g.sKP, g.sROT)
    def kvq_items(step):
        its = [lambda: e.salu("s_add_u32", "m0", g.sLS, step * 16384), lambda: e.salu("s_add_u32", g.sKO, g.sKVB, g.sKP)]
        its += [lambda i=i: e.dma(oKq[i], sK, g.sKO, off=i * 1024, pol=cfg.kv_pol, tag=("kv", step)) for i in range(2)]
        its += [lambda: e.salu("s_add_u32", "m0", g.sLS, step * 16384 + 8192), lambda: e.salu("s_add_u32", g.sKP, g.sKP, 8192)]
        its += [lambda i=i: e.dma(oV[i], sV, g.sKO, off=i * 1024, pol=cfg.kv_pol, tag=("kv", step)) for i in range(2)]
        its += [lambda: e.salu("s_and_b32", g.sKP, g.sKP, "0x3ffff")]
        return its
    kvq_setup()
    def window():
        if cfg.win2:
            e.branch("s_cbranch_vccnz", "4f")
            e._wait(vm=cfg.win2 - cfg.wing)
            e.label("4")
        if cfg.win and len(e.vm_q) > cfg.win - cfg.wing:
            n = cfg.win - cfg.wing
            e._wait(vm=n); e.vm_q = e.vm_q[len(e.vm_q) - n:]
    def ld_setup():
        e.salu("s_cmp_eq_u32", None, sW, 2)
        e.salu("s_cselect_b32", sLD[0], sV[0], sK[0]); e.salu("s_cselect_b32", sLD[1], sV[1], sK[1])
        e.salu("s_mov_b32", sLD[2], hex(1 << 26)); e.salu("s_mov_b32", sLD[3], "0x20000")
        e.salu("s_cselect_b32", g.sLS, 8192, 0)
        e.salu("s_cselect_b64", "vcc", -1, 0)
        e.nop(2)
        for n in range(4): e.ins(f"v_cndmask_b32 {oLD[n]}, {oK[n]}, {oV[n & 1]}, vcc", 'valu', [oK[n], oV[n & 1], 'vcc'], [oLD[n]])
        e.salu("s_add_u32", g.sKP, g.sROT, 4 * 8192); e.salu("s_and_b32", g.sKP, g.sKP, "0x3ffff")
        e.salu("s_mov_b32", g.sKVB, g.sKVB0)
        if cfg.win2:
            e.salu("s_mov_b64", "vcc", 0)
    def ld_items(step):
        its = []
        if step == 32: its.append(lambda: e.salu("s_xor_b32", g.sKVB, g.sKVB, 262144))
        for n in range(8):
            if n == 0:
                its.append(lambda: e.salu("s_add_u32", "m0", g.sLS, (step & 3) * 16384)); its.append(lambda: e.salu("s_add_u32", g.sKO, g.sKVB, g.sKP))
            if n == 4:
                its.append(lambda: e.salu("s_add_u32", "m0", g.sLS, (step & 3) * 16384 + 4096)); its.append(lambda: e.salu("s_add_u32", g.sKO, g.sKO, 4096))
            if n % cfg.wing == 0: its.append(window)
            its.append(lambda n=n: e.dma(oLD[n & 3], sLD, g.sKO, off=(n & 3) * 1024, pol=cfg.kv_pol, tag=("kv", step)))
        its.append(lambda: e.salu("s_add_u32", g.sKP, g.sKP, 0 if cfg.dbg_hot else 8192)); its.append(lambda: e.salu("s_and_b32", g.sKP, g.sKP, "0x3ffff"))
        return its
    def k_reads(step):
        return [lambda kk=kk, kt=kt: e.ds_read("ds_read_b128", Kf(step & 1, kt, kk), KA[kk], (step & 3) * 16384 + kt * 4096, tag="kf")
                for kk in range(4) for kt in range(2)]
    def v_reads(step):
        return [lambda D=D, hi=hi: e.ds_read("ds_read_b64_tr_b16", Vf(step & 1, D)[2 * hi:2 * hi + 2], VA[D], (step & 3) * 16384 + hi * 4096, tag="vf")
                for D in range(8) for hi in range(2)]
    def kb_reads():
        return [lambda kk=kk: e.ds_read("ds_read_b128", Kb[kk], KBA, kk * 64, tag="kf") for kk in range(4)]
    def w_reads(st):
        return [lambda D=D, hi=hi: e.ds_read("ds_read_b64_tr_b16", WF(st & 1, D)[2 * hi:2 * hi + 2], WA[D >> 1],
                                            (st % 3) * 16384 + hi * 512 + (D & 1) * 8, tag="qf") for D in range(4) for hi in range(2)]
    def x_reads(D):
        return [lambda qt=qt, kh=kh: e.ds_read("ds_read_b128", XF((2 * D + kh) % 3, qt), XA[kh], (D & 1) * 18432 + qt * 2048, tag="qf")
                for kh in range(2) for qt in range(9)]
    def run_stage(mfs, rd, fill, span=None):
        nf, n, done = len(fill), span or len(mfs), 0
        for i, m in enumerate(mfs):
            m()
            if rd: rd.popleft()()
            while fill and done * n <= i * nf:
                fill.popleft()(); done += 1
        while rd: rd.popleft()()
        while fill: fill.popleft()()
    GORD = [(dp, 0, i) for dp in range(4) for i in range(2)] + [(0, 1, 0), (0, 1, 1)] + [(dp, 1, i) for i in range(2) for dp in (1, 2, 3)]
    def kpl_items(st, dst):
        dp, h, i = GORD[st]
        return [lambda: e.salu("s_add_u32", dst, g.sHP, dp), lambda: e.salu("s_and_b32", dst, dst, 3),
                lambda: e.salu("s_lshl_b32", dst, dst, 2), lambda: e.salu("s_add_u32", dst, dst, 2 * h + i),
                lambda: e.salu("s_xor_b32", dst, dst, sSW2)]
    def ga_reads(st):
        return [lambda kb=kb, ee=ee, hi=hi: e.ds_read("ds_read_b64_tr_b16", GA(st & 1, kb * 2 + ee)[2 * hi:2 * hi + 2], GWA[st >> 1 & 1],
                                                     (st & 1) * 34816 + kb * 8192 + hi * 4096 + ee * 8, tag="g") for kb in range(2) for ee in range(2) for hi in range(2)]
    def gb_reads(st):
        return [lambda i=i: e.ds_read("ds_read_b128", GB(st & 1, i), GOA[st >> 1 & 1], (st & 1) * 34816 + i * 1024, tag="g") for i in range(18)]
    def full_w_items(st):
        its = kpl_items(st, sU1)
        its += [lambda: e.salu("s_lshl_b32", sU1, sU1, 16), lambda: e.salu("s_add_u32", sU1, sU1, g.sWB)]
        for n in range(16):
            if n % 4 == 0:
                its.append(lambda n=n: e.salu("s_mov_b32", "m0", GSL[st % 4] + n * 1024))
                if n: its.append(lambda: e.salu("s_add_u32", sU1, sU1, 16384))
            its.append(lambda n=n: e.dma(oWo[n & 3], sWO, sU1, off=(n & 3) * 1024, pol=cfg.wo_pol, tag="pre"))
        return its
    def gw_items(st):
        its = kpl_items(st, sU1)
        its += [lambda: e.salu("s_lshl_b32", sU1, sU1, 16), lambda: e.salu("s_add_u32", sU1, sU1, sWBw),
                lambda: e.salu("s_add_u32", "m0", g.sWLG, GSL[st % 4])]
        for i in range(4): its.append(lambda i=i: e.dma(oWo[i], sWO, sU1, off=i * 1024, pol=cfg.wo_pol, tag=("g", st)))
        return its
    def go_items(st):
        its = kpl_items(st, sU0)
        its += [lambda: e.salu("s_mul_i32", sU0, sU0, 18432), lambda: e.salu("s_add_u32", sU0, sU0, sOKw),
                lambda: e.salu("s_add_u32", "m0", g.sOL, GSL[st % 4] + 16384)]
        for i in range(4): its.append(lambda i=i: e.dma(vL16, sWS, sU0, off=i * 1024, pol="sc1", tag=("g", st)))
        its += [lambda: e.salu("s_add_u32", "m0", g.sOL, GSL[st % 4] + 16384 + 4096), lambda: e.salu("s_add_u32", sU0, sU0, 4096),
                lambda: e.dma(vL16, sWS, sU0, pol="sc1", tag=("g", st))]
        return its
    def code_touch():
        e.salu("s_lshl_b32", sT, g.sIDX, 12)
        e.valu("v_lshlrev_b32", V(109), 6, vL)
        e.valu("v_add_u32", V(109), sT, V(109))
        e.valu("v_min_u32", V(109), "L_end-L_pc-4", V(109))
        e.ins(f"v_add_co_u32 v110, vcc, {sPC[0]}, v109", 'valu', [V(109)], [V(110), 'vcc'])
        e.valu("v_mov_b32", V(111), sPC[1])
        e.ins(f"v_addc_co_u32 v111, vcc, 0, v111, vcc", 'valu', [V(111), 'vcc'], [V(111), 'vcc'])
        e.ins(f"global_load_dword {vD1}, v[110:111], off", 'vmem', [V(110, 2)], [vD1]); e.vm_q.append("cw")
    def warm_items():
        its = [lambda: e.salu("s_lshl_b32", sU0, g.sHG, 5), lambda: e.salu("s_add_u32", sU0, sU0, g.sIDX), lambda: e.salu("s_lshl_b32", sU0, sU0, 15),
               lambda: e.valu("v_lshlrev_b32", vT2, 7, vL)]
        for n in range(4):
            if n: its.append(lambda: e.salu("s_add_u32", sU0, sU0, 8192))
            its.append(lambda n=n: e.bload("buffer_load_dword", vD1, vT2, sWO, sU0, pol=cfg.wo_pol, tag="pre"))
        if not cfg.warm_w: its = []
        its += [lambda: e.salu("s_sub_u32", sU0, g.sOB, g.sWLG), lambda: e.valu("v_lshlrev_b32", vT2, 7, vL)]
        for n in range(5 if cfg.warm_o else 0):
            if n: its.append(lambda n=n: e.salu("s_add_u32", sU0, sU0, 8192 if n < 4 else 4096))
            its.append(lambda: e.bload("buffer_load_dword", vD1, vT2, sWS, sU0, pol=cfg.warm_opol, tag="pre"))
        return its
    def atomic_add(flag, val):
        e.valu("v_mov_b32", vT0, val); e.valu("v_mov_b32", vT1, 0)
        e.salu("s_mov_b64", "exec", 1)
        e.ins(f"buffer_atomic_add {vT0}, {vT1}, {sDBG}, {flag} offen sc1", 'vmem', [vT0, vT1, sDBG, flag], [])
        e.salu("s_mov_b64", "exec", -1)
    def flag_store(line, off, who):
        e.salu("s_lshl_b32", sT, who, 3)
        e.valu("v_mov_b32", V(110), sTAG); e.valu("v_not_b32", V(111), sTAG); e.valu("v_mov_b32", vT1, sT)
        e.salu("s_mov_b64", "exec", 1)
        e.ins(f"buffer_store_dwordx2 v[110:111], {vT1}, {sWS}, {line} offen offset:{off} sc1", 'vmem', [V(110, 2), vT1, sWS, line], [])
        e.salu("s_mov_b64", "exec", -1)
    def flag_load(line, off, tag):
        e.valu("v_and_b32", vT2, 3, vL); e.valu("v_lshlrev_b32", vT2, 3, vT2)
        e.bload("buffer_load_dwordx2", TG, vT2, sWS, line, off=off, pol="sc1", tag=tag)
    def flag_test(who):
        e.valu("v_not_b32", TG[1], TG[1])
        e.valu("v_xor_b32", TG[0], sTAG, TG[0]); e.valu("v_xor_b32", TG[1], sTAG, TG[1]); e.valu("v_or_b32", TG[0], TG[0], TG[1])
        e.vcmp("v_cmp_ne_u32", "vcc", 0, TG[0])
        e.salu("s_lshl_b32", sT, 1, who); e.salu("s_xor_b32", sT, sT, 15)
        e.salu("s_and_b32", sT, sT, "vcc_lo")
        e.salu("s_cmp_eq_u32", None, sT, 0)
    def poll(line, off, lab, who):
        e.salu("s_mov_b32", g.sSP, 1 << 20)
        e.label(lab)
        flag_load(line, off, None)
        e.wait_all_vm()
        flag_test(who)
        e.branch("s_cbranch_scc1", lab + "x")
        e.other(f"s_sleep {cfg.poll_sleep}")
        e.salu("s_sub_u32", g.sSP, g.sSP, 1)
        e.salu("s_cmp_lg_u32", None, g.sSP, 0)
        e.branch("s_cbranch_scc1", lab)
        e.label(lab + "x")
    def read_fail(n):
        e.valu("v_mov_b32", vT1, LFLAG)
        for i in range(n): e.ds_read("ds_read_b128", V(80 + 4 * i, 4), vT1, 16 * i)
        e.wait_all_lds()
        e.valu("v_or_b32", V(80), V(80), V(81)); e.valu("v_or3_b32", V(80), V(80), V(82), V(83))
        if n == 2:
            e.valu("v_or3_b32", V(80), V(80), V(84), V(85)); e.valu("v_or3_b32", V(80), V(80), V(86), V(87))
        e.readfirstlane(sT, V(80))

    if cfg.cw & 2:
        e.salu("s_cmp_lg_u32", None, sW, 2)
        e.branch("s_cbranch_scc1", "1f")
        q_ = list(e.vm_q)
        code_touch()
        e.vm_q = q_
        e.label("1")
    def warm0():
        return [lambda: e.salu("s_lshl_b32", sT, g.sHG, 5), lambda: e.salu("s_add_u32", sT, sT, g.sIDX), lambda: e.salu("s_lshl_b32", sT, sT, 2),
                lambda: e.salu("s_add_u32", sT, sT, sW), lambda: e.salu("s_lshl_b32", sT, sT, 13),
                lambda: e.valu("v_lshlrev_b32", vT0, 7, vL),
                lambda: e.bload("buffer_load_dword", vD1, vT0, sWO, sT, pol=cfg.wo_pol, tag="ww")]
    if cfg.warm == 3 and cfg.warm0 == -1:
        for f in warm0(): f()
    e.wait_vm("p0"); e.barrier()
    stamp(1)
    for f in w_reads(0) + x_reads(0): f()
    kvq = deque(kvq_items(s_) for s_ in range(4))
    def q_out(qt):
        its = []
        for P in range(2):
            src = V(112 + (qt * 4 + 2 * P) * 4, 8)
            its += [lambda i=i, src=src: e.valu("v_pk_mul_f32", src[2 * i:2 * i + 2], src[2 * i:2 * i + 2], V(34, 2)) for i in range(4)]
            its += [lambda i=i, src=src: e.valu("v_cvt_pk_bf16_f32", src[i], src[2 * i], src[2 * i + 1]) for i in range(4)]
            its.append(lambda src=src, P=P: e.ds_write("ds_write_b128", QW, src[0:4], (qt * 4 + P) * 1024))
        return its
    e.valu("v_mov_b32", V(34), g.sSC); e.valu("v_mov_b32", V(35), g.sSC)
    for st in range(16):
        e.comment(f"q-proj stage {st}")
        e.wait_vm({0: "p1", 1: "p2"}.get(st, ("iss", st - 2)))
        e.wait_all_lds(); e.barrier()
        if cfg.qst and st in (1, 3, 6, 9, 13): stamp({1: 6, 3: 7, 6: 9, 9: 10, 13: 11}[st], True)
        fill = deque()
        if st // 2 + 2 < 8: fill.extend(x_items(st // 2 + 2, st & 1, ("iss", st)))
        if st + 3 < 16: fill.extend(w_items(st + 3, ("iss", st)))
        if cfg.warm == 3 and cfg.warm0 == st: fill.extend(warm0())
        if st >= cfg.kv0_stage:
            for _ in range(cfg.kv0_rate):
                if kvq: fill.extend(kvq.popleft())
        rd = deque()
        if st + 1 < 16: rd.extend(w_reads(st + 1))
        if st & 1 and st + 1 < 16: rd.extend(x_reads((st + 1) // 2))
        mfs = [lambda qt=qt, D=D: e.mfma16(QACC(D, qt), WF(st & 1, D), XF(st % 3, qt), QACC(D, qt) if st else 0)
               for qt in range(9) for D in range(4)]
        if st < 15 or not cfg.qov: run_stage(mfs, rd, fill)
        else:
            out = deque()
            for i, m in enumerate(mfs):
                m()
                if i % 4 == 3 and i >= 7: out.extend(q_out(i // 4 - 1))
                for _ in range(cfg.qov):
                    if fill: fill.popleft()()
                    elif out: out.popleft()()
            out.extend(q_out(8))
    while kvq:
        for f in kvq.popleft(): f()
    stamp(2)
    if not cfg.qov: out = deque(f for qt in range(9) for f in q_out(qt))
    while out: out.popleft()()
    e.valu("v_mov_b32", vT0, "0x3f803f80")
    for i in range(4): e.valu("v_accvgpr_write_b32", ONES[i], vT0)
    ld_setup()
    e.salu("s_cmp_eq_u32", None, sW, 3)
    e.branch("s_cbranch_scc1", "L_rC")
    e.salu("s_cmp_lg_u32", None, sW, 0)
    e.branch("s_cbranch_scc1", "L_rB")
    hist0 = list(e.hist)

    X8 = 139264
    CAPS = [0, 2, 0, 1, 0, 2, 0, 1, 0, 2, 0, 1, 0, 2, 0, 1, 2]
    for R in "ABC":
        NTW = 2 if R == "B" else 3
        toff = lambda t: ({"A": 8, "C": 2}[R] if t == 2 else t)
        e.hist = list(hist0)
        if R != "A": e.label(f"L_r{R}")
        e.lds_q = ["x"]; e.vm_q = [("kv", s_) for s_ in range(4) for _ in range(4)]
        e.salu("s_mul_i32", sT, sSW2, 18432)
        e.valu("v_add_u32", vT1, sT, QA); e.valu("v_add_u32", QA, 36864, QA); e.valu("v_subrev_u32", QA, sT, QA)
        e.valu("v_add_u32", vD0, X8, vL16)
        e.valu("v_add_u32", vOW, g.sWLG, GOA[0])
        e.wait_vm(("kv", 0))
        e.wait_all_lds(); e.barrier()
        def qf_reads(h, addr):
            return [lambda t=t, kk=kk: e.ds_read("ds_read_b128", Qf(h, t, kk), addr, (toff(t) * 4 + kk) * 1024, tag="q") for t in range(NTW) for kk in range(4)]
        for f in kb_reads() + qf_reads(0, vT1) + k_reads(0) + v_reads(0): f()
        def prepass(h):
            e.comment("stand-in for the row max: minus the score of the first key, per row")
            e.salu("s_cmp_lg_u32", None, g.sRETRY, 0)
            e.branch("s_cbranch_scc1", f"L_np{h}{R}")
            e.salu("s_mov_b32", sT1, "0x80008000")
            for kk in range(4):
                for i in range(4): e.valu("v_xor_b32", Kb[kk][i], sT1, Kb[kk][i])
            for t in range(NTW):
                for kk in range(4): e.mfma16(NM(h, t), Kb[kk], Qf(h, t, kk), NM(h, t) if kk else 0)
            e.label(f"L_np{h}{R}")
        e.wait_lds("q")
        prepass(0)
        stamp(3)
        e.label(f"L_main_{R}")
        e.lds_q = ["x"]
        e.salu("s_mov_b32", g.sFAIL, 0)
        seq = [(s, t) for s in range(32) for t in range(3 if (R == "A" and s % 2 == 0) or (R == "C" and s % 2 == 1) else 2)]
        if not cfg.alt: seq = [(s, t) for s in range(32) for t in range(3 if R == "A" else 2)]
        NT = len(seq)
        first = {s: j for j, (s, t) in reversed(list(enumerate(seq)))}; first[32] = NT
        bpos = {}
        for s in range(1, 33):
            if s % 2 == 0 or R == "B" or not cfg.alt: bpos[(first[s], 0)] = s
            elif R == "A": bpos[(first[s] - 1, 8)] = s
            else: bpos[(first[s], 8)] = s
        def cap_left(j, i):
            n = k = 0
            while True:
                n += CAPS[i]; k += CAPS[i] > 0
                i += 1
                if i == 17: i = 0; j += 1
                if (j, i) in bpos or j > NT: return n, k
        extras = deque(); rds = deque(); lastk = [None]; later = deque()
        def beta(sg):
            while rds: rds.popleft()()
            if sg < 61:
                while extras: extras.popleft()()
            if sg + 1 < 64: e.wait_vm(("kv", sg + 1))
            if R == "C" and sg == 3:
                e.wait_all_vm()
                e.salu("s_cmp_lg_u32", None, g.sRETRY, 0)
                e.branch("s_cbranch_scc1", "6f")
                e.readfirstlane(sT, TG[0])
                e.salu("s_cmp_eq_u32", None, sT, 0)
                e.salu("s_cselect_b32", sT, S(72), sT)
                e.salu("s_mov_b32", sTAG, sT)
                e.valu("v_mov_b32", vT0, sT); e.valu("v_mov_b32", vT1, LFLAG)
                e.ds_write("ds_write_b32", vT1, vT0, 32)
                e.label("6")
            fb = cfg.fb and 4 <= sg < 60
            if fb and R == "C" and sg % 4 == 2:
                e.wait_vm("prg")
                e.vcmp("v_cmp_eq_u32", sM0, sTAG, PG[0]); e.vcmp("v_cmp_le_u32", "vcc", sTRIP, PG[1])
                e.salu("s_and_b32", sT, sM0[0], "vcc_lo"); e.salu("s_and_b32", sT, sT, "0xffff"); e.salu("s_bcnt1_i32_b32", sT, sT)
                e.valu("v_mov_b32", vT0, sT); e.valu("v_mov_b32", vT1, LFLAG)
                e.ds_write("ds_write_b32", vT1, vT0, 36)
            hook = 36 <= sg < 60 and sg % 4 == 0
            if hook:
                if R == "B": assert sg == 36 or "ost0" not in e.vm_q
                else: e.wait_all_vm()
            if R == "C" and sg == 63:
                while extras: extras.popleft()()
                e.wait_vm("fl0")
                flag_test(g.sHP)
                e.branch("s_cbranch_scc1", "L_poll0x")
                e.salu("s_cmp_lg_u32", None, g.sFAIL, 0)
                e.branch("s_cbranch_scc1", "L_poll0x")
                q_ = list(e.vm_q)
                poll(sF1, 0, "L_poll0", g.sHP)
                e.vm_q = q_
            if e.lds_q: e.wait_all_lds()
            if not cfg.dbg_hot & 2: e.barrier()
            for _ in range(cfg.trickle):
                if later and sg > 32: extras.extend(later.popleft())
            if fb and R == "C" and sg % 4 == 0:
                e.salu("s_add_u32", sTRIP, sTRIP, 1)
                e.valu("v_and_b32", vT2, 15, vL); e.valu("v_lshlrev_b32", vT2, 3, vT2)
                e.bload("buffer_load_dwordx2", PG, vT2, sWS, sPL, pol="sc1", tag="prg")
                e.valu("v_mov_b32", V(110), sTAG); e.valu("v_mov_b32", V(111), sTRIP); e.valu("v_mov_b32", vT1, sPS)
                e.salu("s_mov_b64", "exec", 1)
                e.bstore("buffer_store_dwordx2", V(110, 2), vT1, sWS, sPL, pol="sc1")
                e.salu("s_mov_b64", "exec", -1)
            if fb and R == "B" and sg % 4 == 2:
                e.valu("v_mov_b32", vT1, LFLAG)
                e.ds_read("ds_read_b32", vD1, vT1, 36)
            if fb and R == "B" and sg % 4 == 3:
                e.readfirstlane(sT, vD1)
                e.salu("s_cmp_ge_u32", None, sT, cfg.fb)
                e.salu("s_cselect_b64", "vcc", -1, 0)
            if R == "B" and not cfg.dbg_hot & 8:
                if sg + 4 < 64: extras.extend(ld_items(sg + 4))
            if R == "A" and sg in (33, 34): extras.extend(full_w_items(sg - 33))
            if sg == 2:
                e.salu("s_cmp_lg_u32", None, g.sRETRY, 0)
                e.branch("s_cbranch_scc1", "6f")
                for f in qf_reads(1, QA): f()
                e.lds_q = []
                e.label("6")
            if sg == 63: extras.extend(gw_items(2) + go_items(2) + gw_items(3) + go_items(3))
            if R == "A" and cfg.cw and sg % 4 == 0 and 4 <= sg % 32 < 28:
                e.salu("s_cmp_lg_u32", None, g.sCNT, cfg.cw_trip)
                e.branch("s_cbranch_scc1", "1f")
                q_ = list(e.vm_q)
                code_touch()
                e.vm_q = q_
                e.label("1")
            if R == "C":
                if hook:
                    e.salu("s_cmp_lg_u32", None, g.sCNT, cfg.sig_trip)
                    e.branch("s_cbranch_scc1", "1f")
                    read_fail(1)
                    e.salu("s_andn2_b32", g.sFAIL, sT, g.sRETRY)
                    e.salu("s_or_b32", sT, g.sFAIL, g.sPUB)
                    e.salu("s_cmp_lg_u32", None, sT, 0)
                    e.branch("s_cbranch_scc1", "1f")
                    flag_store(sF1, 0, g.sHP)
                    e.label("1")
                    if cfg.warm == 2:
                        e.salu("s_cmp_lg_u32", None, g.sCNT, cfg.warm_trip)
                        e.branch("s_cbranch_scc1", "2f")
                        for f in warm_items(): f()
                        e.label("2")
                if sg == cfg.pre_step:
                    flag_load(sF1, 0, "fl0")
                if sg == cfg.pre_step and cfg.warm == 1: extras.extend(warm_items())
                if cfg.warm == 3 and sg % cfg.warm_per == 0 and sg < 64: extras.extend(warm_items())
                if sg % 32 == 0 and sg and cfg.alt:
                    rds.append(lambda: e.ds_read("ds_read_b32", V(144), vD0, 8192, tag="x8"))
                    rds.extend([lambda D=D: e.ds_read("ds_read_b128", V(112 + 4 * D, 4), vD0, D * 1024, tag="x8") for D in range(8)])
            if sg + 1 < 64 and not cfg.dbg_hot & 4:
                kr = k_reads(sg + 1); rds.extend(kr); lastk[0] = kr[-1]
                if sg + 1 == 32: rds.extend(kb_reads())
        def slot(h, j):
            e.comment(f"slot")
            mf = []
            jq, jp = j + 1, j - 1
            if jq < NT:
                s, t = seq[jq]
                for kk in range(4):
                    for kt in range(2):
                        def m(kk=kk, kt=kt):
                            d = Sb[jq % 2][4 * kt:4 * kt + 4]
                            e.mfma16(d, Kf(s & 1, kt, kk), Qf(h, t, kk), d if kk else NM(h, t))
                        mf.append(m)
            else:
                mf += [None] * 8
            if jp >= 0:
                s2, t2 = seq[jp]
                acc = any(t_ == t2 for _, t_ in seq[:jp])
                for D in range(8):
                    mf.append(lambda D=D: e.mfma16(Oacc(t2, D), Vf(s2 & 1, D), Pb[jp % 2], Oacc(t2, D) if acc else 0))
                mf.append(lambda: e.mfma16(Lb[t2], ONES, Pb[jp % 2], Lb[t2] if acc else 0))
            else:
                mf += [None] * 9
            sm = 0 <= j < NT
            Sx, Px = Sb[j % 2], Pb[j % 2]
            E = lambda i: (lambda: e.valu("v_exp_f32", Sx[i], Sx[i])) if sm else None
            C = lambda i: (lambda: e.valu("v_cvt_pk_bf16_f32", Px[i], Sx[2 * i], Sx[2 * i + 1])) if sm else None
            base = [E(0), None, E(1), C(0), E(2), None, E(3), C(1), E(4), None, E(5), C(2), E(6), None, E(7), C(3), None]
            vre = deque()
            sfirst = [s_ for s_, j_ in first.items() if j_ == j and s_ > 0]
            if sfirst and 32 * h + sfirst[0] + 1 < 64 and not cfg.dbg_hot & 4: vre = deque(v_reads(32 * h + sfirst[0] + 1))
            if R == "A" and j == NT - 1 and cfg.alt:
                rds.extend([lambda D=D: e.ds_write("ds_write_b128", vD0, Oacc(2, D), D * 1024) for D in range(8)])
                rds.append(lambda: e.ds_write("ds_write_b32", vD0, Lb[2][0], 8192))
            for i in range(17):
                if (j, i) in bpos: beta(32 * h + bpos[(j, i)])
                if i == 0 and jq < NT and jq > 0 and seq[jq][1] == 0:
                    while lastk[0] in rds: rds.popleft()()
                    e.wait_lds("kf")
                if mf[i]: mf[i]()
                if 8 <= i < 16 and vre:
                    rds.append(vre.popleft()); rds.append(vre.popleft())
                if base[i]: base[i]()
                cap = CAPS[i] if sm else 2
                if CAPS[i]:
                    nq = len(rds) + len(vre) + min(len(extras), 20)
                    nxt = [s_ for s_, j_ in first.items() if j_ == j + 1]
                    if R == "A" and nxt and nxt[0] % 2 == 1 and i >= 8 and cfg.alt: nq += 16
                    left, k = cap_left(j, i)
                    left -= 3
                    if nq > left: cap += -(-(nq - left) // max(1, k - 1))
                for c in range(cap):
                    if rds and (not extras or c != 1): rds.popleft()()
                    elif extras: extras.popleft()()
        def epilogue(h):
            NE = 2 if R != ("C" if cfg.alt else "A") else 3
            LV = [V(32 + 2 * t, 2) for t in range(3)]
            bad = cfg.force_fallback >> h & 1
            if h == 0:
                e.valu("v_mov_b32", vT0, LFLAG)
                e.ds_read("ds_read_b32", TG[0], vT0, 32, tag="tg")
            e.salu("s_mov_b32", sT, hex(f2u(0.25 if bad else cfg.lthresh)))
            e.salu("s_mov_b64", sM0, 0)
            for t in range(NE): e.valu("v_accvgpr_read_b32", LV[t][0], Lb[t][0])
            if R == "C" and cfg.alt:
                e.wait_lds("x8")
                e.valu("v_add_f32", LV[2][0], LV[2][0], V(144))
            for t in range(NE):
                e.vcmp("v_cmp_nge_f32", sM1, sT, LV[t][0])
                e.salu("s_or_b64", sM0, sM0, sM1)
            for t in range(NE): e.valu("v_rcp_f32", LV[t][0], LV[t][0])
            e.salu("s_or_b32", sT, sM0[0], sM0[1])
            e.valu("v_mov_b32", vT0, sT)
            e.ds_write("ds_write_b32", vFLG, vT0, 16 * h)
            for t in range(NE): e.valu("v_mov_b32", LV[t][1], LV[t][0])
            if h == 0:
                e.salu("s_cmp_lg_u32", None, g.sPUB, 0)
                e.salu("s_cselect_b32", sM0[0], "0x40000000", g.sOB)
            if R == "C" and cfg.alt:
                for i in range(16): e.valu("v_pk_add_f32", V(224 + 2 * i, 2), V(224 + 2 * i, 2), V(112 + 2 * i, 2))
            if h == 1:
                g0 = deque(ga_reads(0) + gb_reads(0))
                for t in reversed(range(NE)):
                    for blk in reversed(range(4)):
                        for _ in range(4):
                            if g0: g0.popleft()()
                        o = V(160 + (t * 8 + 2 * blk) * 4, 8); d = OPK(t, blk)
                        for i in range(4): e.valu("v_pk_mul_f32", o[2 * i:2 * i + 2], o[2 * i:2 * i + 2], LV[t])
                        for i in reversed(range(4)): e.valu("v_cvt_pk_bf16_f32", d[i], o[2 * i], o[2 * i + 1])
                return
            n = 0
            for bh in range(2):
                for t in range(NE):
                    for bl in range(2):
                        blk = 2 * bh + bl
                        o = V(160 + (t * 8 + 2 * blk) * 4, 8)
                        d = V(112 + 4 * n, 4)
                        n += 1
                        for i in range(4): e.valu("v_pk_mul_f32", o[2 * i:2 * i + 2], o[2 * i:2 * i + 2], LV[t])
                        for i in range(4): e.valu("v_cvt_pk_bf16_f32", d[i], o[2 * i], o[2 * i + 1])
                        e.ds_write("ds_write_b128", vOW, d, bh * 34816 + toff(t) * 2048 + bl * 1024)
                        st_ = [lambda bh=bh, t=t: e.salu("s_add_u32", sT, sM0[0], bh * 18432 + toff(t) * 2048),
                               lambda d=d, bl=bl: e.bstore("buffer_store_dwordx4", d, vL16, sWS, sT, off=bl * 1024, pol=cfg.ost_pol, tag="ost0")]
                        if cfg.trickle and n > cfg.trickle0: later.append(st_)
                        else:
                            for f in st_: f()
                        for _ in range(3):
                            if rds: rds.popleft()()
                            elif extras: extras.popleft()()
        for h in range(2):
            if h == 0:
                beta(0); rds.extend(v_reads(1))
            else: prepass(h)
            chunks = []; save = e.lines
            bounds = [-1] + [first[s] for s in range(cfg.chunk0, 32, 4)] + [NT + 1]
            for a_, b_ in zip(bounds[:-1], bounds[1:]):
                e.lines = []
                for j in range(a_, b_): slot(h, j)
                chunks.append(e.lines)
            e.lines = save
            i = 0; nl = 0
            while i < len(chunks):
                k = i
                while k + 1 < len(chunks) and chunks[k + 1] == chunks[i]: k += 1
                if k > i:
                    nl += 1; lab = f"L_loop_{R}{h}{nl}"
                    e.lines.append(f"    s_mov_b32 {g.sCNT}, {k - i + 1}")
                    e.lines.append(lab + ":")
                    e.lines += chunks[i]
                    e.lines += [f"    s_sub_u32 {g.sCNT}, {g.sCNT}, 1", f"    s_cmp_lg_u32 {g.sCNT}, 0", f"    s_cbranch_scc1 {lab}"]
                else:
                    e.lines += chunks[i]
                i = k + 1
            if h:
                while extras: extras.popleft()()
            stamp(4 if h else 12)
            epilogue(h)
            if h == 0:
                e.wait_lds("tg")
                e.readfirstlane(sTAG, TG[0])
                stamp(13)
        while extras: extras.popleft()()
        e.wait_vm("pre")
        e.wait_all_lds(); e.barrier()
        read_fail(2)
        e.salu("s_andn2_b32", sT, sT, g.sRETRY)
        e.salu("s_cmp_eq_u32", None, sT, 0)
        e.branch("s_cbranch_scc1", "L_gemm")
        read_fail(1)
        e.salu("s_cmp_eq_u32", None, sT, 0)
        e.salu("s_cselect_b32", g.sPUB, 1, 0)
        e.salu("s_mov_b32", g.sRETRY, -1)
        e.wait_all()
        kv_addr_init()
        for h in range(2):
            MX = [V(48 + t) for t in range(3)]
            for t in range(NTW): e.valu("v_mov_b32", MX[t], "0xff800000")
            e.salu("s_mov_b32", g.sCNT, 32)
            e.salu("s_xor_b32", g.sKP, g.sKVB0, h * 262144); e.salu("s_mov_b32", g.sLS, 0)
            e.label(f"L_max_{R}{h}")
            e.barrier()
            if R == "A":
                for f in kv4_items("m")[:12]: f()
                e.wait_all_vm()
            e.salu("s_add_u32", g.sKP, g.sKP, 8192)
            e.barrier()
            for f in k_reads(0): f()
            e.wait_all_lds()
            for t in range(NTW):
                for kk in range(4):
                    for kt in range(2):
                        d = Sb[0][4 * kt:4 * kt + 4]
                        e.mfma16(d, Kf(0, kt, kk), Qf(h, t, kk), d if kk else 0)
                for i in range(4): e.valu("v_max3_f32", MX[t], Sb[0][2 * i], Sb[0][2 * i + 1], MX[t])
            e.salu("s_sub_u32", g.sCNT, g.sCNT, 1)
            e.salu("s_cmp_lg_u32", None, g.sCNT, 0)
            e.branch("s_cbranch_scc1", f"L_max_{R}{h}")
            for t in range(NTW):
                for op in ("v_permlane32_swap_b32", "v_permlane16_swap_b32"):
                    e.valu("v_mov_b32", vT0, MX[t])
                    e.perm(op, vT0, MX[t])
                    e.valu("v_max_f32", MX[t], vT0, MX[t])
                for i in range(4): e.valu("v_sub_f32", NM(h, t)[i], 0, MX[t])
        e.barrier()
        kv4_setup()
        for f in kv4_items("m"): f()
        ld_setup()
        e.wait_all_vm(); e.barrier()
        for f in k_reads(0) + v_reads(0): f()
        e.wait_all_lds()
        e.flush_hazards(8)
        e.branch("s_branch", f"L_main_{R}")

    e.label("L_gemm")
    e.hist = []; e.lds_q = []; e.vm_q = ["ost"]
    stamp(5)
    e.vm_q = [("g", 2)] * 9 + [("g", 3)] * 9
    PS = cfg.poll_stage
    mark = [0]
    assert cfg.st_stage < cfg.sig_stage < PS and 6 <= PS <= 8
    def o2_items(kind, bh):
        def one(t, bl):
            if kind == "st":
                if bl == 0: e.salu("s_add_u32", sT, sOB1, bh * 18432 + t * 2048)
                e.bstore("buffer_store_dwordx4", OPK(t, 2 * bh + bl), vL16, sWS, sT, off=bl * 1024, pol=cfg.ost_pol, tag="ost")
            else:
                e.ds_write("ds_write_b128", vOW, OPK(t, 2 * bh + bl), bh * 34816 + t * 2048 + bl * 1024)
        def third():
            e.salu("s_cmp_lg_u32", None, sW, 3)
            e.branch("s_cbranch_scc1", "5f")
            q_ = (list(e.vm_q), list(e.lds_q))
            one(2, 0); one(2, 1)
            e.vm_q, e.lds_q = q_
            e.label("5")
        return [third] + [lambda t=t, bl=bl: one(t, bl) for t in range(2) for bl in range(2)]
    for st in range(16):
        e.comment(f"o-proj stage {st}")
        if st == cfg.sig_stage: e.wait_all_vm()
        if st == PS:
            e.salu("s_cmp_lg_u32", None, sW, 0)
            e.branch("s_cbranch_scc1", "L_poll1x")
            q_ = list(e.vm_q)
            e._wait(vm=len(e.vm_q) - mark[0])
            flag_test(g.sHP)
            e.branch("s_cbranch_scc1", "L_poll1x")
            poll(sF1, 32, "L_poll1", g.sHP)
            e.vm_q = q_
        if st + 1 < 16: e.wait_vm(("g", st + 1))
        if st:
            e.wait_all_lds(); e.barrier()
        if st == cfg.sig_stage:
            e.salu("s_cmp_lg_u32", None, sW, 3)
            e.branch("s_cbranch_scc1", "L_sig1")
            flag_store(sF1, 32, g.sHP)
            e.label("L_sig1")
            stamp(6)
        if st == PS: stamp(7)
        if st == 2: stamp(14)
        fill = deque()
        if st == PS - 1:
            def fl1():
                e.salu("s_cmp_lg_u32", None, sW, 0)
                e.branch("s_cbranch_scc1", "7f")
                flag_load(sF1, 32, None); e.vm_q.pop()
                e.label("7")
                mark[0] = len(e.vm_q)
            fill.append(fl1)
        if st == PS:
            for s2 in range(10, st + 4): fill.extend(go_items(s2))
        if st == cfg.st_stage: fill.extend(o2_items("st", 0) + o2_items("st", 1))
        if st + 4 < 16:
            if st + 4 in (8, 9): fill.extend(o2_items("lds", st - 4))
            elif st + 4 < 8 or st >= PS: fill.extend(go_items(st + 4))
            fill.extend(gw_items(st + 4))
        rd = deque(ga_reads(st + 1) + gb_reads(st + 1)) if st + 1 < 16 else deque()
        mfs = [lambda qt=qt, kb=kb, ee=ee: e.mfma16(GC(qt, ee), GA(st & 1, kb * 2 + ee), GB(st & 1, qt * 2 + kb), GC(qt, ee) if (st or kb) else 0)
               for kb in range(2) for qt in range(9) for ee in range(2)]
        run_stage(mfs, rd, fill, span=20 if st + 1 == cfg.sig_stage else None)
    stamp(8)
    e.salu("s_mul_i32", sT, sW, 9216); e.salu("s_add_u32", g.sPB, g.sPB, sT)
    e.salu("s_lshl_b32", sT, sW, 8); e.salu("s_add_u32", sF2, sF2, sT)
    e.salu("s_mul_i32", sU0, g.sB, 144 * 2048); e.salu("s_lshl_b32", sT, g.sBR, 10); e.salu("s_add_u32", sU0, sU0, sT)
    e.salu("s_lshl_b32", sT, g.sHP, 8); e.salu("s_add_u32", sU0, sU0, sT); e.salu("s_lshl_b32", sT, sW, 6); e.salu("s_add_u32", sU0, sU0, sT)
    e.salu("s_mov_b32", sT1, "0xffff0000")
    for j in range(1, 4):
        e.salu("s_cmp_eq_u32", None, g.sHG, j)
        e.branch("s_cbranch_scc1", f"L_fin{j}")
    h1 = list(e.hist)
    for j in range(4):
        if j: e.label(f"L_fin{j}")
        e.hist = list(h1); e.vm_q = []; e.lds_q = []
        own = [qt for qt in range(9) if qt % 4 == j]
        flag_load(sF2, 0, "f2")
        for qt in range(9):
            if qt in own: continue
            o = V(112 + qt * 8, 8)
            for i in range(4): e.valu("v_cvt_pk_bf16_f32", o[i], o[2 * i], o[2 * i + 1])
            e.salu("s_add_u32", sT2, g.sPB, j * 36864 + qt * 1024)
            e.bstore("buffer_store_dwordx4", o[0:4], vL16, sWS, sT2, pol="sc1")
        e.wait_all_vm()
        flag_store(sF2, 0, g.sHG)
        stamp(9)
        flag_test(g.sHG)
        e.branch("s_cbranch_scc1", f"L_poll2{j}x")
        poll(sF2, 0, f"L_poll2{j}", g.sHG)
        stamp(10)
        PB = lambda s, n: V(184 + (s * 3 + n) * 4, 4)
        srcs = [s for s in range(4) if s != j]
        for n, qt in enumerate(own):
            for si, s in enumerate(srcs):
                e.salu("s_add_u32", sT2, g.sPB, s * 36864 + qt * 1024)
                e.bload("buffer_load_dwordx4", PB(si, n), vL16, sWS, sT2, pol="sc1", tag=(si, n))
        for n, qt in enumerate(own):
            o = V(112 + qt * 8, 8)
            for si in range(3):
                p = PB(si, n)
                e.wait_vm((si, n))
                for i in range(4):
                    e.valu("v_lshlrev_b32", vT0, 16, p[i]); e.valu("v_and_b32", vT1, sT1, p[i])
                    e.valu("v_add_f32", o[2 * i], o[2 * i], vT0); e.valu("v_add_f32", o[2 * i + 1], o[2 * i + 1], vT1)
            for i in range(4): e.valu("v_cvt_pk_bf16_f32", o[i], o[2 * i], o[2 * i + 1])
            e.salu("s_add_u32", sT2, sU0, qt * 32768)
            e.bstore("buffer_store_dwordx4", o[0:4], vST, sOUT, sT2, pol=cfg.out_pol)
        stamp(11)
        stamp_flush()
        e.other("s_endpgm")
    e.label("L_done")
    e.other("s_endpgm")
    e.label("L_end")

def generate(cfg, fn):
    e = Em()
    e.raw('.amdgcn_target "amdgcn-amd-amdhsa--gfx950"'); e.raw(".text")
    gen(e, cfg, NAME + "_kernel")
    top = ("; attention block in one launch: q-projection, attention, output projection; generated by dev/gen5.py\n"
           "; @launch grid=(256,1,1) block=(256,1,1) lds=163840\n")
    tail = '.section .rodata,"a"\n' + descriptor(NAME + "_kernel", 512, 102, 256)
    open(fn, "w").write(top + e.text() + tail)
    return e

if __name__ == "__main__":
    cfg = Cfg()
    fn = sys.argv[1] if len(sys.argv) > 1 else "k.s"
    for kv in sys.argv[2:]:
        k, v = kv.split("=", 1)
        cur = getattr(cfg, k)
        setattr(cfg, k, type(cur)(int(v)) if isinstance(cur, (bool, int)) and not isinstance(cur, float) else (float(v) if isinstance(cur, float) else v))
    e = generate(cfg, fn)
    print(fn, "lines", len(e.lines), "nop states", e.nops)
```

```python
import sys, struct
from collections import deque
from asmlib import *

NAME = "concat_heads__mha_block_cached__gqa_block_cached__near_ridge"
def f2u(x): return struct.unpack("<I", struct.pack("<f", x))[0]
QSCALE = 1.4426950408889634 / (128 ** 0.5)

class Cfg:
    kv_pol = "nt"
    xw_pol = ""
    wo_pol = ""
    lthresh = 2.0 ** 40
    force_fallback = 0
    stamps = False
    poll_sleep = 2
    kv0_stage = 13
    win = 11
    wing = 1
    win2 = 0
    dbg_tail = 0
    ost_pol = "sc1"
    chunk0 = 4
    swap = 1
    alt = 1
    out_pol = "sc1"
    rotmul = "0x9e3779b1"
    trickle = 0
    trickle0 = 3
    sig_trip = 5
    warm_trip = 3
    warm_w = 1
    qst = 0
    gst = 0
    st_split = 0
    sig_drain = 0
    own_lds = 0
    tagpos = 0
    plate = 2
    kv0_at = "13,13,14,14"
    l2pre = 0
    la = 4
    l2pre_at = 13
    fb = 0
    open_trip = 1
    warm0 = -1
    warm_per = 4
    qov = 3
    kv0_rate = 2
    warm_o = 0
    warm_opol = "sc1"
    cw = 3
    cw_trip = 2
    sig1_step = 35
    pre_step = 62
    warm = 1
    dbg_hot = 0
    st_stage = -1
    sig_stage = 3
    poll_stage = 6
    probe = -2
    probe_a = 0
    probe_cyc = 0
    probe_wg = -1

OWS_BYTES = 16 * 64 * 18432
PWS_OFF = OWS_BYTES
PWS_BYTES = 64 * 16 * 9216
FLG_OFF = OWS_BYTES + PWS_BYTES
PRG_OFF = FLG_OFF + (64 + 256) * 256
WS_USED = PRG_OFF + 16 * 256
STAMP_OFF = 32 << 20
NSTAMP = 16

def descriptor(label, vgpr, sgpr, accum):
    return f""".p2align 6
.amdhsa_kernel {label}
  .amdhsa_next_free_vgpr {vgpr}
  .amdhsa_next_free_sgpr {sgpr}
  .amdhsa_accum_offset {accum}
  .amdhsa_group_segment_fixed_size 0
  .amdhsa_kernarg_size 104
  .amdhsa_user_sgpr_count 2
  .amdhsa_user_sgpr_kernarg_segment_ptr 1
  .amdhsa_system_sgpr_workgroup_id_x 1
.end_amdhsa_kernel
"""

def gen(e, cfg, label):
    e.raw(f".globl {label}"); e.raw(".p2align 8"); e.raw(f".type {label},@function"); e.label(label)
    sX, sWQ, sK, sV, sWS, sWO, sOUT, sDBG = (S(4 * i + 4, 4) for i in range(8))
    sLD = sX
    names = ("W XCD IDX T T1 T2 B HP HG BR KVB KP KO LS XS WS2 XL WL CNT RETRY SC ROT OB OKP WB OL PB FL1 FL2 SP WLG FAIL PUB KVB0").split()
    sr = {n: S(36 + i) for i, n in enumerate(names)}
    assert 36 + len(names) <= 70
    g = type("G", (), {"s" + n: r for n, r in sr.items()})
    sM0, sM1 = S(70, 2), S(72, 2)
    KARG = 76
    def kp(i): return S(KARG + 2 * i), S(KARG + 2 * i + 1)
    sW, sT, sT1, sT2 = g.sW, g.sT, g.sT1, g.sT2
    sU0, sU1 = S(76), S(77)
    sWBw, sOKw = S(79), S(80)
    sPC = S(82, 2)
    sPL, sTRIP, sPS = S(86), S(87), S(88)
    sF1, sF2 = S(84), S(85)
    sTAG = S(81)
    TG = V(108, 2)
    sSW2, sOB1 = S(3), S(78)
    vL, vL16, vT0, vT1, vT2 = V(1), V(2), V(3), V(4), V(5)
    KA = [V(6 + i) for i in range(4)]; VA = [V(10 + i) for i in range(8)]
    oK = [V(18 + i) for i in range(4)]; oV = [V(22 + i) for i in range(2)]
    oWo = [V(24 + i) for i in range(4)]
    XA = [V(28), V(29)]; WA = [V(30), V(31)]
    oLD = [V(28 + i) for i in range(4)]
    Sb = [V(32 + i * 8, 8) for i in range(2)]
    Pb = [V(48 + i * 4, 4) for i in range(2)]
    NM = lambda h, t: V(56 + (h * 3 + t) * 4, 4)
    oX = [V(56 + i) for i in range(5)]; oWQ = [V(61 + i) for i in range(4)]
    Kb = [V(80 + kk * 4, 4) for kk in range(4)]
    KBA, QA, QW = V(96), V(97), V(98)
    GWA = [V(99), V(100)]; GOA = [V(101), V(102)]; vST, vFLG, stamp_reg, vD0, vD1 = V(103), V(104), V(105), V(106), V(107)
    PG = V(28, 2)
    vOW = V(98)
    Oacc = lambda t, D: V(160 + (t * 8 + D) * 4, 4)
    OPK = lambda t, blk: V(208 + (t * 4 + blk) * 4, 4)
    QACC = lambda D, qt: V(112 + (qt * 4 + D) * 4, 4)
    XF = lambda buf, qt: A(buf * 36 + qt * 4, 4)
    WF = lambda buf, D: A(108 + buf * 16 + D * 4, 4)
    Qf = lambda h, t, kk: A((h * 12 + t * 4 + kk) * 4, 4)
    Lb = [A(96 + t * 4, 4) for t in range(3)]
    ONES = A(108, 4)
    Kf = lambda b, kt, kk: A(112 + b * 32 + (kt * 4 + kk) * 4, 4)
    Vf = lambda b, D: A(176 + b * 32 + D * 4, 4)
    GB = lambda buf, i: A((0 if buf else 112) + i * 4, 4)
    GA = lambda buf, i: A((72 if buf else 184) + i * 4, 4)
    GC = lambda qt, ee: V(112 + (qt * 2 + ee) * 4, 4)
    LQ = 65536; XS0, WS0 = LQ, LQ + 36864
    GSL = [69632, 104448, 0, 34816]; LFLAG = 163840 - 64

    pl = [0]
    def stamp(i, q=False):
        if cfg.qst and not q and i in (6, 7, 9, 10, 11, 12, 13, 14): return
        if cfg.gst and not q and i in (1, 2, 3, 6, 7, 9, 10, 11, 12, 13, 14): return
        if cfg.stamps:
            e.other("s_memrealtime s[74:75]"); e._wait(lg=0); e.lds_q = []
            e.ins(f"v_writelane_b32 {stamp_reg}, s74, {i}", 'valu', [], [stamp_reg])
            if cfg.probe_cyc:
                e.other("s_memtime s[74:75]"); e._wait(lg=0)
                e.ins(f"v_writelane_b32 {stamp_reg}, s74, {i + 16}", 'valu', [], [stamp_reg])
    def stamp_flush():
        if not cfg.stamps: return
        e.wait_all_vm(); stamp(NSTAMP - 1)
        if cfg.probe >= 0:
            pl[0] += 1
            e.nop(2)
            e.ins(f"v_readlane_b32 {sT1}, {stamp_reg}, {cfg.probe}", 'readlane', [stamp_reg], [sT1])
            e.nop(4)
            e.salu("s_cmp_eq_u32", None, sT1, 0)
            e.branch("s_cbranch_scc1", f"L_pe{pl[0]}")
            if cfg.probe_wg >= 0:
                e.salu("s_and_b32", sT, S(2), 7)
                e.salu("s_cmp_lg_u32", None, sT, cfg.probe_wg)
                e.branch("s_cbranch_scc1", f"L_pe{pl[0]}")
            o_ = 16 if cfg.probe_cyc else 0
            e.ins(f"v_readlane_b32 {sT1}, {stamp_reg}, {cfg.probe + o_}", 'readlane', [stamp_reg], [sT1])
            e.ins(f"v_readlane_b32 {sT2}, {stamp_reg}, {cfg.probe_a + o_}", 'readlane', [stamp_reg], [sT2])
            e.ins(f"v_readlane_b32 {sT}, {stamp_reg}, 0", 'readlane', [stamp_reg], [sT])
            e.nop(4)
            e.salu("s_sub_u32", sT1, sT1, sT2)
            if cfg.probe_cyc: e.salu("s_lshr_b32", sT1, sT1, 4)
            e.salu("s_add_u32", sT1, sT1, sT)
            e.salu("s_add_u32", sT1, sT1, 12000)
            e.label(f"L_pr{pl[0]}")
            e.other("s_memrealtime s[74:75]"); e._wait(lg=0)
            e.salu("s_sub_u32", sT, S(74), sT1)
            e.salu("s_cmp_lt_i32", None, sT, 0)
            e.branch("s_cbranch_scc1", f"L_pr{pl[0]}")
            e.label(f"L_pe{pl[0]}")
            return
        e.salu("s_lshl_b32", sT, S(2), 2); e.salu("s_add_u32", sT, sT, sW); e.salu("s_lshl_b32", sT, sT, 8)
        e.salu("s_add_u32", sT, sT, STAMP_OFF)
        e.valu("v_lshlrev_b32", vT0, 2, vL)
        e.bstore("buffer_store_dword", stamp_reg, vT0, sWS, sT)

    e.salu("s_cmp_ge_u32", None, S(2), 256)
    e.branch("s_cbranch_scc1", "L_done")
    e.other(f"s_load_dwordx16 s[{KARG}:{KARG+15}], s[0:1], 0")
    e.other(f"s_load_dwordx8 s[{KARG+16}:{KARG+23}], s[0:1], 64")
    e.other(f"s_load_dwordx2 s[{KARG+24}:{KARG+25}], s[0:1], 96")
    e.other("s_memrealtime s[72:73]")
    e.valu("v_lshrrev_b32", vT0, 6, V(0))
    e.valu("v_and_b32", vL, 63, V(0))
    e.readfirstlane(sW, vT0)
    if cfg.stamps: e.valu("v_mov_b32", stamp_reg, 0)
    e.salu("s_and_b32", g.sXCD, S(2), 7)
    e.salu("s_lshr_b32", g.sIDX, S(2), 3)
    e.salu("s_lshr_b32", g.sB, g.sIDX, 2); e.salu("s_and_b32", g.sHP, g.sIDX, 3)
    e.salu("s_and_b32", g.sHG, g.sXCD, 3); e.salu("s_lshr_b32", g.sBR, g.sXCD, 2)
    e.valu("v_lshlrev_b32", vL16, 4, vL)
    e.valu("v_lshrrev_b32", vT1, 4, vL); e.valu("v_lshrrev_b32", vT0, 3, vL)
    e.salu("s_lshl_b32", sT, g.sHP, 1); e.salu("s_add_u32", sT, sT, g.sB); e.salu("s_and_b32", sT, sT, 7)
    e.salu("s_lshl_b32", g.sXS, sT, 7); e.salu("s_lshl_b32", g.sWS2, sT, 19)
    e.salu("s_mul_i32", sT, sW, 9); e.salu("s_lshr_b32", sT, sT, 1)
    e.salu("s_lshl_b32", g.sOL, sT, 10); e.salu("s_add_u32", g.sXL, g.sOL, XS0)
    e.salu("s_mul_i32", sT1, g.sB, 147456); e.salu("s_lshl_b32", sT2, sT, 13); e.salu("s_add_u32", sT1, sT1, sT2)
    e.salu("s_and_b32", sT, sT, 1); e.salu("s_lshl_b32", sT, sT, 6)
    e.valu("v_and_b32", vT2, 7, vL); e.valu("v_xor_b32", vT2, vT2, vT1); e.valu("v_lshlrev_b32", vT2, 4, vT2)
    e.valu("v_lshl_add_u32", vT2, vT0, 10, vT2); e.valu("v_xor_b32", vT2, sT, vT2)
    e.valu("v_add_u32", oX[0], sT1, vT2); e.valu("v_xor_b32", vT2, 64, oX[0])
    for i in range(1, 5): e.valu("v_add_u32", oX[i], i * 8192 - (i % 3) * 1024, vT2 if i & 1 else oX[0])
    e.salu("s_lshl_b32", sT1, g.sHG, 11); e.salu("s_lshl_b32", sT2, g.sHP, 9); e.salu("s_add_u32", sT1, sT1, sT2)
    e.salu("s_lshl_b32", sT2, sW, 7); e.salu("s_add_u32", sT1, sT1, sT2)
    e.valu("v_and_b32", vT2, 1, vT1); e.valu("v_lshlrev_b32", vT2, 2, vT2)
    e.valu("v_and_b32", oWQ[0], 7, vL); e.valu("v_xor_b32", vT2, oWQ[0], vT2); e.valu("v_lshlrev_b32", vT2, 4, vT2)
    e.valu("v_lshl_add_u32", vT2, vT0, 13, vT2); e.valu("v_add_u32", oWQ[0], sT1, vT2)
    for i in range(1, 4): e.valu("v_add_u32", oWQ[i], i * (65536 - 1024), oWQ[0])
    e.salu("s_lshl_b32", g.sWLG, sW, 12); e.salu("s_add_u32", g.sWL, g.sWLG, WS0)
    e._wait(lg=0)
    e.salu("s_cmp_lg_u32", None, g.sBR, 0)
    def srd(d, a, b, size):
        if b is None:
            e.salu("s_mov_b32", d[0], kp(a)[0]); e.salu("s_mov_b32", d[1], kp(a)[1])
        else:
            e.salu("s_cselect_b32", d[0], kp(b)[0], kp(a)[0]); e.salu("s_cselect_b32", d[1], kp(b)[1], kp(a)[1])
        e.salu("s_mov_b32", d[2], hex(size)); e.salu("s_mov_b32", d[3], "0x20000")
    srd(sX, 0, 5, 8 * 147456); srd(sWQ, 3, 8, 512 * 8192)
    srd(sK, 1, 6, 1 << 26); srd(sV, 2, 7, 1 << 26); srd(sWO, 4, 9, 4096 * 1024)
    srd(sDBG, 11, None, 256)
    def tag_propose():
        e.salu("s_cmp_lg_u32", None, sW, 3)
        e.branch("s_cbranch_scc1", "1f")
        e.salu("s_or_b32", S(72), S(72), 1)
        e.salu("s_lshl_b32", sT, g.sBR, 3); e.salu("s_add_u32", sT, sT, g.sB); e.salu("s_lshl_b32", sT, sT, 4)
        e.valu("v_mov_b32", TG[0], S(72)); e.valu("v_mov_b32", TG[1], 0); e.valu("v_mov_b32", V(110), 0)
        e.salu("s_mov_b64", "exec", 1)
        e.ins(f"buffer_atomic_cmpswap {TG}, v110, {sDBG}, {sT} offen sc0 sc1", 'vmem', [TG, V(110), sDBG, sT], [TG[0]])
        e.salu("s_mov_b64", "exec", -1)
        e.label("1")
    if cfg.tagpos == 0: tag_propose()
    stamp(0)

    def x_items(D, part, tag):
        its = [lambda: e.salu("s_add_u32", "m0", g.sXL, (D & 1) * 18432 + part * 3072)]
        for i in range(3 * part, min(5, 3 * part + 3)):
            its.append(lambda i=i: e.dma(oX[i], sX, g.sXS, off=(i % 3) * 1024, pol=cfg.xw_pol, tag=tag))
        if part == 1:
            its.append(lambda: e.salu("s_add_u32", g.sXS, g.sXS, 128))
            its.append(lambda: e.salu("s_and_b32", g.sXS, g.sXS, 1023))
        return its
    def w_items(st, tag):
        its = [lambda: e.salu("s_add_u32", "m0", g.sWL, (st % 3) * 16384)]
        for i in range(4):
            its.append(lambda i=i: e.dma(oWQ[i], sWQ, g.sWS2, off=i * 1024, pol=cfg.xw_pol, tag=tag))
        its.append(lambda: e.salu("s_add_u32", g.sWS2, g.sWS2, 1 << 18))
        its.append(lambda: e.salu("s_and_b32", g.sWS2, g.sWS2, "0x3fffff"))
        return its
    pro = [w_items(0, "p0") + x_items(0, 0, "p0") + x_items(0, 1, "p0"), w_items(1, "p1"), x_items(1, 0, "p2") + x_items(1, 1, "p2") + w_items(2, "p2")]
    for f in pro[0]: f()
    if not cfg.plate:
        for f in pro[1] + pro[2]: f()
    if cfg.tagpos == 1: tag_propose()

    if cfg.qst: stamp(12, True)
    srd(sWS, 12, None, 64 << 20 if cfg.stamps else WS_USED); srd(sOUT, 10, None, 8 * 144 * 2048)
    e.salu("s_lshl_b32", sT, g.sHG, 3); e.salu("s_lshl_b32", sT1, g.sHP, 1); e.salu("s_add_u32", sT, sT, sT1)
    e.salu("s_lshl_b32", g.sKVB0, g.sB, 5); e.salu("s_add_u32", g.sKVB0, g.sKVB0, sT); e.salu("s_lshl_b32", g.sKVB0, g.sKVB0, 18)
    e.salu("s_lshl_b32", sT1, g.sBR, 3); e.salu("s_add_u32", sT1, sT1, g.sB)
    e.salu("s_lshl_b32", sT2, sT1, 5); e.salu("s_add_u32", sT2, sT2, sT); e.salu("s_mul_i32", g.sOB, sT2, 36864)
    e.salu("s_add_u32", g.sOB, g.sOB, g.sWLG)
    if cfg.swap == 1: e.salu("s_xor_b32", sSW2, g.sB, g.sHG)
    elif cfg.swap == 2:
        e.salu("s_lshr_b32", sSW2, g.sB, 1); e.salu("s_xor_b32", sSW2, sSW2, g.sB); e.salu("s_lshr_b32", sT2, g.sHG, 1); e.salu("s_xor_b32", sSW2, sSW2, sT2)
    e.salu("s_and_b32", sSW2, sSW2, 1 if cfg.swap else 0)
    e.salu("s_lshl_b32", sT2, sSW2, 18); e.salu("s_add_u32", g.sKVB0, g.sKVB0, sT2)
    e.salu("s_mul_i32", sT2, sSW2, 36864); e.salu("s_add_u32", sOB1, g.sOB, 36864); e.salu("s_sub_u32", sOB1, sOB1, sT2); e.salu("s_add_u32", g.sOB, g.sOB, sT2)
    e.salu("s_lshl_b32", sSW2, sSW2, 1)
    if cfg.dbg_tail & 1: e.salu("s_mov_b32", sOB1, "0x40000000")
    e.salu("s_lshl_b32", sT2, sT1, 2); e.salu("s_add_u32", g.sFL1, sT2, g.sHG); e.salu("s_add_u32", g.sFL2, sT2, g.sHP)
    e.salu("s_mul_i32", g.sOKP, g.sFL1, 16 * 18432)
    e.salu("s_mul_i32", g.sPB, g.sFL2, 16 * 9216); e.salu("s_add_u32", g.sPB, g.sPB, PWS_OFF)
    e.salu("s_lshl_b32", sF1, g.sFL1, 8); e.salu("s_add_u32", sF1, sF1, FLG_OFF)
    e.salu("s_lshl_b32", sF2, g.sFL2, 10); e.salu("s_add_u32", sF2, sF2, FLG_OFF + 64 * 256)
    e.salu("s_lshl_b32", sPL, sT1, 8); e.salu("s_add_u32", sPL, sPL, PRG_OFF)
    e.salu("s_lshl_b32", sPS, g.sHG, 2); e.salu("s_add_u32", sPS, sPS, g.sHP); e.salu("s_lshl_b32", sPS, sPS, 3)
    e.salu("s_mov_b32", sTRIP, 0)
    e.salu("s_lshl_b32", g.sWB, g.sHG, 20); e.salu("s_lshl_b32", sT, g.sHP, 8); e.salu("s_add_u32", g.sWB, g.sWB, sT)
    e.salu("s_lshl_b32", sT, sW, 14); e.salu("s_add_u32", sWBw, g.sWB, sT)
    e.salu("s_add_u32", sOKw, g.sOKP, g.sOL)
    if cfg.dbg_tail & 2: e.salu("s_mov_b32", sOKw, "0x40000000"); e.salu("s_mov_b32", sWBw, "0x40000000")
    if cfg.dbg_tail & 4: e.salu("s_mov_b32", g.sOKP, "0x40000000"); e.salu("s_mov_b32", g.sWB, "0x40000000")
    e.other(f"s_getpc_b64 {sPC}")
    e.label("L_pc")
    e.salu("s_mul_i32", g.sROT, S(2), cfg.rotmul); e.salu("s_lshr_b32", g.sROT, g.sROT, 27); e.salu("s_lshl_b32", g.sROT, g.sROT, 13)
    e.salu("s_mov_b32", g.sRETRY, 0); e.salu("s_mov_b32", g.sPUB, 0)
    e.salu("s_mov_b32", g.sSC, hex(f2u(QSCALE)))
    e.valu("v_and_b32", vT0, 15, vL); e.valu("v_lshrrev_b32", vT1, 4, vL)
    e.valu("v_xor_b32", vT2, vT0, vT1)
    e.valu("v_lshlrev_b32", vT2, 4, vT2); e.valu("v_lshl_add_u32", oK[0], vT1, 8, vT2)
    for n in range(1, 4): e.valu("v_xor_b32", oK[n], n << 6, oK[0])
    e.valu("v_lshlrev_b32", vT2, 1, vT1); e.valu("v_xor_b32", vT2, vT0, vT2)
    e.valu("v_lshlrev_b32", vT2, 4, vT2); e.valu("v_lshl_add_u32", oV[0], vT1, 8, vT2)
    e.valu("v_xor_b32", oV[1], 128, oV[0])
    e.valu("v_lshlrev_b32", vT2, 2, vT1); e.valu("v_xor_b32", vT2, vT0, vT2)
    e.valu("v_lshlrev_b32", vT2, 4, vT2); e.valu("v_lshl_add_u32", oWo[0], vT1, 10, vT2)
    for i in range(1, 4): e.valu("v_add_u32", oWo[i], i * 3072, oWo[0])
    def kv_addr_init():
        e.valu("v_and_b32", vT0, 15, vL); e.valu("v_lshrrev_b32", vT1, 4, vL)
        e.valu("v_xor_b32", vT2, vT0, vT1); e.valu("v_lshlrev_b32", vT2, 4, vT2)
        e.valu("v_lshl_add_u32", KA[0], vT0, 8, vT2)
        for kk in range(1, 4): e.valu("v_xor_b32", KA[kk], kk << 6, KA[0])
        e.valu("v_lshlrev_b32", KBA, 4, vT1)
        e.valu("v_lshrrev_b32", vT0, 2, vL)
        e.valu("v_and_b32", vT2, 7, vT0); e.valu("v_lshlrev_b32", vT2, 5, vT2)
        e.valu("v_lshl_add_u32", vT2, vT0, 8, vT2)
        e.valu("v_and_b32", vT0, 3, vL); e.valu("v_lshl_add_u32", vT2, vT0, 3, vT2)
        e.valu("v_add_u32", VA[0], 8192, vT2)
        for D in range(1, 8): e.valu("v_xor_b32", VA[D], D << 5, VA[0])
    kv_addr_init()
    e.valu("v_and_b32", vT0, 15, vL)
    e.valu("v_lshrrev_b32", vT2, 1, vT0); e.valu("v_xor_b32", vT2, vT2, vT1); e.valu("v_lshlrev_b32", vT2, 4, vT2)
    e.valu("v_lshl_add_u32", vT2, vT0, 7, vT2); e.valu("v_add_u32", XA[0], XS0, vT2); e.valu("v_xor_b32", XA[1], 64, XA[0])
    e.valu("v_lshlrev_b32", vST, 11, vT0); e.valu("v_lshl_add_u32", vST, vT1, 4, vST)
    e.valu("v_lshrrev_b32", vT0, 2, vL); e.valu("v_and_b32", vT0, 3, vT0)
    e.valu("v_lshl_add_u32", vT2, vT1, 3, vT0); e.valu("v_lshlrev_b32", vT2, 7, vT2)
    e.valu("v_lshrrev_b32", WA[1], 1, vT0); e.valu("v_lshl_add_u32", vT2, WA[1], 6, vT2)
    e.valu("v_and_b32", WA[1], 3, vL); e.valu("v_lshl_add_u32", vT2, WA[1], 4, vT2)
    e.valu("v_add_u32", WA[0], g.sWL, vT2); e.valu("v_xor_b32", WA[1], 64, WA[0])
    e.valu("v_xor_b32", vT0, sW, vT0); e.valu("v_lshlrev_b32", vT0, 6, vT0)
    e.valu("v_and_b32", vT2, 3, vL); e.valu("v_lshl_add_u32", vT0, vT2, 4, vT0)
    e.valu("v_lshrrev_b32", vT2, 2, vL); e.valu("v_lshl_add_u32", GWA[1], vT2, 8, vT0)
    e.valu("v_add_u32", GWA[0], GSL[0], GWA[1])
    e.valu("v_add_u32", GOA[1], 16384, vL16); e.valu("v_add_u32", GOA[0], GSL[0] + 16384, vL16)
    e.salu("s_lshr_b32", sT1, sW, 1); e.salu("s_mul_i32", sT1, sT1, 36864)
    e.salu("s_and_b32", sT2, sW, 1); e.salu("s_lshl_b32", sT2, sT2, 11); e.salu("s_add_u32", sT2, sT2, sT1); e.salu("s_add_u32", sT2, sT2, LQ)
    e.valu("v_add_u32", QW, sT2, vL16)
    e.salu("s_lshl_b32", sT2, sW, 13); e.salu("s_add_u32", sT2, sT2, LQ)
    e.valu("v_add_u32", QA, sT2, vL16)
    e.salu("s_lshl_b32", sT2, sW, 2); e.salu("s_add_u32", sT2, sT2, LFLAG)
    e.valu("v_mov_b32", vFLG, sT2)

    def kv4_setup():
        e.salu("s_lshl_b32", sT, sW, 13); e.salu("s_add_u32", g.sKP, g.sROT, sT); e.salu("s_and_b32", g.sKP, g.sKP, "0x3ffff")
        e.salu("s_add_u32", g.sKP, g.sKP, g.sKVB0); e.salu("s_lshl_b32", g.sLS, sW, 14)
    def kv4_items(tag, base=None):
        its = []
        for srd_, voff, b_ in ((sK, oK, 0), (sV, oV, 8192)):
            for n in range(8):
                if n % 4 == 0:
                    its.append(lambda n=n, b_=b_: e.salu("s_add_u32", "m0", g.sLS, b_ + n * 1024))
                    its.append(lambda n=n: e.salu("s_add_u32", g.sKO, g.sKP, n * 1024))
                its.append(lambda n=n, srd_=srd_, voff=voff: e.dma(voff[n % len(voff)], srd_, g.sKO, off=(n & 3) * 1024, pol=cfg.kv_pol, tag=tag))
        return its
    oKq = [V(32), V(33)]
    def kvq_setup():
        e.salu("s_and_b32", sT, sW, 1); e.salu("s_lshl_b32", sT, sT, 7)
        e.valu("v_xor_b32", oKq[0], sT, oK[0]); e.valu("v_xor_b32", oKq[1], sT, oK[1])
        e.salu("s_lshl_b32", g.sLS, sW, 11); e.salu("s_add_u32", g.sKVB, g.sKVB0, g.sLS); e.salu("s_mov_b32", g.sKP, g.sROT)
    def kvq_items(step):
        its = [lambda: e.salu("s_add_u32", "m0", g.sLS, step * 16384), lambda: e.salu("s_add_u32", g.sKO, g.sKVB, g.sKP)]
        its += [lambda i=i: e.dma(oKq[i], sK, g.sKO, off=i * 1024, pol=cfg.kv_pol, tag=("kv", step)) for i in range(2)]
        its += [lambda: e.salu("s_add_u32", "m0", g.sLS, step * 16384 + 8192), lambda: e.salu("s_add_u32", g.sKP, g.sKP, 8192)]
        its += [lambda i=i: e.dma(oV[i], sV, g.sKO, off=i * 1024, pol=cfg.kv_pol, tag=("kv", step)) for i in range(2)]
        its += [lambda: e.salu("s_and_b32", g.sKP, g.sKP, "0x3ffff")]
        return its
    kvq_setup()
    def window():
        if cfg.win2:
            e.branch("s_cbranch_vccnz", "4f")
            e._wait(vm=cfg.win2 - cfg.wing)
            e.label("4")
        if cfg.win and len(e.vm_q) > cfg.win - cfg.wing:
            n = cfg.win - cfg.wing
            e._wait(vm=n); e.vm_q = e.vm_q[len(e.vm_q) - n:]
    def ld_setup():
        e.salu("s_cmp_eq_u32", None, sW, 2)
        e.salu("s_cselect_b32", sLD[0], sV[0], sK[0]); e.salu("s_cselect_b32", sLD[1], sV[1], sK[1])
        e.salu("s_mov_b32", sLD[2], hex(1 << 26)); e.salu("s_mov_b32", sLD[3], "0x20000")
        e.salu("s_cselect_b32", g.sLS, 8192, 0)
        e.salu("s_cselect_b64", "vcc", -1, 0)
        e.nop(2)
        for n in range(4): e.ins(f"v_cndmask_b32 {oLD[n]}, {oK[n]}, {oV[n & 1]}, vcc", 'valu', [oK[n], oV[n & 1], 'vcc'], [oLD[n]])
        e.salu("s_add_u32", g.sKP, g.sROT, 4 * 8192); e.salu("s_and_b32", g.sKP, g.sKP, "0x3ffff")
        e.salu("s_mov_b32", g.sKVB, g.sKVB0)
        if cfg.win2:
            e.salu("s_mov_b64", "vcc", 0)
    def ld_items(step):
        its = []
        if step == 32: its.append(lambda: e.salu("s_xor_b32", g.sKVB, g.sKVB, 262144))
        for n in range(8):
            if n == 0:
                its.append(lambda: e.salu("s_add_u32", "m0", g.sLS, (step & 3) * 16384)); its.append(lambda: e.salu("s_add_u32", g.sKO, g.sKVB, g.sKP))
            if n == 4:
                its.append(lambda: e.salu("s_add_u32", "m0", g.sLS, (step & 3) * 16384 + 4096)); its.append(lambda: e.salu("s_add_u32", g.sKO, g.sKO, 4096))
            if n % cfg.wing == 0: its.append(window)
            its.append(lambda n=n: e.dma(oLD[n & 3], sLD, g.sKO, off=(n & 3) * 1024, pol=cfg.kv_pol, tag=("kv", step)))
        its.append(lambda: e.salu("s_add_u32", g.sKP, g.sKP, 0 if cfg.dbg_hot else 8192)); its.append(lambda: e.salu("s_and_b32", g.sKP, g.sKP, "0x3ffff"))
        return its
    def k_reads(step):
        return [lambda kk=kk, kt=kt: e.ds_read("ds_read_b128", Kf(step & 1, kt, kk), KA[kk], (step & 3) * 16384 + kt * 4096, tag="kf")
                for kk in range(4) for kt in range(2)]
    def v_reads(step):
        return [lambda D=D, hi=hi: e.ds_read("ds_read_b64_tr_b16", Vf(step & 1, D)[2 * hi:2 * hi + 2], VA[D], (step & 3) * 16384 + hi * 4096, tag="vf")
                for D in range(8) for hi in range(2)]
    def kb_reads():
        return [lambda kk=kk: e.ds_read("ds_read_b128", Kb[kk], KBA, kk * 64, tag="kf") for kk in range(4)]
    def w_reads(st):
        return [lambda D=D, hi=hi: e.ds_read("ds_read_b64_tr_b16", WF(st & 1, D)[2 * hi:2 * hi + 2], WA[D >> 1],
                                            (st % 3) * 16384 + hi * 512 + (D & 1) * 8, tag="qf") for D in range(4) for hi in range(2)]
    def x_reads(D):
        return [lambda qt=qt, kh=kh: e.ds_read("ds_read_b128", XF((2 * D + kh) % 3, qt), XA[kh], (D & 1) * 18432 + qt * 2048, tag="qf")
                for kh in range(2) for qt in range(9)]
    def run_stage(mfs, rd, fill, span=None):
        nf, n, done = len(fill), span or len(mfs), 0
        for i, m in enumerate(mfs):
            m()
            if rd: rd.popleft()()
            while fill and done * n <= i * nf:
                fill.popleft()(); done += 1
        while rd: rd.popleft()()
        while fill: fill.popleft()()
    GORD = [(dp, 0, i) for dp in range(4) for i in range(2)] + [(0, 1, 0), (0, 1, 1)] + [(dp, 1, i) for i in range(2) for dp in (1, 2, 3)]
    def kpl_items(st, dst):
        dp, h, i = GORD[st]
        return [lambda: e.salu("s_add_u32", dst, g.sHP, dp), lambda: e.salu("s_and_b32", dst, dst, 3),
                lambda: e.salu("s_lshl_b32", dst, dst, 2), lambda: e.salu("s_add_u32", dst, dst, 2 * h + i),
                lambda: e.salu("s_xor_b32", dst, dst, sSW2)]
    def ga_reads(st):
        return [lambda kb=kb, ee=ee, hi=hi: e.ds_read("ds_read_b64_tr_b16", GA(st & 1, kb * 2 + ee)[2 * hi:2 * hi + 2], GWA[st >> 1 & 1],
                                                     (st & 1) * 34816 + kb * 8192 + hi * 4096 + ee * 8, tag="g") for kb in range(2) for ee in range(2) for hi in range(2)]
    def gb_reads(st):
        return [lambda i=i: e.ds_read("ds_read_b128", GB(st & 1, i), GOA[st >> 1 & 1], (st & 1) * 34816 + i * 1024, tag="g") for i in range(18)]
    def full_w_items(st):
        its = kpl_items(st, sU1)
        its += [lambda: e.salu("s_lshl_b32", sU1, sU1, 16), lambda: e.salu("s_add_u32", sU1, sU1, g.sWB)]
        for n in range(16):
            if n % 4 == 0:
                its.append(lambda n=n: e.salu("s_mov_b32", "m0", GSL[st % 4] + n * 1024))
                if n: its.append(lambda: e.salu("s_add_u32", sU1, sU1, 16384))
            its.append(lambda n=n: e.dma(oWo[n & 3], sWO, sU1, off=(n & 3) * 1024, pol=cfg.wo_pol, tag="pre"))
        return its
    def gw_items(st):
        its = kpl_items(st, sU1)
        its += [lambda: e.salu("s_lshl_b32", sU1, sU1, 16), lambda: e.salu("s_add_u32", sU1, sU1, sWBw),
                lambda: e.salu("s_add_u32", "m0", g.sWLG, GSL[st % 4])]
        for i in range(4): its.append(lambda i=i: e.dma(oWo[i], sWO, sU1, off=i * 1024, pol=cfg.wo_pol, tag=("g", st)))
        return its
    def go_items(st):
        its = kpl_items(st, sU0)
        its += [lambda: e.salu("s_mul_i32", sU0, sU0, 18432), lambda: e.salu("s_add_u32", sU0, sU0, sOKw),
                lambda: e.salu("s_add_u32", "m0", g.sOL, GSL[st % 4] + 16384)]
        for i in range(4): its.append(lambda i=i: e.dma(vL16, sWS, sU0, off=i * 1024, pol="sc1", tag=("g", st)))
        its += [lambda: e.salu("s_add_u32", "m0", g.sOL, GSL[st % 4] + 16384 + 4096), lambda: e.salu("s_add_u32", sU0, sU0, 4096),
                lambda: e.dma(vL16, sWS, sU0, pol="sc1", tag=("g", st))]
        return its
    def gwo_items(st):
        w = gw_items(st); o = go_items(st)
        return o[:5] + [lambda: e.salu("s_lshl_b32", sU1, sU0, 16)] + o[5:] + w[6:]
    def code_touch():
        e.salu("s_lshl_b32", sT, g.sIDX, 12)
        e.valu("v_lshlrev_b32", V(109), 6, vL)
        e.valu("v_add_u32", V(109), sT, V(109))
        e.valu("v_min_u32", V(109), "L_end-L_pc-4", V(109))
        e.ins(f"v_add_co_u32 v110, vcc, {sPC[0]}, v109", 'valu', [V(109)], [V(110), 'vcc'])
        e.valu("v_mov_b32", V(111), sPC[1])
        e.ins(f"v_addc_co_u32 v111, vcc, 0, v111, vcc", 'valu', [V(111), 'vcc'], [V(111), 'vcc'])
        e.ins(f"global_load_dword {vD1}, v[110:111], off", 'vmem', [V(110, 2)], [vD1]); e.vm_q.append("cw")
    def warm_items():
        its = [lambda: e.salu("s_lshl_b32", sU0, g.sHG, 5), lambda: e.salu("s_add_u32", sU0, sU0, g.sIDX), lambda: e.salu("s_lshl_b32", sU0, sU0, 15),
               lambda: e.valu("v_lshlrev_b32", vT2, 7, vL)]
        for n in range(4):
            if n: its.append(lambda: e.salu("s_add_u32", sU0, sU0, 8192))
            its.append(lambda n=n: e.bload("buffer_load_dword", vD1, vT2, sWO, sU0, pol=cfg.wo_pol, tag="pre"))
        if not cfg.warm_w: its = []
        its += [lambda: e.salu("s_sub_u32", sU0, g.sOB, g.sWLG), lambda: e.valu("v_lshlrev_b32", vT2, 7, vL)]
        for n in range(5 if cfg.warm_o else 0):
            if n: its.append(lambda n=n: e.salu("s_add_u32", sU0, sU0, 8192 if n < 4 else 4096))
            its.append(lambda: e.bload("buffer_load_dword", vD1, vT2, sWS, sU0, pol=cfg.warm_opol, tag="pre"))
        return its
    def atomic_add(flag, val):
        e.valu("v_mov_b32", vT0, val); e.valu("v_mov_b32", vT1, 0)
        e.salu("s_mov_b64", "exec", 1)
        e.ins(f"buffer_atomic_add {vT0}, {vT1}, {sDBG}, {flag} offen sc1", 'vmem', [vT0, vT1, sDBG, flag], [])
        e.salu("s_mov_b64", "exec", -1)
    def flag_store(line, off, who):
        e.salu("s_lshl_b32", sT, who, 3)
        e.valu("v_mov_b32", V(110), sTAG); e.valu("v_not_b32", V(111), sTAG); e.valu("v_mov_b32", vT1, sT)
        e.salu("s_mov_b64", "exec", 1)
        e.ins(f"buffer_store_dwordx2 v[110:111], {vT1}, {sWS}, {line} offen offset:{off} sc1", 'vmem', [V(110, 2), vT1, sWS, line], [])
        e.salu("s_mov_b64", "exec", -1)
    def flag_load(line, off, tag):
        e.valu("v_and_b32", vT2, 3, vL); e.valu("v_lshlrev_b32", vT2, 3, vT2)
        e.bload("buffer_load_dwordx2", TG, vT2, sWS, line, off=off, pol="sc1", tag=tag)
    def flag_test(who):
        e.valu("v_not_b32", TG[1], TG[1])
        e.valu("v_xor_b32", TG[0], sTAG, TG[0]); e.valu("v_xor_b32", TG[1], sTAG, TG[1]); e.valu("v_or_b32", TG[0], TG[0], TG[1])
        e.vcmp("v_cmp_ne_u32", "vcc", 0, TG[0])
        e.salu("s_lshl_b32", sT, 1, who); e.salu("s_xor_b32", sT, sT, 15)
        e.salu("s_and_b32", sT, sT, "vcc_lo")
        e.salu("s_cmp_eq_u32", None, sT, 0)
    def poll(line, off, lab, who):
        e.salu("s_mov_b32", g.sSP, 1 << 20)
        e.label(lab)
        flag_load(line, off, None)
        e.wait_all_vm()
        flag_test(who)
        e.branch("s_cbranch_scc1", lab + "x")
        e.other(f"s_sleep {cfg.poll_sleep}")
        e.salu("s_sub_u32", g.sSP, g.sSP, 1)
        e.salu("s_cmp_lg_u32", None, g.sSP, 0)
        e.branch("s_cbranch_scc1", lab)
        e.label(lab + "x")
    def read_fail(n):
        e.valu("v_mov_b32", vT1, LFLAG)
        for i in range(n): e.ds_read("ds_read_b128", V(80 + 4 * i, 4), vT1, 16 * i)
        e.wait_all_lds()
        e.valu("v_or_b32", V(80), V(80), V(81)); e.valu("v_or3_b32", V(80), V(80), V(82), V(83))
        if n == 2:
            e.valu("v_or3_b32", V(80), V(80), V(84), V(85)); e.valu("v_or3_b32", V(80), V(80), V(86), V(87))
        e.readfirstlane(sT, V(80))

    if cfg.cw & 2:
        e.salu("s_cmp_lg_u32", None, sW, 2)
        e.branch("s_cbranch_scc1", "1f")
        q_ = list(e.vm_q)
        code_touch()
        e.vm_q = q_
        e.label("1")
    def warm0():
        return [lambda: e.salu("s_lshl_b32", sT, g.sHG, 5), lambda: e.salu("s_add_u32", sT, sT, g.sIDX), lambda: e.salu("s_lshl_b32", sT, sT, 2),
                lambda: e.salu("s_add_u32", sT, sT, sW), lambda: e.salu("s_lshl_b32", sT, sT, 13),
                lambda: e.valu("v_lshlrev_b32", vT0, 7, vL),
                lambda: e.bload("buffer_load_dword", vD1, vT0, sWO, sT, pol=cfg.wo_pol, tag="ww")]
    if cfg.warm == 3 and cfg.warm0 == -1:
        for f in warm0(): f()
    if cfg.plate:
        for f in pro[1]: f()
    if cfg.plate == 1:
        for f in pro[2]: f()
    if cfg.qst: stamp(13, True)
    e.wait_vm("p0")
    if cfg.qst: stamp(14, True)
    e.barrier()
    stamp(1)
    for f in w_reads(0) + x_reads(0): f()
    if cfg.plate == 2:
        for f in pro[2]: f()
    kvq = deque(kvq_items(s_) for s_ in range(4))
    def q_out(qt):
        its = []
        for P in range(2):
            src = V(112 + (qt * 4 + 2 * P) * 4, 8)
            its += [lambda i=i, src=src: e.valu("v_pk_mul_f32", src[2 * i:2 * i + 2], src[2 * i:2 * i + 2], V(34, 2)) for i in range(4)]
            its += [lambda i=i, src=src: e.valu("v_cvt_pk_bf16_f32", src[i], src[2 * i], src[2 * i + 1]) for i in range(4)]
            its.append(lambda src=src, P=P: e.ds_write("ds_write_b128", QW, src[0:4], (qt * 4 + P) * 1024))
        return its
    e.valu("v_mov_b32", V(34), g.sSC); e.valu("v_mov_b32", V(35), g.sSC)
    for st in range(16):
        e.comment(f"q-proj stage {st}")
        e.wait_vm({0: "p1", 1: "p2"}.get(st, ("iss", st - 2)))
        e.wait_all_lds(); e.barrier()
        if cfg.qst and st in (1, 3, 6, 9, 13): stamp({1: 6, 3: 7, 6: 9, 9: 10, 13: 11}[st], True)
        fill = deque()
        if cfg.plate == 3 and st == 0: fill.extend(pro[2])
        if st // 2 + 2 < 8: fill.extend(x_items(st // 2 + 2, st & 1, ("iss", st)))
        if st + 3 < 16: fill.extend(w_items(st + 3, ("iss", st)))
        if cfg.warm == 3 and cfg.warm0 == st: fill.extend(warm0())
        if cfg.tagpos == 2 and st == 13: tag_propose()
        for _ in range(cfg.kv0_at.split(",").count(str(st))): fill.extend(kvq.popleft())
        if cfg.l2pre and st == cfg.l2pre_at:
            for r in range(cfg.l2pre):
                fill.extend([lambda r=r: e.salu("s_add_u32", sT, sW, 4 + 4 * r), lambda: e.salu("s_lshl_b32", sT, sT, 13), lambda: e.salu("s_add_u32", sT, sT, g.sROT),
                             lambda: e.salu("s_and_b32", sT, sT, "0x3ffff"), lambda: e.salu("s_add_u32", sT, sT, g.sKVB0),
                             lambda: e.valu("v_lshlrev_b32", vT0, 7, vL),
                             lambda: e.bload("buffer_load_dword", vD1, vT0, sK, sT, tag="l2"), lambda: e.bload("buffer_load_dword", vD1, vT0, sV, sT, tag="l2")])
        rd = deque()
        if st + 1 < 16: rd.extend(w_reads(st + 1))
        if st & 1 and st + 1 < 16: rd.extend(x_reads((st + 1) // 2))
        mfs = [lambda qt=qt, D=D: e.mfma16(QACC(D, qt), WF(st & 1, D), XF(st % 3, qt), QACC(D, qt) if st else 0)
               for qt in range(9) for D in range(4)]
        if st < 15 or not cfg.qov: run_stage(mfs, rd, fill)
        else:
            out = deque()
            for i, m in enumerate(mfs):
                m()
                if i % 4 == 3 and i >= 7: out.extend(q_out(i // 4 - 1))
                for _ in range(cfg.qov):
                    if fill: fill.popleft()()
                    elif out: out.popleft()()
            out.extend(q_out(8))
    while kvq:
        for f in kvq.popleft(): f()
    stamp(2)
    if not cfg.qov: out = deque(f for qt in range(9) for f in q_out(qt))
    while out: out.popleft()()
    e.valu("v_mov_b32", vT0, "0x3f803f80")
    for i in range(4): e.valu("v_accvgpr_write_b32", ONES[i], vT0)
    ld_setup()
    e.salu("s_cmp_eq_u32", None, sW, 3)
    e.branch("s_cbranch_scc1", "L_rC")
    e.salu("s_cmp_lg_u32", None, sW, 0)
    e.branch("s_cbranch_scc1", "L_rB")
    hist0 = list(e.hist); vmq0 = list(e.vm_q)

    X8 = 139264
    CAPS = [0, 2, 0, 1, 0, 2, 0, 1, 0, 2, 0, 1, 0, 2, 0, 1, 2]
    for R in "ABC":
        NTW = 2 if R == "B" else 3
        toff = lambda t: ({"A": 8, "C": 2}[R] if t == 2 else t)
        e.hist = list(hist0)
        if R != "A": e.label(f"L_r{R}")
        e.lds_q = ["x"]; e.vm_q = list(vmq0)
        e.salu("s_mul_i32", sT, sSW2, 18432)
        e.valu("v_add_u32", vT1, sT, QA); e.valu("v_add_u32", QA, 36864, QA); e.valu("v_subrev_u32", QA, sT, QA)
        e.valu("v_add_u32", vD0, X8, vL16)
        e.valu("v_add_u32", vOW, g.sWLG, GOA[0])
        e.wait_vm(("kv", 0))
        e.wait_all_lds(); e.barrier()
        def qf_reads(h, addr):
            return [lambda t=t, kk=kk: e.ds_read("ds_read_b128", Qf(h, t, kk), addr, (toff(t) * 4 + kk) * 1024, tag="q") for t in range(NTW) for kk in range(4)]
        for f in kb_reads() + qf_reads(0, vT1) + k_reads(0) + v_reads(0): f()
        def prepass(h):
            e.comment("stand-in for the row max: minus the score of the first key, per row")
            e.salu("s_cmp_lg_u32", None, g.sRETRY, 0)
            e.branch("s_cbranch_scc1", f"L_np{h}{R}")
            e.salu("s_mov_b32", sT1, "0x80008000")
            for kk in range(4):
                for i in range(4): e.valu("v_xor_b32", Kb[kk][i], sT1, Kb[kk][i])
            for t in range(NTW):
                for kk in range(4): e.mfma16(NM(h, t), Kb[kk], Qf(h, t, kk), NM(h, t) if kk else 0)
            e.label(f"L_np{h}{R}")
        e.wait_lds("q")
        prepass(0)
        stamp(3)
        e.label(f"L_main_{R}")
        e.lds_q = ["x"]
        e.salu("s_mov_b32", g.sFAIL, 0)
        seq = [(s, t) for s in range(32) for t in range(3 if (R == "A" and s % 2 == 0) or (R == "C" and s % 2 == 1) else 2)]
        if not cfg.alt: seq = [(s, t) for s in range(32) for t in range(3 if R == "A" else 2)]
        NT = len(seq)
        first = {s: j for j, (s, t) in reversed(list(enumerate(seq)))}; first[32] = NT
        bpos = {}
        for s in range(1, 33):
            if s % 2 == 0 or R == "B" or not cfg.alt: bpos[(first[s], 0)] = s
            elif R == "A": bpos[(first[s] - 1, 8)] = s
            else: bpos[(first[s], 8)] = s
        def cap_left(j, i):
            n = k = 0
            while True:
                n += CAPS[i]; k += CAPS[i] > 0
                i += 1
                if i == 17: i = 0; j += 1
                if (j, i) in bpos or j > NT: return n, k
        extras = deque(); rds = deque(); lastk = [None]; later = deque()
        def beta(sg):
            while rds: rds.popleft()()
            if sg < 63:
                while extras: extras.popleft()()
            if sg + 1 < 64: e.wait_vm(("kv", sg + 1))
            if R == "C" and sg == 3:
                e.wait_all_vm()
                e.salu("s_cmp_lg_u32", None, g.sRETRY, 0)
                e.branch("s_cbranch_scc1", "6f")
                e.readfirstlane(sT, TG[0])
                e.salu("s_cmp_eq_u32", None, sT, 0)
                e.salu("s_cselect_b32", sT, S(72), sT)
                e.salu("s_mov_b32", sTAG, sT)
                e.valu("v_mov_b32", vT0, sT); e.valu("v_mov_b32", vT1, LFLAG)
                e.ds_write("ds_write_b32", vT1, vT0, 32)
                e.label("6")
            fb = cfg.fb and 4 <= sg < 60
            if fb and R == "C" and sg % 4 == 2:
                e.wait_vm("prg")
                e.vcmp("v_cmp_eq_u32", sM0, sTAG, PG[0]); e.vcmp("v_cmp_le_u32", "vcc", sTRIP, PG[1])
                e.salu("s_and_b32", sT, sM0[0], "vcc_lo"); e.salu("s_and_b32", sT, sT, "0xffff"); e.salu("s_bcnt1_i32_b32", sT, sT)
                e.valu("v_mov_b32", vT0, sT); e.valu("v_mov_b32", vT1, LFLAG)
                e.ds_write("ds_write_b32", vT1, vT0, 36)
            hook = 36 <= sg < 60 and sg % 4 == 0
            if hook:
                if R == "B": assert sg == 36 or "ost0" not in e.vm_q
                else: e.wait_all_vm()
            if R == "C" and sg == 63:
                while extras: extras.popleft()()
                e.wait_vm("fl0")
                flag_test(g.sHP)
                e.branch("s_cbranch_scc1", "L_poll0x")
                e.salu("s_cmp_lg_u32", None, g.sFAIL, 0)
                e.branch("s_cbranch_scc1", "L_poll0x")
                q_ = list(e.vm_q)
                poll(sF1, 0, "L_poll0", g.sHP)
                e.vm_q = q_
            if e.lds_q: e.wait_all_lds()
            if not cfg.dbg_hot & 2: e.barrier()
            for _ in range(cfg.trickle):
                if later and sg > 32: extras.extend(later.popleft())
            if fb and R == "C" and sg % 4 == 0:
                e.salu("s_add_u32", sTRIP, sTRIP, 1)
                e.valu("v_and_b32", vT2, 15, vL); e.valu("v_lshlrev_b32", vT2, 3, vT2)
                e.bload("buffer_load_dwordx2", PG, vT2, sWS, sPL, pol="sc1", tag="prg")
                e.valu("v_mov_b32", V(110), sTAG); e.valu("v_mov_b32", V(111), sTRIP); e.valu("v_mov_b32", vT1, sPS)
                e.salu("s_mov_b64", "exec", 1)
                e.bstore("buffer_store_dwordx2", V(110, 2), vT1, sWS, sPL, pol="sc1")
                e.salu("s_mov_b64", "exec", -1)
            if fb and R == "B" and sg % 4 == 2:
                e.valu("v_mov_b32", vT1, LFLAG)
                e.ds_read("ds_read_b32", vD1, vT1, 36)
            if fb and R == "B" and sg % 4 == 3:
                e.readfirstlane(sT, vD1)
                e.salu("s_cmp_ge_u32", None, sT, cfg.fb)
                e.salu("s_cselect_b64", "vcc", -1, 0)
            if R == "B" and not cfg.dbg_hot & 8:
                if 4 <= sg + cfg.la < 64: extras.extend(ld_items(sg + cfg.la))
            if R == "A" and sg in (33, 34): extras.extend(full_w_items(sg - 33))
            if sg == 2:
                e.salu("s_cmp_lg_u32", None, g.sRETRY, 0)
                e.branch("s_cbranch_scc1", "6f")
                for f in qf_reads(1, QA): f()
                e.lds_q = []
                e.label("6")
            if sg == 63: extras.extend(gw_items(2) + go_items(2) + gw_items(3) + go_items(3))
            if R == "A" and cfg.cw and sg % 4 == 0 and 4 <= sg % 32 < 28:
                e.salu("s_cmp_lg_u32", None, g.sCNT, cfg.cw_trip)
                e.branch("s_cbranch_scc1", "1f")
                q_ = list(e.vm_q)
                code_touch()
                e.vm_q = q_
                e.label("1")
            if R == "C":
                if hook:
                    e.salu("s_cmp_lg_u32", None, g.sCNT, cfg.sig_trip)
                    e.branch("s_cbranch_scc1", "1f")
                    read_fail(1)
                    e.salu("s_andn2_b32", g.sFAIL, sT, g.sRETRY)
                    e.salu("s_or_b32", sT, g.sFAIL, g.sPUB)
                    e.salu("s_cmp_lg_u32", None, sT, 0)
                    e.branch("s_cbranch_scc1", "1f")
                    flag_store(sF1, 0, g.sHP)
                    e.label("1")
                    if cfg.warm == 2:
                        e.salu("s_cmp_lg_u32", None, g.sCNT, cfg.warm_trip)
                        e.branch("s_cbranch_scc1", "2f")
                        for f in warm_items(): f()
                        e.label("2")
                if sg == cfg.pre_step:
                    flag_load(sF1, 0, "fl0")
                if sg == cfg.pre_step and cfg.warm == 1: extras.extend(warm_items())
                if cfg.warm == 3 and sg % cfg.warm_per == 0 and sg < 64: extras.extend(warm_items())
                if sg % 32 == 0 and sg and cfg.alt:
                    rds.append(lambda: e.ds_read("ds_read_b32", V(144), vD0, 8192, tag="x8"))
                    rds.extend([lambda D=D: e.ds_read("ds_read_b128", V(112 + 4 * D, 4), vD0, D * 1024, tag="x8") for D in range(8)])
            if sg + 1 < 64 and not cfg.dbg_hot & 4:
                kr = k_reads(sg + 1); rds.extend(kr); lastk[0] = kr[-1]
                if sg + 1 == 32: rds.extend(kb_reads())
        def slot(h, j):
            e.comment(f"slot")
            mf = []
            jq, jp = j + 1, j - 1
            if jq < NT:
                s, t = seq[jq]
                for kk in range(4):
                    for kt in range(2):
                        def m(kk=kk, kt=kt):
                            d = Sb[jq % 2][4 * kt:4 * kt + 4]
                            e.mfma16(d, Kf(s & 1, kt, kk), Qf(h, t, kk), d if kk else NM(h, t))
                        mf.append(m)
            else:
                mf += [None] * 8
            if jp >= 0:
                s2, t2 = seq[jp]
                acc = any(t_ == t2 for _, t_ in seq[:jp])
                for D in range(8):
                    mf.append(lambda D=D: e.mfma16(Oacc(t2, D), Vf(s2 & 1, D), Pb[jp % 2], Oacc(t2, D) if acc else 0))
                mf.append(lambda: e.mfma16(Lb[t2], ONES, Pb[jp % 2], Lb[t2] if acc else 0))
            else:
                mf += [None] * 9
            sm = 0 <= j < NT
            Sx, Px = Sb[j % 2], Pb[j % 2]
            E = lambda i: (lambda: e.valu("v_exp_f32", Sx[i], Sx[i])) if sm else None
            C = lambda i: (lambda: e.valu("v_cvt_pk_bf16_f32", Px[i], Sx[2 * i], Sx[2 * i + 1])) if sm else None
            base = [E(0), None, E(1), C(0), E(2), None, E(3), C(1), E(4), None, E(5), C(2), E(6), None, E(7), C(3), None]
            vre = deque()
            sfirst = [s_ for s_, j_ in first.items() if j_ == j and s_ > 0]
            if sfirst and 32 * h + sfirst[0] + 1 < 64 and not cfg.dbg_hot & 4: vre = deque(v_reads(32 * h + sfirst[0] + 1))
            if R == "A" and j == NT - 1 and cfg.alt:
                rds.extend([lambda D=D: e.ds_write("ds_write_b128", vD0, Oacc(2, D), D * 1024) for D in range(8)])
                rds.append(lambda: e.ds_write("ds_write_b32", vD0, Lb[2][0], 8192))
            for i in range(17):
                if (j, i) in bpos: beta(32 * h + bpos[(j, i)])
                if i == 0 and jq < NT and jq > 0 and seq[jq][1] == 0:
                    while lastk[0] in rds: rds.popleft()()
                    e.wait_lds("kf")
                if mf[i]: mf[i]()
                if 8 <= i < 16 and vre:
                    rds.append(vre.popleft()); rds.append(vre.popleft())
                if base[i]: base[i]()
                cap = CAPS[i] if sm else 2
                if CAPS[i]:
                    nq = len(rds) + len(vre) + min(len(extras), 20)
                    nxt = [s_ for s_, j_ in first.items() if j_ == j + 1]
                    if R == "A" and nxt and nxt[0] % 2 == 1 and i >= 8 and cfg.alt: nq += 16
                    left, k = cap_left(j, i)
                    left -= 3
                    if nq > left: cap += -(-(nq - left) // max(1, k - 1))
                for c in range(cap):
                    if rds and (not extras or c != 1): rds.popleft()()
                    elif extras: extras.popleft()()
        def epilogue(h):
            NE = 2 if R != ("C" if cfg.alt else "A") else 3
            LV = [V(32 + 2 * t, 2) for t in range(3)]
            bad = cfg.force_fallback >> h & 1
            if h == 0:
                e.valu("v_mov_b32", vT0, LFLAG)
                e.ds_read("ds_read_b32", TG[0], vT0, 32, tag="tg")
            e.salu("s_mov_b32", sT, hex(f2u(0.25 if bad else cfg.lthresh)))
            e.salu("s_mov_b64", sM0, 0)
            for t in range(NE): e.valu("v_accvgpr_read_b32", LV[t][0], Lb[t][0])
            if R == "C" and cfg.alt:
                e.wait_lds("x8")
                e.valu("v_add_f32", LV[2][0], LV[2][0], V(144))
            for t in range(NE):
                e.vcmp("v_cmp_nge_f32", sM1, sT, LV[t][0])
                e.salu("s_or_b64", sM0, sM0, sM1)
            for t in range(NE): e.valu("v_rcp_f32", LV[t][0], LV[t][0])
            e.salu("s_or_b32", sT, sM0[0], sM0[1])
            e.valu("v_mov_b32", vT0, sT)
            e.ds_write("ds_write_b32", vFLG, vT0, 16 * h)
            for t in range(NE): e.valu("v_mov_b32", LV[t][1], LV[t][0])
            if h == 0:
                e.salu("s_cmp_lg_u32", None, g.sPUB, 0)
                e.salu("s_cselect_b32", sM0[0], "0x40000000", g.sOB)
            if R == "C" and cfg.alt:
                for i in range(16): e.valu("v_pk_add_f32", V(224 + 2 * i, 2), V(224 + 2 * i, 2), V(112 + 2 * i, 2))
            if h == 1:
                g0 = deque(ga_reads(0) + gb_reads(0))
                for t in reversed(range(NE)):
                    for blk in reversed(range(4)):
                        for _ in range(4):
                            if g0: g0.popleft()()
                        o = V(160 + (t * 8 + 2 * blk) * 4, 8); d = OPK(t, blk)
                        for i in range(4): e.valu("v_pk_mul_f32", o[2 * i:2 * i + 2], o[2 * i:2 * i + 2], LV[t])
                        for i in reversed(range(4)): e.valu("v_cvt_pk_bf16_f32", d[i], o[2 * i], o[2 * i + 1])
                        if cfg.st_stage < 0:
                            if blk & 1: e.salu("s_add_u32", sT, sOB1, (blk >> 1) * 18432 + t * 2048)
                            e.bstore("buffer_store_dwordx4", d, vL16, sWS, sT, off=(blk & 1) * 1024, pol=cfg.ost_pol, tag="ost")
                return
            n = 0
            for bh in range(2):
                for t in range(NE):
                    for bl in range(2):
                        blk = 2 * bh + bl
                        o = V(160 + (t * 8 + 2 * blk) * 4, 8)
                        d = V(112 + 4 * n, 4)
                        n += 1
                        for i in range(4): e.valu("v_pk_mul_f32", o[2 * i:2 * i + 2], o[2 * i:2 * i + 2], LV[t])
                        for i in range(4): e.valu("v_cvt_pk_bf16_f32", d[i], o[2 * i], o[2 * i + 1])
                        e.ds_write("ds_write_b128", vOW, d, bh * 34816 + toff(t) * 2048 + bl * 1024)
                        st_ = [lambda bh=bh, t=t: e.salu("s_add_u32", sT, sM0[0], bh * 18432 + toff(t) * 2048),
                               lambda d=d, bl=bl: e.bstore("buffer_store_dwordx4", d, vL16, sWS, sT, off=bl * 1024, pol=cfg.ost_pol, tag="ost0")]
                        if cfg.trickle and n > cfg.trickle0: later.append(st_)
                        else:
                            for f in st_: f()
                        for _ in range(3):
                            if rds: rds.popleft()()
                            elif extras: extras.popleft()()
        for h in range(2):
            if h == 0:
                beta(0); rds.extend(v_reads(1))
            else: prepass(h)
            chunks = []; save = e.lines
            bounds = [-1] + [first[s] for s in range(cfg.chunk0, 32, 4)] + [NT + 1]
            for a_, b_ in zip(bounds[:-1], bounds[1:]):
                e.lines = []
                for j in range(a_, b_): slot(h, j)
                chunks.append(e.lines)
            e.lines = save
            i = 0; nl = 0
            while i < len(chunks):
                k = i
                while k + 1 < len(chunks) and chunks[k + 1] == chunks[i]: k += 1
                if k > i:
                    nl += 1; lab = f"L_loop_{R}{h}{nl}"
                    e.lines.append(f"    s_mov_b32 {g.sCNT}, {k - i + 1}")
                    e.lines.append(lab + ":")
                    e.lines += chunks[i]
                    e.lines += [f"    s_sub_u32 {g.sCNT}, {g.sCNT}, 1", f"    s_cmp_lg_u32 {g.sCNT}, 0", f"    s_cbranch_scc1 {lab}"]
                else:
                    e.lines += chunks[i]
                i = k + 1
            if h:
                while extras: extras.popleft()()
            stamp(4 if h else 12)
            epilogue(h)
            if h == 0:
                e.wait_lds("tg")
                e.readfirstlane(sTAG, TG[0])
                stamp(13)
        while extras: extras.popleft()()
        e.wait_vm("pre")
        e.wait_all_lds(); e.barrier()
        read_fail(2)
        e.salu("s_andn2_b32", sT, sT, g.sRETRY)
        e.salu("s_cmp_eq_u32", None, sT, 0)
        e.branch("s_cbranch_scc1", "L_gemm")
        read_fail(1)
        e.salu("s_cmp_eq_u32", None, sT, 0)
        e.salu("s_cselect_b32", g.sPUB, 1, 0)
        e.salu("s_mov_b32", g.sRETRY, -1)
        e.wait_all()
        kv_addr_init()
        for h in range(2):
            MX = [V(48 + t) for t in range(3)]
            for t in range(NTW): e.valu("v_mov_b32", MX[t], "0xff800000")
            e.salu("s_mov_b32", g.sCNT, 32)
            e.salu("s_xor_b32", g.sKP, g.sKVB0, h * 262144); e.salu("s_mov_b32", g.sLS, 0)
            e.label(f"L_max_{R}{h}")
            e.barrier()
            if R == "A":
                for f in kv4_items("m")[:12]: f()
                e.wait_all_vm()
            e.salu("s_add_u32", g.sKP, g.sKP, 8192)
            e.barrier()
            for f in k_reads(0): f()
            e.wait_all_lds()
            for t in range(NTW):
                for kk in range(4):
                    for kt in range(2):
                        d = Sb[0][4 * kt:4 * kt + 4]
                        e.mfma16(d, Kf(0, kt, kk), Qf(h, t, kk), d if kk else 0)
                for i in range(4): e.valu("v_max3_f32", MX[t], Sb[0][2 * i], Sb[0][2 * i + 1], MX[t])
            e.salu("s_sub_u32", g.sCNT, g.sCNT, 1)
            e.salu("s_cmp_lg_u32", None, g.sCNT, 0)
            e.branch("s_cbranch_scc1", f"L_max_{R}{h}")
            for t in range(NTW):
                for op in ("v_permlane32_swap_b32", "v_permlane16_swap_b32"):
                    e.valu("v_mov_b32", vT0, MX[t])
                    e.perm(op, vT0, MX[t])
                    e.valu("v_max_f32", MX[t], vT0, MX[t])
                for i in range(4): e.valu("v_sub_f32", NM(h, t)[i], 0, MX[t])
        e.barrier()
        kv4_setup()
        for f in kv4_items("m"): f()
        ld_setup()
        e.wait_all_vm(); e.barrier()
        for f in k_reads(0) + v_reads(0): f()
        e.wait_all_lds()
        e.flush_hazards(8)
        e.branch("s_branch", f"L_main_{R}")

    e.label("L_gemm")
    e.hist = []; e.lds_q = []; e.vm_q = ["ost"]
    stamp(5)
    e.vm_q = [("g", 2)] * 9 + [("g", 3)] * 9 + (["ost"] * 8 if cfg.st_stage < 0 else [])
    PS = cfg.poll_stage
    mark = [0]
    assert cfg.st_stage < cfg.sig_stage < PS and 6 <= PS <= 8 and (cfg.own_lds or cfg.sig_stage <= 4)
    def o2_items(kind, bh):
        def one(t, bl):
            if kind == "st":
                if bl == 0: e.salu("s_add_u32", sT, sOB1, bh * 18432 + t * 2048)
                e.bstore("buffer_store_dwordx4", OPK(t, 2 * bh + bl), vL16, sWS, sT, off=bl * 1024, pol=cfg.ost_pol, tag="ost")
            else:
                e.ds_write("ds_write_b128", vOW, OPK(t, 2 * bh + bl), bh * 34816 + t * 2048 + bl * 1024)
        def third():
            e.salu("s_cmp_lg_u32", None, sW, 3)
            e.branch("s_cbranch_scc1", "5f")
            q_ = (list(e.vm_q), list(e.lds_q))
            one(2, 0); one(2, 1)
            e.vm_q, e.lds_q = q_
            e.label("5")
        return [third] + [lambda t=t, bl=bl: one(t, bl) for t in range(2) for bl in range(2)]
    for st in range(16):
        e.comment(f"o-proj stage {st}")
        if st == cfg.sig_stage:
            if cfg.sig_drain: e.wait_all_vm()
            else: e.wait_vm("ost")
        if st == PS:
            e.salu("s_cmp_lg_u32", None, sW, 0)
            e.branch("s_cbranch_scc1", "L_poll1x")
            q_ = list(e.vm_q)
            e._wait(vm=len(e.vm_q) - mark[0])
            flag_test(g.sHP)
            e.branch("s_cbranch_scc1", "L_poll1x")
            poll(sF1, 32, "L_poll1", g.sHP)
            e.vm_q = q_
        if st + 1 < 16: e.wait_vm(("g", st + 1))
        if st:
            e.wait_all_lds(); e.barrier()
        if st == cfg.sig_stage:
            e.salu("s_cmp_lg_u32", None, sW, 3)
            e.branch("s_cbranch_scc1", "L_sig1")
            flag_store(sF1, 32, g.sHP)
            e.label("L_sig1")
            stamp(6)
        if st == PS: stamp(7)
        if st == 2: stamp(14)
        if cfg.gst and 1 <= st <= 11: stamp((1, 2, 3, 6, 7, 9, 10, 11, 12, 13, 14)[st - 1], True)
        fill = deque()
        if st == PS - 1:
            def fl1():
                e.salu("s_cmp_lg_u32", None, sW, 0)
                e.branch("s_cbranch_scc1", "7f")
                flag_load(sF1, 32, None); e.vm_q.pop()
                e.label("7")
                mark[0] = len(e.vm_q)
            fill.append(fl1)
        if st == PS:
            for s2 in range(10, st + 4): fill.extend(go_items(s2))
        if st == cfg.st_stage: fill.extend(o2_items("st", 0))
        if st == cfg.st_stage + cfg.st_split: fill.extend(o2_items("st", 1))
        if st + 4 < 16:
            if st + 4 in (8, 9) and cfg.own_lds: fill.extend(gw_items(st + 4) + o2_items("lds", st - 4))
            elif st + 4 < 10 or st >= PS: fill.extend(gwo_items(st + 4))
            else: fill.extend(gw_items(st + 4))
        rd = deque(ga_reads(st + 1) + gb_reads(st + 1)) if st + 1 < 16 else deque()
        mfs = [lambda qt=qt, kb=kb, ee=ee: e.mfma16(GC(qt, ee), GA(st & 1, kb * 2 + ee), GB(st & 1, qt * 2 + kb), GC(qt, ee) if (st or kb) else 0)
               for kb in range(2) for qt in range(9) for ee in range(2)]
        run_stage(mfs, rd, fill, span=20 if (st + 1 == cfg.sig_stage and cfg.sig_drain) else None)
    stamp(8)
    e.salu("s_mul_i32", sT, sW, 9216); e.salu("s_add_u32", g.sPB, g.sPB, sT)
    e.salu("s_lshl_b32", sT, sW, 8); e.salu("s_add_u32", sF2, sF2, sT)
    e.salu("s_mul_i32", sU0, g.sB, 144 * 2048); e.salu("s_lshl_b32", sT, g.sBR, 10); e.salu("s_add_u32", sU0, sU0, sT)
    e.salu("s_lshl_b32", sT, g.sHP, 8); e.salu("s_add_u32", sU0, sU0, sT); e.salu("s_lshl_b32", sT, sW, 6); e.salu("s_add_u32", sU0, sU0, sT)
    e.salu("s_mov_b32", sT1, "0xffff0000")
    for j in range(1, 4):
        e.salu("s_cmp_eq_u32", None, g.sHG, j)
        e.branch("s_cbranch_scc1", f"L_fin{j}")
    h1 = list(e.hist)
    for j in range(4):
        if j: e.label(f"L_fin{j}")
        e.hist = list(h1); e.vm_q = []; e.lds_q = []
        own = [qt for qt in range(9) if qt % 4 == j]
        flag_load(sF2, 0, "f2")
        for qt in range(9):
            if qt in own: continue
            o = V(112 + qt * 8, 8)
            for i in range(4): e.valu("v_cvt_pk_bf16_f32", o[i], o[2 * i], o[2 * i + 1])
            e.salu("s_add_u32", sT2, g.sPB, j * 36864 + qt * 1024)
            e.bstore("buffer_store_dwordx4", o[0:4], vL16, sWS, sT2, pol="sc1")
        e.wait_all_vm()
        flag_store(sF2, 0, g.sHG)
        stamp(9)
        flag_test(g.sHG)
        e.branch("s_cbranch_scc1", f"L_poll2{j}x")
        poll(sF2, 0, f"L_poll2{j}", g.sHG)
        stamp(10)
        PB = lambda s, n: V(184 + (s * 3 + n) * 4, 4)
        srcs = [s for s in range(4) if s != j]
        for n, qt in enumerate(own):
            for si, s in enumerate(srcs):
                e.salu("s_add_u32", sT2, g.sPB, s * 36864 + qt * 1024)
                e.bload("buffer_load_dwordx4", PB(si, n), vL16, sWS, sT2, pol="sc1", tag=(si, n))
        for n, qt in enumerate(own):
            o = V(112 + qt * 8, 8)
            for si in range(3):
                p = PB(si, n)
                e.wait_vm((si, n))
                for i in range(4):
                    e.valu("v_lshlrev_b32", vT0, 16, p[i]); e.valu("v_and_b32", vT1, sT1, p[i])
                    e.valu("v_add_f32", o[2 * i], o[2 * i], vT0); e.valu("v_add_f32", o[2 * i + 1], o[2 * i + 1], vT1)
            for i in range(4): e.valu("v_cvt_pk_bf16_f32", o[i], o[2 * i], o[2 * i + 1])
            e.salu("s_add_u32", sT2, sU0, qt * 32768)
            e.bstore("buffer_store_dwordx4", o[0:4], vST, sOUT, sT2, pol=cfg.out_pol)
        stamp(11)
        stamp_flush()
        e.other("s_endpgm")
    e.label("L_done")
    e.other("s_endpgm")
    e.label("L_end")

def generate(cfg, fn):
    e = Em()
    e.raw('.amdgcn_target "amdgcn-amd-amdhsa--gfx950"'); e.raw(".text")
    gen(e, cfg, NAME + "_kernel")
    top = ("; attention block in one launch: q-projection, attention, output projection; generated by dev/gen5.py\n"
           "; @launch grid=(256,1,1) block=(256,1,1) lds=163840\n")
    tail = '.section .rodata,"a"\n' + descriptor(NAME + "_kernel", 512, 102, 256)
    open(fn, "w").write(top + e.text() + tail)
    return e

if __name__ == "__main__":
    cfg = Cfg()
    fn = sys.argv[1] if len(sys.argv) > 1 else "k.s"
    for kv in sys.argv[2:]:
        k, v = kv.split("=", 1)
        cur = getattr(cfg, k)
        setattr(cfg, k, type(cur)(int(v)) if isinstance(cur, (bool, int)) and not isinstance(cur, float) else (float(v) if isinstance(cur, float) else v))
    e = generate(cfg, fn)
    print(fn, "lines", len(e.lines), "nop states", e.nops)
```

```python
import sys, struct
from collections import deque
from asmlib import *

NAME = "concat_heads__mha_block_cached__gqa_block_cached__near_ridge"
def f2u(x): return struct.unpack("<I", struct.pack("<f", x))[0]
QSCALE = 1.4426950408889634 / (128 ** 0.5)

class Cfg:
    kv_pol = "nt"
    xw_pol = ""
    wo_pol = ""
    lthresh = 2.0 ** 40
    force_fallback = 0
    stamps = False
    poll_sleep = 2
    kv0_stage = 13
    win = 11
    wing = 1
    win2 = 0
    dbg_tail = 0
    ost_pol = "sc1"
    chunk0 = 4
    swap = 1
    alt = 1
    out_pol = "sc1"
    rotmul = "0x9e3779b1"
    trickle = 0
    trickle0 = 3
    sig_trip = 5
    warm_trip = 3
    warm_w = 1
    qst = 0
    gst = 0
    st_split = 0
    sig_drain = 0
    own_lds = 0
    tagpos = 0
    plate = 2
    kv0_at = "7,9,11,13"
    l2pre = 0
    la = 4
    thin = 0
    l2pre_at = 13
    fb = 0
    open_trip = 1
    warm0 = -1
    warm_per = 4
    qov = 3
    kv0_rate = 2
    warm_o = 0
    warm_opol = "sc1"
    cw = 3
    cw_trip = 2
    sig1_step = 35
    pre_step = 61
    warm = 1
    dbg_hot = 0
    st_stage = -1
    sig_stage = 3
    poll_stage = 6
    probe = -2
    probe_a = 0
    probe_cyc = 0
    probe_wg = -1

OWS_BYTES = 16 * 64 * 18432
PWS_OFF = OWS_BYTES
PWS_BYTES = 64 * 16 * 9216
FLG_OFF = OWS_BYTES + PWS_BYTES
PRG_OFF = FLG_OFF + (64 + 256) * 256
WS_USED = PRG_OFF + 16 * 256
STAMP_OFF = 32 << 20
NSTAMP = 16

def descriptor(label, vgpr, sgpr, accum):
    return f""".p2align 6
.amdhsa_kernel {label}
  .amdhsa_next_free_vgpr {vgpr}
  .amdhsa_next_free_sgpr {sgpr}
  .amdhsa_accum_offset {accum}
  .amdhsa_group_segment_fixed_size 0
  .amdhsa_kernarg_size 104
  .amdhsa_user_sgpr_count 2
  .amdhsa_user_sgpr_kernarg_segment_ptr 1
  .amdhsa_system_sgpr_workgroup_id_x 1
.end_amdhsa_kernel
"""

def gen(e, cfg, label):
    e.raw(f".globl {label}"); e.raw(".p2align 8"); e.raw(f".type {label},@function"); e.label(label)
    sX, sWQ, sK, sV, sWS, sWO, sOUT, sDBG = (S(4 * i + 4, 4) for i in range(8))
    sLD = sX
    names = ("W XCD IDX T T1 T2 B HP HG BR KVB KP KO LS XS WS2 XL WL CNT RETRY SC ROT OB OKP WB OL PB FL1 FL2 SP WLG FAIL PUB KVB0").split()
    sr = {n: S(36 + i) for i, n in enumerate(names)}
    assert 36 + len(names) <= 70
    g = type("G", (), {"s" + n: r for n, r in sr.items()})
    sM0, sM1 = S(70, 2), S(72, 2)
    KARG = 76
    def kp(i): return S(KARG + 2 * i), S(KARG + 2 * i + 1)
    sW, sT, sT1, sT2 = g.sW, g.sT, g.sT1, g.sT2
    sU0, sU1 = S(76), S(77)
    sWBw, sOKw = S(79), S(80)
    sPC = S(82, 2)
    sPL, sTRIP, sPS = S(86), S(87), S(88)
    sF1, sF2 = S(84), S(85)
    sTAG = S(81)
    TG = V(108, 2)
    sSW2, sOB1 = S(3), S(78)
    vL, vL16, vT0, vT1, vT2 = V(1), V(2), V(3), V(4), V(5)
    KA = [V(6 + i) for i in range(4)]; VA = [V(10 + i) for i in range(8)]
    oK = [V(18 + i) for i in range(4)]; oV = [V(22 + i) for i in range(2)]
    oWo = [V(24 + i) for i in range(4)]
    XA = [V(28), V(29)]; WA = [V(30), V(31)]
    oLD = [V(28 + i) for i in range(4)]
    Sb = [V(32 + i * 8, 8) for i in range(2)]
    Pb = [V(48 + i * 4, 4) for i in range(2)]
    NM = lambda h, t: V(56 + (h * 3 + t) * 4, 4)
    oX = [V(56 + i) for i in range(5)]; oWQ = [V(61 + i) for i in range(4)]
    Kb = [V(80 + kk * 4, 4) for kk in range(4)]
    KBA, QA, QW = V(96), V(97), V(98)
    GWA = [V(99), V(100)]; GOA = [V(101), V(102)]; vST, vFLG, stamp_reg, vD0, vD1 = V(103), V(104), V(105), V(106), V(107)
    PG = V(28, 2)
    vOW = V(98)
    Oacc = lambda t, D: V(160 + (t * 8 + D) * 4, 4)
    OPK = lambda t, blk: V(208 + (t * 4 + blk) * 4, 4)
    QACC = lambda D, qt: V(112 + (qt * 4 + D) * 4, 4)
    XF = lambda buf, qt: A(buf * 36 + qt * 4, 4)
    WF = lambda buf, D: A(108 + buf * 16 + D * 4, 4)
    Qf = lambda h, t, kk: A((h * 12 + t * 4 + kk) * 4, 4)
    Lb = [A(96 + t * 4, 4) for t in range(3)]
    ONES = A(108, 4)
    Kf = lambda b, kt, kk: A(144 - b * 32 + (kt * 4 + kk) * 4, 4)
    Vf = lambda b, D: A(176 + b * 32 + D * 4, 4)
    GB = lambda buf, i: A((0 if buf else 112) + i * 4, 4)
    GA = lambda buf, i: A((72 if buf else 184) + i * 4, 4)
    GC = lambda qt, ee: V(112 + (qt * 2 + ee) * 4, 4)
    LQ = 65536; XS0, WS0 = LQ, LQ + 36864
    GSL = [69632, 104448, 0, 34816]; LFLAG = 163840 - 64

    pl = [0]
    def stamp(i, q=False):
        if cfg.qst and not q and i in (6, 7, 9, 10, 11, 12, 13, 14): return
        if cfg.gst and not q and i in (1, 2, 3, 6, 7, 9, 10, 11, 12, 13, 14): return
        if cfg.stamps:
            e.other("s_memrealtime s[74:75]"); e._wait(lg=0); e.lds_q = []
            e.ins(f"v_writelane_b32 {stamp_reg}, s74, {i}", 'valu', [], [stamp_reg])
            if cfg.probe_cyc:
                e.other("s_memtime s[74:75]"); e._wait(lg=0)
                e.ins(f"v_writelane_b32 {stamp_reg}, s74, {i + 16}", 'valu', [], [stamp_reg])
    def stamp_flush():
        if not cfg.stamps: return
        e.wait_all_vm(); stamp(NSTAMP - 1)
        if cfg.probe >= 0:
            pl[0] += 1
            e.nop(2)
            e.ins(f"v_readlane_b32 {sT1}, {stamp_reg}, {cfg.probe}", 'readlane', [stamp_reg], [sT1])
            e.nop(4)
            e.salu("s_cmp_eq_u32", None, sT1, 0)
            e.branch("s_cbranch_scc1", f"L_pe{pl[0]}")
            if cfg.probe_wg >= 0:
                e.salu("s_and_b32", sT, S(2), 7)
                e.salu("s_cmp_lg_u32", None, sT, cfg.probe_wg)
                e.branch("s_cbranch_scc1", f"L_pe{pl[0]}")
            o_ = 16 if cfg.probe_cyc else 0
            e.ins(f"v_readlane_b32 {sT1}, {stamp_reg}, {cfg.probe + o_}", 'readlane', [stamp_reg], [sT1])
            e.ins(f"v_readlane_b32 {sT2}, {stamp_reg}, {cfg.probe_a + o_}", 'readlane', [stamp_reg], [sT2])
            e.ins(f"v_readlane_b32 {sT}, {stamp_reg}, 0", 'readlane', [stamp_reg], [sT])
            e.nop(4)
            e.salu("s_sub_u32", sT1, sT1, sT2)
            if cfg.probe_cyc: e.salu("s_lshr_b32", sT1, sT1, 4)
            e.salu("s_add_u32", sT1, sT1, sT)
            e.salu("s_add_u32", sT1, sT1, 12000)
            e.label(f"L_pr{pl[0]}")
            e.other("s_memrealtime s[74:75]"); e._wait(lg=0)
            e.salu("s_sub_u32", sT, S(74), sT1)
            e.salu("s_cmp_lt_i32", None, sT, 0)
            e.branch("s_cbranch_scc1", f"L_pr{pl[0]}")
            e.label(f"L_pe{pl[0]}")
            return
        e.salu("s_lshl_b32", sT, S(2), 2); e.salu("s_add_u32", sT, sT, sW); e.salu("s_lshl_b32", sT, sT, 8)
        e.salu("s_add_u32", sT, sT, STAMP_OFF)
        e.valu("v_lshlrev_b32", vT0, 2, vL)
        e.bstore("buffer_store_dword", stamp_reg, vT0, sWS, sT)

    e.salu("s_cmp_ge_u32", None, S(2), 256)
    e.branch("s_cbranch_scc1", "L_done")
    e.other(f"s_load_dwordx16 s[{KARG}:{KARG+15}], s[0:1], 0")
    e.other(f"s_load_dwordx8 s[{KARG+16}:{KARG+23}], s[0:1], 64")
    e.other(f"s_load_dwordx2 s[{KARG+24}:{KARG+25}], s[0:1], 96")
    e.other("s_memrealtime s[72:73]")
    e.valu("v_lshrrev_b32", vT0, 6, V(0))
    e.valu("v_and_b32", vL, 63, V(0))
    e.readfirstlane(sW, vT0)
    if cfg.stamps: e.valu("v_mov_b32", stamp_reg, 0)
    e.salu("s_and_b32", g.sXCD, S(2), 7)
    e.salu("s_lshr_b32", g.sIDX, S(2), 3)
    e.salu("s_lshr_b32", g.sB, g.sIDX, 2); e.salu("s_and_b32", g.sHP, g.sIDX, 3)
    e.salu("s_and_b32", g.sHG, g.sXCD, 3); e.salu("s_lshr_b32", g.sBR, g.sXCD, 2)
    e.valu("v_lshlrev_b32", vL16, 4, vL)
    e.valu("v_lshrrev_b32", vT1, 4, vL); e.valu("v_lshrrev_b32", vT0, 3, vL)
    e.salu("s_lshl_b32", sT, g.sHP, 1); e.salu("s_add_u32", sT, sT, g.sB); e.salu("s_and_b32", sT, sT, 7)
    e.salu("s_lshl_b32", g.sXS, sT, 7); e.salu("s_lshl_b32", g.sWS2, sT, 19)
    e.salu("s_mul_i32", sT, sW, 9); e.salu("s_lshr_b32", sT, sT, 1)
    e.salu("s_lshl_b32", g.sOL, sT, 10); e.salu("s_add_u32", g.sXL, g.sOL, XS0)
    e.salu("s_mul_i32", sT1, g.sB, 147456); e.salu("s_lshl_b32", sT2, sT, 13); e.salu("s_add_u32", sT1, sT1, sT2)
    e.salu("s_and_b32", sT, sT, 1); e.salu("s_lshl_b32", sT, sT, 6)
    e.valu("v_and_b32", vT2, 7, vL); e.valu("v_xor_b32", vT2, vT2, vT1); e.valu("v_lshlrev_b32", vT2, 4, vT2)
    e.valu("v_lshl_add_u32", vT2, vT0, 10, vT2); e.valu("v_xor_b32", vT2, sT, vT2)
    e.valu("v_add_u32", oX[0], sT1, vT2); e.valu("v_xor_b32", vT2, 64, oX[0])
    for i in range(1, 5): e.valu("v_add_u32", oX[i], i * 8192 - (i % 3) * 1024, vT2 if i & 1 else oX[0])
    e.salu("s_lshl_b32", sT1, g.sHG, 11); e.salu("s_lshl_b32", sT2, g.sHP, 9); e.salu("s_add_u32", sT1, sT1, sT2)
    e.salu("s_lshl_b32", sT2, sW, 7); e.salu("s_add_u32", sT1, sT1, sT2)
    e.valu("v_and_b32", vT2, 1, vT1); e.valu("v_lshlrev_b32", vT2, 2, vT2)
    e.valu("v_and_b32", oWQ[0], 7, vL); e.valu("v_xor_b32", vT2, oWQ[0], vT2); e.valu("v_lshlrev_b32", vT2, 4, vT2)
    e.valu("v_lshl_add_u32", vT2, vT0, 13, vT2); e.valu("v_add_u32", oWQ[0], sT1, vT2)
    for i in range(1, 4): e.valu("v_add_u32", oWQ[i], i * (65536 - 1024), oWQ[0])
    e.salu("s_lshl_b32", g.sWLG, sW, 12); e.salu("s_add_u32", g.sWL, g.sWLG, WS0)
    e._wait(lg=0)
    e.salu("s_cmp_lg_u32", None, g.sBR, 0)
    def srd(d, a, b, size):
        if b is None:
            e.salu("s_mov_b32", d[0], kp(a)[0]); e.salu("s_mov_b32", d[1], kp(a)[1])
        else:
            e.salu("s_cselect_b32", d[0], kp(b)[0], kp(a)[0]); e.salu("s_cselect_b32", d[1], kp(b)[1], kp(a)[1])
        e.salu("s_mov_b32", d[2], hex(size)); e.salu("s_mov_b32", d[3], "0x20000")
    srd(sX, 0, 5, 8 * 147456); srd(sWQ, 3, 8, 512 * 8192)
    srd(sK, 1, 6, 1 << 26); srd(sV, 2, 7, 1 << 26); srd(sWO, 4, 9, 4096 * 1024)
    srd(sDBG, 11, None, 256)
    def tag_propose():
        e.salu("s_cmp_lg_u32", None, sW, 3)
        e.branch("s_cbranch_scc1", "1f")
        e.salu("s_or_b32", S(72), S(72), 1)
        e.salu("s_lshl_b32", sT, g.sBR, 3); e.salu("s_add_u32", sT, sT, g.sB); e.salu("s_lshl_b32", sT, sT, 4)
        e.valu("v_mov_b32", TG[0], S(72)); e.valu("v_mov_b32", TG[1], 0); e.valu("v_mov_b32", V(110), 0)
        e.salu("s_mov_b64", "exec", 1)
        e.ins(f"buffer_atomic_cmpswap {TG}, v110, {sDBG}, {sT} offen sc0 sc1", 'vmem', [TG, V(110), sDBG, sT], [TG[0]])
        e.salu("s_mov_b64", "exec", -1)
        e.label("1")
    if cfg.tagpos == 0: tag_propose()
    stamp(0)

    def x_items(D, part, tag):
        its = [lambda: e.salu("s_add_u32", "m0", g.sXL, (D & 1) * 18432 + part * 3072)]
        for i in range(3 * part, min(5, 3 * part + 3)):
            its.append(lambda i=i: e.dma(oX[i], sX, g.sXS, off=(i % 3) * 1024, pol=cfg.xw_pol, tag=tag))
        if part == 1:
            its.append(lambda: e.salu("s_add_u32", g.sXS, g.sXS, 128))
            its.append(lambda: e.salu("s_and_b32", g.sXS, g.sXS, 1023))
        return its
    def w_items(st, tag):
        its = [lambda: e.salu("s_add_u32", "m0", g.sWL, (st % 3) * 16384)]
        for i in range(4):
            its.append(lambda i=i: e.dma(oWQ[i], sWQ, g.sWS2, off=i * 1024, pol=cfg.xw_pol, tag=tag))
        its.append(lambda: e.salu("s_add_u32", g.sWS2, g.sWS2, 1 << 18))
        its.append(lambda: e.salu("s_and_b32", g.sWS2, g.sWS2, "0x3fffff"))
        return its
    pro = [w_items(0, "p0") + x_items(0, 0, "p0") + x_items(0, 1, "p0"), w_items(1, "p1"), x_items(1, 0, "p2") + x_items(1, 1, "p2") + w_items(2, "p2")]
    for f in pro[0]: f()
    if not cfg.plate:
        for f in pro[1] + pro[2]: f()
    if cfg.tagpos == 1: tag_propose()

    if cfg.qst: stamp(12, True)
    srd(sWS, 12, None, 64 << 20 if cfg.stamps else WS_USED); srd(sOUT, 10, None, 8 * 144 * 2048)
    e.salu("s_lshl_b32", sT, g.sHG, 3); e.salu("s_lshl_b32", sT1, g.sHP, 1); e.salu("s_add_u32", sT, sT, sT1)
    e.salu("s_lshl_b32", g.sKVB0, g.sB, 5); e.salu("s_add_u32", g.sKVB0, g.sKVB0, sT); e.salu("s_lshl_b32", g.sKVB0, g.sKVB0, 18)
    e.salu("s_lshl_b32", sT1, g.sBR, 3); e.salu("s_add_u32", sT1, sT1, g.sB)
    e.salu("s_lshl_b32", sT2, sT1, 5); e.salu("s_add_u32", sT2, sT2, sT); e.salu("s_mul_i32", g.sOB, sT2, 36864)
    e.salu("s_add_u32", g.sOB, g.sOB, g.sWLG)
    if cfg.swap == 1: e.salu("s_xor_b32", sSW2, g.sB, g.sHG)
    elif cfg.swap == 2:
        e.salu("s_lshr_b32", sSW2, g.sB, 1); e.salu("s_xor_b32", sSW2, sSW2, g.sB); e.salu("s_lshr_b32", sT2, g.sHG, 1); e.salu("s_xor_b32", sSW2, sSW2, sT2)
    e.salu("s_and_b32", sSW2, sSW2, 1 if cfg.swap else 0)
    e.salu("s_lshl_b32", sT2, sSW2, 18); e.salu("s_add_u32", g.sKVB0, g.sKVB0, sT2)
    e.salu("s_mul_i32", sT2, sSW2, 36864); e.salu("s_add_u32", sOB1, g.sOB, 36864); e.salu("s_sub_u32", sOB1, sOB1, sT2); e.salu("s_add_u32", g.sOB, g.sOB, sT2)
    e.salu("s_lshl_b32", sSW2, sSW2, 1)
    if cfg.dbg_tail & 1: e.salu("s_mov_b32", sOB1, "0x40000000")
    e.salu("s_lshl_b32", sT2, sT1, 2); e.salu("s_add_u32", g.sFL1, sT2, g.sHG); e.salu("s_add_u32", g.sFL2, sT2, g.sHP)
    e.salu("s_mul_i32", g.sOKP, g.sFL1, 16 * 18432)
    e.salu("s_mul_i32", g.sPB, g.sFL2, 16 * 9216); e.salu("s_add_u32", g.sPB, g.sPB, PWS_OFF)
    e.salu("s_lshl_b32", sF1, g.sFL1, 8); e.salu("s_add_u32", sF1, sF1, FLG_OFF)
    e.salu("s_lshl_b32", sF2, g.sFL2, 10); e.salu("s_add_u32", sF2, sF2, FLG_OFF + 64 * 256)
    e.salu("s_lshl_b32", sPL, sT1, 8); e.salu("s_add_u32", sPL, sPL, PRG_OFF)
    e.salu("s_lshl_b32", sPS, g.sHG, 2); e.salu("s_add_u32", sPS, sPS, g.sHP); e.salu("s_lshl_b32", sPS, sPS, 3)
    e.salu("s_mov_b32", sTRIP, 0)
    e.salu("s_lshl_b32", g.sWB, g.sHG, 20); e.salu("s_lshl_b32", sT, g.sHP, 8); e.salu("s_add_u32", g.sWB, g.sWB, sT)
    e.salu("s_lshl_b32", sT, sW, 14); e.salu("s_add_u32", sWBw, g.sWB, sT)
    e.salu("s_add_u32", sOKw, g.sOKP, g.sOL)
    if cfg.dbg_tail & 2: e.salu("s_mov_b32", sOKw, "0x40000000"); e.salu("s_mov_b32", sWBw, "0x40000000")
    if cfg.dbg_tail & 4: e.salu("s_mov_b32", g.sOKP, "0x40000000"); e.salu("s_mov_b32", g.sWB, "0x40000000")
    e.other(f"s_getpc_b64 {sPC}")
    e.label("L_pc")
    e.salu("s_mul_i32", g.sROT, S(2), cfg.rotmul); e.salu("s_lshr_b32", g.sROT, g.sROT, 27); e.salu("s_lshl_b32", g.sROT, g.sROT, 13)
    e.salu("s_mov_b32", g.sRETRY, 0); e.salu("s_mov_b32", g.sPUB, 0)
    e.salu("s_mov_b32", g.sSC, hex(f2u(QSCALE)))
    e.valu("v_and_b32", vT0, 15, vL); e.valu("v_lshrrev_b32", vT1, 4, vL)
    e.valu("v_xor_b32", vT2, vT0, vT1)
    e.valu("v_lshlrev_b32", vT2, 4, vT2); e.valu("v_lshl_add_u32", oK[0], vT1, 8, vT2)
    for n in range(1, 4): e.valu("v_xor_b32", oK[n], n << 6, oK[0])
    e.valu("v_lshlrev_b32", vT2, 1, vT1); e.valu("v_xor_b32", vT2, vT0, vT2)
    e.valu("v_lshlrev_b32", vT2, 4, vT2); e.valu("v_lshl_add_u32", oV[0], vT1, 8, vT2)
    e.valu("v_xor_b32", oV[1], 128, oV[0])
    e.valu("v_lshlrev_b32", vT2, 2, vT1); e.valu("v_xor_b32", vT2, vT0, vT2)
    e.valu("v_lshlrev_b32", vT2, 4, vT2); e.valu("v_lshl_add_u32", oWo[0], vT1, 10, vT2)
    for i in range(1, 4): e.valu("v_add_u32", oWo[i], i * 3072, oWo[0])
    def kv_addr_init():
        e.valu("v_and_b32", vT0, 15, vL); e.valu("v_lshrrev_b32", vT1, 4, vL)
        e.valu("v_xor_b32", vT2, vT0, vT1); e.valu("v_lshlrev_b32", vT2, 4, vT2)
        e.valu("v_lshl_add_u32", KA[0], vT0, 8, vT2)
        for kk in range(1, 4): e.valu("v_xor_b32", KA[kk], kk << 6, KA[0])
        e.valu("v_lshlrev_b32", KBA, 4, vT1)
        e.valu("v_lshrrev_b32", vT0, 2, vL)
        e.valu("v_and_b32", vT2, 7, vT0); e.valu("v_lshlrev_b32", vT2, 5, vT2)
        e.valu("v_lshl_add_u32", vT2, vT0, 8, vT2)
        e.valu("v_and_b32", vT0, 3, vL); e.valu("v_lshl_add_u32", vT2, vT0, 3, vT2)
        e.valu("v_add_u32", VA[0], 8192, vT2)
        for D in range(1, 8): e.valu("v_xor_b32", VA[D], D << 5, VA[0])
    kv_addr_init()
    e.valu("v_and_b32", vT0, 15, vL)
    e.valu("v_lshrrev_b32", vT2, 1, vT0); e.valu("v_xor_b32", vT2, vT2, vT1); e.valu("v_lshlrev_b32", vT2, 4, vT2)
    e.valu("v_lshl_add_u32", vT2, vT0, 7, vT2); e.valu("v_add_u32", XA[0], XS0, vT2); e.valu("v_xor_b32", XA[1], 64, XA[0])
    e.valu("v_lshlrev_b32", vST, 11, vT0); e.valu("v_lshl_add_u32", vST, vT1, 4, vST)
    e.valu("v_lshrrev_b32", vT0, 2, vL); e.valu("v_and_b32", vT0, 3, vT0)
    e.valu("v_lshl_add_u32", vT2, vT1, 3, vT0); e.valu("v_lshlrev_b32", vT2, 7, vT2)
    e.valu("v_lshrrev_b32", WA[1], 1, vT0); e.valu("v_lshl_add_u32", vT2, WA[1], 6, vT2)
    e.valu("v_and_b32", WA[1], 3, vL); e.valu("v_lshl_add_u32", vT2, WA[1], 4, vT2)
    e.valu("v_add_u32", WA[0], g.sWL, vT2); e.valu("v_xor_b32", WA[1], 64, WA[0])
    e.valu("v_xor_b32", vT0, sW, vT0); e.valu("v_lshlrev_b32", vT0, 6, vT0)
    e.valu("v_and_b32", vT2, 3, vL); e.valu("v_lshl_add_u32", vT0, vT2, 4, vT0)
    e.valu("v_lshrrev_b32", vT2, 2, vL); e.valu("v_lshl_add_u32", GWA[1], vT2, 8, vT0)
    e.valu("v_add_u32", GWA[0], GSL[0], GWA[1])
    e.valu("v_add_u32", GOA[1], 16384, vL16); e.valu("v_add_u32", GOA[0], GSL[0] + 16384, vL16)
    e.salu("s_lshr_b32", sT1, sW, 1); e.salu("s_mul_i32", sT1, sT1, 36864)
    e.salu("s_and_b32", sT2, sW, 1); e.salu("s_lshl_b32", sT2, sT2, 11); e.salu("s_add_u32", sT2, sT2, sT1); e.salu("s_add_u32", sT2, sT2, LQ)
    e.valu("v_add_u32", QW, sT2, vL16)
    e.salu("s_lshl_b32", sT2, sW, 13); e.salu("s_add_u32", sT2, sT2, LQ)
    e.valu("v_add_u32", QA, sT2, vL16)
    e.salu("s_lshl_b32", sT2, sW, 2); e.salu("s_add_u32", sT2, sT2, LFLAG)
    e.valu("v_mov_b32", vFLG, sT2)

    def kv4_setup():
        e.salu("s_lshl_b32", sT, sW, 13); e.salu("s_add_u32", g.sKP, g.sROT, sT); e.salu("s_and_b32", g.sKP, g.sKP, "0x3ffff")
        e.salu("s_add_u32", g.sKP, g.sKP, g.sKVB0); e.salu("s_lshl_b32", g.sLS, sW, 14)
    def kv4_items(tag, base=None):
        its = []
        for srd_, voff, b_ in ((sK, oK, 0), (sV, oV, 8192)):
            for n in range(8):
                if n % 4 == 0:
                    its.append(lambda n=n, b_=b_: e.salu("s_add_u32", "m0", g.sLS, b_ + n * 1024))
                    its.append(lambda n=n: e.salu("s_add_u32", g.sKO, g.sKP, n * 1024))
                its.append(lambda n=n, srd_=srd_, voff=voff: e.dma(voff[n % len(voff)], srd_, g.sKO, off=(n & 3) * 1024, pol=cfg.kv_pol, tag=tag))
        return its
    oKq = [V(32), V(33)]
    def kvq_setup():
        e.salu("s_and_b32", sT, sW, 1); e.salu("s_lshl_b32", sT, sT, 7)
        e.valu("v_xor_b32", oKq[0], sT, oK[0]); e.valu("v_xor_b32", oKq[1], sT, oK[1])
        e.salu("s_lshl_b32", g.sLS, sW, 11); e.salu("s_add_u32", g.sKVB, g.sKVB0, g.sLS); e.salu("s_mov_b32", g.sKP, g.sROT)
    def kvq_items(step):
        its = [lambda: e.salu("s_add_u32", "m0", g.sLS, step * 16384), lambda: e.salu("s_add_u32", g.sKO, g.sKVB, g.sKP)]
        its += [lambda i=i: e.dma(oKq[i], sK, g.sKO, off=i * 1024, pol=cfg.kv_pol, tag=("kv", step)) for i in range(2)]
        its += [lambda: e.salu("s_add_u32", "m0", g.sLS, step * 16384 + 8192), lambda: e.salu("s_add_u32", g.sKP, g.sKP, 8192)]
        its += [lambda i=i: e.dma(oV[i], sV, g.sKO, off=i * 1024, pol=cfg.kv_pol, tag=("kv", step)) for i in range(2)]
        its += [lambda: e.salu("s_and_b32", g.sKP, g.sKP, "0x3ffff")]
        return its
    kvq_setup()
    def window():
        if cfg.win2:
            e.branch("s_cbranch_vccnz", "4f")
            e._wait(vm=cfg.win2 - cfg.wing)
            e.label("4")
        if cfg.win and len(e.vm_q) > cfg.win - cfg.wing:
            n = cfg.win - cfg.wing
            e._wait(vm=n); e.vm_q = e.vm_q[len(e.vm_q) - n:]
    def ld_setup():
        e.salu("s_cmp_eq_u32", None, sW, 2)
        e.salu("s_cselect_b32", sLD[0], sV[0], sK[0]); e.salu("s_cselect_b32", sLD[1], sV[1], sK[1])
        e.salu("s_mov_b32", sLD[2], hex(1 << 26)); e.salu("s_mov_b32", sLD[3], "0x20000")
        e.salu("s_cselect_b32", g.sLS, 8192, 0)
        e.salu("s_cselect_b64", "vcc", -1, 0)
        e.nop(2)
        for n in range(4): e.ins(f"v_cndmask_b32 {oLD[n]}, {oK[n]}, {oV[n & 1]}, vcc", 'valu', [oK[n], oV[n & 1], 'vcc'], [oLD[n]])
        e.salu("s_add_u32", g.sKP, g.sROT, 4 * 8192); e.salu("s_and_b32", g.sKP, g.sKP, "0x3ffff")
        e.salu("s_mov_b32", g.sKVB, g.sKVB0)
        if cfg.win2:
            e.salu("s_mov_b64", "vcc", 0)
    def ld_items(step):
        its = []
        if step == 32: its.append(lambda: e.salu("s_xor_b32", g.sKVB, g.sKVB, 262144))
        for n in range(8):
            if n == 0:
                its.append(lambda: e.salu("s_add_u32", "m0", g.sLS, (step & 3) * 16384)); its.append(lambda: e.salu("s_add_u32", g.sKO, g.sKVB, g.sKP))
            if n == 4:
                its.append(lambda: e.salu("s_add_u32", "m0", g.sLS, (step & 3) * 16384 + 4096)); its.append(lambda: e.salu("s_add_u32", g.sKO, g.sKO, 4096))
            if n % cfg.wing == 0: its.append(window)
            its.append(lambda n=n: e.dma(oLD[n & 3], sLD, g.sKO, off=(n & 3) * 1024, pol=cfg.kv_pol, tag=("kv", step)))
        its.append(lambda: e.salu("s_add_u32", g.sKP, g.sKP, 0 if cfg.dbg_hot else 8192)); its.append(lambda: e.salu("s_and_b32", g.sKP, g.sKP, "0x3ffff"))
        return its
    def k_reads(step):
        return [lambda kk=kk, kt=kt: e.ds_read("ds_read_b128", Kf(step & 1, kt, kk), KA[kk], (step & 3) * 16384 + kt * 4096, tag="kf")
                for kk in range(4) for kt in range(2)]
    def v_reads(step):
        return [lambda D=D, hi=hi: e.ds_read("ds_read_b64_tr_b16", Vf(step & 1, D)[2 * hi:2 * hi + 2], VA[D], (step & 3) * 16384 + hi * 4096, tag="vf")
                for D in range(8) for hi in range(2)]
    def kb_reads():
        return [lambda kk=kk: e.ds_read("ds_read_b128", Kb[kk], KBA, kk * 64, tag="kf") for kk in range(4)]
    def w_reads(st):
        return [lambda D=D, hi=hi: e.ds_read("ds_read_b64_tr_b16", WF(st & 1, D)[2 * hi:2 * hi + 2], WA[D >> 1],
                                            (st % 3) * 16384 + hi * 512 + (D & 1) * 8, tag="qf") for D in range(4) for hi in range(2)]
    def x_reads(D):
        return [lambda qt=qt, kh=kh: e.ds_read("ds_read_b128", XF((2 * D + kh) % 3, qt), XA[kh], (D & 1) * 18432 + qt * 2048, tag="qf")
                for kh in range(2) for qt in range(9)]
    def run_stage(mfs, rd, fill, span=None):
        nf, n, done = len(fill), span or len(mfs), 0
        for i, m in enumerate(mfs):
            m()
            if rd: rd.popleft()()
            while fill and done * n <= i * nf:
                fill.popleft()(); done += 1
        while rd: rd.popleft()()
        while fill: fill.popleft()()
    GORD = [(dp, 0, i) for dp in range(4) for i in range(2)] + [(0, 1, 0), (0, 1, 1)] + [(dp, 1, i) for i in range(2) for dp in (1, 2, 3)]
    def kpl_items(st, dst):
        dp, h, i = GORD[st]
        return [lambda: e.salu("s_add_u32", dst, g.sHP, dp), lambda: e.salu("s_and_b32", dst, dst, 3),
                lambda: e.salu("s_lshl_b32", dst, dst, 2), lambda: e.salu("s_add_u32", dst, dst, 2 * h + i),
                lambda: e.salu("s_xor_b32", dst, dst, sSW2)]
    def ga_reads(st):
        return [lambda kb=kb, ee=ee, hi=hi: e.ds_read("ds_read_b64_tr_b16", GA(st & 1, kb * 2 + ee)[2 * hi:2 * hi + 2], GWA[st >> 1 & 1],
                                                     (st & 1) * 34816 + kb * 8192 + hi * 4096 + ee * 8, tag="g") for kb in range(2) for ee in range(2) for hi in range(2)]
    def gb_reads(st):
        return [lambda i=i: e.ds_read("ds_read_b128", GB(st & 1, i), GOA[st >> 1 & 1], (st & 1) * 34816 + i * 1024, tag="g") for i in range(18)]
    def full_w_items(st):
        its = kpl_items(st, sU1)
        its += [lambda: e.salu("s_lshl_b32", sU1, sU1, 16), lambda: e.salu("s_add_u32", sU1, sU1, g.sWB)]
        for n in range(16):
            if n % 4 == 0:
                its.append(lambda n=n: e.salu("s_mov_b32", "m0", GSL[st % 4] + n * 1024))
                if n: its.append(lambda: e.salu("s_add_u32", sU1, sU1, 16384))
            its.append(lambda n=n: e.dma(oWo[n & 3], sWO, sU1, off=(n & 3) * 1024, pol=cfg.wo_pol, tag="pre"))
        return its
    def gw_items(st):
        its = kpl_items(st, sU1)
        its += [lambda: e.salu("s_lshl_b32", sU1, sU1, 16), lambda: e.salu("s_add_u32", sU1, sU1, sWBw),
                lambda: e.salu("s_add_u32", "m0", g.sWLG, GSL[st % 4])]
        for i in range(4): its.append(lambda i=i: e.dma(oWo[i], sWO, sU1, off=i * 1024, pol=cfg.wo_pol, tag=("g", st)))
        return its
    def go_items(st):
        its = kpl_items(st, sU0)
        its += [lambda: e.salu("s_mul_i32", sU0, sU0, 18432), lambda: e.salu("s_add_u32", sU0, sU0, sOKw),
                lambda: e.salu("s_add_u32", "m0", g.sOL, GSL[st % 4] + 16384)]
        for i in range(4): its.append(lambda i=i: e.dma(vL16, sWS, sU0, off=i * 1024, pol="sc1", tag=("g", st)))
        its += [lambda: e.salu("s_add_u32", "m0", g.sOL, GSL[st % 4] + 16384 + 4096), lambda: e.salu("s_add_u32", sU0, sU0, 4096),
                lambda: e.dma(vL16, sWS, sU0, pol="sc1", tag=("g", st))]
        return its
    def gwo_items(st):
        w = gw_items(st); o = go_items(st)
        return o[:5] + [lambda: e.salu("s_lshl_b32", sU1, sU0, 16)] + o[5:] + w[6:]
    def code_touch():
        e.salu("s_lshl_b32", sT, g.sIDX, 12)
        e.valu("v_lshlrev_b32", V(109), 6, vL)
        e.valu("v_add_u32", V(109), sT, V(109))
        e.valu("v_min_u32", V(109), "L_end-L_pc-4", V(109))
        e.ins(f"v_add_co_u32 v110, vcc, {sPC[0]}, v109", 'valu', [V(109)], [V(110), 'vcc'])
        e.valu("v_mov_b32", V(111), sPC[1])
        e.ins(f"v_addc_co_u32 v111, vcc, 0, v111, vcc", 'valu', [V(111), 'vcc'], [V(111), 'vcc'])
        e.ins(f"global_load_dword {vD1}, v[110:111], off", 'vmem', [V(110, 2)], [vD1]); e.vm_q.append("cw")
    def warm_items():
        its = [lambda: e.salu("s_lshl_b32", sU0, g.sHG, 5), lambda: e.salu("s_add_u32", sU0, sU0, g.sIDX), lambda: e.salu("s_lshl_b32", sU0, sU0, 15),
               lambda: e.valu("v_lshlrev_b32", vT2, 7, vL)]
        for n in range(4):
            if n: its.append(lambda: e.salu("s_add_u32", sU0, sU0, 8192))
            its.append(lambda n=n: e.bload("buffer_load_dword", vD1, vT2, sWO, sU0, pol=cfg.wo_pol, tag="pre"))
        if not cfg.warm_w: its = []
        its += [lambda: e.salu("s_sub_u32", sU0, g.sOB, g.sWLG), lambda: e.valu("v_lshlrev_b32", vT2, 7, vL)]
        for n in range(5 if cfg.warm_o else 0):
            if n: its.append(lambda n=n: e.salu("s_add_u32", sU0, sU0, 8192 if n < 4 else 4096))
            its.append(lambda: e.bload("buffer_load_dword", vD1, vT2, sWS, sU0, pol=cfg.warm_opol, tag="pre"))
        return its
    def atomic_add(flag, val):
        e.valu("v_mov_b32", vT0, val); e.valu("v_mov_b32", vT1, 0)
        e.salu("s_mov_b64", "exec", 1)
        e.ins(f"buffer_atomic_add {vT0}, {vT1}, {sDBG}, {flag} offen sc1", 'vmem', [vT0, vT1, sDBG, flag], [])
        e.salu("s_mov_b64", "exec", -1)
    def flag_store(line, off, who):
        e.salu("s_lshl_b32", sT, who, 3)
        e.valu("v_mov_b32", V(110), sTAG); e.valu("v_not_b32", V(111), sTAG); e.valu("v_mov_b32", vT1, sT)
        e.salu("s_mov_b64", "exec", 1)
        e.ins(f"buffer_store_dwordx2 v[110:111], {vT1}, {sWS}, {line} offen offset:{off} sc1", 'vmem', [V(110, 2), vT1, sWS, line], [])
        e.salu("s_mov_b64", "exec", -1)
    def flag_load(line, off, tag):
        e.valu("v_and_b32", vT2, 3, vL); e.valu("v_lshlrev_b32", vT2, 3, vT2)
        e.bload("buffer_load_dwordx2", TG, vT2, sWS, line, off=off, pol="sc1", tag=tag)
    def flag_test(who):
        e.valu("v_not_b32", TG[1], TG[1])
        e.valu("v_xor_b32", TG[0], sTAG, TG[0]); e.valu("v_xor_b32", TG[1], sTAG, TG[1]); e.valu("v_or_b32", TG[0], TG[0], TG[1])
        e.vcmp("v_cmp_ne_u32", "vcc", 0, TG[0])
        e.salu("s_lshl_b32", sT, 1, who); e.salu("s_xor_b32", sT, sT, 15)
        e.salu("s_and_b32", sT, sT, "vcc_lo")
        e.salu("s_cmp_eq_u32", None, sT, 0)
    def poll(line, off, lab, who):
        e.salu("s_mov_b32", g.sSP, 1 << 20)
        e.label(lab)
        flag_load(line, off, None)
        e.wait_all_vm()
        flag_test(who)
        e.branch("s_cbranch_scc1", lab + "x")
        e.other(f"s_sleep {cfg.poll_sleep}")
        e.salu("s_sub_u32", g.sSP, g.sSP, 1)
        e.salu("s_cmp_lg_u32", None, g.sSP, 0)
        e.branch("s_cbranch_scc1", lab)
        e.label(lab + "x")
    def read_fail(n):
        e.valu("v_mov_b32", vT1, LFLAG)
        for i in range(n): e.ds_read("ds_read_b128", V(80 + 4 * i, 4), vT1, 16 * i)
        e.wait_all_lds()
        e.valu("v_or_b32", V(80), V(80), V(81)); e.valu("v_or3_b32", V(80), V(80), V(82), V(83))
        if n == 2:
            e.valu("v_or3_b32", V(80), V(80), V(84), V(85)); e.valu("v_or3_b32", V(80), V(80), V(86), V(87))
        e.readfirstlane(sT, V(80))

    if cfg.cw & 2:
        e.salu("s_cmp_lg_u32", None, sW, 2)
        e.branch("s_cbranch_scc1", "1f")
        q_ = list(e.vm_q)
        code_touch()
        e.vm_q = q_
        e.label("1")
    def warm0():
        return [lambda: e.salu("s_lshl_b32", sT, g.sHG, 5), lambda: e.salu("s_add_u32", sT, sT, g.sIDX), lambda: e.salu("s_lshl_b32", sT, sT, 2),
                lambda: e.salu("s_add_u32", sT, sT, sW), lambda: e.salu("s_lshl_b32", sT, sT, 13),
                lambda: e.valu("v_lshlrev_b32", vT0, 7, vL),
                lambda: e.bload("buffer_load_dword", vD1, vT0, sWO, sT, pol=cfg.wo_pol, tag="ww")]
    if cfg.warm == 3 and cfg.warm0 == -1:
        for f in warm0(): f()
    if cfg.plate:
        for f in pro[1]: f()
    if cfg.plate == 1:
        for f in pro[2]: f()
    if cfg.qst: stamp(13, True)
    e.wait_vm("p0")
    if cfg.qst: stamp(14, True)
    e.barrier()
    stamp(1)
    for f in w_reads(0) + x_reads(0): f()
    if cfg.plate == 2:
        for f in pro[2]: f()
    kvq = deque(kvq_items(s_) for s_ in range(4))
    def q_out(qt):
        its = []
        for P in range(2):
            src = V(112 + (qt * 4 + 2 * P) * 4, 8)
            its += [lambda i=i, src=src: e.valu("v_pk_mul_f32", src[2 * i:2 * i + 2], src[2 * i:2 * i + 2], V(34, 2)) for i in range(4)]
            its += [lambda i=i, src=src: e.valu("v_cvt_pk_bf16_f32", src[i], src[2 * i], src[2 * i + 1]) for i in range(4)]
            its.append(lambda src=src, P=P: e.ds_write("ds_write_b128", QW, src[0:4], (qt * 4 + P) * 1024))
        return its
    e.valu("v_mov_b32", V(34), g.sSC); e.valu("v_mov_b32", V(35), g.sSC)
    for st in range(16):
        e.comment(f"q-proj stage {st}")
        e.wait_vm({0: "p1", 1: "p2"}.get(st, ("iss", st - 2)))
        if st == 14: e.wait_vm(("kv", 0))
        e.wait_all_lds(); e.barrier()
        if cfg.qst and st in (1, 3, 6, 9, 13): stamp({1: 6, 3: 7, 6: 9, 9: 10, 13: 11}[st], True)
        fill = deque()
        if cfg.plate == 3 and st == 0: fill.extend(pro[2])
        if st // 2 + 2 < 8: fill.extend(x_items(st // 2 + 2, st & 1, ("iss", st)))
        if st + 3 < 16: fill.extend(w_items(st + 3, ("iss", st)))
        if cfg.warm == 3 and cfg.warm0 == st: fill.extend(warm0())
        if cfg.tagpos == 2 and st == 13: tag_propose()
        for _ in range(cfg.kv0_at.split(",").count(str(st))): fill.extend(kvq.popleft())
        if cfg.l2pre and st == cfg.l2pre_at:
            for r in range(cfg.l2pre):
                fill.extend([lambda r=r: e.salu("s_add_u32", sT, sW, 4 + 4 * r), lambda: e.salu("s_lshl_b32", sT, sT, 13), lambda: e.salu("s_add_u32", sT, sT, g.sROT),
                             lambda: e.salu("s_and_b32", sT, sT, "0x3ffff"), lambda: e.salu("s_add_u32", sT, sT, g.sKVB0),
                             lambda: e.valu("v_lshlrev_b32", vT0, 7, vL),
                             lambda: e.bload("buffer_load_dword", vD1, vT0, sK, sT, tag="l2"), lambda: e.bload("buffer_load_dword", vD1, vT0, sV, sT, tag="l2")])
        rd = deque()
        if st + 1 < 16: rd.extend(w_reads(st + 1))
        if st & 1 and st + 1 < 16: rd.extend(x_reads((st + 1) // 2))
        if st == 14: rd.extend(kb_reads() + k_reads(0) + v_reads(0))
        if st == 15:
            fill.append(lambda: e.salu("s_mov_b32", sT1, "0x80008000"))
            fill.extend([lambda kk=kk, i=i: e.valu("v_xor_b32", Kb[kk][i], sT1, Kb[kk][i]) for kk in range(4) for i in range(4)])
        mfs = [lambda qt=qt, D=D: e.mfma16(QACC(D, qt), WF(st & 1, D), XF(st % 3, qt), QACC(D, qt) if st else 0)
               for qt in range(9) for D in range(4)]
        if st < 15 or not cfg.qov: run_stage(mfs, rd, fill)
        else:
            out = deque()
            for i, m in enumerate(mfs):
                m()
                if i % 4 == 3 and i >= 7: out.extend(q_out(i // 4 - 1))
                for _ in range(cfg.qov):
                    if fill: fill.popleft()()
                    elif out: out.popleft()()
            out.extend(q_out(8))
    while kvq:
        for f in kvq.popleft(): f()
    stamp(2)
    if not cfg.qov: out = deque(f for qt in range(9) for f in q_out(qt))
    while out: out.popleft()()
    e.valu("v_mov_b32", vT0, "0x3f803f80")
    for i in range(4): e.valu("v_accvgpr_write_b32", ONES[i], vT0)
    ld_setup()
    e.salu("s_cmp_eq_u32", None, sW, 3)
    e.branch("s_cbranch_scc1", "L_rC")
    e.salu("s_cmp_lg_u32", None, sW, 0)
    e.branch("s_cbranch_scc1", "L_rB")
    hist0 = list(e.hist); vmq0 = list(e.vm_q)

    X8 = 139264
    CAPS = [0, 2, 0, 1, 0, 2, 0, 1, 0, 2, 0, 1, 0, 2, 0, 1, 2]
    for R in "ABC":
        NTW = 2 if R == "B" else 3
        toff = lambda t: ({"A": 8, "C": 2}[R] if t == 2 else t)
        e.hist = list(hist0)
        if R != "A": e.label(f"L_r{R}")
        e.lds_q = ["x"]; e.vm_q = list(vmq0)
        e.salu("s_mul_i32", sT, sSW2, 18432)
        e.valu("v_add_u32", vD1, sT, QA); e.valu("v_add_u32", QA, 36864, QA); e.valu("v_subrev_u32", QA, sT, QA)
        e.valu("v_add_u32", vD0, X8, vL16)
        e.valu("v_add_u32", vOW, g.sWLG, GOA[0])
        def qf_reads(h, addr):
            return [lambda t=t, kk=kk: e.ds_read("ds_read_b128", Qf(h, t, kk), addr, (toff(t) * 4 + kk) * 1024, tag="q") for t in range(NTW) for kk in range(4)]
        def prepass(h):
            e.comment("stand-in for the row max: minus the score of the first key, per row")
            e.salu("s_cmp_lg_u32", None, g.sRETRY, 0)
            e.branch("s_cbranch_scc1", f"L_np{h}{R}")
            if h == 0:
                for f in qf_reads(0, vD1): f()
                e.wait_all_lds()
            else:
                e.salu("s_mov_b32", sT1, "0x80008000")
                for kk in range(4):
                    for i in range(4): e.valu("v_xor_b32", Kb[kk][i], sT1, Kb[kk][i])
            for t in range(NTW):
                for kk in range(4): e.mfma16(NM(h, t), Kb[kk], Qf(h, t, kk), NM(h, t) if kk else 0)
            e.label(f"L_np{h}{R}")
        e.label(f"L_main_{R}")
        e.lds_q = ["x"]
        e.salu("s_mov_b32", g.sFAIL, 0)
        seq = [(s, t) for s in range(32) for t in range(3 if (R == "A" and s % 2 == 0) or (R == "C" and s % 2 == 1) else 2)]
        if not cfg.alt: seq = [(s, t) for s in range(32) for t in range(3 if R == "A" else 2)]
        NT = len(seq)
        first = {s: j for j, (s, t) in reversed(list(enumerate(seq)))}; first[32] = NT
        bpos = {}
        for s in range(1, 33):
            if s % 2 == 0 or R == "B" or not cfg.alt: bpos[(first[s], 0)] = s
            elif R == "A": bpos[(first[s] - 1, 8)] = s
            else: bpos[(first[s], 8)] = s
        def cap_left(j, i):
            n = k = 0
            while True:
                n += CAPS[i]; k += CAPS[i] > 0
                i += 1
                if i == 17: i = 0; j += 1
                if (j, i) in bpos or j > NT: return n, k
        extras = deque(); rds = deque(); lastk = [None]; later = deque()
        def beta(sg):
            while rds: rds.popleft()()
            if sg < 63:
                while extras: extras.popleft()()
            if sg + 1 < 64: e.wait_vm(("kv", sg + 1))
            if R == "C" and sg == 3:
                e.wait_all_vm()
                e.salu("s_cmp_lg_u32", None, g.sRETRY, 0)
                e.branch("s_cbranch_scc1", "6f")
                e.readfirstlane(sT, TG[0])
                e.salu("s_cmp_eq_u32", None, sT, 0)
                e.salu("s_cselect_b32", sT, S(72), sT)
                e.salu("s_mov_b32", sTAG, sT)
                e.valu("v_mov_b32", vT0, sT); e.valu("v_mov_b32", vT1, LFLAG)
                e.ds_write("ds_write_b32", vT1, vT0, 32)
                e.label("6")
            fb = cfg.fb and 4 <= sg < 60
            if fb and R == "C" and sg % 4 == 2:
                e.wait_vm("prg")
                e.vcmp("v_cmp_eq_u32", sM0, sTAG, PG[0]); e.vcmp("v_cmp_le_u32", "vcc", sTRIP, PG[1])
                e.salu("s_and_b32", sT, sM0[0], "vcc_lo"); e.salu("s_and_b32", sT, sT, "0xffff"); e.salu("s_bcnt1_i32_b32", sT, sT)
                e.valu("v_mov_b32", vT0, sT); e.valu("v_mov_b32", vT1, LFLAG)
                e.ds_write("ds_write_b32", vT1, vT0, 36)
            hook = 36 <= sg < 60 and sg % 4 == 0
            if hook:
                if R == "B": assert sg == 36 or "ost0" not in e.vm_q
                else: e.wait_all_vm()
            if R == "C" and sg == 63:
                while extras: extras.popleft()()
                e.wait_vm("fl0")
                flag_test(g.sHP)
                e.branch("s_cbranch_scc1", "L_poll0x")
                e.salu("s_cmp_lg_u32", None, g.sFAIL, 0)
                e.branch("s_cbranch_scc1", "L_poll0x")
                q_ = list(e.vm_q)
                poll(sF1, 0, "L_poll0", g.sHP)
                e.vm_q = q_
            if e.lds_q: e.wait_all_lds()
            if not cfg.dbg_hot & 2: e.barrier()
            for _ in range(cfg.trickle):
                if later and sg > 32: extras.extend(later.popleft())
            if fb and R == "C" and sg % 4 == 0:
                e.salu("s_add_u32", sTRIP, sTRIP, 1)
                e.valu("v_and_b32", vT2, 15, vL); e.valu("v_lshlrev_b32", vT2, 3, vT2)
                e.bload("buffer_load_dwordx2", PG, vT2, sWS, sPL, pol="sc1", tag="prg")
                e.valu("v_mov_b32", V(110), sTAG); e.valu("v_mov_b32", V(111), sTRIP); e.valu("v_mov_b32", vT1, sPS)
                e.salu("s_mov_b64", "exec", 1)
                e.bstore("buffer_store_dwordx2", V(110, 2), vT1, sWS, sPL, pol="sc1")
                e.salu("s_mov_b64", "exec", -1)
            if fb and R == "B" and sg % 4 == 2:
                e.valu("v_mov_b32", vT1, LFLAG)
                e.ds_read("ds_read_b32", vD1, vT1, 36)
            if fb and R == "B" and sg % 4 == 3:
                e.readfirstlane(sT, vD1)
                e.salu("s_cmp_ge_u32", None, sT, cfg.fb)
                e.salu("s_cselect_b64", "vcc", -1, 0)
            if R == "B" and not cfg.dbg_hot & 8:
                if 4 <= sg + cfg.la < 64: extras.extend(ld_items(sg + cfg.la))
            if R == "A" and sg in (33, 34): extras.extend(full_w_items(sg - 33))
            if sg == 2:
                e.salu("s_cmp_lg_u32", None, g.sRETRY, 0)
                e.branch("s_cbranch_scc1", "6f")
                for f in qf_reads(1, QA): f()
                e.lds_q = []
                e.label("6")
            if sg == 63: extras.extend(gw_items(2) + go_items(2) + gw_items(3) + go_items(3))
            if R == "A" and cfg.cw and sg % 4 == 0 and 4 <= sg % 32 < 28:
                e.salu("s_cmp_lg_u32", None, g.sCNT, cfg.cw_trip)
                e.branch("s_cbranch_scc1", "1f")
                q_ = list(e.vm_q)
                code_touch()
                e.vm_q = q_
                e.label("1")
            if R == "C":
                if hook:
                    e.salu("s_cmp_lg_u32", None, g.sCNT, cfg.sig_trip)
                    e.branch("s_cbranch_scc1", "1f")
                    read_fail(1)
                    e.salu("s_andn2_b32", g.sFAIL, sT, g.sRETRY)
                    e.salu("s_or_b32", sT, g.sFAIL, g.sPUB)
                    e.salu("s_cmp_lg_u32", None, sT, 0)
                    e.branch("s_cbranch_scc1", "1f")
                    flag_store(sF1, 0, g.sHP)
                    e.label("1")
                    if cfg.warm == 2:
                        e.salu("s_cmp_lg_u32", None, g.sCNT, cfg.warm_trip)
                        e.branch("s_cbranch_scc1", "2f")
                        for f in warm_items(): f()
                        e.label("2")
                if sg == cfg.pre_step:
                    flag_load(sF1, 0, "fl0")
                if sg == cfg.pre_step and cfg.warm == 1: extras.extend(warm_items())
                if cfg.warm == 3 and sg % cfg.warm_per == 0 and sg < 64: extras.extend(warm_items())
                if sg % 32 == 0 and sg and cfg.alt:
                    rds.append(lambda: e.ds_read("ds_read_b32", V(144), vD0, 8192, tag="x8"))
                    rds.extend([lambda D=D: e.ds_read("ds_read_b128", V(112 + 4 * D, 4), vD0, D * 1024, tag="x8") for D in range(8)])
            if sg + 1 < 64 and not cfg.dbg_hot & 4:
                kr = k_reads(sg + 1); rds.extend(kr); lastk[0] = kr[-1]
                if sg + 1 == 32: rds.extend(kb_reads())
        def slot(h, j):
            e.comment(f"slot")
            mf = []
            jq, jp = j + 1, j - 1
            if jq < NT:
                s, t = seq[jq]
                for kk in range(4):
                    for kt in range(2):
                        def m(kk=kk, kt=kt):
                            d = Sb[jq % 2][4 * kt:4 * kt + 4]
                            e.mfma16(d, Kf(s & 1, kt, kk), Qf(h, t, kk), d if kk else NM(h, t))
                        mf.append(m)
            else:
                mf += [None] * 8
            if jp >= 0:
                s2, t2 = seq[jp]
                acc = any(t_ == t2 for _, t_ in seq[:jp])
                for D in range(8):
                    mf.append(lambda D=D: e.mfma16(Oacc(t2, D), Vf(s2 & 1, D), Pb[jp % 2], Oacc(t2, D) if acc else 0))
                mf.append(lambda: e.mfma16(Lb[t2], ONES, Pb[jp % 2], Lb[t2] if acc else 0))
            else:
                mf += [None] * 9
            sm = 0 <= j < NT
            Sx, Px = Sb[j % 2], Pb[j % 2]
            E = lambda i: (lambda: e.valu("v_exp_f32", Sx[i], Sx[i])) if sm else None
            C = lambda i: (lambda: e.valu("v_cvt_pk_bf16_f32", Px[i], Sx[2 * i], Sx[2 * i + 1])) if sm else None
            base = [E(0), None, E(1), C(0), E(2), None, E(3), C(1), E(4), None, E(5), C(2), E(6), None, E(7), C(3), None]
            vre = deque()
            sfirst = [s_ for s_, j_ in first.items() if j_ == j and s_ > 0]
            if sfirst and 32 * h + sfirst[0] + 1 < 64 and not cfg.dbg_hot & 4: vre = deque(v_reads(32 * h + sfirst[0] + 1))
            if R == "A" and j == NT - 1 and cfg.alt:
                rds.extend([lambda D=D: e.ds_write("ds_write_b128", vD0, Oacc(2, D), D * 1024) for D in range(8)])
                rds.append(lambda: e.ds_write("ds_write_b32", vD0, Lb[2][0], 8192))
            for i in range(17):
                if (j, i) in bpos: beta(32 * h + bpos[(j, i)])
                if i == 0 and jq < NT and jq > 0 and seq[jq][1] == 0:
                    while lastk[0] in rds: rds.popleft()()
                    e.wait_lds("kf")
                if mf[i]: mf[i]()
                if 8 <= i < 16 and vre:
                    rds.append(vre.popleft()); rds.append(vre.popleft())
                if base[i]: base[i]()
                cap = CAPS[i] if sm else 2
                if CAPS[i]:
                    nq = len(rds) + (0 if ((j, 8) in bpos and i < 8) else len(vre)) + min(len(extras), 24)
                    nxt = [s_ for s_, j_ in first.items() if j_ == j + 1]
                    if R == "A" and nxt and nxt[0] % 2 == 1 and i >= 8 and cfg.alt: nq += 16
                    left, k = cap_left(j, i)
                    left -= 3
                    if nq > left: cap += -(-(nq - left) // max(1, k - 1))
                    elif cfg.thin and sm and cap == 2 and nq <= k - 2 and not (lastk[0] in rds and jq + 1 < NT and seq[jq + 1][1] == 0): cap = 1
                for c in range(cap):
                    if rds and (not extras or c != 1): rds.popleft()()
                    elif extras: extras.popleft()()
        def epilogue(h):
            NE = 2 if R != ("C" if cfg.alt else "A") else 3
            LV = [V(32 + 2 * t, 2) for t in range(3)]
            bad = cfg.force_fallback >> h & 1
            if h == 0:
                e.valu("v_mov_b32", vT0, LFLAG)
                e.ds_read("ds_read_b32", TG[0], vT0, 32, tag="tg")
            e.salu("s_mov_b32", sT, hex(f2u(0.25 if bad else cfg.lthresh)))
            e.salu("s_mov_b64", sM0, 0)
            for t in range(NE): e.valu("v_accvgpr_read_b32", LV[t][0], Lb[t][0])
            if R == "C" and cfg.alt:
                e.wait_lds("x8")
                e.valu("v_add_f32", LV[2][0], LV[2][0], V(144))
            for t in range(NE):
                e.vcmp("v_cmp_nge_f32", sM1, sT, LV[t][0])
                e.salu("s_or_b64", sM0, sM0, sM1)
            for t in range(NE): e.valu("v_rcp_f32", LV[t][0], LV[t][0])
            e.salu("s_or_b32", sT, sM0[0], sM0[1])
            e.valu("v_mov_b32", vT0, sT)
            e.ds_write("ds_write_b32", vFLG, vT0, 16 * h)
            for t in range(NE): e.valu("v_mov_b32", LV[t][1], LV[t][0])
            if h == 0:
                e.salu("s_cmp_lg_u32", None, g.sPUB, 0)
                e.salu("s_cselect_b32", sM0[0], "0x40000000", g.sOB)
            if R == "C" and cfg.alt:
                for i in range(16): e.valu("v_pk_add_f32", V(224 + 2 * i, 2), V(224 + 2 * i, 2), V(112 + 2 * i, 2))
            if h == 1:
                g0 = deque(ga_reads(0) + gb_reads(0))
                for t in reversed(range(NE)):
                    for blk in reversed(range(4)):
                        for _ in range(4):
                            if g0: g0.popleft()()
                        o = V(160 + (t * 8 + 2 * blk) * 4, 8); d = OPK(t, blk)
                        for i in range(4): e.valu("v_pk_mul_f32", o[2 * i:2 * i + 2], o[2 * i:2 * i + 2], LV[t])
                        for i in reversed(range(4)): e.valu("v_cvt_pk_bf16_f32", d[i], o[2 * i], o[2 * i + 1])
                        if cfg.st_stage < 0:
                            if blk & 1: e.salu("s_add_u32", sT, sOB1, (blk >> 1) * 18432 + t * 2048)
                            e.bstore("buffer_store_dwordx4", d, vL16, sWS, sT, off=(blk & 1) * 1024, pol=cfg.ost_pol, tag="ost")
                return
            n = 0
            for bh in range(2):
                for t in range(NE):
                    for bl in range(2):
                        blk = 2 * bh + bl
                        o = V(160 + (t * 8 + 2 * blk) * 4, 8)
                        d = V(112 + 4 * n, 4)
                        n += 1
                        for i in range(4): e.valu("v_pk_mul_f32", o[2 * i:2 * i + 2], o[2 * i:2 * i + 2], LV[t])
                        for i in range(4): e.valu("v_cvt_pk_bf16_f32", d[i], o[2 * i], o[2 * i + 1])
                        e.ds_write("ds_write_b128", vOW, d, bh * 34816 + toff(t) * 2048 + bl * 1024)
                        st_ = [lambda bh=bh, t=t: e.salu("s_add_u32", sT, sM0[0], bh * 18432 + toff(t) * 2048),
                               lambda d=d, bl=bl: e.bstore("buffer_store_dwordx4", d, vL16, sWS, sT, off=bl * 1024, pol=cfg.ost_pol, tag="ost0")]
                        if cfg.trickle and n > cfg.trickle0: later.append(st_)
                        else:
                            for f in st_: f()
                        for _ in range(3):
                            if rds: rds.popleft()()
                            elif extras: extras.popleft()()
        for h in range(2):
            if h == 0:
                beta(0); rds.extend(v_reads(1))
                for _ in range(6):
                    if extras: extras.popleft()()
            prepass(h)
            if h == 0: stamp(3)
            chunks = []; save = e.lines
            bounds = [-1] + [first[s] for s in range(cfg.chunk0, 32, 4)] + [NT + 1]
            for a_, b_ in zip(bounds[:-1], bounds[1:]):
                e.lines = []
                for j in range(a_, b_): slot(h, j)
                chunks.append(e.lines)
            e.lines = save
            i = 0; nl = 0
            while i < len(chunks):
                k = i
                while k + 1 < len(chunks) and chunks[k + 1] == chunks[i]: k += 1
                if k > i:
                    nl += 1; lab = f"L_loop_{R}{h}{nl}"
                    e.lines.append(f"    s_mov_b32 {g.sCNT}, {k - i + 1}")
                    e.lines.append(lab + ":")
                    e.lines += chunks[i]
                    e.lines += [f"    s_sub_u32 {g.sCNT}, {g.sCNT}, 1", f"    s_cmp_lg_u32 {g.sCNT}, 0", f"    s_cbranch_scc1 {lab}"]
                else:
                    e.lines += chunks[i]
                i = k + 1
            if h:
                while extras: extras.popleft()()
            stamp(4 if h else 12)
            epilogue(h)
            if h == 0:
                e.wait_lds("tg")
                e.readfirstlane(sTAG, TG[0])
                stamp(13)
        while extras: extras.popleft()()
        e.wait_vm("pre")
        e.wait_all_lds(); e.barrier()
        read_fail(2)
        e.salu("s_andn2_b32", sT, sT, g.sRETRY)
        e.salu("s_cmp_eq_u32", None, sT, 0)
        e.branch("s_cbranch_scc1", "L_gemm")
        read_fail(1)
        e.salu("s_cmp_eq_u32", None, sT, 0)
        e.salu("s_cselect_b32", g.sPUB, 1, 0)
        e.salu("s_mov_b32", g.sRETRY, -1)
        e.wait_all()
        kv_addr_init()
        for h in range(2):
            MX = [V(48 + t) for t in range(3)]
            for t in range(NTW): e.valu("v_mov_b32", MX[t], "0xff800000")
            e.salu("s_mov_b32", g.sCNT, 32)
            e.salu("s_xor_b32", g.sKP, g.sKVB0, h * 262144); e.salu("s_mov_b32", g.sLS, 0)
            e.label(f"L_max_{R}{h}")
            e.barrier()
            if R == "A":
                for f in kv4_items("m")[:12]: f()
                e.wait_all_vm()
            e.salu("s_add_u32", g.sKP, g.sKP, 8192)
            e.barrier()
            for f in k_reads(0): f()
            e.wait_all_lds()
            for t in range(NTW):
                for kk in range(4):
                    for kt in range(2):
                        d = Sb[0][4 * kt:4 * kt + 4]
                        e.mfma16(d, Kf(0, kt, kk), Qf(h, t, kk), d if kk else 0)
                for i in range(4): e.valu("v_max3_f32", MX[t], Sb[0][2 * i], Sb[0][2 * i + 1], MX[t])
            e.salu("s_sub_u32", g.sCNT, g.sCNT, 1)
            e.salu("s_cmp_lg_u32", None, g.sCNT, 0)
            e.branch("s_cbranch_scc1", f"L_max_{R}{h}")
            for t in range(NTW):
                for op in ("v_permlane32_swap_b32", "v_permlane16_swap_b32"):
                    e.valu("v_mov_b32", vT0, MX[t])
                    e.perm(op, vT0, MX[t])
                    e.valu("v_max_f32", MX[t], vT0, MX[t])
                for i in range(4): e.valu("v_sub_f32", NM(h, t)[i], 0, MX[t])
        e.barrier()
        kv4_setup()
        for f in kv4_items("m"): f()
        ld_setup()
        e.wait_all_vm(); e.barrier()
        for f in k_reads(0) + v_reads(0): f()
        e.wait_all_lds()
        e.flush_hazards(8)
        e.branch("s_branch", f"L_main_{R}")

    e.label("L_gemm")
    e.hist = []; e.lds_q = []; e.vm_q = ["ost"]
    stamp(5)
    e.vm_q = [("g", 2)] * 9 + [("g", 3)] * 9 + (["ost"] * 8 if cfg.st_stage < 0 else [])
    PS = cfg.poll_stage
    mark = [0]
    assert cfg.st_stage < cfg.sig_stage < PS and 6 <= PS <= 8 and (cfg.own_lds or cfg.sig_stage <= 4)
    def o2_items(kind, bh):
        def one(t, bl):
            if kind == "st":
                if bl == 0: e.salu("s_add_u32", sT, sOB1, bh * 18432 + t * 2048)
                e.bstore("buffer_store_dwordx4", OPK(t, 2 * bh + bl), vL16, sWS, sT, off=bl * 1024, pol=cfg.ost_pol, tag="ost")
            else:
                e.ds_write("ds_write_b128", vOW, OPK(t, 2 * bh + bl), bh * 34816 + t * 2048 + bl * 1024)
        def third():
            e.salu("s_cmp_lg_u32", None, sW, 3)
            e.branch("s_cbranch_scc1", "5f")
            q_ = (list(e.vm_q), list(e.lds_q))
            one(2, 0); one(2, 1)
            e.vm_q, e.lds_q = q_
            e.label("5")
        return [third] + [lambda t=t, bl=bl: one(t, bl) for t in range(2) for bl in range(2)]
    for st in range(16):
        e.comment(f"o-proj stage {st}")
        if st == cfg.sig_stage:
            if cfg.sig_drain: e.wait_all_vm()
            else: e.wait_vm("ost")
        if st == PS:
            e.salu("s_cmp_lg_u32", None, sW, 0)
            e.branch("s_cbranch_scc1", "L_poll1x")
            q_ = list(e.vm_q)
            e._wait(vm=len(e.vm_q) - mark[0])
            flag_test(g.sHP)
            e.branch("s_cbranch_scc1", "L_poll1x")
            poll(sF1, 32, "L_poll1", g.sHP)
            e.vm_q = q_
        if st + 1 < 16: e.wait_vm(("g", st + 1))
        if st:
            e.wait_all_lds(); e.barrier()
        if st == cfg.sig_stage:
            e.salu("s_cmp_lg_u32", None, sW, 3)
            e.branch("s_cbranch_scc1", "L_sig1")
            flag_store(sF1, 32, g.sHP)
            e.label("L_sig1")
            stamp(6)
        if st == PS: stamp(7)
        if st == 2: stamp(14)
        if cfg.gst and 1 <= st <= 11: stamp((1, 2, 3, 6, 7, 9, 10, 11, 12, 13, 14)[st - 1], True)
        fill = deque()
        if st == PS - 1:
            def fl1():
                e.salu("s_cmp_lg_u32", None, sW, 0)
                e.branch("s_cbranch_scc1", "7f")
                flag_load(sF1, 32, None); e.vm_q.pop()
                e.label("7")
                mark[0] = len(e.vm_q)
            fill.append(fl1)
        if st == PS:
            for s2 in range(10, st + 4): fill.extend(go_items(s2))
        if st == cfg.st_stage: fill.extend(o2_items("st", 0))
        if st == cfg.st_stage + cfg.st_split: fill.extend(o2_items("st", 1))
        if st + 4 < 16:
            if st + 4 in (8, 9) and cfg.own_lds: fill.extend(gw_items(st + 4) + o2_items("lds", st - 4))
            elif st + 4 < 10 or st >= PS: fill.extend(gwo_items(st + 4))
            else: fill.extend(gw_items(st + 4))
        rd = deque(ga_reads(st + 1) + gb_reads(st + 1)) if st + 1 < 16 else deque()
        mfs = [lambda qt=qt, kb=kb, ee=ee: e.mfma16(GC(qt, ee), GA(st & 1, kb * 2 + ee), GB(st & 1, qt * 2 + kb), GC(qt, ee) if (st or kb) else 0)
               for kb in range(2) for qt in range(9) for ee in range(2)]
        run_stage(mfs, rd, fill, span=20 if (st + 1 == cfg.sig_stage and cfg.sig_drain) else None)
    stamp(8)
    e.salu("s_mul_i32", sT, sW, 9216); e.salu("s_add_u32", g.sPB, g.sPB, sT)
    e.salu("s_lshl_b32", sT, sW, 8); e.salu("s_add_u32", sF2, sF2, sT)
    e.salu("s_mul_i32", sU0, g.sB, 144 * 2048); e.salu("s_lshl_b32", sT, g.sBR, 10); e.salu("s_add_u32", sU0, sU0, sT)
    e.salu("s_lshl_b32", sT, g.sHP, 8); e.salu("s_add_u32", sU0, sU0, sT); e.salu("s_lshl_b32", sT, sW, 6); e.salu("s_add_u32", sU0, sU0, sT)
    e.salu("s_mov_b32", sT1, "0xffff0000")
    for j in range(1, 4):
        e.salu("s_cmp_eq_u32", None, g.sHG, j)
        e.branch("s_cbranch_scc1", f"L_fin{j}")
    h1 = list(e.hist)
    for j in range(4):
        if j: e.label(f"L_fin{j}")
        e.hist = list(h1); e.vm_q = []; e.lds_q = []
        own = [qt for qt in range(9) if qt % 4 == j]
        flag_load(sF2, 0, "f2")
        for qt in range(9):
            if qt in own: continue
            o = V(112 + qt * 8, 8)
            for i in range(4): e.valu("v_cvt_pk_bf16_f32", o[i], o[2 * i], o[2 * i + 1])
            e.salu("s_add_u32", sT2, g.sPB, j * 36864 + qt * 1024)
            e.bstore("buffer_store_dwordx4", o[0:4], vL16, sWS, sT2, pol="sc1")
        e.wait_all_vm()
        flag_store(sF2, 0, g.sHG)
        stamp(9)
        flag_test(g.sHG)
        e.branch("s_cbranch_scc1", f"L_poll2{j}x")
        poll(sF2, 0, f"L_poll2{j}", g.sHG)
        stamp(10)
        PB = lambda s, n: V(184 + (s * 3 + n) * 4, 4)
        srcs = [s for s in range(4) if s != j]
        for n, qt in enumerate(own):
            for si, s in enumerate(srcs):
                e.salu("s_add_u32", sT2, g.sPB, s * 36864 + qt * 1024)
                e.bload("buffer_load_dwordx4", PB(si, n), vL16, sWS, sT2, pol="sc1", tag=(si, n))
        for n, qt in enumerate(own):
            o = V(112 + qt * 8, 8)
            for si in range(3):
                p = PB(si, n)
                e.wait_vm((si, n))
                for i in range(4):
                    e.valu("v_lshlrev_b32", vT0, 16, p[i]); e.valu("v_and_b32", vT1, sT1, p[i])
                    e.valu("v_add_f32", o[2 * i], o[2 * i], vT0); e.valu("v_add_f32", o[2 * i + 1], o[2 * i + 1], vT1)
            for i in range(4): e.valu("v_cvt_pk_bf16_f32", o[i], o[2 * i], o[2 * i + 1])
            e.salu("s_add_u32", sT2, sU0, qt * 32768)
            e.bstore("buffer_store_dwordx4", o[0:4], vST, sOUT, sT2, pol=cfg.out_pol)
        stamp(11)
        stamp_flush()
        e.other("s_endpgm")
    e.label("L_done")
    e.other("s_endpgm")
    e.label("L_end")

def generate(cfg, fn):
    e = Em()
    e.raw('.amdgcn_target "amdgcn-amd-amdhsa--gfx950"'); e.raw(".text")
    gen(e, cfg, NAME + "_kernel")
    top = ("; attention block in one launch: q-projection, attention, output projection; generated by dev/gen5.py\n"
           "; @launch grid=(256,1,1) block=(256,1,1) lds=163840\n")
    tail = '.section .rodata,"a"\n' + descriptor(NAME + "_kernel", 512, 102, 256)
    open(fn, "w").write(top + e.text() + tail)
    return e

if __name__ == "__main__":
    cfg = Cfg()
    fn = sys.argv[1] if len(sys.argv) > 1 else "k.s"
    for kv in sys.argv[2:]:
        k, v = kv.split("=", 1)
        cur = getattr(cfg, k)
        setattr(cfg, k, type(cur)(int(v)) if isinstance(cur, (bool, int)) and not isinstance(cur, float) else (float(v) if isinstance(cur, float) else v))
    e = generate(cfg, fn)
    print(fn, "lines", len(e.lines), "nop states", e.nops)
```

```python
import sys, struct
from collections import deque
from asmlib import *

NAME = "concat_heads__mha_block_cached__gqa_block_cached__near_ridge"
def f2u(x): return struct.unpack("<I", struct.pack("<f", x))[0]
QSCALE = 1.4426950408889634 / (128 ** 0.5)

class Cfg:
    kv_pol = "nt"
    xw_pol = ""
    wo_pol = ""
    lthresh = 2.0 ** 40
    force_fallback = 0
    stamps = False
    poll_sleep = 2
    kv0_stage = 13
    win = 11
    wing = 1
    win2 = 0
    dbg_tail = 0
    ost_pol = "sc1"
    chunk0 = 4
    swap = 0
    alt = 1
    out_pol = "sc1"
    rotmul = "0x9e3779b1"
    trickle = 0
    trickle0 = 3
    sig_trip = 5
    warm_trip = 3
    warm_w = 1
    qst = 0
    gst = 0
    st_split = 0
    sig_drain = 0
    own_lds = 0
    tagpos = 0
    plate = 1
    kv0_at = "10,12,14,15"
    l2pre = 0
    la = 4
    thin = 0
    qrot = 4
    xwarm = 0
    stride = 0
    inband = 0
    poison_at = 13
    ann_stage = 14
    l2pre_at = 13
    fb = 0
    open_trip = 1
    warm0 = -1
    warm_per = 4
    qov = 3
    kv0_rate = 2
    warm_o = 0
    warm_opol = "sc1"
    cw = 3
    cw_trip = 2
    sig1_step = 35
    pre_step = 61
    warm = 1
    dbg_hot = 0
    st_stage = -1
    sig_stage = 3
    poll_stage = 6
    probe = -2
    probe_a = 0
    probe_cyc = 0
    probe_wg = -1

OWS_BYTES = 16 * 64 * 18432
PWS_OFF = OWS_BYTES
PWS_BYTES = 64 * 16 * 9216
FLG_OFF = OWS_BYTES + PWS_BYTES
PRG_OFF = FLG_OFF + (64 + 256) * 256
WS_USED = PRG_OFF + 16 * 256
STAMP_OFF = 32 << 20
NSTAMP = 16

def descriptor(label, vgpr, sgpr, accum):
    return f""".p2align 6
.amdhsa_kernel {label}
  .amdhsa_next_free_vgpr {vgpr}
  .amdhsa_next_free_sgpr {sgpr}
  .amdhsa_accum_offset {accum}
  .amdhsa_group_segment_fixed_size 0
  .amdhsa_kernarg_size 104
  .amdhsa_user_sgpr_count 2
  .amdhsa_user_sgpr_kernarg_segment_ptr 1
  .amdhsa_system_sgpr_workgroup_id_x 1
.end_amdhsa_kernel
"""

def gen(e, cfg, label):
    e.raw(f".globl {label}"); e.raw(".p2align 8"); e.raw(f".type {label},@function"); e.label(label)
    sX, sWQ, sK, sV, sWS, sWO, sOUT, sDBG = (S(4 * i + 4, 4) for i in range(8))
    sLD = sX
    names = ("W XCD IDX T T1 T2 B HP HG BR KVB KP KO LS XS WS2 XL WL CNT RETRY SC ROT OB OKP WB OL PB FL1 FL2 SP WLG FAIL PUB KVB0").split()
    sr = {n: S(36 + i) for i, n in enumerate(names)}
    assert 36 + len(names) <= 70
    g = type("G", (), {"s" + n: r for n, r in sr.items()})
    sM0, sM1 = S(70, 2), S(72, 2)
    KARG = 76
    def kp(i): return S(KARG + 2 * i), S(KARG + 2 * i + 1)
    sW, sT, sT1, sT2 = g.sW, g.sT, g.sT1, g.sT2
    sU0, sU1 = S(76), S(77)
    sWBw, sOKw = S(79), S(80)
    sPC = S(82, 2)
    sSTR = S(89)
    sPL, sTRIP, sPS = S(86), S(87), S(88)
    sF1, sF2 = S(84), S(85)
    sTAG = S(81)
    TG = V(108, 2)
    sSW2, sOB1 = S(3), S(78)
    vL, vL16, vT0, vT1, vT2 = V(1), V(2), V(3), V(4), V(5)
    KA = [V(6 + i) for i in range(4)]; VA = [V(10 + i) for i in range(8)]
    oK = [V(18 + i) for i in range(4)]; oV = [V(22 + i) for i in range(2)]
    oWo = [V(24 + i) for i in range(4)]
    XA = [V(28), V(29)]; WA = [V(30), V(31)]
    oLD = [V(28 + i) for i in range(4)]
    Sb = [V(32 + i * 8, 8) for i in range(2)]
    Pb = [V(48 + i * 4, 4) for i in range(2)]
    NM = lambda h, t: V(56 + (h * 3 + t) * 4, 4)
    oX = [V(56 + i) for i in range(5)]; oWQ = [V(61 + i) for i in range(4)]
    Kb = [V(80 + kk * 4, 4) for kk in range(4)]
    KBA, QA, QW = V(96), V(97), V(98)
    GWA = [V(99), V(100)]; GOA = [V(101), V(102)]; vST, vFLG, stamp_reg, vD0, vD1 = V(103), V(104), V(105), V(106), V(107)
    PG = V(28, 2)
    vOW = V(98)
    Oacc = lambda t, D: V(160 + (t * 8 + D) * 4, 4)
    OPK = lambda t, blk: V(208 + (t * 4 + blk) * 4, 4)
    QACC = lambda D, qt: V(112 + (qt * 4 + D) * 4, 4)
    XF = lambda buf, qt: A(buf * 36 + qt * 4, 4)
    WF = lambda buf, D: A(108 + buf * 16 + D * 4, 4)
    Qf = lambda h, t, kk: A((h * 12 + t * 4 + kk) * 4, 4)
    Lb = [A(96 + t * 4, 4) for t in range(3)]
    ONES = A(108, 4)
    Kf = lambda b, kt, kk: A(144 - b * 32 + (kt * 4 + kk) * 4, 4)
    Vf = lambda b, D: A(176 + b * 32 + D * 4, 4)
    GB = lambda buf, i: A((0 if buf else 112) + i * 4, 4)
    GA = lambda buf, i: A((72 if buf else 184) + i * 4, 4)
    GC = lambda qt, ee: V(112 + (qt * 2 + ee) * 4, 4)
    LQ = 65536; XS0, WS0 = LQ, LQ + 36864
    GSL = [69632, 104448, 0, 34816]; LFLAG = 163840 - 64

    pl = [0]
    def stamp(i, q=False):
        if cfg.qst and not q and i in (6, 7, 9, 10, 11, 12, 13, 14): return
        if cfg.gst and not q and i in (1, 2, 3, 6, 7, 9, 10, 11, 12, 13, 14): return
        if cfg.stamps:
            e.other("s_memrealtime s[74:75]"); e._wait(lg=0); e.lds_q = []
            e.ins(f"v_writelane_b32 {stamp_reg}, s74, {i}", 'valu', [], [stamp_reg])
            if cfg.probe_cyc:
                e.other("s_memtime s[74:75]"); e._wait(lg=0)
                e.ins(f"v_writelane_b32 {stamp_reg}, s74, {i + 16}", 'valu', [], [stamp_reg])
    def stamp_flush():
        if not cfg.stamps: return
        e.wait_all_vm(); stamp(NSTAMP - 1)
        if cfg.probe >= 0:
            pl[0] += 1
            e.nop(2)
            e.ins(f"v_readlane_b32 {sT1}, {stamp_reg}, {cfg.probe}", 'readlane', [stamp_reg], [sT1])
            e.nop(4)
            e.salu("s_cmp_eq_u32", None, sT1, 0)
            e.branch("s_cbranch_scc1", f"L_pe{pl[0]}")
            if cfg.probe_wg >= 0:
                e.salu("s_and_b32", sT, S(2), 7)
                e.salu("s_cmp_lg_u32", None, sT, cfg.probe_wg)
                e.branch("s_cbranch_scc1", f"L_pe{pl[0]}")
            o_ = 16 if cfg.probe_cyc else 0
            e.ins(f"v_readlane_b32 {sT1}, {stamp_reg}, {cfg.probe + o_}", 'readlane', [stamp_reg], [sT1])
            e.ins(f"v_readlane_b32 {sT2}, {stamp_reg}, {cfg.probe_a + o_}", 'readlane', [stamp_reg], [sT2])
            e.ins(f"v_readlane_b32 {sT}, {stamp_reg}, 0", 'readlane', [stamp_reg], [sT])
            e.nop(4)
            e.salu("s_sub_u32", sT1, sT1, sT2)
            if cfg.probe_cyc: e.salu("s_lshr_b32", sT1, sT1, 4)
            e.salu("s_add_u32", sT1, sT1, sT)
            e.salu("s_add_u32", sT1, sT1, 12000)
            e.label(f"L_pr{pl[0]}")
            e.other("s_memrealtime s[74:75]"); e._wait(lg=0)
            e.salu("s_sub_u32", sT, S(74), sT1)
            e.salu("s_cmp_lt_i32", None, sT, 0)
            e.branch("s_cbranch_scc1", f"L_pr{pl[0]}")
            e.label(f"L_pe{pl[0]}")
            return
        e.salu("s_lshl_b32", sT, S(2), 2); e.salu("s_add_u32", sT, sT, sW); e.salu("s_lshl_b32", sT, sT, 8)
        e.salu("s_add_u32", sT, sT, STAMP_OFF)
        e.valu("v_lshlrev_b32", vT0, 2, vL)
        e.bstore("buffer_store_dword", stamp_reg, vT0, sWS, sT)

    e.salu("s_cmp_ge_u32", None, S(2), 256)
    e.branch("s_cbranch_scc1", "L_done")
    e.other(f"s_load_dwordx16 s[{KARG}:{KARG+15}], s[0:1], 0")
    e.other(f"s_load_dwordx8 s[{KARG+16}:{KARG+23}], s[0:1], 64")
    e.other(f"s_load_dwordx2 s[{KARG+24}:{KARG+25}], s[0:1], 96")
    e.other("s_memrealtime s[72:73]")
    e.valu("v_lshrrev_b32", vT0, 6, V(0))
    e.valu("v_and_b32", vL, 63, V(0))
    e.readfirstlane(sW, vT0)
    if cfg.stamps: e.valu("v_mov_b32", stamp_reg, 0)
    e.salu("s_and_b32", g.sXCD, S(2), 7)
    e.salu("s_lshr_b32", g.sIDX, S(2), 3)
    e.salu("s_lshr_b32", g.sB, g.sIDX, 2); e.salu("s_and_b32", g.sHP, g.sIDX, 3)
    e.salu("s_and_b32", g.sHG, g.sXCD, 3); e.salu("s_lshr_b32", g.sBR, g.sXCD, 2)
    e.valu("v_lshlrev_b32", vL16, 4, vL)
    e.valu("v_lshrrev_b32", vT1, 4, vL); e.valu("v_lshrrev_b32", vT0, 3, vL)
    e.salu("s_lshl_b32", sT, g.sHP, 1); e.salu("s_add_u32", sT, sT, g.sB); e.salu("s_and_b32", sT, sT, cfg.qrot)
    e.salu("s_lshl_b32", g.sXS, sT, 7); e.salu("s_lshl_b32", g.sWS2, sT, 19)
    e.salu("s_mul_i32", sT, sW, 9); e.salu("s_lshr_b32", sT, sT, 1)
    e.salu("s_lshl_b32", g.sOL, sT, 10); e.salu("s_add_u32", g.sXL, g.sOL, XS0)
    e.salu("s_mul_i32", sT1, g.sB, 147456); e.salu("s_lshl_b32", sT2, sT, 13); e.salu("s_add_u32", sT1, sT1, sT2)
    e.salu("s_and_b32", sT, sT, 1); e.salu("s_lshl_b32", sT, sT, 6)
    e.valu("v_and_b32", vT2, 7, vL); e.valu("v_xor_b32", vT2, vT2, vT1); e.valu("v_lshlrev_b32", vT2, 4, vT2)
    e.valu("v_lshl_add_u32", vT2, vT0, 10, vT2); e.valu("v_xor_b32", vT2, sT, vT2)
    e.valu("v_add_u32", oX[0], sT1, vT2); e.valu("v_xor_b32", vT2, 64, oX[0])
    for i in range(1, 5): e.valu("v_add_u32", oX[i], i * 8192 - (i % 3) * 1024, vT2 if i & 1 else oX[0])
    e.salu("s_lshl_b32", sT1, g.sHG, 11); e.salu("s_lshl_b32", sT2, g.sHP, 9); e.salu("s_add_u32", sT1, sT1, sT2)
    e.salu("s_lshl_b32", sT2, sW, 7); e.salu("s_add_u32", sT1, sT1, sT2)
    e.valu("v_and_b32", vT2, 1, vT1); e.valu("v_lshlrev_b32", vT2, 2, vT2)
    e.valu("v_and_b32", oWQ[0], 7, vL); e.valu("v_xor_b32", vT2, oWQ[0], vT2); e.valu("v_lshlrev_b32", vT2, 4, vT2)
    e.valu("v_lshl_add_u32", vT2, vT0, 13, vT2); e.valu("v_add_u32", oWQ[0], sT1, vT2)
    for i in range(1, 4): e.valu("v_add_u32", oWQ[i], i * (65536 - 1024), oWQ[0])
    e.salu("s_lshl_b32", g.sWLG, sW, 12); e.salu("s_add_u32", g.sWL, g.sWLG, WS0)
    e._wait(lg=0)
    e.salu("s_cmp_lg_u32", None, g.sBR, 0)
    def srd(d, a, b, size):
        if b is None:
            e.salu("s_mov_b32", d[0], kp(a)[0]); e.salu("s_mov_b32", d[1], kp(a)[1])
        else:
            e.salu("s_cselect_b32", d[0], kp(b)[0], kp(a)[0]); e.salu("s_cselect_b32", d[1], kp(b)[1], kp(a)[1])
        e.salu("s_mov_b32", d[2], hex(size)); e.salu("s_mov_b32", d[3], "0x20000")
    srd(sX, 0, 5, 8 * 147456); srd(sWQ, 3, 8, 512 * 8192)
    srd(sK, 1, 6, 1 << 26); srd(sV, 2, 7, 1 << 26); srd(sWO, 4, 9, 4096 * 1024)
    srd(sDBG, 11, None, 256)
    def tag_propose():
        e.salu("s_cmp_lg_u32", None, sW, 3)
        e.branch("s_cbranch_scc1", "1f")
        e.salu("s_or_b32", S(72), S(72), 1)
        e.salu("s_lshl_b32", sT, g.sBR, 3); e.salu("s_add_u32", sT, sT, g.sB); e.salu("s_lshl_b32", sT, sT, 4)
        e.valu("v_mov_b32", TG[0], S(72)); e.valu("v_mov_b32", TG[1], 0); e.valu("v_mov_b32", V(110), 0)
        e.salu("s_mov_b64", "exec", 1)
        e.ins(f"buffer_atomic_cmpswap {TG}, v110, {sDBG}, {sT} offen sc0 sc1", 'vmem', [TG, V(110), sDBG, sT], [TG[0]])
        e.salu("s_mov_b64", "exec", -1)
        e.label("1")
    if cfg.tagpos == 0: tag_propose()
    stamp(0)

    def x_items(D, part, tag):
        its = [lambda: e.salu("s_add_u32", "m0", g.sXL, (D & 1) * 18432 + part * 3072)]
        for i in range(3 * part, min(5, 3 * part + 3)):
            its.append(lambda i=i: e.dma(oX[i], sX, g.sXS, off=(i % 3) * 1024, pol=cfg.xw_pol, tag=tag))
        if part == 1:
            its.append(lambda: e.salu("s_add_u32", g.sXS, g.sXS, 128))
            its.append(lambda: e.salu("s_and_b32", g.sXS, g.sXS, 1023))
        return its
    def w_items(st, tag):
        its = [lambda: e.salu("s_add_u32", "m0", g.sWL, (st % 3) * 16384)]
        for i in range(4):
            its.append(lambda i=i: e.dma(oWQ[i], sWQ, g.sWS2, off=i * 1024, pol=cfg.xw_pol, tag=tag))
        its.append(lambda: e.salu("s_add_u32", g.sWS2, g.sWS2, 1 << 18))
        its.append(lambda: e.salu("s_and_b32", g.sWS2, g.sWS2, "0x3fffff"))
        return its
    pro = [w_items(0, "p0") + x_items(0, 0, "p0") + x_items(0, 1, "p0"), w_items(1, "p1"), x_items(1, 0, "p2") + x_items(1, 1, "p2") + w_items(2, "p2")]
    for f in pro[0]: f()
    if not cfg.plate:
        for f in pro[1] + pro[2]: f()
    if cfg.tagpos == 1: tag_propose()

    if cfg.qst: stamp(12, True)
    srd(sWS, 12, None, 64 << 20 if cfg.stamps else WS_USED); srd(sOUT, 10, None, 8 * 144 * 2048)
    e.salu("s_lshl_b32", sT, g.sHG, 3); e.salu("s_lshl_b32", sT1, g.sHP, 1); e.salu("s_add_u32", sT, sT, sT1)
    e.salu("s_lshl_b32", g.sKVB0, g.sB, 5); e.salu("s_add_u32", g.sKVB0, g.sKVB0, sT); e.salu("s_lshl_b32", g.sKVB0, g.sKVB0, 18)
    e.salu("s_lshl_b32", sT1, g.sBR, 3); e.salu("s_add_u32", sT1, sT1, g.sB)
    e.salu("s_lshl_b32", sT2, sT1, 5); e.salu("s_add_u32", sT2, sT2, sT); e.salu("s_mul_i32", g.sOB, sT2, 36864)
    e.salu("s_add_u32", g.sOB, g.sOB, g.sWLG)
    if cfg.swap == 1: e.salu("s_xor_b32", sSW2, g.sB, g.sHG)
    elif cfg.swap == 2:
        e.salu("s_lshr_b32", sSW2, g.sB, 1); e.salu("s_xor_b32", sSW2, sSW2, g.sB); e.salu("s_lshr_b32", sT2, g.sHG, 1); e.salu("s_xor_b32", sSW2, sSW2, sT2)
    e.salu("s_and_b32", sSW2, sSW2, 1 if cfg.swap else 0)
    e.salu("s_lshl_b32", sT2, sSW2, 18); e.salu("s_add_u32", g.sKVB0, g.sKVB0, sT2)
    e.salu("s_mul_i32", sT2, sSW2, 36864); e.salu("s_add_u32", sOB1, g.sOB, 36864); e.salu("s_sub_u32", sOB1, sOB1, sT2); e.salu("s_add_u32", g.sOB, g.sOB, sT2)
    e.salu("s_lshl_b32", sSW2, sSW2, 1)
    if cfg.dbg_tail & 1: e.salu("s_mov_b32", sOB1, "0x40000000")
    e.salu("s_lshl_b32", sT2, sT1, 2); e.salu("s_add_u32", g.sFL1, sT2, g.sHG); e.salu("s_add_u32", g.sFL2, sT2, g.sHP)
    e.salu("s_mul_i32", g.sOKP, g.sFL1, 16 * 18432)
    e.salu("s_mul_i32", g.sPB, g.sFL2, 16 * 9216); e.salu("s_add_u32", g.sPB, g.sPB, PWS_OFF)
    e.salu("s_lshl_b32", sF1, g.sFL1, 8); e.salu("s_add_u32", sF1, sF1, FLG_OFF)
    e.salu("s_lshl_b32", sF2, g.sFL2, 10); e.salu("s_add_u32", sF2, sF2, FLG_OFF + 64 * 256)
    e.salu("s_mul_i32", sT, sW, 9216); e.salu("s_add_u32", g.sPB, g.sPB, sT)
    e.salu("s_lshl_b32", sT, sW, 8); e.salu("s_add_u32", sF2, sF2, sT)
    e.salu("s_lshl_b32", sPL, sT1, 8); e.salu("s_add_u32", sPL, sPL, PRG_OFF)
    e.salu("s_lshl_b32", sPS, g.sHG, 2); e.salu("s_add_u32", sPS, sPS, g.sHP); e.salu("s_lshl_b32", sPS, sPS, 3)
    e.salu("s_mov_b32", sTRIP, 0)
    e.salu("s_lshl_b32", g.sWB, g.sHG, 20); e.salu("s_lshl_b32", sT, g.sHP, 8); e.salu("s_add_u32", g.sWB, g.sWB, sT)
    e.salu("s_lshl_b32", sT, sW, 14); e.salu("s_add_u32", sWBw, g.sWB, sT)
    e.salu("s_add_u32", sOKw, g.sOKP, g.sOL)
    if cfg.dbg_tail & 2: e.salu("s_mov_b32", sOKw, "0x40000000"); e.salu("s_mov_b32", sWBw, "0x40000000")
    if cfg.dbg_tail & 4: e.salu("s_mov_b32", g.sOKP, "0x40000000"); e.salu("s_mov_b32", g.sWB, "0x40000000")
    e.other(f"s_getpc_b64 {sPC}")
    e.label("L_pc")
    e.salu("s_mul_i32", g.sROT, S(2), cfg.rotmul)
    if cfg.stride == 1:
        e.salu("s_lshr_b32", sSTR, g.sROT, 22); e.salu("s_and_b32", sSTR, sSTR, 30); e.salu("s_or_b32", sSTR, sSTR, 1); e.salu("s_lshl_b32", sSTR, sSTR, 13)
    else: e.salu("s_mov_b32", sSTR, 8192 * (cfg.stride | 1))
    e.salu("s_lshr_b32", g.sROT, g.sROT, 27); e.salu("s_lshl_b32", g.sROT, g.sROT, 13)
    e.salu("s_mov_b32", g.sRETRY, 0); e.salu("s_mov_b32", g.sPUB, 0)
    e.salu("s_mov_b32", g.sSC, hex(f2u(QSCALE)))
    e.valu("v_and_b32", vT0, 15, vL); e.valu("v_lshrrev_b32", vT1, 4, vL)
    e.valu("v_xor_b32", vT2, vT0, vT1)
    e.valu("v_lshlrev_b32", vT2, 4, vT2); e.valu("v_lshl_add_u32", oK[0], vT1, 8, vT2)
    for n in range(1, 4): e.valu("v_xor_b32", oK[n], n << 6, oK[0])
    e.valu("v_lshlrev_b32", vT2, 1, vT1); e.valu("v_xor_b32", vT2, vT0, vT2)
    e.valu("v_lshlrev_b32", vT2, 4, vT2); e.valu("v_lshl_add_u32", oV[0], vT1, 8, vT2)
    e.valu("v_xor_b32", oV[1], 128, oV[0])
    e.valu("v_lshlrev_b32", vT2, 2, vT1); e.valu("v_xor_b32", vT2, vT0, vT2)
    e.valu("v_lshlrev_b32", vT2, 4, vT2); e.valu("v_lshl_add_u32", oWo[0], vT1, 10, vT2)
    for i in range(1, 4): e.valu("v_add_u32", oWo[i], i * 3072, oWo[0])
    def kv_addr_init():
        e.valu("v_and_b32", vT0, 15, vL); e.valu("v_lshrrev_b32", vT1, 4, vL)
        e.valu("v_xor_b32", vT2, vT0, vT1); e.valu("v_lshlrev_b32", vT2, 4, vT2)
        e.valu("v_lshl_add_u32", KA[0], vT0, 8, vT2)
        for kk in range(1, 4): e.valu("v_xor_b32", KA[kk], kk << 6, KA[0])
        e.valu("v_lshlrev_b32", KBA, 4, vT1)
        e.valu("v_lshrrev_b32", vT0, 2, vL)
        e.valu("v_and_b32", vT2, 7, vT0); e.valu("v_lshlrev_b32", vT2, 5, vT2)
        e.valu("v_lshl_add_u32", vT2, vT0, 8, vT2)
        e.valu("v_and_b32", vT0, 3, vL); e.valu("v_lshl_add_u32", vT2, vT0, 3, vT2)
        e.valu("v_add_u32", VA[0], 8192, vT2)
        for D in range(1, 8): e.valu("v_xor_b32", VA[D], D << 5, VA[0])
    kv_addr_init()
    e.valu("v_and_b32", vT0, 15, vL)
    e.valu("v_lshrrev_b32", vT2, 1, vT0); e.valu("v_xor_b32", vT2, vT2, vT1); e.valu("v_lshlrev_b32", vT2, 4, vT2)
    e.valu("v_lshl_add_u32", vT2, vT0, 7, vT2); e.valu("v_add_u32", XA[0], XS0, vT2); e.valu("v_xor_b32", XA[1], 64, XA[0])
    e.valu("v_lshlrev_b32", vST, 11, vT0); e.valu("v_lshl_add_u32", vST, vT1, 4, vST)
    e.valu("v_lshrrev_b32", vT0, 2, vL); e.valu("v_and_b32", vT0, 3, vT0)
    e.valu("v_lshl_add_u32", vT2, vT1, 3, vT0); e.valu("v_lshlrev_b32", vT2, 7, vT2)
    e.valu("v_lshrrev_b32", WA[1], 1, vT0); e.valu("v_lshl_add_u32", vT2, WA[1], 6, vT2)
    e.valu("v_and_b32", WA[1], 3, vL); e.valu("v_lshl_add_u32", vT2, WA[1], 4, vT2)
    e.valu("v_add_u32", WA[0], g.sWL, vT2); e.valu("v_xor_b32", WA[1], 64, WA[0])
    e.valu("v_xor_b32", vT0, sW, vT0); e.valu("v_lshlrev_b32", vT0, 6, vT0)
    e.valu("v_and_b32", vT2, 3, vL); e.valu("v_lshl_add_u32", vT0, vT2, 4, vT0)
    e.valu("v_lshrrev_b32", vT2, 2, vL); e.valu("v_lshl_add_u32", GWA[1], vT2, 8, vT0)
    e.valu("v_add_u32", GWA[0], GSL[0], GWA[1])
    e.valu("v_add_u32", GOA[1], 16384, vL16); e.valu("v_add_u32", GOA[0], GSL[0] + 16384, vL16)
    e.salu("s_lshr_b32", sT1, sW, 1); e.salu("s_mul_i32", sT1, sT1, 36864)
    e.salu("s_and_b32", sT2, sW, 1); e.salu("s_lshl_b32", sT2, sT2, 11); e.salu("s_add_u32", sT2, sT2, sT1); e.salu("s_add_u32", sT2, sT2, LQ)
    e.valu("v_add_u32", QW, sT2, vL16)
    e.salu("s_lshl_b32", sT2, sW, 13); e.salu("s_add_u32", sT2, sT2, LQ)
    e.valu("v_add_u32", QA, sT2, vL16)
    e.salu("s_lshl_b32", sT2, sW, 2); e.salu("s_add_u32", sT2, sT2, LFLAG)
    e.valu("v_mov_b32", vFLG, sT2)

    def kv4_setup():
        e.salu("s_mul_i32", sT, sW, sSTR); e.salu("s_add_u32", g.sKP, g.sROT, sT); e.salu("s_and_b32", g.sKP, g.sKP, "0x3ffff")
        e.salu("s_add_u32", g.sKP, g.sKP, g.sKVB0); e.salu("s_lshl_b32", g.sLS, sW, 14)
    def kv4_items(tag, base=None):
        its = []
        for srd_, voff, b_ in ((sK, oK, 0), (sV, oV, 8192)):
            for n in range(8):
                if n % 4 == 0:
                    its.append(lambda n=n, b_=b_: e.salu("s_add_u32", "m0", g.sLS, b_ + n * 1024))
                    its.append(lambda n=n: e.salu("s_add_u32", g.sKO, g.sKP, n * 1024))
                its.append(lambda n=n, srd_=srd_, voff=voff: e.dma(voff[n % len(voff)], srd_, g.sKO, off=(n & 3) * 1024, pol=cfg.kv_pol, tag=tag))
        return its
    oKq = [V(32), V(33)]
    def kvq_setup():
        e.salu("s_and_b32", sT, sW, 1); e.salu("s_lshl_b32", sT, sT, 7)
        e.valu("v_xor_b32", oKq[0], sT, oK[0]); e.valu("v_xor_b32", oKq[1], sT, oK[1])
        e.salu("s_lshl_b32", g.sLS, sW, 11); e.salu("s_add_u32", g.sKVB, g.sKVB0, g.sLS); e.salu("s_mov_b32", g.sKP, g.sROT)
    def kvq_items(step):
        its = [lambda: e.salu("s_add_u32", "m0", g.sLS, step * 16384), lambda: e.salu("s_add_u32", g.sKO, g.sKVB, g.sKP)]
        its += [lambda i=i: e.dma(oKq[i], sK, g.sKO, off=i * 1024, pol=cfg.kv_pol, tag=("kv", step)) for i in range(2)]
        its += [lambda: e.salu("s_add_u32", "m0", g.sLS, step * 16384 + 8192), lambda: e.salu("s_add_u32", g.sKP, g.sKP, sSTR)]
        its += [lambda i=i: e.dma(oV[i], sV, g.sKO, off=i * 1024, pol=cfg.kv_pol, tag=("kv", step)) for i in range(2)]
        its += [lambda: e.salu("s_and_b32", g.sKP, g.sKP, "0x3ffff")]
        return its
    kvq_setup()
    def window():
        if cfg.win2:
            e.branch("s_cbranch_vccnz", "4f")
            e._wait(vm=cfg.win2 - cfg.wing)
            e.label("4")
        if cfg.win and len(e.vm_q) > cfg.win - cfg.wing:
            n = cfg.win - cfg.wing
            e._wait(vm=n); e.vm_q = e.vm_q[len(e.vm_q) - n:]
    def ld_setup():
        e.salu("s_cmp_eq_u32", None, sW, 2)
        e.salu("s_cselect_b32", sLD[0], sV[0], sK[0]); e.salu("s_cselect_b32", sLD[1], sV[1], sK[1])
        e.salu("s_mov_b32", sLD[2], hex(1 << 26)); e.salu("s_mov_b32", sLD[3], "0x20000")
        e.salu("s_cselect_b32", g.sLS, 8192, 0)
        e.salu("s_cselect_b64", "vcc", -1, 0)
        e.nop(2)
        for n in range(4): e.ins(f"v_cndmask_b32 {oLD[n]}, {oK[n]}, {oV[n & 1]}, vcc", 'valu', [oK[n], oV[n & 1], 'vcc'], [oLD[n]])
        e.salu("s_lshl_b32", g.sKP, sSTR, 2); e.salu("s_add_u32", g.sKP, g.sROT, g.sKP); e.salu("s_and_b32", g.sKP, g.sKP, "0x3ffff")
        e.salu("s_mov_b32", g.sKVB, g.sKVB0)
        if cfg.win2:
            e.salu("s_mov_b64", "vcc", 0)
    def ld_items(step):
        its = []
        if step == 32: its.append(lambda: e.salu("s_xor_b32", g.sKVB, g.sKVB, 262144))
        for n in range(8):
            if n == 0:
                its.append(lambda: e.salu("s_add_u32", "m0", g.sLS, (step & 3) * 16384)); its.append(lambda: e.salu("s_add_u32", g.sKO, g.sKVB, g.sKP))
            if n == 4:
                its.append(lambda: e.salu("s_add_u32", "m0", g.sLS, (step & 3) * 16384 + 4096)); its.append(lambda: e.salu("s_add_u32", g.sKO, g.sKO, 4096))
            if n % cfg.wing == 0: its.append(window)
            its.append(lambda n=n: e.dma(oLD[n & 3], sLD, g.sKO, off=(n & 3) * 1024, pol=cfg.kv_pol, tag=("kv", step)))
        its.append(lambda: e.salu("s_add_u32", g.sKP, g.sKP, 0 if cfg.dbg_hot else sSTR)); its.append(lambda: e.salu("s_and_b32", g.sKP, g.sKP, "0x3ffff"))
        return its
    def k_reads(step):
        return [lambda kk=kk, kt=kt: e.ds_read("ds_read_b128", Kf(step & 1, kt, kk), KA[kk], (step & 3) * 16384 + kt * 4096, tag="kf")
                for kk in range(4) for kt in range(2)]
    def v_reads(step):
        return [lambda D=D, hi=hi: e.ds_read("ds_read_b64_tr_b16", Vf(step & 1, D)[2 * hi:2 * hi + 2], VA[D], (step & 3) * 16384 + hi * 4096, tag="vf")
                for D in range(8) for hi in range(2)]
    def kb_reads():
        return [lambda kk=kk: e.ds_read("ds_read_b128", Kb[kk], KBA, kk * 64, tag="kf") for kk in range(4)]
    def w_reads(st):
        return [lambda D=D, hi=hi: e.ds_read("ds_read_b64_tr_b16", WF(st & 1, D)[2 * hi:2 * hi + 2], WA[D >> 1],
                                            (st % 3) * 16384 + hi * 512 + (D & 1) * 8, tag="qf") for D in range(4) for hi in range(2)]
    def x_reads(D):
        return [lambda qt=qt, kh=kh: e.ds_read("ds_read_b128", XF((2 * D + kh) % 3, qt), XA[kh], (D & 1) * 18432 + qt * 2048, tag="qf")
                for kh in range(2) for qt in range(9)]
    def run_stage(mfs, rd, fill, span=None):
        nf, n, done = len(fill), span or len(mfs), 0
        for i, m in enumerate(mfs):
            m()
            if rd: rd.popleft()()
            while fill and done * n <= i * nf:
                fill.popleft()(); done += 1
        while rd: rd.popleft()()
        while fill: fill.popleft()()
    GORD = [(dp, 0, i) for dp in range(4) for i in range(2)] + [(0, 1, 0), (0, 1, 1)] + [(dp, 1, i) for i in range(2) for dp in (1, 2, 3)]
    def kpl_items(st, dst):
        dp, h, i = GORD[st]
        return [lambda: e.salu("s_add_u32", dst, g.sHP, dp), lambda: e.salu("s_and_b32", dst, dst, 3),
                lambda: e.salu("s_lshl_b32", dst, dst, 2), lambda: e.salu("s_add_u32", dst, dst, 2 * h + i),
                lambda: e.salu("s_xor_b32", dst, dst, sSW2)]
    def ga_reads(st):
        return [lambda kb=kb, ee=ee, hi=hi: e.ds_read("ds_read_b64_tr_b16", GA(st & 1, kb * 2 + ee)[2 * hi:2 * hi + 2], GWA[st >> 1 & 1],
                                                     (st & 1) * 34816 + kb * 8192 + hi * 4096 + ee * 8, tag="g") for kb in range(2) for ee in range(2) for hi in range(2)]
    def gb_reads(st):
        return [lambda i=i: e.ds_read("ds_read_b128", GB(st & 1, i), GOA[st >> 1 & 1], (st & 1) * 34816 + i * 1024, tag="g") for i in range(18)]
    def full_w_items(st):
        its = kpl_items(st, sU1)
        its += [lambda: e.salu("s_lshl_b32", sU1, sU1, 16), lambda: e.salu("s_add_u32", sU1, sU1, g.sWB)]
        for n in range(16):
            if n % 4 == 0:
                its.append(lambda n=n: e.salu("s_mov_b32", "m0", GSL[st % 4] + n * 1024))
                if n: its.append(lambda: e.salu("s_add_u32", sU1, sU1, 16384))
            its.append(lambda n=n: e.dma(oWo[n & 3], sWO, sU1, off=(n & 3) * 1024, pol=cfg.wo_pol, tag="pre"))
        return its
    def gw_items(st):
        its = kpl_items(st, sU1)
        its += [lambda: e.salu("s_lshl_b32", sU1, sU1, 16), lambda: e.salu("s_add_u32", sU1, sU1, sWBw),
                lambda: e.salu("s_add_u32", "m0", g.sWLG, GSL[st % 4])]
        for i in range(4): its.append(lambda i=i: e.dma(oWo[i], sWO, sU1, off=i * 1024, pol=cfg.wo_pol, tag=("g", st)))
        return its
    def go_items(st):
        its = kpl_items(st, sU0)
        its += [lambda: e.salu("s_mul_i32", sU0, sU0, 18432), lambda: e.salu("s_add_u32", sU0, sU0, sOKw),
                lambda: e.salu("s_add_u32", "m0", g.sOL, GSL[st % 4] + 16384)]
        for i in range(4): its.append(lambda i=i: e.dma(vL16, sWS, sU0, off=i * 1024, pol="sc1", tag=("g", st)))
        its += [lambda: e.salu("s_add_u32", "m0", g.sOL, GSL[st % 4] + 16384 + 4096), lambda: e.salu("s_add_u32", sU0, sU0, 4096),
                lambda: e.dma(vL16, sWS, sU0, pol="sc1", tag=("g", st))]
        return its
    def gwo_items(st):
        w = gw_items(st); o = go_items(st)
        return o[:5] + [lambda: e.salu("s_lshl_b32", sU1, sU0, 16)] + o[5:] + w[6:]
    def code_touch():
        e.salu("s_lshl_b32", sT, g.sIDX, 12)
        e.valu("v_lshlrev_b32", V(109), 6, vL)
        e.valu("v_add_u32", V(109), sT, V(109))
        e.valu("v_min_u32", V(109), "L_end-L_pc-4", V(109))
        e.ins(f"v_add_co_u32 v110, vcc, {sPC[0]}, v109", 'valu', [V(109)], [V(110), 'vcc'])
        e.valu("v_mov_b32", V(111), sPC[1])
        e.ins(f"v_addc_co_u32 v111, vcc, 0, v111, vcc", 'valu', [V(111), 'vcc'], [V(111), 'vcc'])
        e.ins(f"global_load_dword {vD1}, v[110:111], off", 'vmem', [V(110, 2)], [vD1]); e.vm_q.append("cw")
    def warm_items():
        its = [lambda: e.salu("s_lshl_b32", sU0, g.sHG, 5), lambda: e.salu("s_add_u32", sU0, sU0, g.sIDX), lambda: e.salu("s_lshl_b32", sU0, sU0, 15),
               lambda: e.valu("v_lshlrev_b32", vT2, 7, vL)]
        for n in range(4):
            if n: its.append(lambda: e.salu("s_add_u32", sU0, sU0, 8192))
            its.append(lambda n=n: e.bload("buffer_load_dword", vD1, vT2, sWO, sU0, pol=cfg.wo_pol, tag="pre"))
        if not cfg.warm_w: its = []
        its += [lambda: e.salu("s_sub_u32", sU0, g.sOB, g.sWLG), lambda: e.valu("v_lshlrev_b32", vT2, 7, vL)]
        for n in range(5 if cfg.warm_o else 0):
            if n: its.append(lambda n=n: e.salu("s_add_u32", sU0, sU0, 8192 if n < 4 else 4096))
            its.append(lambda: e.bload("buffer_load_dword", vD1, vT2, sWS, sU0, pol=cfg.warm_opol, tag="pre"))
        return its
    def atomic_add(flag, val):
        e.valu("v_mov_b32", vT0, val); e.valu("v_mov_b32", vT1, 0)
        e.salu("s_mov_b64", "exec", 1)
        e.ins(f"buffer_atomic_add {vT0}, {vT1}, {sDBG}, {flag} offen sc1", 'vmem', [vT0, vT1, sDBG, flag], [])
        e.salu("s_mov_b64", "exec", -1)
    def flag_store(line, off, who):
        e.salu("s_lshl_b32", sT, who, 3)
        e.valu("v_mov_b32", V(110), sTAG); e.valu("v_not_b32", V(111), sTAG); e.valu("v_mov_b32", vT1, sT)
        e.salu("s_mov_b64", "exec", 1)
        e.ins(f"buffer_store_dwordx2 v[110:111], {vT1}, {sWS}, {line} offen offset:{off} sc1", 'vmem', [V(110, 2), vT1, sWS, line], [])
        e.salu("s_mov_b64", "exec", -1)
    def flag_load(line, off, tag):
        e.valu("v_and_b32", vT2, 3, vL); e.valu("v_lshlrev_b32", vT2, 3, vT2)
        e.bload("buffer_load_dwordx2", TG, vT2, sWS, line, off=off, pol="sc1", tag=tag)
    def flag_test(who):
        e.valu("v_not_b32", TG[1], TG[1])
        e.valu("v_xor_b32", TG[0], sTAG, TG[0]); e.valu("v_xor_b32", TG[1], sTAG, TG[1]); e.valu("v_or_b32", TG[0], TG[0], TG[1])
        e.vcmp("v_cmp_ne_u32", "vcc", 0, TG[0])
        e.salu("s_lshl_b32", sT, 1, who); e.salu("s_xor_b32", sT, sT, 15)
        e.salu("s_and_b32", sT, sT, "vcc_lo")
        e.salu("s_cmp_eq_u32", None, sT, 0)
    def poll(line, off, lab, who):
        e.salu("s_mov_b32", g.sSP, 1 << 20)
        e.label(lab)
        flag_load(line, off, None)
        e.wait_all_vm()
        flag_test(who)
        e.branch("s_cbranch_scc1", lab + "x")
        e.other(f"s_sleep {cfg.poll_sleep}")
        e.salu("s_sub_u32", g.sSP, g.sSP, 1)
        e.salu("s_cmp_lg_u32", None, g.sSP, 0)
        e.branch("s_cbranch_scc1", lab)
        e.label(lab + "x")
    def read_fail(n):
        e.valu("v_mov_b32", vT1, LFLAG)
        for i in range(n): e.ds_read("ds_read_b128", V(80 + 4 * i, 4), vT1, 16 * i)
        e.wait_all_lds()
        e.valu("v_or_b32", V(80), V(80), V(81)); e.valu("v_or3_b32", V(80), V(80), V(82), V(83))
        if n == 2:
            e.valu("v_or3_b32", V(80), V(80), V(84), V(85)); e.valu("v_or3_b32", V(80), V(80), V(86), V(87))
        e.readfirstlane(sT, V(80))

    if cfg.cw & 2:
        e.salu("s_cmp_lg_u32", None, sW, 2)
        e.branch("s_cbranch_scc1", "1f")
        q_ = list(e.vm_q)
        code_touch()
        e.vm_q = q_
        e.label("1")
    def warm0():
        return [lambda: e.salu("s_lshl_b32", sT, g.sHG, 5), lambda: e.salu("s_add_u32", sT, sT, g.sIDX), lambda: e.salu("s_lshl_b32", sT, sT, 2),
                lambda: e.salu("s_add_u32", sT, sT, sW), lambda: e.salu("s_lshl_b32", sT, sT, 13),
                lambda: e.valu("v_lshlrev_b32", vT0, 7, vL),
                lambda: e.bload("buffer_load_dword", vD1, vT0, sWO, sT, pol=cfg.wo_pol, tag="ww")]
    if cfg.warm == 3 and cfg.warm0 == -1:
        for f in warm0(): f()
    if cfg.plate:
        for f in pro[1]: f()
    if cfg.plate == 1:
        for f in pro[2]: f()
    def xw_warm():
        e.salu("s_lshl_b32", sT, g.sIDX, 2); e.salu("s_add_u32", sT, sT, sW)
        e.salu("s_mul_i32", sT1, sT, 9216); e.valu("v_lshlrev_b32", vT0, 7, vL)
        e.bload("buffer_load_dword", vD1, vT0, sX, sT1, tag="xw"); e.bload("buffer_load_dword", vD1, vT0, sX, sT1, off=1024, tag="xw")
        e.salu("s_lshl_b32", sT1, sT, 15); e.salu("s_lshl_b32", sT2, g.sHG, 11); e.salu("s_add_u32", sT1, sT1, sT2)
        e.valu("v_and_b32", vT0, 15, vL); e.valu("v_lshlrev_b32", vT0, 7, vT0)
        e.valu("v_lshrrev_b32", vT1, 4, vL); e.valu("v_lshl_add_u32", vT0, vT1, 13, vT0)
        e.bload("buffer_load_dword", vD1, vT0, sWQ, sT1, tag="xw")
    def poison(fill):
        PZ = V(36, 4)
        fill.extend([lambda i=i: e.valu("v_mov_b32", PZ[i], -1) for i in range(4)])
        def third():
            e.salu("s_mov_b32", sU1, "0x40000000"); e.salu("s_cmp_eq_u32", None, g.sHG, 0); e.salu("s_cmov_b32", sU1, 8192)
        fill.append(third)
        for s_ in range(1, 4):
            def base(s_=s_):
                e.salu("s_add_u32", sU0, g.sHG, s_); e.salu("s_and_b32", sU0, sU0, 3); e.salu("s_mul_i32", sU0, sU0, 36)
            fill.append(base)
            fill.append(lambda: e.salu("s_add_u32", sU0, sU0, g.sHG))
            fill.append(lambda: e.salu("s_lshl_b32", sU0, sU0, 10))
            fill.append(lambda: e.salu("s_add_u32", sU0, sU0, g.sPB))
            fill.append(lambda: e.bstore("buffer_store_dwordx4", PZ, vL16, sWS, sU0, pol="sc1", tag="pz"))
            fill.append(lambda: e.salu("s_add_u32", sT, sU0, 4096))
            fill.append(lambda: e.bstore("buffer_store_dwordx4", PZ, vL16, sWS, sT, pol="sc1", tag="pz"))
            fill.append(lambda: e.salu("s_add_u32", sT, sU0, sU1))
            fill.append(lambda: e.bstore("buffer_store_dwordx4", PZ, vL16, sWS, sT, pol="sc1", tag="pz"))
    if cfg.inband and cfg.poison_at == -1:
        pz = []; poison(pz)
        for f in pz: f()
    if cfg.xwarm == 1: xw_warm()
    if cfg.qst: stamp(13, True)
    e.wait_vm("p0")
    if cfg.qst: stamp(14, True)
    e.barrier()
    stamp(1)
    for f in w_reads(0) + x_reads(0): f()
    if cfg.plate == 2:
        for f in pro[2]: f()
    if cfg.xwarm == 2: xw_warm()
    kvq = deque(kvq_items(s_) for s_ in range(4))
    def q_out(qt):
        its = []
        for P in range(2):
            src = V(112 + (qt * 4 + 2 * P) * 4, 8)
            its += [lambda i=i, src=src: e.valu("v_pk_mul_f32", src[2 * i:2 * i + 2], src[2 * i:2 * i + 2], V(34, 2)) for i in range(4)]
            its += [lambda i=i, src=src: e.valu("v_cvt_pk_bf16_f32", src[i], src[2 * i], src[2 * i + 1]) for i in range(4)]
            its.append(lambda src=src, P=P: e.ds_write("ds_write_b128", QW, src[0:4], (qt * 4 + P) * 1024))
        return its
    e.valu("v_mov_b32", V(34), g.sSC); e.valu("v_mov_b32", V(35), g.sSC)
    for st in range(16):
        e.comment(f"q-proj stage {st}")
        e.wait_vm({0: "p1", 1: "p2"}.get(st, ("iss", st - 2)))
        if st == 14: e.wait_vm(("kv", 0))
        e.wait_all_lds(); e.barrier()
        if cfg.qst and st in (1, 3, 6, 9, 13): stamp({1: 6, 3: 7, 6: 9, 9: 10, 13: 11}[st], True)
        fill = deque()
        if cfg.plate == 3 and st == 0: fill.extend(pro[2])
        if st // 2 + 2 < 8: fill.extend(x_items(st // 2 + 2, st & 1, ("iss", st)))
        if st + 3 < 16: fill.extend(w_items(st + 3, ("iss", st)))
        if cfg.warm == 3 and cfg.warm0 == st: fill.extend(warm0())
        if cfg.tagpos == 2 and st == 13: tag_propose()
        for _ in range(cfg.kv0_at.split(",").count(str(st))): fill.extend(kvq.popleft())
        if cfg.inband and st == cfg.poison_at: poison(fill)
        if cfg.l2pre and st == cfg.l2pre_at:
            for r in range(cfg.l2pre):
                fill.extend([lambda r=r: e.salu("s_add_u32", sT, sW, 4 + 4 * r), lambda: e.salu("s_lshl_b32", sT, sT, 13), lambda: e.salu("s_add_u32", sT, sT, g.sROT),
                             lambda: e.salu("s_and_b32", sT, sT, "0x3ffff"), lambda: e.salu("s_add_u32", sT, sT, g.sKVB0),
                             lambda: e.valu("v_lshlrev_b32", vT0, 7, vL),
                             lambda: e.bload("buffer_load_dword", vD1, vT0, sK, sT, tag="l2"), lambda: e.bload("buffer_load_dword", vD1, vT0, sV, sT, tag="l2")])
        rd = deque()
        if st + 1 < 16: rd.extend(w_reads(st + 1))
        if st & 1 and st + 1 < 16: rd.extend(x_reads((st + 1) // 2))
        if st == 14: rd.extend(kb_reads() + k_reads(0) + v_reads(0))
        if st == 15:
            fill.append(lambda: e.salu("s_mov_b32", sT1, "0x80008000"))
            fill.extend([lambda kk=kk, i=i: e.valu("v_xor_b32", Kb[kk][i], sT1, Kb[kk][i]) for kk in range(4) for i in range(4)])
        mfs = [lambda qt=qt, D=D: e.mfma16(QACC(D, qt), WF(st & 1, D), XF(st % 3, qt), QACC(D, qt) if st else 0)
               for qt in range(9) for D in range(4)]
        if st < 15 or not cfg.qov: run_stage(mfs, rd, fill)
        else:
            out = deque()
            for i, m in enumerate(mfs):
                m()
                if i % 4 == 3 and i >= 7: out.extend(q_out(i // 4 - 1))
                for _ in range(cfg.qov):
                    if fill: fill.popleft()()
                    elif out: out.popleft()()
            out.extend(q_out(8))
    while kvq:
        for f in kvq.popleft(): f()
    stamp(2)
    if not cfg.qov: out = deque(f for qt in range(9) for f in q_out(qt))
    while out: out.popleft()()
    e.valu("v_mov_b32", vT0, "0x3f803f80")
    for i in range(4): e.valu("v_accvgpr_write_b32", ONES[i], vT0)
    ld_setup()
    e.salu("s_cmp_eq_u32", None, sW, 3)
    e.branch("s_cbranch_scc1", "L_rC")
    e.salu("s_cmp_lg_u32", None, sW, 0)
    e.branch("s_cbranch_scc1", "L_rB")
    hist0 = list(e.hist); vmq0 = list(e.vm_q)

    X8 = 139264
    CAPS = [0, 2, 0, 1, 0, 2, 0, 1, 0, 2, 0, 1, 0, 2, 0, 1, 2]
    for R in "ABC":
        NTW = 2 if R == "B" else 3
        toff = lambda t: ({"A": 8, "C": 2}[R] if t == 2 else t)
        e.hist = list(hist0)
        if R != "A": e.label(f"L_r{R}")
        e.lds_q = ["x"]; e.vm_q = list(vmq0)
        e.salu("s_mul_i32", sT, sSW2, 18432)
        e.valu("v_add_u32", vD1, sT, QA); e.valu("v_add_u32", QA, 36864, QA); e.valu("v_subrev_u32", QA, sT, QA)
        e.valu("v_add_u32", vD0, X8, vL16)
        e.valu("v_add_u32", vOW, g.sWLG, GOA[0])
        def qf_reads(h, addr):
            return [lambda t=t, kk=kk: e.ds_read("ds_read_b128", Qf(h, t, kk), addr, (toff(t) * 4 + kk) * 1024, tag="q") for t in range(NTW) for kk in range(4)]
        def prepass(h):
            e.comment("stand-in for the row max: minus the score of the first key, per row")
            e.salu("s_cmp_lg_u32", None, g.sRETRY, 0)
            e.branch("s_cbranch_scc1", f"L_np{h}{R}")
            if h == 0:
                for f in qf_reads(0, vD1): f()
                e.wait_all_lds()
            else:
                e.salu("s_mov_b32", sT1, "0x80008000")
                for kk in range(4):
                    for i in range(4): e.valu("v_xor_b32", Kb[kk][i], sT1, Kb[kk][i])
            for t in range(NTW):
                for kk in range(4): e.mfma16(NM(h, t), Kb[kk], Qf(h, t, kk), NM(h, t) if kk else 0)
            e.label(f"L_np{h}{R}")
        e.label(f"L_main_{R}")
        e.lds_q = ["x"]
        e.salu("s_mov_b32", g.sFAIL, 0)
        seq = [(s, t) for s in range(32) for t in range(3 if (R == "A" and s % 2 == 0) or (R == "C" and s % 2 == 1) else 2)]
        if not cfg.alt: seq = [(s, t) for s in range(32) for t in range(3 if R == "A" else 2)]
        NT = len(seq)
        first = {s: j for j, (s, t) in reversed(list(enumerate(seq)))}; first[32] = NT
        bpos = {}
        for s in range(1, 33):
            if s % 2 == 0 or R == "B" or not cfg.alt: bpos[(first[s], 0)] = s
            elif R == "A": bpos[(first[s] - 1, 8)] = s
            else: bpos[(first[s], 8)] = s
        def cap_left(j, i):
            n = k = 0
            while True:
                n += CAPS[i]; k += CAPS[i] > 0
                i += 1
                if i == 17: i = 0; j += 1
                if (j, i) in bpos or j > NT: return n, k
        extras = deque(); rds = deque(); lastk = [None]; later = deque()
        def beta(sg):
            while rds: rds.popleft()()
            if sg < 63:
                while extras: extras.popleft()()
            if sg + 1 < 64: e.wait_vm(("kv", sg + 1))
            if R == "C" and sg == 3:
                e.wait_all_vm()
                e.salu("s_cmp_lg_u32", None, g.sRETRY, 0)
                e.branch("s_cbranch_scc1", "6f")
                e.readfirstlane(sT, TG[0])
                e.salu("s_cmp_eq_u32", None, sT, 0)
                e.salu("s_cselect_b32", sT, S(72), sT)
                e.salu("s_mov_b32", sTAG, sT)
                e.valu("v_mov_b32", vT0, sT); e.valu("v_mov_b32", vT1, LFLAG)
                e.ds_write("ds_write_b32", vT1, vT0, 32)
                e.label("6")
            fb = cfg.fb and 4 <= sg < 60
            if fb and R == "C" and sg % 4 == 2:
                e.wait_vm("prg")
                e.vcmp("v_cmp_eq_u32", sM0, sTAG, PG[0]); e.vcmp("v_cmp_le_u32", "vcc", sTRIP, PG[1])
                e.salu("s_and_b32", sT, sM0[0], "vcc_lo"); e.salu("s_and_b32", sT, sT, "0xffff"); e.salu("s_bcnt1_i32_b32", sT, sT)
                e.valu("v_mov_b32", vT0, sT); e.valu("v_mov_b32", vT1, LFLAG)
                e.ds_write("ds_write_b32", vT1, vT0, 36)
            hook = 36 <= sg < 60 and sg % 4 == 0
            if hook:
                if R == "B": assert sg == 36 or "ost0" not in e.vm_q
                else: e.wait_all_vm()
            if R == "C" and sg == 63:
                while extras: extras.popleft()()
                e.wait_vm("fl0")
                flag_test(g.sHP)
                e.branch("s_cbranch_scc1", "L_poll0x")
                e.salu("s_cmp_lg_u32", None, g.sFAIL, 0)
                e.branch("s_cbranch_scc1", "L_poll0x")
                q_ = list(e.vm_q)
                poll(sF1, 0, "L_poll0", g.sHP)
                e.vm_q = q_
            if e.lds_q: e.wait_all_lds()
            if not cfg.dbg_hot & 2: e.barrier()
            for _ in range(cfg.trickle):
                if later and sg > 32: extras.extend(later.popleft())
            if fb and R == "C" and sg % 4 == 0:
                e.salu("s_add_u32", sTRIP, sTRIP, 1)
                e.valu("v_and_b32", vT2, 15, vL); e.valu("v_lshlrev_b32", vT2, 3, vT2)
                e.bload("buffer_load_dwordx2", PG, vT2, sWS, sPL, pol="sc1", tag="prg")
                e.valu("v_mov_b32", V(110), sTAG); e.valu("v_mov_b32", V(111), sTRIP); e.valu("v_mov_b32", vT1, sPS)
                e.salu("s_mov_b64", "exec", 1)
                e.bstore("buffer_store_dwordx2", V(110, 2), vT1, sWS, sPL, pol="sc1")
                e.salu("s_mov_b64", "exec", -1)
            if fb and R == "B" and sg % 4 == 2:
                e.valu("v_mov_b32", vT1, LFLAG)
                e.ds_read("ds_read_b32", vD1, vT1, 36)
            if fb and R == "B" and sg % 4 == 3:
                e.readfirstlane(sT, vD1)
                e.salu("s_cmp_ge_u32", None, sT, cfg.fb)
                e.salu("s_cselect_b64", "vcc", -1, 0)
            if R == "B" and not cfg.dbg_hot & 8:
                if 4 <= sg + cfg.la < 64: extras.extend(ld_items(sg + cfg.la))
            if R == "A" and sg in (33, 34): extras.extend(full_w_items(sg - 33))
            if sg == 2:
                e.salu("s_cmp_lg_u32", None, g.sRETRY, 0)
                e.branch("s_cbranch_scc1", "6f")
                for f in qf_reads(1, QA): f()
                e.lds_q = []
                e.label("6")
            if sg == 63: extras.extend(gw_items(2) + go_items(2) + gw_items(3) + go_items(3))
            if R == "A" and cfg.cw and sg % 4 == 0 and 4 <= sg % 32 < 28:
                e.salu("s_cmp_lg_u32", None, g.sCNT, cfg.cw_trip)
                e.branch("s_cbranch_scc1", "1f")
                q_ = list(e.vm_q)
                code_touch()
                e.vm_q = q_
                e.label("1")
            if R == "C":
                if hook:
                    e.salu("s_cmp_lg_u32", None, g.sCNT, cfg.sig_trip)
                    e.branch("s_cbranch_scc1", "1f")
                    read_fail(1)
                    e.salu("s_andn2_b32", g.sFAIL, sT, g.sRETRY)
                    e.salu("s_or_b32", sT, g.sFAIL, g.sPUB)
                    e.salu("s_cmp_lg_u32", None, sT, 0)
                    e.branch("s_cbranch_scc1", "1f")
                    flag_store(sF1, 0, g.sHP)
                    e.label("1")
                    if cfg.warm == 2:
                        e.salu("s_cmp_lg_u32", None, g.sCNT, cfg.warm_trip)
                        e.branch("s_cbranch_scc1", "2f")
                        for f in warm_items(): f()
                        e.label("2")
                if sg == cfg.pre_step:
                    flag_load(sF1, 0, "fl0")
                if sg == cfg.pre_step and cfg.warm == 1: extras.extend(warm_items())
                if cfg.warm == 3 and sg % cfg.warm_per == 0 and sg < 64: extras.extend(warm_items())
                if sg % 32 == 0 and sg and cfg.alt:
                    rds.append(lambda: e.ds_read("ds_read_b32", V(144), vD0, 8192, tag="x8"))
                    rds.extend([lambda D=D: e.ds_read("ds_read_b128", V(112 + 4 * D, 4), vD0, D * 1024, tag="x8") for D in range(8)])
            if sg + 1 < 64 and not cfg.dbg_hot & 4:
                kr = k_reads(sg + 1); rds.extend(kr); lastk[0] = kr[-1]
                if sg + 1 == 32: rds.extend(kb_reads())
        def slot(h, j):
            e.comment(f"slot")
            mf = []
            jq, jp = j + 1, j - 1
            if jq < NT:
                s, t = seq[jq]
                for kk in range(4):
                    for kt in range(2):
                        def m(kk=kk, kt=kt):
                            d = Sb[jq % 2][4 * kt:4 * kt + 4]
                            e.mfma16(d, Kf(s & 1, kt, kk), Qf(h, t, kk), d if kk else NM(h, t))
                        mf.append(m)
            else:
                mf += [None] * 8
            if jp >= 0:
                s2, t2 = seq[jp]
                acc = any(t_ == t2 for _, t_ in seq[:jp])
                for D in range(8):
                    mf.append(lambda D=D: e.mfma16(Oacc(t2, D), Vf(s2 & 1, D), Pb[jp % 2], Oacc(t2, D) if acc else 0))
                mf.append(lambda: e.mfma16(Lb[t2], ONES, Pb[jp % 2], Lb[t2] if acc else 0))
            else:
                mf += [None] * 9
            sm = 0 <= j < NT
            Sx, Px = Sb[j % 2], Pb[j % 2]
            E = lambda i: (lambda: e.valu("v_exp_f32", Sx[i], Sx[i])) if sm else None
            C = lambda i: (lambda: e.valu("v_cvt_pk_bf16_f32", Px[i], Sx[2 * i], Sx[2 * i + 1])) if sm else None
            base = [E(0), None, E(1), C(0), E(2), None, E(3), C(1), E(4), None, E(5), C(2), E(6), None, E(7), C(3), None]
            vre = deque()
            sfirst = [s_ for s_, j_ in first.items() if j_ == j and s_ > 0]
            if sfirst and 32 * h + sfirst[0] + 1 < 64 and not cfg.dbg_hot & 4: vre = deque(v_reads(32 * h + sfirst[0] + 1))
            if R == "A" and j == NT - 1 and cfg.alt:
                rds.extend([lambda D=D: e.ds_write("ds_write_b128", vD0, Oacc(2, D), D * 1024) for D in range(8)])
                rds.append(lambda: e.ds_write("ds_write_b32", vD0, Lb[2][0], 8192))
            for i in range(17):
                if (j, i) in bpos: beta(32 * h + bpos[(j, i)])
                if i == 0 and jq < NT and jq > 0 and seq[jq][1] == 0:
                    while lastk[0] in rds: rds.popleft()()
                    e.wait_lds("kf")
                if mf[i]: mf[i]()
                if 8 <= i < 16 and vre:
                    rds.append(vre.popleft()); rds.append(vre.popleft())
                if base[i]: base[i]()
                cap = CAPS[i] if sm else 2
                if CAPS[i]:
                    nq = len(rds) + (0 if ((j, 8) in bpos and i < 8) else len(vre)) + min(len(extras), 24)
                    nxt = [s_ for s_, j_ in first.items() if j_ == j + 1]
                    if R == "A" and nxt and nxt[0] % 2 == 1 and i >= 8 and cfg.alt: nq += 16
                    left, k = cap_left(j, i)
                    left -= 3
                    if nq > left: cap += -(-(nq - left) // max(1, k - 1))
                    elif cfg.thin and sm and cap == 2 and nq <= k - 2 and not (lastk[0] in rds and jq + 1 < NT and seq[jq + 1][1] == 0): cap = 1
                for c in range(cap):
                    if rds and (not extras or c != 1): rds.popleft()()
                    elif extras: extras.popleft()()
        def epilogue(h):
            NE = 2 if R != ("C" if cfg.alt else "A") else 3
            LV = [V(32 + 2 * t, 2) for t in range(3)]
            bad = cfg.force_fallback >> h & 1
            if h == 0:
                e.valu("v_mov_b32", vT0, LFLAG)
                e.ds_read("ds_read_b32", TG[0], vT0, 32, tag="tg")
            e.salu("s_mov_b32", sT, hex(f2u(0.25 if bad else cfg.lthresh)))
            e.salu("s_mov_b64", sM0, 0)
            for t in range(NE): e.valu("v_accvgpr_read_b32", LV[t][0], Lb[t][0])
            if R == "C" and cfg.alt:
                e.wait_lds("x8")
                e.valu("v_add_f32", LV[2][0], LV[2][0], V(144))
            for t in range(NE):
                e.vcmp("v_cmp_nge_f32", sM1, sT, LV[t][0])
                e.salu("s_or_b64", sM0, sM0, sM1)
            for t in range(NE): e.valu("v_rcp_f32", LV[t][0], LV[t][0])
            e.salu("s_or_b32", sT, sM0[0], sM0[1])
            e.valu("v_mov_b32", vT0, sT)
            e.ds_write("ds_write_b32", vFLG, vT0, 16 * h)
            for t in range(NE): e.valu("v_mov_b32", LV[t][1], LV[t][0])
            if h == 0:
                e.salu("s_cmp_lg_u32", None, g.sPUB, 0)
                e.salu("s_cselect_b32", sM0[0], "0x40000000", g.sOB)
            if R == "C" and cfg.alt:
                for i in range(16): e.valu("v_pk_add_f32", V(224 + 2 * i, 2), V(224 + 2 * i, 2), V(112 + 2 * i, 2))
            if h == 1:
                g0 = deque(ga_reads(0) + gb_reads(0))
                for t in reversed(range(NE)):
                    for blk in reversed(range(4)):
                        for _ in range(4):
                            if g0: g0.popleft()()
                        o = V(160 + (t * 8 + 2 * blk) * 4, 8); d = OPK(t, blk)
                        for i in range(4): e.valu("v_pk_mul_f32", o[2 * i:2 * i + 2], o[2 * i:2 * i + 2], LV[t])
                        for i in reversed(range(4)): e.valu("v_cvt_pk_bf16_f32", d[i], o[2 * i], o[2 * i + 1])
                        if cfg.st_stage < 0:
                            if blk & 1: e.salu("s_add_u32", sT, sOB1, (blk >> 1) * 18432 + t * 2048)
                            e.bstore("buffer_store_dwordx4", d, vL16, sWS, sT, off=(blk & 1) * 1024, pol=cfg.ost_pol, tag="ost")
                return
            n = 0
            for bh in range(2):
                for t in range(NE):
                    for bl in range(2):
                        blk = 2 * bh + bl
                        o = V(160 + (t * 8 + 2 * blk) * 4, 8)
                        d = V(112 + 4 * n, 4)
                        n += 1
                        for i in range(4): e.valu("v_pk_mul_f32", o[2 * i:2 * i + 2], o[2 * i:2 * i + 2], LV[t])
                        for i in range(4): e.valu("v_cvt_pk_bf16_f32", d[i], o[2 * i], o[2 * i + 1])
                        e.ds_write("ds_write_b128", vOW, d, bh * 34816 + toff(t) * 2048 + bl * 1024)
                        st_ = [lambda bh=bh, t=t: e.salu("s_add_u32", sT, sM0[0], bh * 18432 + toff(t) * 2048),
                               lambda d=d, bl=bl: e.bstore("buffer_store_dwordx4", d, vL16, sWS, sT, off=bl * 1024, pol=cfg.ost_pol, tag="ost0")]
                        if cfg.trickle and n > cfg.trickle0: later.append(st_)
                        else:
                            for f in st_: f()
                        for _ in range(3):
                            if rds: rds.popleft()()
                            elif extras: extras.popleft()()
        for h in range(2):
            if h == 0:
                beta(0); rds.extend(v_reads(1))
                for _ in range(6):
                    if extras: extras.popleft()()
            prepass(h)
            if h == 0: stamp(3)
            chunks = []; save = e.lines
            bounds = [-1] + [first[s] for s in range(cfg.chunk0, 32, 4)] + [NT + 1]
            for a_, b_ in zip(bounds[:-1], bounds[1:]):
                e.lines = []
                for j in range(a_, b_): slot(h, j)
                chunks.append(e.lines)
            e.lines = save
            i = 0; nl = 0
            while i < len(chunks):
                k = i
                while k + 1 < len(chunks) and chunks[k + 1] == chunks[i]: k += 1
                if k > i:
                    nl += 1; lab = f"L_loop_{R}{h}{nl}"
                    e.lines.append(f"    s_mov_b32 {g.sCNT}, {k - i + 1}")
                    e.lines.append(lab + ":")
                    e.lines += chunks[i]
                    e.lines += [f"    s_sub_u32 {g.sCNT}, {g.sCNT}, 1", f"    s_cmp_lg_u32 {g.sCNT}, 0", f"    s_cbranch_scc1 {lab}"]
                else:
                    e.lines += chunks[i]
                i = k + 1
            if h:
                while extras: extras.popleft()()
            stamp(4 if h else 12)
            epilogue(h)
            if h == 0:
                e.wait_lds("tg")
                e.readfirstlane(sTAG, TG[0])
                if cfg.inband and cfg.poison_at < 100:
                    assert "pz" not in e.vm_q
                    flag_store(sF2, 32, g.sHG); e.vm_q.append("fs")
                stamp(13)
        while extras: extras.popleft()()
        e.wait_vm("pre")
        e.wait_all_lds(); e.barrier()
        read_fail(2)
        e.salu("s_andn2_b32", sT, sT, g.sRETRY)
        e.salu("s_cmp_eq_u32", None, sT, 0)
        e.branch("s_cbranch_scc1", "L_gemm")
        read_fail(1)
        e.salu("s_cmp_eq_u32", None, sT, 0)
        e.salu("s_cselect_b32", g.sPUB, 1, 0)
        e.salu("s_mov_b32", g.sRETRY, -1)
        e.wait_all()
        kv_addr_init()
        for h in range(2):
            MX = [V(48 + t) for t in range(3)]
            for t in range(NTW): e.valu("v_mov_b32", MX[t], "0xff800000")
            e.salu("s_mov_b32", g.sCNT, 32)
            e.salu("s_xor_b32", g.sKP, g.sKVB0, h * 262144); e.salu("s_mov_b32", g.sLS, 0)
            e.label(f"L_max_{R}{h}")
            e.barrier()
            if R == "A":
                for f in kv4_items("m")[:12]: f()
                e.wait_all_vm()
            e.salu("s_add_u32", g.sKP, g.sKP, 8192)
            e.barrier()
            for f in k_reads(0): f()
            e.wait_all_lds()
            for t in range(NTW):
                for kk in range(4):
                    for kt in range(2):
                        d = Sb[0][4 * kt:4 * kt + 4]
                        e.mfma16(d, Kf(0, kt, kk), Qf(h, t, kk), d if kk else 0)
                for i in range(4): e.valu("v_max3_f32", MX[t], Sb[0][2 * i], Sb[0][2 * i + 1], MX[t])
            e.salu("s_sub_u32", g.sCNT, g.sCNT, 1)
            e.salu("s_cmp_lg_u32", None, g.sCNT, 0)
            e.branch("s_cbranch_scc1", f"L_max_{R}{h}")
            for t in range(NTW):
                for op in ("v_permlane32_swap_b32", "v_permlane16_swap_b32"):
                    e.valu("v_mov_b32", vT0, MX[t])
                    e.perm(op, vT0, MX[t])
                    e.valu("v_max_f32", MX[t], vT0, MX[t])
                for i in range(4): e.valu("v_sub_f32", NM(h, t)[i], 0, MX[t])
        e.barrier()
        kv4_setup()
        for f in kv4_items("m"): f()
        ld_setup()
        e.wait_all_vm(); e.barrier()
        for f in k_reads(0) + v_reads(0): f()
        e.wait_all_lds()
        e.flush_hazards(8)
        e.branch("s_branch", f"L_main_{R}")

    e.label("L_gemm")
    e.hist = []; e.lds_q = []; e.vm_q = ["ost"]
    stamp(5)
    e.vm_q = [("g", 2)] * 9 + [("g", 3)] * 9 + (["ost"] * 8 if cfg.st_stage < 0 else [])
    PS = cfg.poll_stage
    mark = [0]
    assert cfg.st_stage < cfg.sig_stage < PS and 6 <= PS <= 8 and (cfg.own_lds or cfg.sig_stage <= 4)
    def o2_items(kind, bh):
        def one(t, bl):
            if kind == "st":
                if bl == 0: e.salu("s_add_u32", sT, sOB1, bh * 18432 + t * 2048)
                e.bstore("buffer_store_dwordx4", OPK(t, 2 * bh + bl), vL16, sWS, sT, off=bl * 1024, pol=cfg.ost_pol, tag="ost")
            else:
                e.ds_write("ds_write_b128", vOW, OPK(t, 2 * bh + bl), bh * 34816 + t * 2048 + bl * 1024)
        def third():
            e.salu("s_cmp_lg_u32", None, sW, 3)
            e.branch("s_cbranch_scc1", "5f")
            q_ = (list(e.vm_q), list(e.lds_q))
            one(2, 0); one(2, 1)
            e.vm_q, e.lds_q = q_
            e.label("5")
        return [third] + [lambda t=t, bl=bl: one(t, bl) for t in range(2) for bl in range(2)]
    for st in range(16):
        e.comment(f"o-proj stage {st}")
        if st == cfg.sig_stage:
            if cfg.sig_drain: e.wait_all_vm()
            else: e.wait_vm("ost")
        if st == PS:
            e.salu("s_cmp_lg_u32", None, sW, 0)
            e.branch("s_cbranch_scc1", "L_poll1x")
            q_ = list(e.vm_q)
            e._wait(vm=len(e.vm_q) - mark[0])
            flag_test(g.sHP)
            e.branch("s_cbranch_scc1", "L_poll1x")
            poll(sF1, 32, "L_poll1", g.sHP)
            e.vm_q = q_
        if cfg.inband and st == cfg.poison_at - 100 + 4:
            e.wait_vm("pz")
            flag_store(sF2, 32, g.sHG)
        if cfg.inband and st == cfg.ann_stage:
            e.wait_vm("f3")
            flag_test(g.sHG)
            e.branch("s_cbranch_scc1", "L_poll3x")
            q_ = list(e.vm_q)
            poll(sF2, 32, "L_poll3", g.sHG)
            e.vm_q = q_
        if st + 1 < 16: e.wait_vm(("g", st + 1))
        if st:
            e.wait_all_lds(); e.barrier()
        if st == cfg.sig_stage:
            e.salu("s_cmp_lg_u32", None, sW, 3)
            e.branch("s_cbranch_scc1", "L_sig1")
            flag_store(sF1, 32, g.sHP)
            e.label("L_sig1")
            stamp(6)
        if st == PS: stamp(7)
        if st == 2: stamp(14)
        if cfg.gst and 1 <= st <= 11: stamp((1, 2, 3, 6, 7, 9, 10, 11, 12, 13, 14)[st - 1], True)
        fill = deque()
        if st == PS - 1:
            def fl1():
                e.salu("s_cmp_lg_u32", None, sW, 0)
                e.branch("s_cbranch_scc1", "7f")
                flag_load(sF1, 32, None); e.vm_q.pop()
                e.label("7")
                mark[0] = len(e.vm_q)
            fill.append(fl1)
        if cfg.inband and st == cfg.poison_at - 100: poison(fill)
        if cfg.inband and st == cfg.ann_stage - 2: fill.append(lambda: flag_load(sF2, 32, "f3"))
        if cfg.inband and st == cfg.ann_stage: fill.append(lambda: flag_store(sF2, 0, g.sHG))
        if cfg.inband and st == 15: fill.extend([lambda: None] * 2 + [lambda: flag_load(sF2, 0, "f2")])
        if st == PS:
            for s2 in range(10, st + 4): fill.extend(go_items(s2))
        if st == cfg.st_stage: fill.extend(o2_items("st", 0))
        if st == cfg.st_stage + cfg.st_split: fill.extend(o2_items("st", 1))
        if st + 4 < 16:
            if st + 4 in (8, 9) and cfg.own_lds: fill.extend(gw_items(st + 4) + o2_items("lds", st - 4))
            elif st + 4 < 10 or st >= PS: fill.extend(gwo_items(st + 4))
            else: fill.extend(gw_items(st + 4))
        rd = deque(ga_reads(st + 1) + gb_reads(st + 1)) if st + 1 < 16 else deque()
        mfs = [lambda qt=qt, kb=kb, ee=ee: e.mfma16(GC(qt, ee), GA(st & 1, kb * 2 + ee), GB(st & 1, qt * 2 + kb), GC(qt, ee) if (st or kb) else 0)
               for kb in range(2) for qt in range(9) for ee in range(2)]
        run_stage(mfs, rd, fill, span=20 if (st + 1 == cfg.sig_stage and cfg.sig_drain) else None)
    stamp(8)
    e.salu("s_mul_i32", sU0, g.sB, 144 * 2048); e.salu("s_lshl_b32", sT, g.sBR, 10); e.salu("s_add_u32", sU0, sU0, sT)
    e.salu("s_lshl_b32", sT, g.sHP, 8); e.salu("s_add_u32", sU0, sU0, sT); e.salu("s_lshl_b32", sT, sW, 6); e.salu("s_add_u32", sU0, sU0, sT)
    e.salu("s_mov_b32", sT1, "0xffff0000")
    for j in range(1, 4):
        e.salu("s_cmp_eq_u32", None, g.sHG, j)
        e.branch("s_cbranch_scc1", f"L_fin{j}")
    h1 = list(e.hist)
    for j in range(4):
        if j: e.label(f"L_fin{j}")
        e.hist = list(h1); e.vm_q = []; e.lds_q = []
        own = [qt for qt in range(9) if qt % 4 == j]
        if cfg.inband: e.vm_q = ["f2"]
        else: flag_load(sF2, 0, "f2")
        for qt in range(9):
            if qt in own: continue
            o = V(112 + qt * 8, 8)
            for i in range(4): e.valu("v_cvt_pk_bf16_f32", o[i], o[2 * i], o[2 * i + 1])
            if cfg.inband:
                for i in range(4): e.valu("v_min_u32", o[i], -2, o[i])
            e.salu("s_add_u32", sT2, g.sPB, j * 36864 + qt * 1024)
            e.bstore("buffer_store_dwordx4", o[0:4], vL16, sWS, sT2, pol="sc1")
        if cfg.inband: e.wait_vm("f2")
        else:
            e.wait_all_vm()
            flag_store(sF2, 0, g.sHG)
        stamp(9)
        flag_test(g.sHG)
        e.branch("s_cbranch_scc1", f"L_poll2{j}x")
        poll(sF2, 0, f"L_poll2{j}", g.sHG)
        PB = lambda s, n: V(184 + (s * 3 + n) * 4, 4)
        srcs = [s for s in range(4) if s != j]
        if cfg.inband:
            e.salu("s_mov_b32", g.sSP, 1 << 20)
            e.label(f"L_get{j}")
        else: stamp(10)
        for n, qt in enumerate(own):
            for si, s in enumerate(srcs):
                e.salu("s_add_u32", sT2, g.sPB, s * 36864 + qt * 1024)
                e.bload("buffer_load_dwordx4", PB(si, n), vL16, sWS, sT2, pol="sc1", tag=(si, n))
        if cfg.inband:
            e.wait_all_vm()
            ws_ = [PB(si, n)[i] for n in range(len(own)) for si in range(3) for i in range(4)]
            e.valu("v_max_u32", vT0, ws_[0], ws_[1])
            for i in range(2, len(ws_), 2): e.valu("v_max3_u32", vT0, ws_[i], ws_[i + 1], vT0)
            e.vcmp("v_cmp_eq_u32", "vcc", -1, vT0)
            e.salu("s_cmp_eq_u64", None, "vcc", 0)
            e.branch("s_cbranch_scc1", f"L_get{j}x")
            e.salu("s_sub_u32", g.sSP, g.sSP, 1)
            e.salu("s_cmp_lg_u32", None, g.sSP, 0)
            e.branch("s_cbranch_scc1", f"L_get{j}")
            e.label(f"L_get{j}x")
            stamp(10)
        for n, qt in enumerate(own):
            o = V(112 + qt * 8, 8)
            for si in range(3):
                p = PB(si, n)
                e.wait_vm((si, n))
                for i in range(4):
                    e.valu("v_lshlrev_b32", vT0, 16, p[i]); e.valu("v_and_b32", vT1, sT1, p[i])
                    e.valu("v_add_f32", o[2 * i], o[2 * i], vT0); e.valu("v_add_f32", o[2 * i + 1], o[2 * i + 1], vT1)
            for i in range(4): e.valu("v_cvt_pk_bf16_f32", o[i], o[2 * i], o[2 * i + 1])
            e.salu("s_add_u32", sT2, sU0, qt * 32768)
            e.bstore("buffer_store_dwordx4", o[0:4], vST, sOUT, sT2, pol=cfg.out_pol)
        stamp(11)
        stamp_flush()
        e.other("s_endpgm")
    e.label("L_done")
    e.other("s_endpgm")
    e.label("L_end")

def generate(cfg, fn):
    e = Em()
    e.raw('.amdgcn_target "amdgcn-amd-amdhsa--gfx950"'); e.raw(".text")
    gen(e, cfg, NAME + "_kernel")
    top = ("; attention block in one launch: q-projection, attention, output projection; generated by dev/gen5.py\n"
           "; @launch grid=(256,1,1) block=(256,1,1) lds=163840\n")
    tail = '.section .rodata,"a"\n' + descriptor(NAME + "_kernel", 512, 102, 256)
    open(fn, "w").write(top + e.text() + tail)
    return e

if __name__ == "__main__":
    cfg = Cfg()
    fn = sys.argv[1] if len(sys.argv) > 1 else "k.s"
    for kv in sys.argv[2:]:
        k, v = kv.split("=", 1)
        cur = getattr(cfg, k)
        setattr(cfg, k, type(cur)(int(v)) if isinstance(cur, (bool, int)) and not isinstance(cur, float) else (float(v) if isinstance(cur, float) else v))
    e = generate(cfg, fn)
    print(fn, "lines", len(e.lines), "nop states", e.nops)
```

```python
import re

def R(kind, lo, n=1):
    return f"{kind}{lo}" if n == 1 else f"{kind}[{lo}:{lo+n-1}]"

class Reg:
    def __init__(self, kind, lo, n=1):
        self.kind, self.lo, self.n = kind, lo, n
    def __str__(self):
        return R(self.kind, self.lo, self.n)
    def __getitem__(self, i):
        if isinstance(i, slice):
            a = i.start or 0; b = i.stop if i.stop is not None else self.n
            assert 0 <= a < b <= self.n, (a, b, self.n)
            return Reg(self.kind, self.lo + a, b - a)
        assert 0 <= i < self.n, (i, self.n)
        return Reg(self.kind, self.lo + i, 1)
    def set(self):
        return {(self.kind, self.lo + i) for i in range(self.n)}

def V(lo, n=1): return Reg('v', lo, n)
def A(lo, n=1): return Reg('a', lo, n)
def S(lo, n=1): return Reg('s', lo, n)

def regset(xs):
    s = set()
    for x in xs:
        if isinstance(x, Reg): s |= x.set()
        elif isinstance(x, str) and x in ('vcc', 'm0', 'exec', 'scc'): s.add((x, 0))
        elif isinstance(x, str) and x in ('vcc_lo', 'vcc_hi'): s.add(('vcc', 0))
    return s

TRANS = ('v_exp_f32', 'v_rcp_f32', 'v_log_f32', 'v_rsq_f32', 'v_sqrt_f32')

class Em:
    def __init__(self):
        self.lines = []
        self.hist = []
        self.lds_q = []
        self.vm_q = []
        self.nops = 0
    def raw(self, t): self.lines.append(t)
    def comment(self, t): self.lines.append("    ; " + t)
    def label(self, l):
        self.lines.append(l + ":")
    def _push(self, text, kind, reads, writes, extra=None, states=1):
        self.lines.append("    " + text)
        self.hist.append((kind, reads, writes, extra, states))
        if len(self.hist) > 40: self.hist.pop(0)
    def nop(self, n):
        while n > 0:
            k = min(n, 16)
            self._push(f"s_nop {k-1}", 'nop', set(), set(), None, k)
            self.nops += k
            n -= k
    def _need(self, kind, reads, writes, extra):
        need = 0; dist = 0
        for (pk, pr, pw, pe, st) in reversed(self.hist):
            req = 0
            isvalu = kind in ('valu', 'trans', 'perm', 'readlane')
            pvalu = pk in ('valu', 'trans', 'perm', 'readlane')
            vw = {r for r in pw if r[0] in ('v', 'a')}
            sw = {r for r in pw if r[0] in ('s', 'vcc')}
            if pvalu:
                if kind == 'mfma' and vw & reads: req = max(req, 2)
                if kind == 'perm' and vw & reads: req = max(req, 2)
                if kind == 'readlane' and vw & reads: req = max(req, 1)
                if pk == 'trans' and isvalu and kind != 'trans' and vw & reads: req = max(req, 1)
                if kind in ('vmem',) and sw & reads: req = max(req, 5)
                if isvalu and sw & reads: req = max(req, 2)
                if kind == 'salu' and sw & reads: req = max(req, 1)
            if pk == 'mfma':
                passes = pe['passes']; D = pw; big = {2: 5, 4: 8, 8: 12, 16: 20}[passes]
                if kind == 'mfma':
                    if D & extra['ab']: req = max(req, big)
                    c = extra['c']
                    if D & c and not (c == D and extra['passes'] == passes):
                        req = max(req, {2: 4, 4: 6, 8: 10, 16: 18}[passes])
                    if D & c and passes == 2: req = max(req, 2)
                    if D & writes and not (c == D): req = max(req, big)
                elif isvalu or kind in ('vmem', 'ds'):
                    if D & (reads | writes): req = max(req, big)
                if isvalu and pe['c'] & writes: req = max(req, {2: 1, 4: 3, 8: 7, 16: 15}[passes])
            if pk == 'salu' and ('m0', 0) in pw and kind == 'vmem' and ('m0', 0) in reads: req = max(req, 1)
            if pk == 'vmem' and pe and pe.get('wide_store') and (pe['wide_store'] & writes):
                req = max(req, 2)
            if pk == 'ds' and pe and pe.get('wide_store') and (pe['wide_store'] & writes) and isvalu:
                req = max(req, 2)
            need = max(need, req - dist)
            dist += st
            if dist >= 24: break
        return need
    def ins(self, text, kind, reads=(), writes=(), extra=None):
        r = regset(reads); w = regset(writes)
        n = self._need(kind, r, w, extra)
        if n > 0: self.nop(n)
        self._push(text, kind, r, w, extra)
    def salu(self, op, dst, *srcs):
        ops = ([dst] if dst is not None else []) + list(srcs)
        self.ins(f"{op} " + ", ".join(str(x) for x in ops), 'salu', srcs, [dst] if dst is not None else [])
    def valu(self, op, dst, *srcs, rmw=False, mods=""):
        kind = 'trans' if op in TRANS else 'valu'
        rd = list(srcs) + ([dst] if rmw else [])
        self.ins(f"{op} {dst}, " + ", ".join(str(x) for x in srcs) + mods, kind, rd, [dst])
    def vcmp(self, op, dst, a, b):
        self.ins(f"{op} {dst}, {a}, {b}", 'valu', [a, b], [dst])
    def perm(self, op, a, b):
        self.ins(f"{op} {a}, {b}", 'perm', [a, b], [a, b])
    def readfirstlane(self, dst, src):
        self.ins(f"v_readfirstlane_b32 {dst}, {src}", 'readlane', [src], [dst])
    def mfma16(self, d, a, b, c):
        cs = regset([c]) if isinstance(c, Reg) else set()
        ex = {'passes': 4, 'ab': regset([a, b]), 'c': cs}
        self.ins(f"v_mfma_f32_16x16x32_bf16 {d}, {a}, {b}, {c}", 'mfma', [a, b] + ([c] if isinstance(c, Reg) else []), [d], ex)
    def mfma4(self, d, a, b, c):
        cs = regset([c]) if isinstance(c, Reg) else set()
        ex = {'passes': 2, 'ab': regset([a, b]), 'c': cs}
        self.ins(f"v_mfma_f32_4x4x4_16b_bf16 {d}, {a}, {b}, {c}", 'mfma', [a, b] + ([c] if isinstance(c, Reg) else []), [d], ex)
    def mfma32(self, d, a, b, c):
        cs = regset([c]) if isinstance(c, Reg) else set()
        ex = {'passes': 8, 'ab': regset([a, b]), 'c': cs}
        self.ins(f"v_mfma_f32_32x32x16_bf16 {d}, {a}, {b}, {c}", 'mfma', [a, b] + ([c] if isinstance(c, Reg) else []), [d], ex)
    def ds_read(self, op, dst, addr, off=0, tag=None):
        assert 0 <= off <= 65535, off
        self.ins(f"{op} {dst}, {addr}" + (f" offset:{off}" if off else ""), 'ds', [addr], [dst])
        self.lds_q.append(tag)
    def ds_write(self, op, addr, src, off=0, tag=None):
        assert 0 <= off <= 65535, off
        self.ins(f"{op} {addr}, {src}" + (f" offset:{off}" if off else ""), 'ds', [addr, src], [], {'wide_store': regset([src]) if src.n >= 3 else set()})
        self.lds_q.append(tag)
    def dma(self, voff, srd, soff, off=0, pol="", tag=None):
        assert 0 <= off <= 4095
        self.ins(f"buffer_load_dwordx4 {voff}, {srd}, {soff} offen" + (f" offset:{off}" if off else "") + (f" {pol}" if pol else "") + " lds",
                 'vmem', [voff, srd, soff, 'm0'], [])
        self.vm_q.append(tag)
    def bload(self, op, dst, voff, srd, soff, off=0, pol="", tag=None):
        assert 0 <= off <= 4095
        self.ins(f"{op} {dst}, {voff}, {srd}, {soff} offen" + (f" offset:{off}" if off else "") + (f" {pol}" if pol else ""),
                 'vmem', [voff, srd, soff], [dst])
        self.vm_q.append(tag)
    def bstore(self, op, src, voff, srd, soff, off=0, pol="", tag=None):
        assert 0 <= off <= 4095
        self.ins(f"{op} {src}, {voff}, {srd}, {soff} offen" + (f" offset:{off}" if off else "") + (f" {pol}" if pol else ""),
                 'vmem', [src, voff, srd, soff], [], {'wide_store': regset([src]) if src.n >= 3 else set()})
        self.vm_q.append(tag)
    def _wait(self, vm=None, lg=None):
        t = "s_waitcnt" + (f" vmcnt({vm})" if vm is not None else "") + (f" lgkmcnt({lg})" if lg is not None else "")
        self._push(t, 'wait', set(), set())
    def wait_lds(self, tag):
        idx = [i for i, t in enumerate(self.lds_q) if t == tag]
        if not idx: return
        n = len(self.lds_q) - 1 - idx[-1]
        n = min(n, 15)
        self._wait(lg=n)
        self.lds_q = self.lds_q[len(self.lds_q) - n:] if n else []
    def wait_vm(self, tag, slack=0):
        idx = [i for i, t in enumerate(self.vm_q) if t == tag]
        if not idx: return
        n = len(self.vm_q) - 1 - idx[-1] - slack
        n = max(0, min(n, 63))
        self._wait(vm=n)
        self.vm_q = self.vm_q[len(self.vm_q) - n:] if n else []
    def wait_all_lds(self):
        self._wait(lg=0); self.lds_q = []
    def wait_all_vm(self):
        self._wait(vm=0); self.vm_q = []
    def wait_all(self):
        self._wait(vm=0, lg=0); self.vm_q = []; self.lds_q = []
    def barrier(self):
        self._push("s_barrier", 'other', set(), set())
    def branch(self, op, label):
        self._push(f"{op} {label}", 'other', set(), set())
    def other(self, t):
        self._push(t, 'other', set(), set())
    def flush_hazards(self, n=20):
        self.nop(n)
    def text(self):
        return "\n".join(self.lines) + "\n"
```

```python
import sys, struct
from collections import deque
from asmlib import *

NAME = "concat_heads__mha_block_cached__gqa_block_cached__near_ridge"
def f2u(x): return struct.unpack("<I", struct.pack("<f", x))[0]
QSCALE = 1.4426950408889634 / (128 ** 0.5)

class Cfg:
    kv_pol = "nt"
    xw_pol = ""
    wo_pol = ""
    lthresh = 2.0 ** 40
    force_fallback = 0
    stamps = False
    poll_sleep = 2
    kv0_stage = 13
    win = 11
    wing = 1
    win2 = 0
    dbg_tail = 0
    ost_pol = "sc1"
    chunk0 = 4
    swap = 0
    alt = 1
    out_pol = "sc1"
    rotmul = "0x9e3779b1"
    trickle = 0
    trickle0 = 3
    sig_trip = 5
    warm_trip = 3
    warm_w = 1
    qst = 0
    gst = 0
    st_split = 0
    sig_drain = 0
    own_lds = 0
    tagpos = 0
    plate = 1
    kv0_at = "10,12,14,15"
    l2pre = 0
    la = 4
    thin = 0
    qrot = 4
    xwarm = 0
    stride = 0
    opre = -1
    opre_pol = ""
    qbar2 = 1
    l4 = 0
    l4pos = 3
    l4cap = 1
    dbg_pw = 0
    inband = 0
    poison_at = 13
    ann_stage = 14
    l2pre_at = 13
    fb = 0
    open_trip = 1
    warm0 = -1
    warm_per = 4
    qov = 3
    kv0_rate = 2
    warm_o = 0
    warm_opol = "sc1"
    cw = 3
    cw_trip = 2
    sig1_step = 35
    pre_step = 61
    warm = 1
    dbg_hot = 0
    st_stage = -1
    sig_stage = 3
    poll_stage = 6
    probe = -2
    probe_a = 0
    probe_cyc = 0
    probe_wg = -1

OWS_BYTES = 16 * 64 * 18432
PWS_OFF = OWS_BYTES
PWS_BYTES = 64 * 16 * 9216
FLG_OFF = OWS_BYTES + PWS_BYTES
PRG_OFF = FLG_OFF + (64 + 256) * 256
WS_USED = PRG_OFF + 16 * 256
STAMP_OFF = 32 << 20
NSTAMP = 16

def descriptor(label, vgpr, sgpr, accum):
    return f""".p2align 6
.amdhsa_kernel {label}
  .amdhsa_next_free_vgpr {vgpr}
  .amdhsa_next_free_sgpr {sgpr}
  .amdhsa_accum_offset {accum}
  .amdhsa_group_segment_fixed_size 0
  .amdhsa_kernarg_size 104
  .amdhsa_user_sgpr_count 2
  .amdhsa_user_sgpr_kernarg_segment_ptr 1
  .amdhsa_system_sgpr_workgroup_id_x 1
.end_amdhsa_kernel
"""

def gen(e, cfg, label):
    e.raw(f".globl {label}"); e.raw(".p2align 8"); e.raw(f".type {label},@function"); e.label(label)
    sX, sWQ, sK, sV, sWS, sWO, sOUT, sDBG = (S(4 * i + 4, 4) for i in range(8))
    sLD = sX
    names = ("W XCD IDX T T1 T2 B HP HG BR KVB KP KO LS XS WS2 XL WL CNT RETRY SC ROT OB OKP WB OL PB FL1 FL2 SP WLG FAIL PUB KVB0").split()
    sr = {n: S(36 + i) for i, n in enumerate(names)}
    assert 36 + len(names) <= 70
    g = type("G", (), {"s" + n: r for n, r in sr.items()})
    sM0, sM1 = S(70, 2), S(72, 2)
    KARG = 76
    def kp(i): return S(KARG + 2 * i), S(KARG + 2 * i + 1)
    sW, sT, sT1, sT2 = g.sW, g.sT, g.sT1, g.sT2
    sU0, sU1 = S(76), S(77)
    sWBw, sOKw = S(79), S(80)
    sPC = S(82, 2)
    sSTR = S(89)
    sPL, sTRIP, sPS = S(86), S(87), S(88)
    sF1, sF2 = S(84), S(85)
    sTAG = S(81)
    TG = V(108, 2)
    sSW2, sOB1 = S(3), S(78)
    vL, vL16, vT0, vT1, vT2 = V(1), V(2), V(3), V(4), V(5)
    KA = [V(6 + i) for i in range(4)]; VA = [V(10 + i) for i in range(8)]
    oK = [V(18 + i) for i in range(4)]; oV = [V(22 + i) for i in range(2)]
    oWo = [V(24 + i) for i in range(4)]
    XA = [V(28), V(29)]; WA = [V(30), V(31)]
    oLD = [V(28 + i) for i in range(4)]
    Sb = [V(32 + i * 8, 8) for i in range(2)]
    Pb = [V(48 + i * 4, 4) for i in range(2)]
    NM = lambda h, t: V(56 + (h * 3 + t) * 4, 4)
    oX = [V(56 + i) for i in range(5)]; oWQ = [V(61 + i) for i in range(4)]
    Kb = [V(80 + kk * 4, 4) for kk in range(4)]
    KBA, QA, QW = V(96), V(97), V(98)
    GWA = [V(99), V(100)]; GOA = [V(101), V(102)]; vST, vFLG, stamp_reg, vD0, vD1 = V(103), V(104), V(105), V(106), V(107)
    PG = V(28, 2)
    vOW = V(98)
    Oacc = lambda t, D: V(160 + (t * 8 + D) * 4, 4)
    OPK = lambda t, blk: V(208 + (t * 4 + blk) * 4, 4)
    QACC = lambda D, qt: V(112 + (qt * 4 + D) * 4, 4)
    XF = lambda buf, qt: A(buf * 36 + qt * 4, 4)
    WF = lambda buf, D: A(108 + buf * 16 + D * 4, 4)
    Qf = lambda h, t, kk: A((h * 12 + t * 4 + kk) * 4, 4)
    Lb = [A(96 + t * 4, 4) for t in range(3)]
    ONES = A(108, 4)
    Kf = lambda b, kt, kk: A(144 - b * 32 + (kt * 4 + kk) * 4, 4)
    Vf = lambda b, D: A(176 + b * 32 + D * 4, 4)
    GB = lambda buf, i: A((0 if buf else 112) + i * 4, 4)
    GA = lambda buf, i: A((72 if buf else 184) + i * 4, 4)
    GC = lambda qt, ee: V(112 + (qt * 2 + ee) * 4, 4)
    LQ = 65536; XS0, WS0 = LQ, LQ + 36864
    GSL = [69632, 104448, 0, 34816]; LFLAG = 163840 - 64

    pl = [0]
    def stamp(i, q=False):
        if cfg.qst and not q and i in (6, 7, 9, 10, 11, 12, 13, 14): return
        if cfg.gst and not q and i in (1, 2, 3, 6, 7, 9, 10, 11, 12, 13, 14): return
        if cfg.stamps:
            e.other("s_memrealtime s[74:75]"); e._wait(lg=0); e.lds_q = []
            e.ins(f"v_writelane_b32 {stamp_reg}, s74, {i}", 'valu', [], [stamp_reg])
            if cfg.probe_cyc:
                e.other("s_memtime s[74:75]"); e._wait(lg=0)
                e.ins(f"v_writelane_b32 {stamp_reg}, s74, {i + 16}", 'valu', [], [stamp_reg])
    def stamp_flush():
        if not cfg.stamps: return
        e.wait_all_vm(); stamp(NSTAMP - 1)
        if cfg.probe >= 0:
            pl[0] += 1
            e.nop(2)
            e.ins(f"v_readlane_b32 {sT1}, {stamp_reg}, {cfg.probe}", 'readlane', [stamp_reg], [sT1])
            e.nop(4)
            e.salu("s_cmp_eq_u32", None, sT1, 0)
            e.branch("s_cbranch_scc1", f"L_pe{pl[0]}")
            if cfg.probe_wg >= 0:
                e.salu("s_and_b32", sT, S(2), 7)
                e.salu("s_cmp_lg_u32", None, sT, cfg.probe_wg)
                e.branch("s_cbranch_scc1", f"L_pe{pl[0]}")
            o_ = 16 if cfg.probe_cyc else 0
            e.ins(f"v_readlane_b32 {sT1}, {stamp_reg}, {cfg.probe + o_}", 'readlane', [stamp_reg], [sT1])
            e.ins(f"v_readlane_b32 {sT2}, {stamp_reg}, {cfg.probe_a + o_}", 'readlane', [stamp_reg], [sT2])
            e.ins(f"v_readlane_b32 {sT}, {stamp_reg}, 0", 'readlane', [stamp_reg], [sT])
            e.nop(4)
            e.salu("s_sub_u32", sT1, sT1, sT2)
            if cfg.probe_cyc: e.salu("s_lshr_b32", sT1, sT1, 4)
            e.salu("s_add_u32", sT1, sT1, sT)
            e.salu("s_add_u32", sT1, sT1, 12000)
            e.label(f"L_pr{pl[0]}")
            e.other("s_memrealtime s[74:75]"); e._wait(lg=0)
            e.salu("s_sub_u32", sT, S(74), sT1)
            e.salu("s_cmp_lt_i32", None, sT, 0)
            e.branch("s_cbranch_scc1", f"L_pr{pl[0]}")
            e.label(f"L_pe{pl[0]}")
            return
        e.salu("s_lshl_b32", sT, S(2), 2); e.salu("s_add_u32", sT, sT, sW); e.salu("s_lshl_b32", sT, sT, 8)
        e.salu("s_add_u32", sT, sT, STAMP_OFF)
        e.valu("v_lshlrev_b32", vT0, 2, vL)
        e.bstore("buffer_store_dword", stamp_reg, vT0, sWS, sT)

    e.salu("s_cmp_ge_u32", None, S(2), 256)
    e.branch("s_cbranch_scc1", "L_done")
    e.other(f"s_load_dwordx16 s[{KARG}:{KARG+15}], s[0:1], 0")
    e.other(f"s_load_dwordx8 s[{KARG+16}:{KARG+23}], s[0:1], 64")
    e.other(f"s_load_dwordx2 s[{KARG+24}:{KARG+25}], s[0:1], 96")
    e.other("s_memrealtime s[72:73]")
    e.valu("v_lshrrev_b32", vT0, 6, V(0))
    e.valu("v_and_b32", vL, 63, V(0))
    e.readfirstlane(sW, vT0)
    if cfg.stamps: e.valu("v_mov_b32", stamp_reg, 0)
    e.salu("s_and_b32", g.sXCD, S(2), 7)
    e.salu("s_lshr_b32", g.sIDX, S(2), 3)
    e.salu("s_lshr_b32", g.sB, g.sIDX, 2); e.salu("s_and_b32", g.sHP, g.sIDX, 3)
    e.salu("s_and_b32", g.sHG, g.sXCD, 3); e.salu("s_lshr_b32", g.sBR, g.sXCD, 2)
    e.valu("v_lshlrev_b32", vL16, 4, vL)
    e.valu("v_lshrrev_b32", vT1, 4, vL); e.valu("v_lshrrev_b32", vT0, 3, vL)
    e.salu("s_lshl_b32", sT, g.sHP, 1); e.salu("s_add_u32", sT, sT, g.sB); e.salu("s_and_b32", sT, sT, cfg.qrot)
    e.salu("s_lshl_b32", g.sXS, sT, 7); e.salu("s_lshl_b32", g.sWS2, sT, 19)
    e.salu("s_mul_i32", sT, sW, 9); e.salu("s_lshr_b32", sT, sT, 1)
    e.salu("s_lshl_b32", g.sOL, sT, 10); e.salu("s_add_u32", g.sXL, g.sOL, XS0)
    e.salu("s_mul_i32", sT1, g.sB, 147456); e.salu("s_lshl_b32", sT2, sT, 13); e.salu("s_add_u32", sT1, sT1, sT2)
    e.salu("s_and_b32", sT, sT, 1); e.salu("s_lshl_b32", sT, sT, 6)
    e.valu("v_and_b32", vT2, 7, vL); e.valu("v_xor_b32", vT2, vT2, vT1); e.valu("v_lshlrev_b32", vT2, 4, vT2)
    e.valu("v_lshl_add_u32", vT2, vT0, 10, vT2); e.valu("v_xor_b32", vT2, sT, vT2)
    e.valu("v_add_u32", oX[0], sT1, vT2); e.valu("v_xor_b32", vT2, 64, oX[0])
    for i in range(1, 5): e.valu("v_add_u32", oX[i], i * 8192 - (i % 3) * 1024, vT2 if i & 1 else oX[0])
    e.salu("s_lshl_b32", sT1, g.sHG, 11); e.salu("s_lshl_b32", sT2, g.sHP, 9); e.salu("s_add_u32", sT1, sT1, sT2)
    e.salu("s_lshl_b32", sT2, sW, 7); e.salu("s_add_u32", sT1, sT1, sT2)
    e.valu("v_and_b32", vT2, 1, vT1); e.valu("v_lshlrev_b32", vT2, 2, vT2)
    e.valu("v_and_b32", oWQ[0], 7, vL); e.valu("v_xor_b32", vT2, oWQ[0], vT2); e.valu("v_lshlrev_b32", vT2, 4, vT2)
    e.valu("v_lshl_add_u32", vT2, vT0, 13, vT2); e.valu("v_add_u32", oWQ[0], sT1, vT2)
    for i in range(1, 4): e.valu("v_add_u32", oWQ[i], i * (65536 - 1024), oWQ[0])
    e.salu("s_lshl_b32", g.sWLG, sW, 12); e.salu("s_add_u32", g.sWL, g.sWLG, WS0)
    e._wait(lg=0)
    e.salu("s_cmp_lg_u32", None, g.sBR, 0)
    def srd(d, a, b, size):
        if b is None:
            e.salu("s_mov_b32", d[0], kp(a)[0]); e.salu("s_mov_b32", d[1], kp(a)[1])
        else:
            e.salu("s_cselect_b32", d[0], kp(b)[0], kp(a)[0]); e.salu("s_cselect_b32", d[1], kp(b)[1], kp(a)[1])
        e.salu("s_mov_b32", d[2], hex(size)); e.salu("s_mov_b32", d[3], "0x20000")
    srd(sX, 0, 5, 8 * 147456); srd(sWQ, 3, 8, 512 * 8192)
    srd(sK, 1, 6, 1 << 26); srd(sV, 2, 7, 1 << 26); srd(sWO, 4, 9, 4096 * 1024)
    srd(sDBG, 11, None, 256)
    def tag_propose():
        e.salu("s_cmp_lg_u32", None, sW, 3)
        e.branch("s_cbranch_scc1", "1f")
        e.salu("s_or_b32", S(72), S(72), 1)
        e.salu("s_lshl_b32", sT, g.sBR, 3); e.salu("s_add_u32", sT, sT, g.sB); e.salu("s_lshl_b32", sT, sT, 4)
        e.valu("v_mov_b32", TG[0], S(72)); e.valu("v_mov_b32", TG[1], 0); e.valu("v_mov_b32", V(110), 0)
        e.salu("s_mov_b64", "exec", 1)
        e.ins(f"buffer_atomic_cmpswap {TG}, v110, {sDBG}, {sT} offen sc0 sc1", 'vmem', [TG, V(110), sDBG, sT], [TG[0]])
        e.salu("s_mov_b64", "exec", -1)
        e.label("1")
    if cfg.tagpos == 0: tag_propose()
    stamp(0)

    def x_items(D, part, tag):
        its = [lambda: e.salu("s_add_u32", "m0", g.sXL, (D & 1) * 18432 + part * 3072)]
        for i in range(3 * part, min(5, 3 * part + 3)):
            its.append(lambda i=i: e.dma(oX[i], sX, g.sXS, off=(i % 3) * 1024, pol=cfg.xw_pol, tag=tag))
        if part == 1:
            its.append(lambda: e.salu("s_add_u32", g.sXS, g.sXS, 128))
            its.append(lambda: e.salu("s_and_b32", g.sXS, g.sXS, 1023))
        return its
    def w_items(st, tag):
        its = [lambda: e.salu("s_add_u32", "m0", g.sWL, (st % 3) * 16384)]
        for i in range(4):
            its.append(lambda i=i: e.dma(oWQ[i], sWQ, g.sWS2, off=i * 1024, pol=cfg.xw_pol, tag=tag))
        its.append(lambda: e.salu("s_add_u32", g.sWS2, g.sWS2, 1 << 18))
        its.append(lambda: e.salu("s_and_b32", g.sWS2, g.sWS2, "0x3fffff"))
        return its
    pro = [w_items(0, "p0") + x_items(0, 0, "p0") + x_items(0, 1, "p0"), w_items(1, "p1"), x_items(1, 0, "p2") + x_items(1, 1, "p2") + w_items(2, "p2")]
    for f in pro[0]: f()
    if not cfg.plate:
        for f in pro[1] + pro[2]: f()
    if cfg.tagpos == 1: tag_propose()

    if cfg.qst: stamp(12, True)
    srd(sWS, 12, None, 64 << 20 if cfg.stamps else WS_USED); srd(sOUT, 10, None, 8 * 144 * 2048)
    e.salu("s_lshl_b32", sT, g.sHG, 3); e.salu("s_lshl_b32", sT1, g.sHP, 1); e.salu("s_add_u32", sT, sT, sT1)
    e.salu("s_lshl_b32", g.sKVB0, g.sB, 5); e.salu("s_add_u32", g.sKVB0, g.sKVB0, sT); e.salu("s_lshl_b32", g.sKVB0, g.sKVB0, 18)
    e.salu("s_lshl_b32", sT1, g.sBR, 3); e.salu("s_add_u32", sT1, sT1, g.sB)
    e.salu("s_lshl_b32", sT2, sT1, 5); e.salu("s_add_u32", sT2, sT2, sT); e.salu("s_mul_i32", g.sOB, sT2, 36864)
    e.salu("s_add_u32", g.sOB, g.sOB, g.sWLG)
    if cfg.swap == 1: e.salu("s_xor_b32", sSW2, g.sB, g.sHG)
    elif cfg.swap == 2:
        e.salu("s_lshr_b32", sSW2, g.sB, 1); e.salu("s_xor_b32", sSW2, sSW2, g.sB); e.salu("s_lshr_b32", sT2, g.sHG, 1); e.salu("s_xor_b32", sSW2, sSW2, sT2)
    e.salu("s_and_b32", sSW2, sSW2, 1 if cfg.swap else 0)
    e.salu("s_lshl_b32", sT2, sSW2, 18); e.salu("s_add_u32", g.sKVB0, g.sKVB0, sT2)
    e.salu("s_mul_i32", sT2, sSW2, 36864); e.salu("s_add_u32", sOB1, g.sOB, 36864); e.salu("s_sub_u32", sOB1, sOB1, sT2); e.salu("s_add_u32", g.sOB, g.sOB, sT2)
    e.salu("s_lshl_b32", sSW2, sSW2, 1)
    if cfg.dbg_tail & 1: e.salu("s_mov_b32", sOB1, "0x40000000")
    e.salu("s_lshl_b32", sT2, sT1, 2); e.salu("s_add_u32", g.sFL1, sT2, g.sHG); e.salu("s_add_u32", g.sFL2, sT2, g.sHP)
    e.salu("s_mul_i32", g.sOKP, g.sFL1, 16 * 18432)
    e.salu("s_mul_i32", g.sPB, g.sFL2, 16 * 9216); e.salu("s_add_u32", g.sPB, g.sPB, PWS_OFF)
    e.salu("s_lshl_b32", sF1, g.sFL1, 8); e.salu("s_add_u32", sF1, sF1, FLG_OFF)
    e.salu("s_lshl_b32", sF2, g.sFL2, 10); e.salu("s_add_u32", sF2, sF2, FLG_OFF + 64 * 256)
    e.salu("s_mul_i32", sT, sW, 9216); e.salu("s_add_u32", g.sPB, g.sPB, sT)
    e.salu("s_lshl_b32", sT, sW, 8); e.salu("s_add_u32", sF2, sF2, sT)
    e.salu("s_lshl_b32", sPL, sT1, 8); e.salu("s_add_u32", sPL, sPL, PRG_OFF)
    e.salu("s_lshl_b32", sPS, g.sHG, 2); e.salu("s_add_u32", sPS, sPS, g.sHP); e.salu("s_lshl_b32", sPS, sPS, 3)
    e.salu("s_mov_b32", sTRIP, 0)
    e.salu("s_lshl_b32", g.sWB, g.sHG, 20); e.salu("s_lshl_b32", sT, g.sHP, 8); e.salu("s_add_u32", g.sWB, g.sWB, sT)
    e.salu("s_lshl_b32", sT, sW, 14); e.salu("s_add_u32", sWBw, g.sWB, sT)
    e.salu("s_add_u32", sOKw, g.sOKP, g.sOL)
    if cfg.dbg_tail & 2: e.salu("s_mov_b32", sOKw, "0x40000000"); e.salu("s_mov_b32", sWBw, "0x40000000")
    if cfg.dbg_tail & 4: e.salu("s_mov_b32", g.sOKP, "0x40000000"); e.salu("s_mov_b32", g.sWB, "0x40000000")
    e.other(f"s_getpc_b64 {sPC}")
    e.label("L_pc")
    e.salu("s_mul_i32", g.sROT, S(2), cfg.rotmul)
    if cfg.stride == 1:
        e.salu("s_lshr_b32", sSTR, g.sROT, 22); e.salu("s_and_b32", sSTR, sSTR, 30); e.salu("s_or_b32", sSTR, sSTR, 1); e.salu("s_lshl_b32", sSTR, sSTR, 13)
    else: e.salu("s_mov_b32", sSTR, 8192 * (cfg.stride | 1))
    e.salu("s_lshr_b32", g.sROT, g.sROT, 27); e.salu("s_lshl_b32", g.sROT, g.sROT, 13)
    e.salu("s_mov_b32", g.sRETRY, 0); e.salu("s_mov_b32", g.sPUB, 0)
    e.salu("s_mov_b32", g.sSC, hex(f2u(QSCALE)))
    e.valu("v_and_b32", vT0, 15, vL); e.valu("v_lshrrev_b32", vT1, 4, vL)
    e.valu("v_xor_b32", vT2, vT0, vT1)
    e.valu("v_lshlrev_b32", vT2, 4, vT2); e.valu("v_lshl_add_u32", oK[0], vT1, 8, vT2)
    for n in range(1, 4): e.valu("v_xor_b32", oK[n], n << 6, oK[0])
    e.valu("v_lshlrev_b32", vT2, 1, vT1); e.valu("v_xor_b32", vT2, vT0, vT2)
    e.valu("v_lshlrev_b32", vT2, 4, vT2); e.valu("v_lshl_add_u32", oV[0], vT1, 8, vT2)
    e.valu("v_xor_b32", oV[1], 128, oV[0])
    e.valu("v_lshlrev_b32", vT2, 2, vT1); e.valu("v_xor_b32", vT2, vT0, vT2)
    e.valu("v_lshlrev_b32", vT2, 4, vT2); e.valu("v_lshl_add_u32", oWo[0], vT1, 10, vT2)
    for i in range(1, 4): e.valu("v_add_u32", oWo[i], i * 3072, oWo[0])
    def kv_addr_init():
        e.valu("v_and_b32", vT0, 15, vL); e.valu("v_lshrrev_b32", vT1, 4, vL)
        e.valu("v_xor_b32", vT2, vT0, vT1); e.valu("v_lshlrev_b32", vT2, 4, vT2)
        e.valu("v_lshl_add_u32", KA[0], vT0, 8, vT2)
        for kk in range(1, 4): e.valu("v_xor_b32", KA[kk], kk << 6, KA[0])
        e.valu("v_lshlrev_b32", KBA, 4, vT1)
        e.valu("v_lshrrev_b32", vT0, 2, vL)
        e.valu("v_and_b32", vT2, 7, vT0); e.valu("v_lshlrev_b32", vT2, 5, vT2)
        e.valu("v_lshl_add_u32", vT2, vT0, 8, vT2)
        e.valu("v_and_b32", vT0, 3, vL); e.valu("v_lshl_add_u32", vT2, vT0, 3, vT2)
        e.valu("v_add_u32", VA[0], 8192, vT2)
        for D in range(1, 8): e.valu("v_xor_b32", VA[D], D << 5, VA[0])
    kv_addr_init()
    e.valu("v_and_b32", vT0, 15, vL)
    e.valu("v_lshrrev_b32", vT2, 1, vT0); e.valu("v_xor_b32", vT2, vT2, vT1); e.valu("v_lshlrev_b32", vT2, 4, vT2)
    e.valu("v_lshl_add_u32", vT2, vT0, 7, vT2); e.valu("v_add_u32", XA[0], XS0, vT2); e.valu("v_xor_b32", XA[1], 64, XA[0])
    e.valu("v_lshlrev_b32", vST, 11, vT0); e.valu("v_lshl_add_u32", vST, vT1, 4, vST)
    e.valu("v_lshrrev_b32", vT0, 2, vL); e.valu("v_and_b32", vT0, 3, vT0)
    e.valu("v_lshl_add_u32", vT2, vT1, 3, vT0); e.valu("v_lshlrev_b32", vT2, 7, vT2)
    e.valu("v_lshrrev_b32", WA[1], 1, vT0); e.valu("v_lshl_add_u32", vT2, WA[1], 6, vT2)
    e.valu("v_and_b32", WA[1], 3, vL); e.valu("v_lshl_add_u32", vT2, WA[1], 4, vT2)
    e.valu("v_add_u32", WA[0], g.sWL, vT2); e.valu("v_xor_b32", WA[1], 64, WA[0])
    e.valu("v_xor_b32", vT0, sW, vT0); e.valu("v_lshlrev_b32", vT0, 6, vT0)
    e.valu("v_and_b32", vT2, 3, vL); e.valu("v_lshl_add_u32", vT0, vT2, 4, vT0)
    e.valu("v_lshrrev_b32", vT2, 2, vL); e.valu("v_lshl_add_u32", GWA[1], vT2, 8, vT0)
    e.valu("v_add_u32", GWA[0], GSL[0], GWA[1])
    e.valu("v_add_u32", GOA[1], 16384, vL16); e.valu("v_add_u32", GOA[0], GSL[0] + 16384, vL16)
    e.salu("s_lshr_b32", sT1, sW, 1); e.salu("s_mul_i32", sT1, sT1, 36864)
    e.salu("s_and_b32", sT2, sW, 1); e.salu("s_lshl_b32", sT2, sT2, 11); e.salu("s_add_u32", sT2, sT2, sT1); e.salu("s_add_u32", sT2, sT2, LQ)
    e.valu("v_add_u32", QW, sT2, vL16)
    e.salu("s_lshl_b32", sT2, sW, 13); e.salu("s_add_u32", sT2, sT2, LQ)
    e.valu("v_add_u32", QA, sT2, vL16)
    e.salu("s_lshl_b32", sT2, sW, 2); e.salu("s_add_u32", sT2, sT2, LFLAG)
    e.valu("v_mov_b32", vFLG, sT2)

    def kv4_setup():
        e.salu("s_mul_i32", sT, sW, sSTR); e.salu("s_add_u32", g.sKP, g.sROT, sT); e.salu("s_and_b32", g.sKP, g.sKP, "0x3ffff")
        e.salu("s_add_u32", g.sKP, g.sKP, g.sKVB0); e.salu("s_lshl_b32", g.sLS, sW, 14)
    def kv4_items(tag, base=None):
        its = []
        for srd_, voff, b_ in ((sK, oK, 0), (sV, oV, 8192)):
            for n in range(8):
                if n % 4 == 0:
                    its.append(lambda n=n, b_=b_: e.salu("s_add_u32", "m0", g.sLS, b_ + n * 1024))
                    its.append(lambda n=n: e.salu("s_add_u32", g.sKO, g.sKP, n * 1024))
                its.append(lambda n=n, srd_=srd_, voff=voff: e.dma(voff[n % len(voff)], srd_, g.sKO, off=(n & 3) * 1024, pol=cfg.kv_pol, tag=tag))
        return its
    oKq = [V(32), V(33)]
    def kvq_setup():
        e.salu("s_and_b32", sT, sW, 1); e.salu("s_lshl_b32", sT, sT, 7)
        e.valu("v_xor_b32", oKq[0], sT, oK[0]); e.valu("v_xor_b32", oKq[1], sT, oK[1])
        e.salu("s_lshl_b32", g.sLS, sW, 11); e.salu("s_add_u32", g.sKVB, g.sKVB0, g.sLS); e.salu("s_mov_b32", g.sKP, g.sROT)
    def kvq_items(step):
        its = [lambda: e.salu("s_add_u32", "m0", g.sLS, step * 16384), lambda: e.salu("s_add_u32", g.sKO, g.sKVB, g.sKP)]
        its += [lambda i=i: e.dma(oKq[i], sK, g.sKO, off=i * 1024, pol=cfg.kv_pol, tag=("kv", step)) for i in range(2)]
        its += [lambda: e.salu("s_add_u32", "m0", g.sLS, step * 16384 + 8192), lambda: e.salu("s_add_u32", g.sKP, g.sKP, sSTR)]
        its += [lambda i=i: e.dma(oV[i], sV, g.sKO, off=i * 1024, pol=cfg.kv_pol, tag=("kv", step)) for i in range(2)]
        its += [lambda: e.salu("s_and_b32", g.sKP, g.sKP, "0x3ffff")]
        return its
    kvq_setup()
    def window():
        if cfg.win2:
            e.branch("s_cbranch_vccnz", "4f")
            e._wait(vm=cfg.win2 - cfg.wing)
            e.label("4")
        if cfg.win and len(e.vm_q) > cfg.win - cfg.wing:
            n = cfg.win - cfg.wing
            e._wait(vm=n); e.vm_q = e.vm_q[len(e.vm_q) - n:]
    def ld_setup():
        e.salu("s_cmp_eq_u32", None, sW, 2)
        e.salu("s_cselect_b32", sLD[0], sV[0], sK[0]); e.salu("s_cselect_b32", sLD[1], sV[1], sK[1])
        e.salu("s_mov_b32", sLD[2], hex(1 << 26)); e.salu("s_mov_b32", sLD[3], "0x20000")
        e.salu("s_cselect_b32", g.sLS, 8192, 0)
        e.salu("s_cselect_b64", "vcc", -1, 0)
        e.nop(2)
        for n in range(4): e.ins(f"v_cndmask_b32 {oLD[n]}, {oK[n]}, {oV[n & 1]}, vcc", 'valu', [oK[n], oV[n & 1], 'vcc'], [oLD[n]])
        e.salu("s_lshl_b32", g.sKP, sSTR, 2); e.salu("s_add_u32", g.sKP, g.sROT, g.sKP); e.salu("s_and_b32", g.sKP, g.sKP, "0x3ffff")
        e.salu("s_mov_b32", g.sKVB, g.sKVB0)
        if cfg.win2:
            e.salu("s_mov_b64", "vcc", 0)
    def ld_items(step):
        its = []
        if step == 32: its.append(lambda: e.salu("s_xor_b32", g.sKVB, g.sKVB, 262144))
        for n in range(8):
            if n == 0:
                its.append(lambda: e.salu("s_add_u32", "m0", g.sLS, (step & 3) * 16384)); its.append(lambda: e.salu("s_add_u32", g.sKO, g.sKVB, g.sKP))
            if n == 4:
                its.append(lambda: e.salu("s_add_u32", "m0", g.sLS, (step & 3) * 16384 + 4096)); its.append(lambda: e.salu("s_add_u32", g.sKO, g.sKO, 4096))
            if n % cfg.wing == 0: its.append(window)
            its.append(lambda n=n: e.dma(oLD[n & 3], sLD, g.sKO, off=(n & 3) * 1024, pol=cfg.kv_pol, tag=("kv", step)))
        its.append(lambda: e.salu("s_add_u32", g.sKP, g.sKP, 0 if cfg.dbg_hot else sSTR)); its.append(lambda: e.salu("s_and_b32", g.sKP, g.sKP, "0x3ffff"))
        return its
    def k_reads(step):
        return [lambda kk=kk, kt=kt: e.ds_read("ds_read_b128", Kf(step & 1, kt, kk), KA[kk], (step & 3) * 16384 + kt * 4096, tag="kf")
                for kk in range(4) for kt in range(2)][:(4 if cfg.dbg_pw & 2 and step > 1 else 8)]
    def v_reads(step):
        return [lambda D=D, hi=hi: e.ds_read("ds_read_b64_tr_b16", Vf(step & 1, D)[2 * hi:2 * hi + 2], VA[D], (step & 3) * 16384 + hi * 4096, tag="vf")
                for D in range(8) for hi in range(2)][:(8 if cfg.dbg_pw & 2 and step > 1 else 16)]
    def kb_reads():
        return [lambda kk=kk: e.ds_read("ds_read_b128", Kb[kk], KBA, kk * 64, tag="kf") for kk in range(4)]
    def w_reads(st):
        return [lambda D=D, hi=hi: e.ds_read("ds_read_b64_tr_b16", WF(st & 1, D)[2 * hi:2 * hi + 2], WA[D >> 1],
                                            (st % 3) * 16384 + hi * 512 + (D & 1) * 8, tag="qf") for D in range(4) for hi in range(2)]
    def x_reads(D):
        return [lambda qt=qt, kh=kh: e.ds_read("ds_read_b128", XF((2 * D + kh) % 3, qt), XA[kh], (D & 1) * 18432 + qt * 2048, tag="qf")
                for kh in range(2) for qt in range(9)]
    def run_stage(mfs, rd, fill, span=None):
        nf, n, done = len(fill), span or len(mfs), 0
        for i, m in enumerate(mfs):
            m()
            if rd: rd.popleft()()
            while fill and done * n <= i * nf:
                fill.popleft()(); done += 1
        while rd: rd.popleft()()
        while fill: fill.popleft()()
    GORD = [(dp, 0, i) for dp in range(4) for i in range(2)] + [(0, 1, 0), (0, 1, 1)] + [(dp, 1, i) for i in range(2) for dp in (1, 2, 3)]
    def kpl_items(st, dst):
        dp, h, i = GORD[st]
        return [lambda: e.salu("s_add_u32", dst, g.sHP, dp), lambda: e.salu("s_and_b32", dst, dst, 3),
                lambda: e.salu("s_lshl_b32", dst, dst, 2), lambda: e.salu("s_add_u32", dst, dst, 2 * h + i),
                lambda: e.salu("s_xor_b32", dst, dst, sSW2)]
    def ga_reads(st):
        return [lambda kb=kb, ee=ee, hi=hi: e.ds_read("ds_read_b64_tr_b16", GA(st & 1, kb * 2 + ee)[2 * hi:2 * hi + 2], GWA[st >> 1 & 1],
                                                     (st & 1) * 34816 + kb * 8192 + hi * 4096 + ee * 8, tag="g") for kb in range(2) for ee in range(2) for hi in range(2)]
    def gb_reads(st):
        return [lambda i=i: e.ds_read("ds_read_b128", GB(st & 1, i), GOA[st >> 1 & 1], (st & 1) * 34816 + i * 1024, tag="g") for i in range(18)]
    def full_w_items(st):
        its = kpl_items(st, sU1)
        its += [lambda: e.salu("s_lshl_b32", sU1, sU1, 16), lambda: e.salu("s_add_u32", sU1, sU1, g.sWB)]
        for n in range(16):
            if n % 4 == 0:
                its.append(lambda n=n: e.salu("s_mov_b32", "m0", GSL[st % 4] + n * 1024))
                if n: its.append(lambda: e.salu("s_add_u32", sU1, sU1, 16384))
            its.append(lambda n=n: e.dma(oWo[n & 3], sWO, sU1, off=(n & 3) * 1024, pol=cfg.wo_pol, tag="pre"))
        return its
    def gw_items(st):
        its = kpl_items(st, sU1)
        its += [lambda: e.salu("s_lshl_b32", sU1, sU1, 16), lambda: e.salu("s_add_u32", sU1, sU1, sWBw),
                lambda: e.salu("s_add_u32", "m0", g.sWLG, GSL[st % 4])]
        for i in range(4): its.append(lambda i=i: e.dma(oWo[i], sWO, sU1, off=i * 1024, pol=cfg.wo_pol, tag=("g", st)))
        return its
    def go_items(st):
        its = kpl_items(st, sU0)
        its += [lambda: e.salu("s_mul_i32", sU0, sU0, 18432), lambda: e.salu("s_add_u32", sU0, sU0, sOKw),
                lambda: e.salu("s_add_u32", "m0", g.sOL, GSL[st % 4] + 16384)]
        for i in range(4): its.append(lambda i=i: e.dma(vL16, sWS, sU0, off=i * 1024, pol="sc1", tag=("g", st)))
        its += [lambda: e.salu("s_add_u32", "m0", g.sOL, GSL[st % 4] + 16384 + 4096), lambda: e.salu("s_add_u32", sU0, sU0, 4096),
                lambda: e.dma(vL16, sWS, sU0, pol="sc1", tag=("g", st))]
        return its
    def gwo_items(st):
        w = gw_items(st); o = go_items(st)
        return o[:5] + [lambda: e.salu("s_lshl_b32", sU1, sU0, 16)] + o[5:] + w[6:]
    def code_touch():
        e.salu("s_lshl_b32", sT, g.sIDX, 12)
        e.valu("v_lshlrev_b32", V(109), 6, vL)
        e.valu("v_add_u32", V(109), sT, V(109))
        e.valu("v_min_u32", V(109), "L_end-L_pc-4", V(109))
        e.ins(f"v_add_co_u32 v110, vcc, {sPC[0]}, v109", 'valu', [V(109)], [V(110), 'vcc'])
        e.valu("v_mov_b32", V(111), sPC[1])
        e.ins(f"v_addc_co_u32 v111, vcc, 0, v111, vcc", 'valu', [V(111), 'vcc'], [V(111), 'vcc'])
        e.ins(f"global_load_dword {vD1}, v[110:111], off", 'vmem', [V(110, 2)], [vD1]); e.vm_q.append("cw")
    def warm_items():
        its = [lambda: e.salu("s_lshl_b32", sU0, g.sHG, 5), lambda: e.salu("s_add_u32", sU0, sU0, g.sIDX), lambda: e.salu("s_lshl_b32", sU0, sU0, 15),
               lambda: e.valu("v_lshlrev_b32", vT2, 7, vL)]
        for n in range(4):
            if n: its.append(lambda: e.salu("s_add_u32", sU0, sU0, 8192))
            its.append(lambda n=n: e.bload("buffer_load_dword", vD1, vT2, sWO, sU0, pol=cfg.wo_pol, tag="pre"))
        if not cfg.warm_w: its = []
        its += [lambda: e.salu("s_sub_u32", sU0, g.sOB, g.sWLG), lambda: e.valu("v_lshlrev_b32", vT2, 7, vL)]
        for n in range(5 if cfg.warm_o else 0):
            if n: its.append(lambda n=n: e.salu("s_add_u32", sU0, sU0, 8192 if n < 4 else 4096))
            its.append(lambda: e.bload("buffer_load_dword", vD1, vT2, sWS, sU0, pol=cfg.warm_opol, tag="pre"))
        return its
    def atomic_add(flag, val):
        e.valu("v_mov_b32", vT0, val); e.valu("v_mov_b32", vT1, 0)
        e.salu("s_mov_b64", "exec", 1)
        e.ins(f"buffer_atomic_add {vT0}, {vT1}, {sDBG}, {flag} offen sc1", 'vmem', [vT0, vT1, sDBG, flag], [])
        e.salu("s_mov_b64", "exec", -1)
    def flag_store(line, off, who):
        e.salu("s_lshl_b32", sT, who, 3)
        e.valu("v_mov_b32", V(110), sTAG); e.valu("v_not_b32", V(111), sTAG); e.valu("v_mov_b32", vT1, sT)
        e.salu("s_mov_b64", "exec", 1)
        e.ins(f"buffer_store_dwordx2 v[110:111], {vT1}, {sWS}, {line} offen offset:{off} sc1", 'vmem', [V(110, 2), vT1, sWS, line], [])
        e.salu("s_mov_b64", "exec", -1)
    def flag_load(line, off, tag):
        e.valu("v_and_b32", vT2, 3, vL); e.valu("v_lshlrev_b32", vT2, 3, vT2)
        e.bload("buffer_load_dwordx2", TG, vT2, sWS, line, off=off, pol="sc1", tag=tag)
    def flag_test(who):
        e.valu("v_not_b32", TG[1], TG[1])
        e.valu("v_xor_b32", TG[0], sTAG, TG[0]); e.valu("v_xor_b32", TG[1], sTAG, TG[1]); e.valu("v_or_b32", TG[0], TG[0], TG[1])
        e.vcmp("v_cmp_ne_u32", "vcc", 0, TG[0])
        e.salu("s_lshl_b32", sT, 1, who); e.salu("s_xor_b32", sT, sT, 15)
        e.salu("s_and_b32", sT, sT, "vcc_lo")
        e.salu("s_cmp_eq_u32", None, sT, 0)
    def poll(line, off, lab, who):
        e.salu("s_mov_b32", g.sSP, 1 << 20)
        e.label(lab)
        flag_load(line, off, None)
        e.wait_all_vm()
        flag_test(who)
        e.branch("s_cbranch_scc1", lab + "x")
        e.other(f"s_sleep {cfg.poll_sleep}")
        e.salu("s_sub_u32", g.sSP, g.sSP, 1)
        e.salu("s_cmp_lg_u32", None, g.sSP, 0)
        e.branch("s_cbranch_scc1", lab)
        e.label(lab + "x")
    def read_fail(n):
        e.valu("v_mov_b32", vT1, LFLAG)
        for i in range(n): e.ds_read("ds_read_b128", V(80 + 4 * i, 4), vT1, 16 * i)
        e.wait_all_lds()
        e.valu("v_or_b32", V(80), V(80), V(81)); e.valu("v_or3_b32", V(80), V(80), V(82), V(83))
        if n == 2:
            e.valu("v_or3_b32", V(80), V(80), V(84), V(85)); e.valu("v_or3_b32", V(80), V(80), V(86), V(87))
        e.readfirstlane(sT, V(80))

    if cfg.cw & 2:
        e.salu("s_cmp_lg_u32", None, sW, 2)
        e.branch("s_cbranch_scc1", "1f")
        q_ = list(e.vm_q)
        code_touch()
        e.vm_q = q_
        e.label("1")
    def warm0():
        return [lambda: e.salu("s_lshl_b32", sT, g.sHG, 5), lambda: e.salu("s_add_u32", sT, sT, g.sIDX), lambda: e.salu("s_lshl_b32", sT, sT, 2),
                lambda: e.salu("s_add_u32", sT, sT, sW), lambda: e.salu("s_lshl_b32", sT, sT, 13),
                lambda: e.valu("v_lshlrev_b32", vT0, 7, vL),
                lambda: e.bload("buffer_load_dword", vD1, vT0, sWO, sT, pol=cfg.wo_pol, tag="ww")]
    if cfg.warm == 3 and cfg.warm0 == -1:
        for f in warm0(): f()
    if cfg.plate:
        for f in pro[1]: f()
    if cfg.plate == 1:
        for f in pro[2]: f()
    def xw_warm():
        e.salu("s_lshl_b32", sT, g.sIDX, 2); e.salu("s_add_u32", sT, sT, sW)
        e.salu("s_mul_i32", sT1, sT, 9216); e.valu("v_lshlrev_b32", vT0, 7, vL)
        e.bload("buffer_load_dword", vD1, vT0, sX, sT1, tag="xw"); e.bload("buffer_load_dword", vD1, vT0, sX, sT1, off=1024, tag="xw")
        e.salu("s_lshl_b32", sT1, sT, 15); e.salu("s_lshl_b32", sT2, g.sHG, 11); e.salu("s_add_u32", sT1, sT1, sT2)
        e.valu("v_and_b32", vT0, 15, vL); e.valu("v_lshlrev_b32", vT0, 7, vT0)
        e.valu("v_lshrrev_b32", vT1, 4, vL); e.valu("v_lshl_add_u32", vT0, vT1, 13, vT0)
        e.bload("buffer_load_dword", vD1, vT0, sWQ, sT1, tag="xw")
    def poison(fill):
        PZ = V(36, 4)
        fill.extend([lambda i=i: e.valu("v_mov_b32", PZ[i], -1) for i in range(4)])
        def third():
            e.salu("s_mov_b32", sU1, "0x40000000"); e.salu("s_cmp_eq_u32", None, g.sHG, 0); e.salu("s_cmov_b32", sU1, 8192)
        fill.append(third)
        for s_ in range(1, 4):
            def base(s_=s_):
                e.salu("s_add_u32", sU0, g.sHG, s_); e.salu("s_and_b32", sU0, sU0, 3); e.salu("s_mul_i32", sU0, sU0, 36)
            fill.append(base)
            fill.append(lambda: e.salu("s_add_u32", sU0, sU0, g.sHG))
            fill.append(lambda: e.salu("s_lshl_b32", sU0, sU0, 10))
            fill.append(lambda: e.salu("s_add_u32", sU0, sU0, g.sPB))
            fill.append(lambda: e.bstore("buffer_store_dwordx4", PZ, vL16, sWS, sU0, pol="sc1", tag="pz"))
            fill.append(lambda: e.salu("s_add_u32", sT, sU0, 4096))
            fill.append(lambda: e.bstore("buffer_store_dwordx4", PZ, vL16, sWS, sT, pol="sc1", tag="pz"))
            fill.append(lambda: e.salu("s_add_u32", sT, sU0, sU1))
            fill.append(lambda: e.bstore("buffer_store_dwordx4", PZ, vL16, sWS, sT, pol="sc1", tag="pz"))
    if cfg.inband and cfg.poison_at == -1:
        pz = []; poison(pz)
        for f in pz: f()
    if cfg.xwarm == 1: xw_warm()
    if cfg.qst: stamp(13, True)
    e.wait_vm("p0")
    if cfg.qst: stamp(14, True)
    e.barrier()
    stamp(1)
    for f in w_reads(0) + x_reads(0): f()
    if cfg.plate == 2:
        for f in pro[2]: f()
    if cfg.xwarm == 2: xw_warm()
    kvq = deque(kvq_items(s_) for s_ in range(4))
    def q_out(qt):
        its = []
        for P in range(2):
            src = V(112 + (qt * 4 + 2 * P) * 4, 8)
            its += [lambda i=i, src=src: e.valu("v_pk_mul_f32", src[2 * i:2 * i + 2], src[2 * i:2 * i + 2], V(34, 2)) for i in range(4)]
            its += [lambda i=i, src=src: e.valu("v_cvt_pk_bf16_f32", src[i], src[2 * i], src[2 * i + 1]) for i in range(4)]
            its.append(lambda src=src, P=P: e.ds_write("ds_write_b128", QW, src[0:4], (qt * 4 + P) * 1024))
        return its
    e.valu("v_mov_b32", V(34), g.sSC); e.valu("v_mov_b32", V(35), g.sSC)
    for st in range(16):
        e.comment(f"q-proj stage {st}")
        e.wait_vm({0: "p1", 1: "p2"}.get(st, ("iss", st - 2)))
        if st == (13 if cfg.qbar2 else 14): e.wait_vm(("kv", 0))
        e.wait_all_lds()
        if st & 1 or not cfg.qbar2: e.barrier()
        if cfg.qst and st in (1, 3, 6, 9, 13): stamp({1: 6, 3: 7, 6: 9, 9: 10, 13: 11}[st], True)
        fill = deque()
        if cfg.plate == 3 and st == 0: fill.extend(pro[2])
        if st // 2 + 2 < 8:
            if not cfg.qbar2: fill.extend(x_items(st // 2 + 2, st & 1, ("iss", st)))
            elif st & 1: fill.extend(x_items(st // 2 + 2, 0, ("iss", st)) + x_items(st // 2 + 2, 1, ("iss", st)))
        if st + 3 < 16: fill.extend(w_items(st + 3, ("iss", st)))
        if cfg.warm == 3 and cfg.warm0 == st: fill.extend(warm0())
        if cfg.tagpos == 2 and st == 13: tag_propose()
        for _ in range(cfg.kv0_at.split(",").count(str(st))): fill.extend(kvq.popleft())
        if cfg.inband and st == cfg.poison_at: poison(fill)
        if st == cfg.opre:
            fill.extend([lambda: e.salu("s_sub_u32", sU0, g.sOB, g.sWLG), lambda: e.salu("s_mul_i32", sU1, sW, 18432),
                         lambda: e.salu("s_add_u32", sU0, sU0, sU1), lambda: e.valu("v_lshlrev_b32", vT0, 7, vL)])
            for n in range(3):
                if n: fill.append(lambda n=n: e.salu("s_add_u32", sU0, sU0, 8192 if n == 1 else 2048))
                fill.append(lambda: e.bload("buffer_load_dword", vD1, vT0, sWS, sU0, pol=cfg.opre_pol, tag="op"))
        if cfg.l2pre and st == cfg.l2pre_at:
            for r in range(cfg.l2pre):
                fill.extend([lambda r=r: e.salu("s_add_u32", sT, sW, 4 + 4 * r), lambda: e.salu("s_lshl_b32", sT, sT, 13), lambda: e.salu("s_add_u32", sT, sT, g.sROT),
                             lambda: e.salu("s_and_b32", sT, sT, "0x3ffff"), lambda: e.salu("s_add_u32", sT, sT, g.sKVB0),
                             lambda: e.valu("v_lshlrev_b32", vT0, 7, vL),
                             lambda: e.bload("buffer_load_dword", vD1, vT0, sK, sT, tag="l2"), lambda: e.bload("buffer_load_dword", vD1, vT0, sV, sT, tag="l2")])
        rd = deque()
        if st + 1 < 16: rd.extend(w_reads(st + 1))
        if st & 1 and st + 1 < 16: rd.extend(x_reads((st + 1) // 2))
        if st == 14: rd.extend(kb_reads() + k_reads(0) + v_reads(0))
        if st == 15:
            fill.append(lambda: e.salu("s_mov_b32", sT1, "0x80008000"))
            fill.extend([lambda kk=kk, i=i: e.valu("v_xor_b32", Kb[kk][i], sT1, Kb[kk][i]) for kk in range(4) for i in range(4)])
        mfs = [lambda qt=qt, D=D: e.mfma16(QACC(D, qt), WF(st & 1, D), XF(st % 3, qt), QACC(D, qt) if st else 0)
               for qt in range(9) for D in range(4)]
        if st < 15 or not cfg.qov: run_stage(mfs, rd, fill)
        else:
            out = deque()
            for i, m in enumerate(mfs):
                m()
                if i % 4 == 3 and i >= 7: out.extend(q_out(i // 4 - 1))
                for _ in range(cfg.qov):
                    if fill: fill.popleft()()
                    elif out: out.popleft()()
            out.extend(q_out(8))
    while kvq:
        for f in kvq.popleft(): f()
    stamp(2)
    if not cfg.qov: out = deque(f for qt in range(9) for f in q_out(qt))
    while out: out.popleft()()
    e.valu("v_mov_b32", vT0, "0x3f803f80")
    for i in range(4): e.valu("v_accvgpr_write_b32", ONES[i], vT0)
    ld_setup()
    e.salu("s_cmp_eq_u32", None, sW, 3)
    e.branch("s_cbranch_scc1", "L_rC")
    e.salu("s_cmp_lg_u32", None, sW, 0)
    e.branch("s_cbranch_scc1", "L_rB")
    hist0 = list(e.hist); vmq0 = list(e.vm_q)

    X8 = 139264
    CAPS = [0, 2, 0, 1, 0, 2, 0, 1, 0, 2, 0, 1, 0, 2, 0, 1, cfg.l4cap if cfg.l4 else 2]
    for R in "ABC":
        NTW = 2 if R == "B" else 3
        toff = lambda t: ({"A": 8, "C": 2}[R] if t == 2 else t)
        e.hist = list(hist0)
        if R != "A": e.label(f"L_r{R}")
        e.lds_q = ["x"]; e.vm_q = list(vmq0)
        e.salu("s_mul_i32", sT, sSW2, 18432)
        e.valu("v_add_u32", vD1, sT, QA); e.valu("v_add_u32", QA, 36864, QA); e.valu("v_subrev_u32", QA, sT, QA)
        e.valu("v_add_u32", vD0, X8, vL16)
        e.valu("v_add_u32", vOW, g.sWLG, GOA[0])
        def qf_reads(h, addr):
            return [lambda t=t, kk=kk: e.ds_read("ds_read_b128", Qf(h, t, kk), addr, (toff(t) * 4 + kk) * 1024, tag="q") for t in range(NTW) for kk in range(4)]
        def prepass(h):
            e.comment("stand-in for the row max: minus the score of the first key, per row")
            e.salu("s_cmp_lg_u32", None, g.sRETRY, 0)
            e.branch("s_cbranch_scc1", f"L_np{h}{R}")
            if h == 0:
                for f in qf_reads(0, vD1): f()
                e.wait_all_lds()
            else:
                e.salu("s_mov_b32", sT1, "0x80008000")
                for kk in range(4):
                    for i in range(4): e.valu("v_xor_b32", Kb[kk][i], sT1, Kb[kk][i])
            for t in range(NTW):
                for kk in range(4): e.mfma16(NM(h, t), Kb[kk], Qf(h, t, kk), NM(h, t) if kk else 0)
            e.label(f"L_np{h}{R}")
        e.label(f"L_main_{R}")
        e.lds_q = ["x"]
        e.salu("s_mov_b32", g.sFAIL, 0)
        seq = [(s, t) for s in range(32) for t in range(3 if (R == "A" and s % 2 == 0) or (R == "C" and s % 2 == 1) else 2)]
        if not cfg.alt: seq = [(s, t) for s in range(32) for t in range(3 if R == "A" else 2)]
        NT = len(seq)
        first = {s: j for j, (s, t) in reversed(list(enumerate(seq)))}; first[32] = NT
        bpos = {}
        for s in range(1, 33):
            if s % 2 == 0 or R == "B" or not cfg.alt: bpos[(first[s], 0)] = s
            elif R == "A": bpos[(first[s] - 1, 8)] = s
            else: bpos[(first[s], 8)] = s
        def cap_left(j, i):
            n = k = 0
            while True:
                n += CAPS[i]; k += CAPS[i] > 0
                i += 1
                if i == 17: i = 0; j += 1
                if (j, i) in bpos or j > NT: return n, k
        extras = deque(); rds = deque(); lastk = [None]; later = deque()
        def beta(sg):
            while rds: rds.popleft()()
            if sg < 63:
                while extras: extras.popleft()()
            if sg + 1 < 64: e.wait_vm(("kv", sg + 1))
            if R == "C" and sg == 3:
                e.wait_all_vm()
                e.salu("s_cmp_lg_u32", None, g.sRETRY, 0)
                e.branch("s_cbranch_scc1", "6f")
                e.readfirstlane(sT, TG[0])
                e.salu("s_cmp_eq_u32", None, sT, 0)
                e.salu("s_cselect_b32", sT, S(72), sT)
                e.salu("s_mov_b32", sTAG, sT)
                e.valu("v_mov_b32", vT0, sT); e.valu("v_mov_b32", vT1, LFLAG)
                e.ds_write("ds_write_b32", vT1, vT0, 32)
                e.label("6")
            fb = cfg.fb and 4 <= sg < 60
            if fb and R == "C" and sg % 4 == 2:
                e.wait_vm("prg")
                e.vcmp("v_cmp_eq_u32", sM0, sTAG, PG[0]); e.vcmp("v_cmp_le_u32", "vcc", sTRIP, PG[1])
                e.salu("s_and_b32", sT, sM0[0], "vcc_lo"); e.salu("s_and_b32", sT, sT, "0xffff"); e.salu("s_bcnt1_i32_b32", sT, sT)
                e.valu("v_mov_b32", vT0, sT); e.valu("v_mov_b32", vT1, LFLAG)
                e.ds_write("ds_write_b32", vT1, vT0, 36)
            hook = 36 <= sg < 60 and sg % 4 == 0
            if hook:
                if R == "B": assert sg == 36 or "ost0" not in e.vm_q
                else: e.wait_all_vm()
            if R == "C" and sg == 63:
                while extras: extras.popleft()()
                e.wait_vm("fl0")
                flag_test(g.sHP)
                e.branch("s_cbranch_scc1", "L_poll0x")
                e.salu("s_cmp_lg_u32", None, g.sFAIL, 0)
                e.branch("s_cbranch_scc1", "L_poll0x")
                q_ = list(e.vm_q)
                poll(sF1, 0, "L_poll0", g.sHP)
                e.vm_q = q_
            if e.lds_q: e.wait_all_lds()
            if not cfg.dbg_hot & 2: e.barrier()
            for _ in range(cfg.trickle):
                if later and sg > 32: extras.extend(later.popleft())
            if fb and R == "C" and sg % 4 == 0:
                e.salu("s_add_u32", sTRIP, sTRIP, 1)
                e.valu("v_and_b32", vT2, 15, vL); e.valu("v_lshlrev_b32", vT2, 3, vT2)
                e.bload("buffer_load_dwordx2", PG, vT2, sWS, sPL, pol="sc1", tag="prg")
                e.valu("v_mov_b32", V(110), sTAG); e.valu("v_mov_b32", V(111), sTRIP); e.valu("v_mov_b32", vT1, sPS)
                e.salu("s_mov_b64", "exec", 1)
                e.bstore("buffer_store_dwordx2", V(110, 2), vT1, sWS, sPL, pol="sc1")
                e.salu("s_mov_b64", "exec", -1)
            if fb and R == "B" and sg % 4 == 2:
                e.valu("v_mov_b32", vT1, LFLAG)
                e.ds_read("ds_read_b32", vD1, vT1, 36)
            if fb and R == "B" and sg % 4 == 3:
                e.readfirstlane(sT, vD1)
                e.salu("s_cmp_ge_u32", None, sT, cfg.fb)
                e.salu("s_cselect_b64", "vcc", -1, 0)
            if R == "B" and not cfg.dbg_hot & 8:
                if 4 <= sg + cfg.la < 64: extras.extend(ld_items(sg + cfg.la))
            if R == "A" and sg in (33, 34): extras.extend(full_w_items(sg - 33))
            if sg == 2:
                e.salu("s_cmp_lg_u32", None, g.sRETRY, 0)
                e.branch("s_cbranch_scc1", "6f")
                for f in qf_reads(1, QA): f()
                e.lds_q = []
                e.label("6")
            if sg == 63: extras.extend(gw_items(2) + go_items(2) + gw_items(3) + go_items(3))
            if R == "A" and cfg.cw and sg % 4 == 0 and 4 <= sg % 32 < 28:
                e.salu("s_cmp_lg_u32", None, g.sCNT, cfg.cw_trip)
                e.branch("s_cbranch_scc1", "1f")
                q_ = list(e.vm_q)
                code_touch()
                e.vm_q = q_
                e.label("1")
            if R == "C":
                if hook:
                    e.salu("s_cmp_lg_u32", None, g.sCNT, cfg.sig_trip)
                    e.branch("s_cbranch_scc1", "1f")
                    read_fail(1)
                    e.salu("s_andn2_b32", g.sFAIL, sT, g.sRETRY)
                    e.salu("s_or_b32", sT, g.sFAIL, g.sPUB)
                    e.salu("s_cmp_lg_u32", None, sT, 0)
                    e.branch("s_cbranch_scc1", "1f")
                    flag_store(sF1, 0, g.sHP)
                    e.label("1")
                    if cfg.warm == 2:
                        e.salu("s_cmp_lg_u32", None, g.sCNT, cfg.warm_trip)
                        e.branch("s_cbranch_scc1", "2f")
                        for f in warm_items(): f()
                        e.label("2")
                if sg == cfg.pre_step:
                    flag_load(sF1, 0, "fl0")
                if sg == cfg.pre_step and cfg.warm == 1: extras.extend(warm_items())
                if cfg.warm == 3 and sg % cfg.warm_per == 0 and sg < 64: extras.extend(warm_items())
                if sg % 32 == 0 and sg and cfg.alt:
                    rds.append(lambda: e.ds_read("ds_read_b32", V(144), vD0, 8192, tag="x8"))
                    rds.extend([lambda D=D: e.ds_read("ds_read_b128", V(112 + 4 * D, 4), vD0, D * 1024, tag="x8") for D in range(8)])
            if sg + 1 < 64 and not cfg.dbg_hot & 4:
                kr = k_reads(sg + 1); rds.extend(kr); lastk[0] = kr[-1]
                if sg + 1 == 32: rds.extend(kb_reads())
        def slot(h, j):
            e.comment(f"slot")
            mf = []
            jq, jp = j + 1, j - 1
            if jq < NT:
                s, t = seq[jq]
                for kk in range(4):
                    for kt in range(2):
                        def m(kk=kk, kt=kt):
                            d = Sb[jq % 2][4 * kt:4 * kt + 4]
                            e.mfma16(d, Kf(s & 1, kt, kk), Qf(h, t, kk), d if kk else NM(h, t))
                        mf.append(m)
            else:
                mf += [None] * 8
            if jp >= 0:
                s2, t2 = seq[jp]
                acc = any(t_ == t2 for _, t_ in seq[:jp])
                def pv(D):
                    e.mfma16(Oacc(t2, D), Vf(s2 & 1, D), Pb[jp % 2], Oacc(t2, D) if acc else 0)
                    if cfg.l4 and D == cfg.l4pos: e.mfma4(Lb[t2], ONES[0:2], Pb[jp % 2][0:2], Lb[t2] if acc else 0)
                for D in range(8): mf.append(lambda D=D: pv(D))
                if cfg.l4: mf.append(lambda: e.mfma4(Lb[t2], ONES[0:2], Pb[jp % 2][2:4], Lb[t2]))
                else: mf.append((lambda: e.mfma16(Lb[t2], ONES, Pb[jp % 2], Lb[t2] if acc else 0)) if not (cfg.dbg_pw & 1 and acc) else None)
            else:
                mf += [None] * 9
            sm = 0 <= j < NT
            Sx, Px = Sb[j % 2], Pb[j % 2]
            E = lambda i: (lambda: e.valu("v_exp_f32", Sx[i], Sx[i])) if sm else None
            if cfg.dbg_pw & 4:
                for i_ in range(8, 16, 2): mf[i_] = None
            C = lambda i: (lambda: e.valu("v_cvt_pk_bf16_f32", Px[i], Sx[2 * i], Sx[2 * i + 1])) if sm else None
            base = [E(0), None, E(1), C(0), E(2), None, E(3), C(1), E(4), None, E(5), C(2), E(6), None, E(7), C(3), None]
            vre = deque()
            sfirst = [s_ for s_, j_ in first.items() if j_ == j and s_ > 0]
            if sfirst and 32 * h + sfirst[0] + 1 < 64 and not cfg.dbg_hot & 4: vre = deque(v_reads(32 * h + sfirst[0] + 1))
            if R == "A" and j == NT - 1 and cfg.alt:
                rds.extend([lambda D=D: e.ds_write("ds_write_b128", vD0, Oacc(2, D), D * 1024) for D in range(8)])
                rds.append(lambda: e.ds_write("ds_write_b32", vD0, Lb[2][0], 8192))
            for i in range(17):
                if (j, i) in bpos: beta(32 * h + bpos[(j, i)])
                if i == 0 and jq < NT and jq > 0 and seq[jq][1] == 0:
                    while lastk[0] in rds: rds.popleft()()
                    e.wait_lds("kf")
                if mf[i]: mf[i]()
                if 8 <= i < 16 and vre:
                    rds.append(vre.popleft()); rds.append(vre.popleft())
                if base[i]: base[i]()
                cap = CAPS[i] if sm else 2
                if CAPS[i]:
                    nq = len(rds) + (0 if ((j, 8) in bpos and i < 8) else len(vre)) + min(len(extras), 24)
                    nxt = [s_ for s_, j_ in first.items() if j_ == j + 1]
                    if R == "A" and nxt and nxt[0] % 2 == 1 and i >= 8 and cfg.alt: nq += 16
                    left, k = cap_left(j, i)
                    left -= 3
                    if nq > left: cap += -(-(nq - left) // max(1, k - 1))
                    elif cfg.thin and sm and cap == 2 and nq <= k - 2 and not (lastk[0] in rds and jq + 1 < NT and seq[jq + 1][1] == 0): cap = 1
                for c in range(cap):
                    if rds and (not extras or c != 1): rds.popleft()()
                    elif extras: extras.popleft()()
        def epilogue(h):
            NE = 2 if R != ("C" if cfg.alt else "A") else 3
            LV = [V(32 + 2 * t, 2) for t in range(3)]
            bad = cfg.force_fallback >> h & 1
            if h == 0:
                e.valu("v_mov_b32", vT0, LFLAG)
                e.ds_read("ds_read_b32", TG[0], vT0, 32, tag="tg")
            e.salu("s_mov_b32", sT, hex(f2u(0.25 if bad else cfg.lthresh)))
            e.salu("s_mov_b64", sM0, 0)
            for t in range(NE): e.valu("v_accvgpr_read_b32", LV[t][0], Lb[t][0])
            if R == "C" and cfg.alt:
                e.wait_lds("x8")
                e.valu("v_add_f32", LV[2][0], LV[2][0], V(144))
            if cfg.l4:
                for op in ("v_permlane32_swap_b32", "v_permlane16_swap_b32"):
                    for t in range(NE): e.valu("v_mov_b32", LV[t][1], LV[t][0])
                    for t in range(NE): e.perm(op, LV[t][1], LV[t][0])
                    for t in range(NE): e.valu("v_add_f32", LV[t][0], LV[t][0], LV[t][1])
            for t in range(NE):
                e.vcmp("v_cmp_nge_f32", sM1, sT, LV[t][0])
                e.salu("s_or_b64", sM0, sM0, sM1)
            for t in range(NE): e.valu("v_rcp_f32", LV[t][0], LV[t][0])
            e.salu("s_or_b32", sT, sM0[0], sM0[1])
            e.valu("v_mov_b32", vT0, sT)
            e.ds_write("ds_write_b32", vFLG, vT0, 16 * h)
            for t in range(NE): e.valu("v_mov_b32", LV[t][1], LV[t][0])
            if h == 0:
                e.salu("s_cmp_lg_u32", None, g.sPUB, 0)
                e.salu("s_cselect_b32", sM0[0], "0x40000000", g.sOB)
            if R == "C" and cfg.alt:
                for i in range(16): e.valu("v_pk_add_f32", V(224 + 2 * i, 2), V(224 + 2 * i, 2), V(112 + 2 * i, 2))
            if h == 1:
                g0 = deque(ga_reads(0) + gb_reads(0))
                for t in reversed(range(NE)):
                    for blk in reversed(range(4)):
                        for _ in range(4):
                            if g0: g0.popleft()()
                        o = V(160 + (t * 8 + 2 * blk) * 4, 8); d = OPK(t, blk)
                        for i in range(4): e.valu("v_pk_mul_f32", o[2 * i:2 * i + 2], o[2 * i:2 * i + 2], LV[t])
                        for i in reversed(range(4)): e.valu("v_cvt_pk_bf16_f32", d[i], o[2 * i], o[2 * i + 1])
                        if cfg.st_stage < 0:
                            if blk & 1: e.salu("s_add_u32", sT, sOB1, (blk >> 1) * 18432 + t * 2048)
                            e.bstore("buffer_store_dwordx4", d, vL16, sWS, sT, off=(blk & 1) * 1024, pol=cfg.ost_pol, tag="ost")
                return
            n = 0
            for bh in range(2):
                for t in range(NE):
                    for bl in range(2):
                        blk = 2 * bh + bl
                        o = V(160 + (t * 8 + 2 * blk) * 4, 8)
                        d = V(112 + 4 * n, 4)
                        n += 1
                        for i in range(4): e.valu("v_pk_mul_f32", o[2 * i:2 * i + 2], o[2 * i:2 * i + 2], LV[t])
                        for i in range(4): e.valu("v_cvt_pk_bf16_f32", d[i], o[2 * i], o[2 * i + 1])
                        e.ds_write("ds_write_b128", vOW, d, bh * 34816 + toff(t) * 2048 + bl * 1024)
                        st_ = [lambda bh=bh, t=t: e.salu("s_add_u32", sT, sM0[0], bh * 18432 + toff(t) * 2048),
                               lambda d=d, bl=bl: e.bstore("buffer_store_dwordx4", d, vL16, sWS, sT, off=bl * 1024, pol=cfg.ost_pol, tag="ost0")]
                        if cfg.trickle and n > cfg.trickle0: later.append(st_)
                        else:
                            for f in st_: f()
                        for _ in range(3):
                            if rds: rds.popleft()()
                            elif extras: extras.popleft()()
        for h in range(2):
            if h == 0:
                beta(0); rds.extend(v_reads(1))
                for _ in range(6):
                    if extras: extras.popleft()()
            prepass(h)
            if h == 0: stamp(3)
            chunks = []; save = e.lines
            bounds = [-1] + [first[s] for s in range(cfg.chunk0, 32, 4)] + [NT + 1]
            for a_, b_ in zip(bounds[:-1], bounds[1:]):
                e.lines = []
                for j in range(a_, b_): slot(h, j)
                chunks.append(e.lines)
            e.lines = save
            i = 0; nl = 0
            while i < len(chunks):
                k = i
                while k + 1 < len(chunks) and chunks[k + 1] == chunks[i]: k += 1
                if k > i:
                    nl += 1; lab = f"L_loop_{R}{h}{nl}"
                    e.lines.append(f"    s_mov_b32 {g.sCNT}, {k - i + 1}")
                    e.lines.append(lab + ":")
                    e.lines += chunks[i]
                    e.lines += [f"    s_sub_u32 {g.sCNT}, {g.sCNT}, 1", f"    s_cmp_lg_u32 {g.sCNT}, 0", f"    s_cbranch_scc1 {lab}"]
                else:
                    e.lines += chunks[i]
                i = k + 1
            if h:
                while extras: extras.popleft()()
            stamp(4 if h else 12)
            epilogue(h)
            if h == 0:
                e.wait_lds("tg")
                e.readfirstlane(sTAG, TG[0])
                if cfg.inband and cfg.poison_at < 100:
                    assert "pz" not in e.vm_q
                    flag_store(sF2, 32, g.sHG); e.vm_q.append("fs")
                stamp(13)
        while extras: extras.popleft()()
        e.wait_vm("pre")
        e.wait_all_lds(); e.barrier()
        read_fail(2)
        e.salu("s_andn2_b32", sT, sT, g.sRETRY)
        e.salu("s_cmp_eq_u32", None, sT, 0)
        e.branch("s_cbranch_scc1", "L_gemm")
        read_fail(1)
        e.salu("s_cmp_eq_u32", None, sT, 0)
        e.salu("s_cselect_b32", g.sPUB, 1, 0)
        e.salu("s_mov_b32", g.sRETRY, -1)
        e.wait_all()
        kv_addr_init()
        for h in range(2):
            MX = [V(48 + t) for t in range(3)]
            for t in range(NTW): e.valu("v_mov_b32", MX[t], "0xff800000")
            e.salu("s_mov_b32", g.sCNT, 32)
            e.salu("s_xor_b32", g.sKP, g.sKVB0, h * 262144); e.salu("s_mov_b32", g.sLS, 0)
            e.label(f"L_max_{R}{h}")
            e.barrier()
            if R == "A":
                for f in kv4_items("m")[:12]: f()
                e.wait_all_vm()
            e.salu("s_add_u32", g.sKP, g.sKP, 8192)
            e.barrier()
            for f in k_reads(0): f()
            e.wait_all_lds()
            for t in range(NTW):
                for kk in range(4):
                    for kt in range(2):
                        d = Sb[0][4 * kt:4 * kt + 4]
                        e.mfma16(d, Kf(0, kt, kk), Qf(h, t, kk), d if kk else 0)
                for i in range(4): e.valu("v_max3_f32", MX[t], Sb[0][2 * i], Sb[0][2 * i + 1], MX[t])
            e.salu("s_sub_u32", g.sCNT, g.sCNT, 1)
            e.salu("s_cmp_lg_u32", None, g.sCNT, 0)
            e.branch("s_cbranch_scc1", f"L_max_{R}{h}")
            for t in range(NTW):
                for op in ("v_permlane32_swap_b32", "v_permlane16_swap_b32"):
                    e.valu("v_mov_b32", vT0, MX[t])
                    e.perm(op, vT0, MX[t])
                    e.valu("v_max_f32", MX[t], vT0, MX[t])
                for i in range(4): e.valu("v_sub_f32", NM(h, t)[i], 0, MX[t])
        e.barrier()
        kv4_setup()
        for f in kv4_items("m"): f()
        ld_setup()
        e.wait_all_vm(); e.barrier()
        for f in k_reads(0) + v_reads(0): f()
        e.wait_all_lds()
        e.flush_hazards(8)
        e.branch("s_branch", f"L_main_{R}")

    e.label("L_gemm")
    e.hist = []; e.lds_q = []; e.vm_q = ["ost"]
    stamp(5)
    e.vm_q = [("g", 2)] * 9 + [("g", 3)] * 9 + (["ost"] * 8 if cfg.st_stage < 0 else [])
    PS = cfg.poll_stage
    mark = [0]
    assert cfg.st_stage < cfg.sig_stage < PS and 6 <= PS <= 8 and (cfg.own_lds or cfg.sig_stage <= 4)
    def o2_items(kind, bh):
        def one(t, bl):
            if kind == "st":
                if bl == 0: e.salu("s_add_u32", sT, sOB1, bh * 18432 + t * 2048)
                e.bstore("buffer_store_dwordx4", OPK(t, 2 * bh + bl), vL16, sWS, sT, off=bl * 1024, pol=cfg.ost_pol, tag="ost")
            else:
                e.ds_write("ds_write_b128", vOW, OPK(t, 2 * bh + bl), bh * 34816 + t * 2048 + bl * 1024)
        def third():
            e.salu("s_cmp_lg_u32", None, sW, 3)
            e.branch("s_cbranch_scc1", "5f")
            q_ = (list(e.vm_q), list(e.lds_q))
            one(2, 0); one(2, 1)
            e.vm_q, e.lds_q = q_
            e.label("5")
        return [third] + [lambda t=t, bl=bl: one(t, bl) for t in range(2) for bl in range(2)]
    for st in range(16):
        e.comment(f"o-proj stage {st}")
        if st == cfg.sig_stage:
            if cfg.sig_drain: e.wait_all_vm()
            else: e.wait_vm("ost")
        if st == PS:
            e.salu("s_cmp_lg_u32", None, sW, 0)
            e.branch("s_cbranch_scc1", "L_poll1x")
            q_ = list(e.vm_q)
            e._wait(vm=len(e.vm_q) - mark[0])
            flag_test(g.sHP)
            e.branch("s_cbranch_scc1", "L_poll1x")
            poll(sF1, 32, "L_poll1", g.sHP)
            e.vm_q = q_
        if cfg.inband and st == cfg.poison_at - 100 + 4:
            e.wait_vm("pz")
            flag_store(sF2, 32, g.sHG)
        if cfg.inband and st == cfg.ann_stage:
            e.wait_vm("f3")
            flag_test(g.sHG)
            e.branch("s_cbranch_scc1", "L_poll3x")
            q_ = list(e.vm_q)
            poll(sF2, 32, "L_poll3", g.sHG)
            e.vm_q = q_
        if st + 1 < 16: e.wait_vm(("g", st + 1))
        if st:
            e.wait_all_lds(); e.barrier()
        if st == cfg.sig_stage:
            e.salu("s_cmp_lg_u32", None, sW, 3)
            e.branch("s_cbranch_scc1", "L_sig1")
            flag_store(sF1, 32, g.sHP)
            e.label("L_sig1")
            stamp(6)
        if st == PS: stamp(7)
        if st == 2: stamp(14)
        if cfg.gst and 1 <= st <= 11: stamp((1, 2, 3, 6, 7, 9, 10, 11, 12, 13, 14)[st - 1], True)
        fill = deque()
        if st == PS - 1:
            def fl1():
                e.salu("s_cmp_lg_u32", None, sW, 0)
                e.branch("s_cbranch_scc1", "7f")
                flag_load(sF1, 32, None); e.vm_q.pop()
                e.label("7")
                mark[0] = len(e.vm_q)
            fill.append(fl1)
        if cfg.inband and st == cfg.poison_at - 100: poison(fill)
        if cfg.inband and st == cfg.ann_stage - 2: fill.append(lambda: flag_load(sF2, 32, "f3"))
        if cfg.inband and st == cfg.ann_stage: fill.append(lambda: flag_store(sF2, 0, g.sHG))
        if cfg.inband and st == 15: fill.extend([lambda: None] * 2 + [lambda: flag_load(sF2, 0, "f2")])
        if st == PS:
            for s2 in range(10, st + 4): fill.extend(go_items(s2))
        if st == cfg.st_stage: fill.extend(o2_items("st", 0))
        if st == cfg.st_stage + cfg.st_split: fill.extend(o2_items("st", 1))
        if st + 4 < 16:
            if st + 4 in (8, 9) and cfg.own_lds: fill.extend(gw_items(st + 4) + o2_items("lds", st - 4))
            elif st + 4 < 10 or st >= PS: fill.extend(gwo_items(st + 4))
            else: fill.extend(gw_items(st + 4))
        rd = deque(ga_reads(st + 1) + gb_reads(st + 1)) if st + 1 < 16 else deque()
        mfs = [lambda qt=qt, kb=kb, ee=ee: e.mfma16(GC(qt, ee), GA(st & 1, kb * 2 + ee), GB(st & 1, qt * 2 + kb), GC(qt, ee) if (st or kb) else 0)
               for kb in range(2) for qt in range(9) for ee in range(2)]
        run_stage(mfs, rd, fill, span=20 if (st + 1 == cfg.sig_stage and cfg.sig_drain) else None)
    stamp(8)
    e.salu("s_mul_i32", sU0, g.sB, 144 * 2048); e.salu("s_lshl_b32", sT, g.sBR, 10); e.salu("s_add_u32", sU0, sU0, sT)
    e.salu("s_lshl_b32", sT, g.sHP, 8); e.salu("s_add_u32", sU0, sU0, sT); e.salu("s_lshl_b32", sT, sW, 6); e.salu("s_add_u32", sU0, sU0, sT)
    e.salu("s_mov_b32", sT1, "0xffff0000")
    for j in range(1, 4):
        e.salu("s_cmp_eq_u32", None, g.sHG, j)
        e.branch("s_cbranch_scc1", f"L_fin{j}")
    h1 = list(e.hist)
    for j in range(4):
        if j: e.label(f"L_fin{j}")
        e.hist = list(h1); e.vm_q = []; e.lds_q = []
        own = [qt for qt in range(9) if qt % 4 == j]
        if cfg.inband: e.vm_q = ["f2"]
        else: flag_load(sF2, 0, "f2")
        for qt in range(9):
            if qt in own: continue
            o = V(112 + qt * 8, 8)
            for i in range(4): e.valu("v_cvt_pk_bf16_f32", o[i], o[2 * i], o[2 * i + 1])
            if cfg.inband:
                for i in range(4): e.valu("v_min_u32", o[i], -2, o[i])
            e.salu("s_add_u32", sT2, g.sPB, j * 36864 + qt * 1024)
            e.bstore("buffer_store_dwordx4", o[0:4], vL16, sWS, sT2, pol="sc1")
        if cfg.inband: e.wait_vm("f2")
        else:
            e.wait_all_vm()
            flag_store(sF2, 0, g.sHG)
        stamp(9)
        flag_test(g.sHG)
        e.branch("s_cbranch_scc1", f"L_poll2{j}x")
        poll(sF2, 0, f"L_poll2{j}", g.sHG)
        PB = lambda s, n: V(184 + (s * 3 + n) * 4, 4)
        srcs = [s for s in range(4) if s != j]
        if cfg.inband:
            e.salu("s_mov_b32", g.sSP, 1 << 20)
            e.label(f"L_get{j}")
        else: stamp(10)
        for n, qt in enumerate(own):
            for si, s in enumerate(srcs):
                e.salu("s_add_u32", sT2, g.sPB, s * 36864 + qt * 1024)
                e.bload("buffer_load_dwordx4", PB(si, n), vL16, sWS, sT2, pol="sc1", tag=(si, n))
        if cfg.inband:
            e.wait_all_vm()
            ws_ = [PB(si, n)[i] for n in range(len(own)) for si in range(3) for i in range(4)]
            e.valu("v_max_u32", vT0, ws_[0], ws_[1])
            for i in range(2, len(ws_), 2): e.valu("v_max3_u32", vT0, ws_[i], ws_[i + 1], vT0)
            e.vcmp("v_cmp_eq_u32", "vcc", -1, vT0)
            e.salu("s_cmp_eq_u64", None, "vcc", 0)
            e.branch("s_cbranch_scc1", f"L_get{j}x")
            e.salu("s_sub_u32", g.sSP, g.sSP, 1)
            e.salu("s_cmp_lg_u32", None, g.sSP, 0)
            e.branch("s_cbranch_scc1", f"L_get{j}")
            e.label(f"L_get{j}x")
            stamp(10)
        for n, qt in enumerate(own):
            o = V(112 + qt * 8, 8)
            for si in range(3):
                p = PB(si, n)
                e.wait_vm((si, n))
                for i in range(4):
                    e.valu("v_lshlrev_b32", vT0, 16, p[i]); e.valu("v_and_b32", vT1, sT1, p[i])
                    e.valu("v_add_f32", o[2 * i], o[2 * i], vT0); e.valu("v_add_f32", o[2 * i + 1], o[2 * i + 1], vT1)
            for i in range(4): e.valu("v_cvt_pk_bf16_f32", o[i], o[2 * i], o[2 * i + 1])
            e.salu("s_add_u32", sT2, sU0, qt * 32768)
            e.bstore("buffer_store_dwordx4", o[0:4], vST, sOUT, sT2, pol=cfg.out_pol)
        stamp(11)
        stamp_flush()
        e.other("s_endpgm")
    e.label("L_done")
    e.other("s_endpgm")
    e.label("L_end")

def generate(cfg, fn):
    e = Em()
    e.raw('.amdgcn_target "amdgcn-amd-amdhsa--gfx950"'); e.raw(".text")
    gen(e, cfg, NAME + "_kernel")
    top = ("; attention block in one launch: q-projection, attention, output projection; generated by dev/gen5.py\n"
           "; @launch grid=(256,1,1) block=(256,1,1) lds=163840\n")
    tail = '.section .rodata,"a"\n' + descriptor(NAME + "_kernel", 512, 102, 256)
    open(fn, "w").write(top + e.text() + tail)
    return e

if __name__ == "__main__":
    cfg = Cfg()
    fn = sys.argv[1] if len(sys.argv) > 1 else "k.s"
    for kv in sys.argv[2:]:
        k, v = kv.split("=", 1)
        cur = getattr(cfg, k)
        setattr(cfg, k, type(cur)(int(v)) if isinstance(cur, (bool, int)) and not isinstance(cur, float) else (float(v) if isinstance(cur, float) else v))
    e = generate(cfg, fn)
    print(fn, "lines", len(e.lines), "nop states", e.nops)
```

```python
import sys, struct
from collections import deque
from asmlib import *

NAME = "concat_heads__mha_block_cached__gqa_block_cached__near_ridge"
def f2u(x): return struct.unpack("<I", struct.pack("<f", x))[0]
QSCALE = 1.4426950408889634 / (128 ** 0.5)

class Cfg:
    kv_pol = "nt"
    xw_pol = ""
    wo_pol = ""
    lthresh = 2.0 ** 40
    force_fallback = 0
    stamps = False
    poll_sleep = 2
    kv0_stage = 13
    win = 11
    wing = 1
    win2 = 0
    dbg_tail = 0
    ost_pol = "sc1"
    chunk0 = 4
    swap = 0
    alt = 1
    out_pol = "sc1"
    rotmul = "0x9e3779b1"
    trickle = 0
    trickle0 = 3
    sig_trip = 5
    warm_trip = 3
    warm_w = 1
    qst = 0
    gst = 0
    st_split = 0
    sig_drain = 0
    own_lds = 0
    tagpos = 0
    plate = 1
    kv0_at = "10,12,14,15"
    l2pre = 0
    la = 4
    thin = 0
    qrot = 4
    xwarm = 0
    stride = 0
    tpace = 0
    opre = -1
    opre_pol = ""
    qbar2 = 1
    l4 = 0
    l4pos = 3
    l4cap = 1
    dbg_pw = 0
    inband = 0
    poison_at = 13
    ann_stage = 14
    l2pre_at = 13
    fb = 0
    open_trip = 1
    warm0 = -1
    warm_per = 4
    qov = 3
    kv0_rate = 2
    warm_o = 0
    warm_opol = "sc1"
    cw = 3
    cw_trip = 2
    sig1_step = 35
    pre_step = 63
    warm = 1
    dbg_hot = 0
    st_stage = -1
    sig_stage = 3
    poll_stage = 6
    probe = -2
    probe_a = 0
    probe_cyc = 0
    probe_wg = -1

OWS_BYTES = 16 * 64 * 18432
PWS_OFF = OWS_BYTES
PWS_BYTES = 64 * 16 * 9216
FLG_OFF = OWS_BYTES + PWS_BYTES
PRG_OFF = FLG_OFF + (64 + 256) * 256
WS_USED = PRG_OFF + 16 * 256
STAMP_OFF = 32 << 20
NSTAMP = 16

def descriptor(label, vgpr, sgpr, accum):
    return f""".p2align 6
.amdhsa_kernel {label}
  .amdhsa_next_free_vgpr {vgpr}
  .amdhsa_next_free_sgpr {sgpr}
  .amdhsa_accum_offset {accum}
  .amdhsa_group_segment_fixed_size 0
  .amdhsa_kernarg_size 104
  .amdhsa_user_sgpr_count 2
  .amdhsa_user_sgpr_kernarg_segment_ptr 1
  .amdhsa_system_sgpr_workgroup_id_x 1
.end_amdhsa_kernel
"""

def gen(e, cfg, label):
    e.raw(f".globl {label}"); e.raw(".p2align 8"); e.raw(f".type {label},@function"); e.label(label)
    sX, sWQ, sK, sV, sWS, sWO, sOUT, sDBG = (S(4 * i + 4, 4) for i in range(8))
    sLD = sX
    names = ("W XCD IDX T T1 T2 B HP HG BR KVB KP KO LS XS WS2 XL WL CNT RETRY SC ROT OB OKP WB OL PB FL1 FL2 SP WLG FAIL PUB KVB0").split()
    sr = {n: S(36 + i) for i, n in enumerate(names)}
    assert 36 + len(names) <= 70
    g = type("G", (), {"s" + n: r for n, r in sr.items()})
    sM0, sM1 = S(70, 2), S(72, 2)
    KARG = 76
    def kp(i): return S(KARG + 2 * i), S(KARG + 2 * i + 1)
    sW, sT, sT1, sT2 = g.sW, g.sT, g.sT1, g.sT2
    sU0, sU1 = S(76), S(77)
    sWBw, sOKw = S(79), S(80)
    sPC = S(82, 2)
    sSTR = S(89)
    sPL, sTRIP, sPS = S(86), S(87), S(88)
    sF1, sF2 = S(84), S(85)
    sTAG = S(81)
    TG = V(108, 2)
    sSW2, sOB1 = S(3), S(78)
    vL, vL16, vT0, vT1, vT2 = V(1), V(2), V(3), V(4), V(5)
    KA = [V(6 + i) for i in range(4)]; VA = [V(10 + i) for i in range(8)]
    oK = [V(18 + i) for i in range(4)]; oV = [V(22 + i) for i in range(2)]
    oWo = [V(24 + i) for i in range(4)]
    XA = [V(28), V(29)]; WA = [V(30), V(31)]
    oLD = [V(28 + i) for i in range(4)]
    Sb = [V(32 + i * 8, 8) for i in range(2)]
    Pb = [V(48 + i * 4, 4) for i in range(2)]
    NM = lambda h, t: V(56 + (h * 3 + t) * 4, 4)
    oX = [V(56 + i) for i in range(5)]; oWQ = [V(61 + i) for i in range(4)]
    Kb = [V(80 + kk * 4, 4) for kk in range(4)]
    KBA, QA, QW = V(96), V(97), V(98)
    GWA = [V(99), V(100)]; GOA = [V(101), V(102)]; vST, vFLG, stamp_reg, vD0, vD1 = V(103), V(104), V(105), V(106), V(107)
    PG = V(28, 2)
    vOW = V(98)
    Oacc = lambda t, D: V(160 + (t * 8 + D) * 4, 4)
    OPK = lambda t, blk: V(208 + (t * 4 + blk) * 4, 4)
    QACC = lambda D, qt: V(112 + (qt * 4 + D) * 4, 4)
    XF = lambda buf, qt: A(buf * 36 + qt * 4, 4)
    WF = lambda buf, D: A(108 + buf * 16 + D * 4, 4)
    Qf = lambda h, t, kk: A((h * 12 + t * 4 + kk) * 4, 4)
    Lb = [A(96 + t * 4, 4) for t in range(3)]
    ONES = A(108, 4)
    Kf = lambda b, kt, kk: A(144 - b * 32 + (kt * 4 + kk) * 4, 4)
    Vf = lambda b, D: A(176 + b * 32 + D * 4, 4)
    GB = lambda buf, i: A((0 if buf else 112) + i * 4, 4)
    GA = lambda buf, i: A((72 if buf else 184) + i * 4, 4)
    GC = lambda qt, ee: V(112 + (qt * 2 + ee) * 4, 4)
    LQ = 65536; XS0, WS0 = LQ, LQ + 36864
    GSL = [69632, 104448, 0, 34816]; LFLAG = 163840 - 64
    WOF = [69632, 104448, 0, 16384]; OOF = [86016, 120832, 32768, 51200]

    pl = [0]
    def stamp(i, q=False):
        if cfg.qst and not q and i in (6, 7, 9, 10, 11, 12, 13, 14): return
        if cfg.gst and not q and i in (1, 2, 3, 6, 7, 9, 10, 11, 12, 13, 14): return
        if cfg.stamps:
            e.other("s_memrealtime s[74:75]"); e._wait(lg=0); e.lds_q = []
            e.ins(f"v_writelane_b32 {stamp_reg}, s74, {i}", 'valu', [], [stamp_reg])
            if cfg.probe_cyc:
                e.other("s_memtime s[74:75]"); e._wait(lg=0)
                e.ins(f"v_writelane_b32 {stamp_reg}, s74, {i + 16}", 'valu', [], [stamp_reg])
    def stamp_flush():
        if not cfg.stamps: return
        e.wait_all_vm(); stamp(NSTAMP - 1)
        if cfg.probe >= 0:
            pl[0] += 1
            e.nop(2)
            e.ins(f"v_readlane_b32 {sT1}, {stamp_reg}, {cfg.probe}", 'readlane', [stamp_reg], [sT1])
            e.nop(4)
            e.salu("s_cmp_eq_u32", None, sT1, 0)
            e.branch("s_cbranch_scc1", f"L_pe{pl[0]}")
            if cfg.probe_wg >= 0:
                e.salu("s_and_b32", sT, S(2), 7)
                e.salu("s_cmp_lg_u32", None, sT, cfg.probe_wg)
                e.branch("s_cbranch_scc1", f"L_pe{pl[0]}")
            o_ = 16 if cfg.probe_cyc else 0
            e.ins(f"v_readlane_b32 {sT1}, {stamp_reg}, {cfg.probe + o_}", 'readlane', [stamp_reg], [sT1])
            e.ins(f"v_readlane_b32 {sT2}, {stamp_reg}, {cfg.probe_a + o_}", 'readlane', [stamp_reg], [sT2])
            e.ins(f"v_readlane_b32 {sT}, {stamp_reg}, 0", 'readlane', [stamp_reg], [sT])
            e.nop(4)
            e.salu("s_sub_u32", sT1, sT1, sT2)
            if cfg.probe_cyc: e.salu("s_lshr_b32", sT1, sT1, 4)
            e.salu("s_add_u32", sT1, sT1, sT)
            e.salu("s_add_u32", sT1, sT1, 12000)
            e.label(f"L_pr{pl[0]}")
            e.other("s_memrealtime s[74:75]"); e._wait(lg=0)
            e.salu("s_sub_u32", sT, S(74), sT1)
            e.salu("s_cmp_lt_i32", None, sT, 0)
            e.branch("s_cbranch_scc1", f"L_pr{pl[0]}")
            e.label(f"L_pe{pl[0]}")
            return
        e.salu("s_lshl_b32", sT, S(2), 2); e.salu("s_add_u32", sT, sT, sW); e.salu("s_lshl_b32", sT, sT, 8)
        e.salu("s_add_u32", sT, sT, STAMP_OFF)
        e.valu("v_lshlrev_b32", vT0, 2, vL)
        e.bstore("buffer_store_dword", stamp_reg, vT0, sWS, sT)

    e.salu("s_cmp_ge_u32", None, S(2), 256)
    e.branch("s_cbranch_scc1", "L_done")
    e.other(f"s_load_dwordx16 s[{KARG}:{KARG+15}], s[0:1], 0")
    e.other(f"s_load_dwordx8 s[{KARG+16}:{KARG+23}], s[0:1], 64")
    e.other(f"s_load_dwordx2 s[{KARG+24}:{KARG+25}], s[0:1], 96")
    e.other("s_memrealtime s[72:73]")
    e.valu("v_lshrrev_b32", vT0, 6, V(0))
    e.valu("v_and_b32", vL, 63, V(0))
    e.readfirstlane(sW, vT0)
    if cfg.stamps: e.valu("v_mov_b32", stamp_reg, 0)
    e.salu("s_and_b32", g.sXCD, S(2), 7)
    e.salu("s_lshr_b32", g.sIDX, S(2), 3)
    e.salu("s_lshr_b32", g.sB, g.sIDX, 2); e.salu("s_and_b32", g.sHP, g.sIDX, 3)
    e.salu("s_and_b32", g.sHG, g.sXCD, 3); e.salu("s_lshr_b32", g.sBR, g.sXCD, 2)
    e.valu("v_lshlrev_b32", vL16, 4, vL)
    e.valu("v_lshrrev_b32", vT1, 4, vL); e.valu("v_lshrrev_b32", vT0, 3, vL)
    e.salu("s_lshl_b32", sT, g.sHP, 1); e.salu("s_add_u32", sT, sT, g.sB); e.salu("s_and_b32", sT, sT, cfg.qrot)
    e.salu("s_lshl_b32", g.sXS, sT, 7); e.salu("s_lshl_b32", g.sWS2, sT, 19)
    e.salu("s_mul_i32", sT, sW, 9); e.salu("s_lshr_b32", sT, sT, 1)
    e.salu("s_lshl_b32", g.sOL, sT, 10); e.salu("s_add_u32", g.sXL, g.sOL, XS0)
    e.salu("s_mul_i32", sT1, g.sB, 147456); e.salu("s_lshl_b32", sT2, sT, 13); e.salu("s_add_u32", sT1, sT1, sT2)
    e.salu("s_and_b32", sT, sT, 1); e.salu("s_lshl_b32", sT, sT, 6)
    e.valu("v_and_b32", vT2, 7, vL); e.valu("v_xor_b32", vT2, vT2, vT1); e.valu("v_lshlrev_b32", vT2, 4, vT2)
    e.valu("v_lshl_add_u32", vT2, vT0, 10, vT2); e.valu("v_xor_b32", vT2, sT, vT2)
    e.valu("v_add_u32", oX[0], sT1, vT2); e.valu("v_xor_b32", vT2, 64, oX[0])
    for i in range(1, 5): e.valu("v_add_u32", oX[i], i * 8192 - (i % 3) * 1024, vT2 if i & 1 else oX[0])
    e.salu("s_lshl_b32", sT1, g.sHG, 11); e.salu("s_lshl_b32", sT2, g.sHP, 9); e.salu("s_add_u32", sT1, sT1, sT2)
    e.salu("s_lshl_b32", sT2, sW, 7); e.salu("s_add_u32", sT1, sT1, sT2)
    e.valu("v_and_b32", vT2, 1, vT1); e.valu("v_lshlrev_b32", vT2, 2, vT2)
    e.valu("v_and_b32", oWQ[0], 7, vL); e.valu("v_xor_b32", vT2, oWQ[0], vT2); e.valu("v_lshlrev_b32", vT2, 4, vT2)
    e.valu("v_lshl_add_u32", vT2, vT0, 13, vT2); e.valu("v_add_u32", oWQ[0], sT1, vT2)
    for i in range(1, 4): e.valu("v_add_u32", oWQ[i], i * (65536 - 1024), oWQ[0])
    e.salu("s_lshl_b32", g.sWLG, sW, 12); e.salu("s_add_u32", g.sWL, g.sWLG, WS0)
    e._wait(lg=0)
    e.salu("s_cmp_lg_u32", None, g.sBR, 0)
    def srd(d, a, b, size):
        if b is None:
            e.salu("s_mov_b32", d[0], kp(a)[0]); e.salu("s_mov_b32", d[1], kp(a)[1])
        else:
            e.salu("s_cselect_b32", d[0], kp(b)[0], kp(a)[0]); e.salu("s_cselect_b32", d[1], kp(b)[1], kp(a)[1])
        e.salu("s_mov_b32", d[2], hex(size)); e.salu("s_mov_b32", d[3], "0x20000")
    srd(sX, 0, 5, 8 * 147456); srd(sWQ, 3, 8, 512 * 8192)
    srd(sK, 1, 6, 1 << 26); srd(sV, 2, 7, 1 << 26); srd(sWO, 4, 9, 4096 * 1024)
    srd(sDBG, 11, None, 256)
    def tag_propose():
        e.salu("s_cmp_lg_u32", None, sW, 3)
        e.branch("s_cbranch_scc1", "1f")
        e.salu("s_or_b32", S(72), S(72), 1)
        e.salu("s_lshl_b32", sT, g.sBR, 3); e.salu("s_add_u32", sT, sT, g.sB); e.salu("s_lshl_b32", sT, sT, 4)
        e.valu("v_mov_b32", TG[0], S(72)); e.valu("v_mov_b32", TG[1], 0); e.valu("v_mov_b32", V(110), 0)
        e.salu("s_mov_b64", "exec", 1)
        e.ins(f"buffer_atomic_cmpswap {TG}, v110, {sDBG}, {sT} offen sc0 sc1", 'vmem', [TG, V(110), sDBG, sT], [TG[0]])
        e.salu("s_mov_b64", "exec", -1)
        e.label("1")
    if cfg.tagpos == 0: tag_propose()
    stamp(0)

    def x_items(D, part, tag):
        its = [lambda: e.salu("s_add_u32", "m0", g.sXL, (D & 1) * 18432 + part * 3072)]
        for i in range(3 * part, min(5, 3 * part + 3)):
            its.append(lambda i=i: e.dma(oX[i], sX, g.sXS, off=(i % 3) * 1024, pol=cfg.xw_pol, tag=tag))
        if part == 1:
            its.append(lambda: e.salu("s_add_u32", g.sXS, g.sXS, 128))
            its.append(lambda: e.salu("s_and_b32", g.sXS, g.sXS, 1023))
        return its
    def w_items(st, tag):
        its = [lambda: e.salu("s_add_u32", "m0", g.sWL, (st % 3) * 16384)]
        for i in range(4):
            its.append(lambda i=i: e.dma(oWQ[i], sWQ, g.sWS2, off=i * 1024, pol=cfg.xw_pol, tag=tag))
        its.append(lambda: e.salu("s_add_u32", g.sWS2, g.sWS2, 1 << 18))
        its.append(lambda: e.salu("s_and_b32", g.sWS2, g.sWS2, "0x3fffff"))
        return its
    pro = [w_items(0, "p0") + x_items(0, 0, "p0") + x_items(0, 1, "p0"), w_items(1, "p1"), x_items(1, 0, "p2") + x_items(1, 1, "p2") + w_items(2, "p2")]
    for f in pro[0]: f()
    if not cfg.plate:
        for f in pro[1] + pro[2]: f()
    if cfg.tagpos == 1: tag_propose()

    if cfg.qst: stamp(12, True)
    srd(sWS, 12, None, 64 << 20 if cfg.stamps else WS_USED); srd(sOUT, 10, None, 8 * 144 * 2048)
    e.salu("s_lshl_b32", sT, g.sHG, 3); e.salu("s_lshl_b32", sT1, g.sHP, 1); e.salu("s_add_u32", sT, sT, sT1)
    e.salu("s_lshl_b32", g.sKVB0, g.sB, 5); e.salu("s_add_u32", g.sKVB0, g.sKVB0, sT); e.salu("s_lshl_b32", g.sKVB0, g.sKVB0, 18)
    e.salu("s_lshl_b32", sT1, g.sBR, 3); e.salu("s_add_u32", sT1, sT1, g.sB)
    e.salu("s_lshl_b32", sT2, sT1, 5); e.salu("s_add_u32", sT2, sT2, sT); e.salu("s_mul_i32", g.sOB, sT2, 36864)
    e.salu("s_add_u32", g.sOB, g.sOB, g.sWLG)
    if cfg.swap == 1: e.salu("s_xor_b32", sSW2, g.sB, g.sHG)
    elif cfg.swap == 2:
        e.salu("s_lshr_b32", sSW2, g.sB, 1); e.salu("s_xor_b32", sSW2, sSW2, g.sB); e.salu("s_lshr_b32", sT2, g.sHG, 1); e.salu("s_xor_b32", sSW2, sSW2, sT2)
    e.salu("s_and_b32", sSW2, sSW2, 1 if cfg.swap else 0)
    e.salu("s_lshl_b32", sT2, sSW2, 18); e.salu("s_add_u32", g.sKVB0, g.sKVB0, sT2)
    e.salu("s_mul_i32", sT2, sSW2, 36864); e.salu("s_add_u32", sOB1, g.sOB, 36864); e.salu("s_sub_u32", sOB1, sOB1, sT2); e.salu("s_add_u32", g.sOB, g.sOB, sT2)
    e.salu("s_lshl_b32", sSW2, sSW2, 1)
    if cfg.dbg_tail & 1: e.salu("s_mov_b32", sOB1, "0x40000000")
    e.salu("s_lshl_b32", sT2, sT1, 2); e.salu("s_add_u32", g.sFL1, sT2, g.sHG); e.salu("s_add_u32", g.sFL2, sT2, g.sHP)
    e.salu("s_mul_i32", g.sOKP, g.sFL1, 16 * 18432)
    e.salu("s_mul_i32", g.sPB, g.sFL2, 16 * 9216); e.salu("s_add_u32", g.sPB, g.sPB, PWS_OFF)
    e.salu("s_lshl_b32", sF1, g.sFL1, 8); e.salu("s_add_u32", sF1, sF1, FLG_OFF)
    e.salu("s_lshl_b32", sF2, g.sFL2, 10); e.salu("s_add_u32", sF2, sF2, FLG_OFF + 64 * 256)
    e.salu("s_mul_i32", sT, sW, 9216); e.salu("s_add_u32", g.sPB, g.sPB, sT)
    e.salu("s_lshl_b32", sT, sW, 8); e.salu("s_add_u32", sF2, sF2, sT)
    e.salu("s_lshl_b32", sPL, sT1, 8); e.salu("s_add_u32", sPL, sPL, PRG_OFF)
    e.salu("s_lshl_b32", sPS, g.sHG, 2); e.salu("s_add_u32", sPS, sPS, g.sHP); e.salu("s_lshl_b32", sPS, sPS, 3)
    e.salu("s_mov_b32", sTRIP, 0)
    e.salu("s_lshl_b32", g.sWB, g.sHG, 20); e.salu("s_lshl_b32", sT, g.sHP, 8); e.salu("s_add_u32", g.sWB, g.sWB, sT)
    e.salu("s_lshl_b32", sT, sW, 14); e.salu("s_add_u32", sWBw, g.sWB, sT)
    e.salu("s_add_u32", sOKw, g.sOKP, g.sOL)
    if cfg.dbg_tail & 2: e.salu("s_mov_b32", sOKw, "0x40000000"); e.salu("s_mov_b32", sWBw, "0x40000000")
    if cfg.dbg_tail & 4: e.salu("s_mov_b32", g.sOKP, "0x40000000"); e.salu("s_mov_b32", g.sWB, "0x40000000")
    e.other(f"s_getpc_b64 {sPC}")
    e.label("L_pc")
    e.salu("s_mul_i32", g.sROT, S(2), cfg.rotmul)
    if cfg.stride == 1:
        e.salu("s_lshr_b32", sSTR, g.sROT, 22); e.salu("s_and_b32", sSTR, sSTR, 30); e.salu("s_or_b32", sSTR, sSTR, 1); e.salu("s_lshl_b32", sSTR, sSTR, 13)
    else: e.salu("s_mov_b32", sSTR, 8192 * (cfg.stride | 1))
    e.salu("s_lshr_b32", g.sROT, g.sROT, 27); e.salu("s_lshl_b32", g.sROT, g.sROT, 13)
    e.salu("s_mov_b32", g.sRETRY, 0); e.salu("s_mov_b32", g.sPUB, 0)
    e.salu("s_mov_b32", g.sSC, hex(f2u(QSCALE)))
    e.valu("v_and_b32", vT0, 15, vL); e.valu("v_lshrrev_b32", vT1, 4, vL)
    e.valu("v_xor_b32", vT2, vT0, vT1)
    e.valu("v_lshlrev_b32", vT2, 4, vT2); e.valu("v_lshl_add_u32", oK[0], vT1, 8, vT2)
    for n in range(1, 4): e.valu("v_xor_b32", oK[n], n << 6, oK[0])
    e.valu("v_lshlrev_b32", vT2, 1, vT1); e.valu("v_xor_b32", vT2, vT0, vT2)
    e.valu("v_lshlrev_b32", vT2, 4, vT2); e.valu("v_lshl_add_u32", oV[0], vT1, 8, vT2)
    e.valu("v_xor_b32", oV[1], 128, oV[0])
    e.valu("v_lshlrev_b32", vT2, 2, vT1); e.valu("v_xor_b32", vT2, vT0, vT2)
    e.valu("v_lshlrev_b32", vT2, 4, vT2); e.valu("v_lshl_add_u32", oWo[0], vT1, 10, vT2)
    for i in range(1, 4): e.valu("v_add_u32", oWo[i], i * 3072, oWo[0])
    def kv_addr_init():
        e.valu("v_and_b32", vT0, 15, vL); e.valu("v_lshrrev_b32", vT1, 4, vL)
        e.valu("v_xor_b32", vT2, vT0, vT1); e.valu("v_lshlrev_b32", vT2, 4, vT2)
        e.valu("v_lshl_add_u32", KA[0], vT0, 8, vT2)
        for kk in range(1, 4): e.valu("v_xor_b32", KA[kk], kk << 6, KA[0])
        e.valu("v_lshlrev_b32", KBA, 4, vT1)
        e.valu("v_lshrrev_b32", vT0, 2, vL)
        e.valu("v_and_b32", vT2, 7, vT0); e.valu("v_lshlrev_b32", vT2, 5, vT2)
        e.valu("v_lshl_add_u32", vT2, vT0, 8, vT2)
        e.valu("v_and_b32", vT0, 3, vL); e.valu("v_lshl_add_u32", vT2, vT0, 3, vT2)
        e.valu("v_add_u32", VA[0], 8192, vT2)
        for D in range(1, 8): e.valu("v_xor_b32", VA[D], D << 5, VA[0])
    kv_addr_init()
    e.valu("v_and_b32", vT0, 15, vL)
    e.valu("v_lshrrev_b32", vT2, 1, vT0); e.valu("v_xor_b32", vT2, vT2, vT1); e.valu("v_lshlrev_b32", vT2, 4, vT2)
    e.valu("v_lshl_add_u32", vT2, vT0, 7, vT2); e.valu("v_add_u32", XA[0], XS0, vT2); e.valu("v_xor_b32", XA[1], 64, XA[0])
    e.valu("v_lshlrev_b32", vST, 11, vT0); e.valu("v_lshl_add_u32", vST, vT1, 4, vST)
    e.valu("v_lshrrev_b32", vT0, 2, vL); e.valu("v_and_b32", vT0, 3, vT0)
    e.valu("v_lshl_add_u32", vT2, vT1, 3, vT0); e.valu("v_lshlrev_b32", vT2, 7, vT2)
    e.valu("v_lshrrev_b32", WA[1], 1, vT0); e.valu("v_lshl_add_u32", vT2, WA[1], 6, vT2)
    e.valu("v_and_b32", WA[1], 3, vL); e.valu("v_lshl_add_u32", vT2, WA[1], 4, vT2)
    e.valu("v_add_u32", WA[0], g.sWL, vT2); e.valu("v_xor_b32", WA[1], 64, WA[0])
    e.valu("v_xor_b32", vT0, sW, vT0); e.valu("v_lshlrev_b32", vT0, 6, vT0)
    e.valu("v_and_b32", vT2, 3, vL); e.valu("v_lshl_add_u32", vT0, vT2, 4, vT0)
    e.valu("v_lshrrev_b32", vT2, 2, vL); e.valu("v_lshl_add_u32", GWA[1], vT2, 8, vT0)
    e.valu("v_add_u32", GWA[0], GSL[0], GWA[1])
    e.valu("v_add_u32", GOA[1], OOF[2], vL16); e.valu("v_add_u32", GOA[0], GSL[0] + 16384, vL16)
    e.salu("s_lshr_b32", sT1, sW, 1); e.salu("s_mul_i32", sT1, sT1, 36864)
    e.salu("s_and_b32", sT2, sW, 1); e.salu("s_lshl_b32", sT2, sT2, 11); e.salu("s_add_u32", sT2, sT2, sT1); e.salu("s_add_u32", sT2, sT2, LQ)
    e.valu("v_add_u32", QW, sT2, vL16)
    e.salu("s_lshl_b32", sT2, sW, 13); e.salu("s_add_u32", sT2, sT2, LQ)
    e.valu("v_add_u32", QA, sT2, vL16)
    e.salu("s_lshl_b32", sT2, sW, 2); e.salu("s_add_u32", sT2, sT2, LFLAG)
    e.valu("v_mov_b32", vFLG, sT2)

    def kv4_setup():
        e.salu("s_mul_i32", sT, sW, sSTR); e.salu("s_add_u32", g.sKP, g.sROT, sT); e.salu("s_and_b32", g.sKP, g.sKP, "0x3ffff")
        e.salu("s_add_u32", g.sKP, g.sKP, g.sKVB0); e.salu("s_lshl_b32", g.sLS, sW, 14)
    def kv4_items(tag, base=None):
        its = []
        for srd_, voff, b_ in ((sK, oK, 0), (sV, oV, 8192)):
            for n in range(8):
                if n % 4 == 0:
                    its.append(lambda n=n, b_=b_: e.salu("s_add_u32", "m0", g.sLS, b_ + n * 1024))
                    its.append(lambda n=n: e.salu("s_add_u32", g.sKO, g.sKP, n * 1024))
                its.append(lambda n=n, srd_=srd_, voff=voff: e.dma(voff[n % len(voff)], srd_, g.sKO, off=(n & 3) * 1024, pol=cfg.kv_pol, tag=tag))
        return its
    oKq = [V(32), V(33)]
    def kvq_setup():
        e.salu("s_and_b32", sT, sW, 1); e.salu("s_lshl_b32", sT, sT, 7)
        e.valu("v_xor_b32", oKq[0], sT, oK[0]); e.valu("v_xor_b32", oKq[1], sT, oK[1])
        e.salu("s_lshl_b32", g.sLS, sW, 11); e.salu("s_add_u32", g.sKVB, g.sKVB0, g.sLS); e.salu("s_mov_b32", g.sKP, g.sROT)
    def kvq_items(step):
        its = [lambda: e.salu("s_add_u32", "m0", g.sLS, step * 16384), lambda: e.salu("s_add_u32", g.sKO, g.sKVB, g.sKP)]
        its += [lambda i=i: e.dma(oKq[i], sK, g.sKO, off=i * 1024, pol=cfg.kv_pol, tag=("kv", step)) for i in range(2)]
        its += [lambda: e.salu("s_add_u32", "m0", g.sLS, step * 16384 + 8192), lambda: e.salu("s_add_u32", g.sKP, g.sKP, sSTR)]
        its += [lambda i=i: e.dma(oV[i], sV, g.sKO, off=i * 1024, pol=cfg.kv_pol, tag=("kv", step)) for i in range(2)]
        its += [lambda: e.salu("s_and_b32", g.sKP, g.sKP, "0x3ffff")]
        return its
    kvq_setup()
    def window():
        if cfg.win2:
            e.branch("s_cbranch_vccnz", "4f")
            e._wait(vm=cfg.win2 - cfg.wing)
            e.label("4")
        if cfg.win and len(e.vm_q) > cfg.win - cfg.wing:
            n = cfg.win - cfg.wing
            e._wait(vm=n); e.vm_q = e.vm_q[len(e.vm_q) - n:]
    def ld_setup():
        e.salu("s_cmp_eq_u32", None, sW, 2)
        e.salu("s_cselect_b32", sLD[0], sV[0], sK[0]); e.salu("s_cselect_b32", sLD[1], sV[1], sK[1])
        e.salu("s_mov_b32", sLD[2], hex(1 << 26)); e.salu("s_mov_b32", sLD[3], "0x20000")
        e.salu("s_cselect_b32", g.sLS, 8192, 0)
        e.salu("s_cselect_b64", "vcc", -1, 0)
        e.nop(2)
        for n in range(4): e.ins(f"v_cndmask_b32 {oLD[n]}, {oK[n]}, {oV[n & 1]}, vcc", 'valu', [oK[n], oV[n & 1], 'vcc'], [oLD[n]])
        e.salu("s_lshl_b32", g.sKP, sSTR, 2); e.salu("s_add_u32", g.sKP, g.sROT, g.sKP); e.salu("s_and_b32", g.sKP, g.sKP, "0x3ffff")
        e.salu("s_mov_b32", g.sKVB, g.sKVB0)
        if cfg.win2:
            e.salu("s_mov_b64", "vcc", 0)
    def ld_items(step):
        its = []
        if step == 32: its.append(lambda: e.salu("s_xor_b32", g.sKVB, g.sKVB, 262144))
        for n in range(8):
            if n == 0:
                its.append(lambda: e.salu("s_add_u32", "m0", g.sLS, (step & 3) * 16384)); its.append(lambda: e.salu("s_add_u32", g.sKO, g.sKVB, g.sKP))
            if n == 4:
                its.append(lambda: e.salu("s_add_u32", "m0", g.sLS, (step & 3) * 16384 + 4096)); its.append(lambda: e.salu("s_add_u32", g.sKO, g.sKO, 4096))
            if n % cfg.wing == 0: its.append(window)
            its.append(lambda n=n: e.dma(oLD[n & 3], sLD, g.sKO, off=(n & 3) * 1024, pol=cfg.kv_pol, tag=("kv", step)))
        its.append(lambda: e.salu("s_add_u32", g.sKP, g.sKP, 0 if cfg.dbg_hot else sSTR)); its.append(lambda: e.salu("s_and_b32", g.sKP, g.sKP, "0x3ffff"))
        return its
    def k_reads(step):
        return [lambda kk=kk, kt=kt: e.ds_read("ds_read_b128", Kf(step & 1, kt, kk), KA[kk], (step & 3) * 16384 + kt * 4096, tag="kf")
                for kk in range(4) for kt in range(2)][:(4 if cfg.dbg_pw & 2 and step > 1 else 8)]
    def v_reads(step):
        return [lambda D=D, hi=hi: e.ds_read("ds_read_b64_tr_b16", Vf(step & 1, D)[2 * hi:2 * hi + 2], VA[D], (step & 3) * 16384 + hi * 4096, tag="vf")
                for D in range(8) for hi in range(2)][:(8 if cfg.dbg_pw & 2 and step > 1 else 16)]
    def kb_reads():
        return [lambda kk=kk: e.ds_read("ds_read_b128", Kb[kk], KBA, kk * 64, tag="kf") for kk in range(4)]
    def w_reads(st):
        return [lambda D=D, hi=hi: e.ds_read("ds_read_b64_tr_b16", WF(st & 1, D)[2 * hi:2 * hi + 2], WA[D >> 1],
                                            (st % 3) * 16384 + hi * 512 + (D & 1) * 8, tag="qf") for D in range(4) for hi in range(2)]
    def x_reads(D):
        return [lambda qt=qt, kh=kh: e.ds_read("ds_read_b128", XF((2 * D + kh) % 3, qt), XA[kh], (D & 1) * 18432 + qt * 2048, tag="qf")
                for kh in range(2) for qt in range(9)]
    def run_stage(mfs, rd, fill, span=None):
        nf, n, done = len(fill), span or len(mfs), 0
        for i, m in enumerate(mfs):
            m()
            if rd: rd.popleft()()
            while fill and done * n <= i * nf:
                fill.popleft()(); done += 1
        while rd: rd.popleft()()
        while fill: fill.popleft()()
    GORD = [(dp, 0, i) for dp in range(4) for i in range(2)] + [(0, 1, 0), (0, 1, 1)] + [(dp, 1, i) for i in range(2) for dp in (1, 2, 3)]
    def kpl_items(st, dst):
        dp, h, i = GORD[st]
        return [lambda: e.salu("s_add_u32", dst, g.sHP, dp), lambda: e.salu("s_and_b32", dst, dst, 3),
                lambda: e.salu("s_lshl_b32", dst, dst, 2), lambda: e.salu("s_add_u32", dst, dst, 2 * h + i),
                lambda: e.salu("s_xor_b32", dst, dst, sSW2)]
    def ga_reads(st):
        return [lambda kb=kb, ee=ee, hi=hi: e.ds_read("ds_read_b64_tr_b16", GA(st & 1, kb * 2 + ee)[2 * hi:2 * hi + 2], GWA[st >> 1 & 1],
                                                     WOF[st % 4] - WOF[st & 2] + kb * 8192 + hi * 4096 + ee * 8, tag="g") for kb in range(2) for ee in range(2) for hi in range(2)]
    def gb_reads(st):
        return [lambda i=i: e.ds_read("ds_read_b128", GB(st & 1, i), GOA[st >> 1 & 1], OOF[st % 4] - OOF[st & 2] + i * 1024, tag="g") for i in range(18)]
    def full_w_items(st):
        its = kpl_items(st, sU1)
        its += [lambda: e.salu("s_lshl_b32", sU1, sU1, 16), lambda: e.salu("s_add_u32", sU1, sU1, g.sWB)]
        for n in range(16):
            if n % 4 == 0:
                its.append(lambda n=n: e.salu("s_mov_b32", "m0", GSL[st % 4] + n * 1024))
                if n: its.append(lambda: e.salu("s_add_u32", sU1, sU1, 16384))
            its.append(lambda n=n: e.dma(oWo[n & 3], sWO, sU1, off=(n & 3) * 1024, pol=cfg.wo_pol, tag="pre"))
        return its
    def gw_items(st):
        its = kpl_items(st, sU1)
        its += [lambda: e.salu("s_lshl_b32", sU1, sU1, 16), lambda: e.salu("s_add_u32", sU1, sU1, sWBw),
                lambda: e.salu("s_add_u32", "m0", g.sWLG, WOF[st % 4])]
        for i in range(4): its.append(lambda i=i: e.dma(oWo[i], sWO, sU1, off=i * 1024, pol=cfg.wo_pol, tag=("g", st)))
        return its
    def go_items(st):
        its = kpl_items(st, sU0)
        its += [lambda: e.salu("s_mul_i32", sU0, sU0, 18432), lambda: e.salu("s_add_u32", sU0, sU0, sOKw),
                lambda: e.salu("s_add_u32", "m0", g.sOL, OOF[st % 4])]
        for i in range(4): its.append(lambda i=i: e.dma(vL16, sWS, sU0, off=i * 1024, pol="sc1", tag=("g", st)))
        its += [lambda: e.salu("s_add_u32", "m0", g.sOL, OOF[st % 4] + 4096), lambda: e.salu("s_add_u32", sU0, sU0, 4096),
                lambda: e.dma(vL16, sWS, sU0, pol="sc1", tag=("g", st))]
        return its
    def tail_items(sg):
        its = [lambda: e.salu("s_sub_u32", sT1, sW, 1)]
        if sg < 62:
            st = sg - 58
            its += kpl_items(st, sU1)
            its += [lambda: e.salu("s_lshl_b32", sU1, sU1, 16), lambda: e.salu("s_add_u32", sU1, sU1, g.sWB),
                    lambda: e.salu("s_lshl_b32", sT2, sT1, 15), lambda: e.salu("s_add_u32", sU1, sU1, sT2), lambda: e.salu("s_lshl_b32", sT2, sT1, 13)]
            for n in range(8):
                if n % 4 == 0:
                    its.append(lambda n=n: e.salu("s_add_u32", "m0", sT2, WOF[st] + n * 1024))
                    if n: its.append(lambda: e.salu("s_add_u32", sU1, sU1, 16384))
                if cfg.tpace: its.append(window)
                its.append(lambda n=n: e.dma(oWo[n & 3], sWO, sU1, off=(n & 3) * 1024, pol=cfg.wo_pol, tag="pre"))
        else:
            cnt, p0 = (8, 0) if sg == 62 else (10, 16)
            its += kpl_items(2, sU0)
            its += [lambda: e.salu("s_mul_i32", sU0, sU0, 18432), lambda: e.salu("s_add_u32", sU0, sU0, g.sOKP),
                    lambda: e.salu("s_mul_i32", sT2, sT1, cnt * 1024), lambda: e.salu("s_add_u32", sU0, sU0, sT2), lambda: e.salu("s_add_u32", sU0, sU0, p0 * 1024)]
            for n in range(cnt):
                if n % 4 == 0:
                    its.append(lambda n=n: e.salu("s_add_u32", "m0", sT2, OOF[2] + (p0 + n) * 1024))
                    if n: its.append(lambda: e.salu("s_add_u32", sU0, sU0, 4096))
                if cfg.tpace: its.append(window)
                its.append(lambda n=n: e.dma(vL16, sWS, sU0, off=(n & 3) * 1024, pol="sc1", tag="tl"))
        return its
    def gwo_items(st):
        w = gw_items(st); o = go_items(st)
        return o[:5] + [lambda: e.salu("s_lshl_b32", sU1, sU0, 16)] + o[5:] + w[6:]
    def code_touch():
        e.salu("s_lshl_b32", sT, g.sIDX, 12)
        e.valu("v_lshlrev_b32", V(109), 6, vL)
        e.valu("v_add_u32", V(109), sT, V(109))
        e.valu("v_min_u32", V(109), "L_end-L_pc-4", V(109))
        e.ins(f"v_add_co_u32 v110, vcc, {sPC[0]}, v109", 'valu', [V(109)], [V(110), 'vcc'])
        e.valu("v_mov_b32", V(111), sPC[1])
        e.ins(f"v_addc_co_u32 v111, vcc, 0, v111, vcc", 'valu', [V(111), 'vcc'], [V(111), 'vcc'])
        e.ins(f"global_load_dword {vD1}, v[110:111], off", 'vmem', [V(110, 2)], [vD1]); e.vm_q.append("cw")
    def warm_items():
        its = [lambda: e.salu("s_lshl_b32", sU0, g.sHG, 5), lambda: e.salu("s_add_u32", sU0, sU0, g.sIDX), lambda: e.salu("s_lshl_b32", sU0, sU0, 15),
               lambda: e.valu("v_lshlrev_b32", vT2, 7, vL)]
        for n in range(4):
            if n: its.append(lambda: e.salu("s_add_u32", sU0, sU0, 8192))
            its.append(lambda n=n: e.bload("buffer_load_dword", vD1, vT2, sWO, sU0, pol=cfg.wo_pol, tag="pre"))
        if not cfg.warm_w: its = []
        its += [lambda: e.salu("s_sub_u32", sU0, g.sOB, g.sWLG), lambda: e.valu("v_lshlrev_b32", vT2, 7, vL)]
        for n in range(5 if cfg.warm_o else 0):
            if n: its.append(lambda n=n: e.salu("s_add_u32", sU0, sU0, 8192 if n < 4 else 4096))
            its.append(lambda: e.bload("buffer_load_dword", vD1, vT2, sWS, sU0, pol=cfg.warm_opol, tag="pre"))
        return its
    def atomic_add(flag, val):
        e.valu("v_mov_b32", vT0, val); e.valu("v_mov_b32", vT1, 0)
        e.salu("s_mov_b64", "exec", 1)
        e.ins(f"buffer_atomic_add {vT0}, {vT1}, {sDBG}, {flag} offen sc1", 'vmem', [vT0, vT1, sDBG, flag], [])
        e.salu("s_mov_b64", "exec", -1)
    def flag_store(line, off, who):
        e.salu("s_lshl_b32", sT, who, 3)
        e.valu("v_mov_b32", V(110), sTAG); e.valu("v_not_b32", V(111), sTAG); e.valu("v_mov_b32", vT1, sT)
        e.salu("s_mov_b64", "exec", 1)
        e.ins(f"buffer_store_dwordx2 v[110:111], {vT1}, {sWS}, {line} offen offset:{off} sc1", 'vmem', [V(110, 2), vT1, sWS, line], [])
        e.salu("s_mov_b64", "exec", -1)
    def flag_load(line, off, tag):
        e.valu("v_and_b32", vT2, 3, vL); e.valu("v_lshlrev_b32", vT2, 3, vT2)
        e.bload("buffer_load_dwordx2", TG, vT2, sWS, line, off=off, pol="sc1", tag=tag)
    def flag_test(who):
        e.valu("v_not_b32", TG[1], TG[1])
        e.valu("v_xor_b32", TG[0], sTAG, TG[0]); e.valu("v_xor_b32", TG[1], sTAG, TG[1]); e.valu("v_or_b32", TG[0], TG[0], TG[1])
        e.vcmp("v_cmp_ne_u32", "vcc", 0, TG[0])
        e.salu("s_lshl_b32", sT, 1, who); e.salu("s_xor_b32", sT, sT, 15)
        e.salu("s_and_b32", sT, sT, "vcc_lo")
        e.salu("s_cmp_eq_u32", None, sT, 0)
    def poll(line, off, lab, who):
        e.salu("s_mov_b32", g.sSP, 1 << 20)
        e.label(lab)
        flag_load(line, off, None)
        e.wait_all_vm()
        flag_test(who)
        e.branch("s_cbranch_scc1", lab + "x")
        e.other(f"s_sleep {cfg.poll_sleep}")
        e.salu("s_sub_u32", g.sSP, g.sSP, 1)
        e.salu("s_cmp_lg_u32", None, g.sSP, 0)
        e.branch("s_cbranch_scc1", lab)
        e.label(lab + "x")
    def read_fail(n):
        e.valu("v_mov_b32", vT1, LFLAG)
        for i in range(n): e.ds_read("ds_read_b128", V(80 + 4 * i, 4), vT1, 16 * i)
        e.wait_all_lds()
        e.valu("v_or_b32", V(80), V(80), V(81)); e.valu("v_or3_b32", V(80), V(80), V(82), V(83))
        if n == 2:
            e.valu("v_or3_b32", V(80), V(80), V(84), V(85)); e.valu("v_or3_b32", V(80), V(80), V(86), V(87))
        e.readfirstlane(sT, V(80))

    if cfg.cw & 2:
        e.salu("s_cmp_lg_u32", None, sW, 2)
        e.branch("s_cbranch_scc1", "1f")
        q_ = list(e.vm_q)
        code_touch()
        e.vm_q = q_
        e.label("1")
    def warm0():
        return [lambda: e.salu("s_lshl_b32", sT, g.sHG, 5), lambda: e.salu("s_add_u32", sT, sT, g.sIDX), lambda: e.salu("s_lshl_b32", sT, sT, 2),
                lambda: e.salu("s_add_u32", sT, sT, sW), lambda: e.salu("s_lshl_b32", sT, sT, 13),
                lambda: e.valu("v_lshlrev_b32", vT0, 7, vL),
                lambda: e.bload("buffer_load_dword", vD1, vT0, sWO, sT, pol=cfg.wo_pol, tag="ww")]
    if cfg.warm == 3 and cfg.warm0 == -1:
        for f in warm0(): f()
    if cfg.plate:
        for f in pro[1]: f()
    if cfg.plate == 1:
        for f in pro[2]: f()
    def xw_warm():
        e.salu("s_lshl_b32", sT, g.sIDX, 2); e.salu("s_add_u32", sT, sT, sW)
        e.salu("s_mul_i32", sT1, sT, 9216); e.valu("v_lshlrev_b32", vT0, 7, vL)
        e.bload("buffer_load_dword", vD1, vT0, sX, sT1, tag="xw"); e.bload("buffer_load_dword", vD1, vT0, sX, sT1, off=1024, tag="xw")
        e.salu("s_lshl_b32", sT1, sT, 15); e.salu("s_lshl_b32", sT2, g.sHG, 11); e.salu("s_add_u32", sT1, sT1, sT2)
        e.valu("v_and_b32", vT0, 15, vL); e.valu("v_lshlrev_b32", vT0, 7, vT0)
        e.valu("v_lshrrev_b32", vT1, 4, vL); e.valu("v_lshl_add_u32", vT0, vT1, 13, vT0)
        e.bload("buffer_load_dword", vD1, vT0, sWQ, sT1, tag="xw")
    def poison(fill):
        PZ = V(36, 4)
        fill.extend([lambda i=i: e.valu("v_mov_b32", PZ[i], -1) for i in range(4)])
        def third():
            e.salu("s_mov_b32", sU1, "0x40000000"); e.salu("s_cmp_eq_u32", None, g.sHG, 0); e.salu("s_cmov_b32", sU1, 8192)
        fill.append(third)
        for s_ in range(1, 4):
            def base(s_=s_):
                e.salu("s_add_u32", sU0, g.sHG, s_); e.salu("s_and_b32", sU0, sU0, 3); e.salu("s_mul_i32", sU0, sU0, 36)
            fill.append(base)
            fill.append(lambda: e.salu("s_add_u32", sU0, sU0, g.sHG))
            fill.append(lambda: e.salu("s_lshl_b32", sU0, sU0, 10))
            fill.append(lambda: e.salu("s_add_u32", sU0, sU0, g.sPB))
            fill.append(lambda: e.bstore("buffer_store_dwordx4", PZ, vL16, sWS, sU0, pol="sc1", tag="pz"))
            fill.append(lambda: e.salu("s_add_u32", sT, sU0, 4096))
            fill.append(lambda: e.bstore("buffer_store_dwordx4", PZ, vL16, sWS, sT, pol="sc1", tag="pz"))
            fill.append(lambda: e.salu("s_add_u32", sT, sU0, sU1))
            fill.append(lambda: e.bstore("buffer_store_dwordx4", PZ, vL16, sWS, sT, pol="sc1", tag="pz"))
    if cfg.inband and cfg.poison_at == -1:
        pz = []; poison(pz)
        for f in pz: f()
    if cfg.xwarm == 1: xw_warm()
    if cfg.qst: stamp(13, True)
    e.wait_vm("p0")
    if cfg.qst: stamp(14, True)
    e.barrier()
    stamp(1)
    for f in w_reads(0) + x_reads(0): f()
    if cfg.plate == 2:
        for f in pro[2]: f()
    if cfg.xwarm == 2: xw_warm()
    kvq = deque(kvq_items(s_) for s_ in range(4))
    def q_out(qt):
        its = []
        for P in range(2):
            src = V(112 + (qt * 4 + 2 * P) * 4, 8)
            its += [lambda i=i, src=src: e.valu("v_pk_mul_f32", src[2 * i:2 * i + 2], src[2 * i:2 * i + 2], V(34, 2)) for i in range(4)]
            its += [lambda i=i, src=src: e.valu("v_cvt_pk_bf16_f32", src[i], src[2 * i], src[2 * i + 1]) for i in range(4)]
            its.append(lambda src=src, P=P: e.ds_write("ds_write_b128", QW, src[0:4], (qt * 4 + P) * 1024))
        return its
    e.valu("v_mov_b32", V(34), g.sSC); e.valu("v_mov_b32", V(35), g.sSC)
    for st in range(16):
        e.comment(f"q-proj stage {st}")
        e.wait_vm({0: "p1", 1: "p2"}.get(st, ("iss", st - 2)))
        if st == (13 if cfg.qbar2 else 14): e.wait_vm(("kv", 0))
        e.wait_all_lds()
        if st & 1 or not cfg.qbar2: e.barrier()
        if cfg.qst and st in (1, 3, 6, 9, 13): stamp({1: 6, 3: 7, 6: 9, 9: 10, 13: 11}[st], True)
        fill = deque()
        if cfg.plate == 3 and st == 0: fill.extend(pro[2])
        if st // 2 + 2 < 8:
            if not cfg.qbar2: fill.extend(x_items(st // 2 + 2, st & 1, ("iss", st)))
            elif st & 1: fill.extend(x_items(st // 2 + 2, 0, ("iss", st)) + x_items(st // 2 + 2, 1, ("iss", st)))
        if st + 3 < 16: fill.extend(w_items(st + 3, ("iss", st)))
        if cfg.warm == 3 and cfg.warm0 == st: fill.extend(warm0())
        if cfg.tagpos == 2 and st == 13: tag_propose()
        for _ in range(cfg.kv0_at.split(",").count(str(st))): fill.extend(kvq.popleft())
        if cfg.inband and st == cfg.poison_at: poison(fill)
        if st == cfg.opre:
            fill.extend([lambda: e.salu("s_sub_u32", sU0, g.sOB, g.sWLG), lambda: e.salu("s_mul_i32", sU1, sW, 18432),
                         lambda: e.salu("s_add_u32", sU0, sU0, sU1), lambda: e.valu("v_lshlrev_b32", vT0, 7, vL)])
            for n in range(3):
                if n: fill.append(lambda n=n: e.salu("s_add_u32", sU0, sU0, 8192 if n == 1 else 2048))
                fill.append(lambda: e.bload("buffer_load_dword", vD1, vT0, sWS, sU0, pol=cfg.opre_pol, tag="op"))
        if cfg.l2pre and st == cfg.l2pre_at:
            for r in range(cfg.l2pre):
                fill.extend([lambda r=r: e.salu("s_add_u32", sT, sW, 4 + 4 * r), lambda: e.salu("s_lshl_b32", sT, sT, 13), lambda: e.salu("s_add_u32", sT, sT, g.sROT),
                             lambda: e.salu("s_and_b32", sT, sT, "0x3ffff"), lambda: e.salu("s_add_u32", sT, sT, g.sKVB0),
                             lambda: e.valu("v_lshlrev_b32", vT0, 7, vL),
                             lambda: e.bload("buffer_load_dword", vD1, vT0, sK, sT, tag="l2"), lambda: e.bload("buffer_load_dword", vD1, vT0, sV, sT, tag="l2")])
        rd = deque()
        if st + 1 < 16: rd.extend(w_reads(st + 1))
        if st & 1 and st + 1 < 16: rd.extend(x_reads((st + 1) // 2))
        if st == 14: rd.extend(kb_reads() + k_reads(0) + v_reads(0))
        if st == 15:
            fill.append(lambda: e.salu("s_mov_b32", sT1, "0x80008000"))
            fill.extend([lambda kk=kk, i=i: e.valu("v_xor_b32", Kb[kk][i], sT1, Kb[kk][i]) for kk in range(4) for i in range(4)])
        mfs = [lambda qt=qt, D=D: e.mfma16(QACC(D, qt), WF(st & 1, D), XF(st % 3, qt), QACC(D, qt) if st else 0)
               for qt in range(9) for D in range(4)]
        if st < 15 or not cfg.qov: run_stage(mfs, rd, fill)
        else:
            out = deque()
            for i, m in enumerate(mfs):
                m()
                if i % 4 == 3 and i >= 7: out.extend(q_out(i // 4 - 1))
                for _ in range(cfg.qov):
                    if fill: fill.popleft()()
                    elif out: out.popleft()()
            out.extend(q_out(8))
    while kvq:
        for f in kvq.popleft(): f()
    stamp(2)
    if not cfg.qov: out = deque(f for qt in range(9) for f in q_out(qt))
    while out: out.popleft()()
    e.valu("v_mov_b32", vT0, "0x3f803f80")
    for i in range(4): e.valu("v_accvgpr_write_b32", ONES[i], vT0)
    ld_setup()
    e.salu("s_cmp_eq_u32", None, sW, 3)
    e.branch("s_cbranch_scc1", "L_rC")
    e.salu("s_cmp_lg_u32", None, sW, 0)
    e.branch("s_cbranch_scc1", "L_rB")
    hist0 = list(e.hist); vmq0 = list(e.vm_q)

    X8 = 139264
    CAPS = [0, 2, 0, 1, 0, 2, 0, 1, 0, 2, 0, 1, 0, 2, 0, 1, cfg.l4cap if cfg.l4 else 2]
    for R in "ABC":
        NTW = 2 if R == "B" else 3
        toff = lambda t: ({"A": 8, "C": 2}[R] if t == 2 else t)
        e.hist = list(hist0)
        if R != "A": e.label(f"L_r{R}")
        e.lds_q = ["x"]; e.vm_q = list(vmq0)
        e.salu("s_mul_i32", sT, sSW2, 18432)
        e.valu("v_add_u32", vD1, sT, QA); e.valu("v_add_u32", QA, 36864, QA); e.valu("v_subrev_u32", QA, sT, QA)
        e.valu("v_add_u32", vD0, X8, vL16)
        e.valu("v_add_u32", vOW, g.sWLG, GOA[0])
        def qf_reads(h, addr):
            return [lambda t=t, kk=kk: e.ds_read("ds_read_b128", Qf(h, t, kk), addr, (toff(t) * 4 + kk) * 1024, tag="q") for t in range(NTW) for kk in range(4)]
        def prepass(h):
            e.comment("stand-in for the row max: minus the score of the first key, per row")
            e.salu("s_cmp_lg_u32", None, g.sRETRY, 0)
            e.branch("s_cbranch_scc1", f"L_np{h}{R}")
            if h == 0:
                for f in qf_reads(0, vD1): f()
                e.wait_all_lds()
            else:
                e.salu("s_mov_b32", sT1, "0x80008000")
                for kk in range(4):
                    for i in range(4): e.valu("v_xor_b32", Kb[kk][i], sT1, Kb[kk][i])
            for t in range(NTW):
                for kk in range(4): e.mfma16(NM(h, t), Kb[kk], Qf(h, t, kk), NM(h, t) if kk else 0)
            e.label(f"L_np{h}{R}")
        e.label(f"L_main_{R}")
        e.lds_q = ["x"]
        e.salu("s_mov_b32", g.sFAIL, 0)
        seq = [(s, t) for s in range(32) for t in range(3 if (R == "A" and s % 2 == 0) or (R == "C" and s % 2 == 1) else 2)]
        if not cfg.alt: seq = [(s, t) for s in range(32) for t in range(3 if R == "A" else 2)]
        NT = len(seq)
        first = {s: j for j, (s, t) in reversed(list(enumerate(seq)))}; first[32] = NT
        bpos = {}
        for s in range(1, 33):
            if s % 2 == 0 or R == "B" or not cfg.alt: bpos[(first[s], 0)] = s
            elif R == "A": bpos[(first[s] - 1, 8)] = s
            else: bpos[(first[s], 8)] = s
        def cap_left(j, i):
            n = k = 0
            while True:
                n += CAPS[i]; k += CAPS[i] > 0
                i += 1
                if i == 17: i = 0; j += 1
                if (j, i) in bpos or j > NT: return n, k
        extras = deque(); rds = deque(); lastk = [None]; later = deque()
        def beta(sg):
            while rds: rds.popleft()()
            if sg < 64:
                while extras: extras.popleft()()
            if sg + 1 < 64: e.wait_vm(("kv", sg + 1))
            if R == "C" and sg == 3:
                e.wait_all_vm()
                e.salu("s_cmp_lg_u32", None, g.sRETRY, 0)
                e.branch("s_cbranch_scc1", "6f")
                e.readfirstlane(sT, TG[0])
                e.salu("s_cmp_eq_u32", None, sT, 0)
                e.salu("s_cselect_b32", sT, S(72), sT)
                e.salu("s_mov_b32", sTAG, sT)
                e.valu("v_mov_b32", vT0, sT); e.valu("v_mov_b32", vT1, LFLAG)
                e.ds_write("ds_write_b32", vT1, vT0, 32)
                e.label("6")
            fb = cfg.fb and 4 <= sg < 60
            if fb and R == "C" and sg % 4 == 2:
                e.wait_vm("prg")
                e.vcmp("v_cmp_eq_u32", sM0, sTAG, PG[0]); e.vcmp("v_cmp_le_u32", "vcc", sTRIP, PG[1])
                e.salu("s_and_b32", sT, sM0[0], "vcc_lo"); e.salu("s_and_b32", sT, sT, "0xffff"); e.salu("s_bcnt1_i32_b32", sT, sT)
                e.valu("v_mov_b32", vT0, sT); e.valu("v_mov_b32", vT1, LFLAG)
                e.ds_write("ds_write_b32", vT1, vT0, 36)
            hook = 36 <= sg < 60 and sg % 4 == 0
            if hook:
                if R == "B": assert sg == 36 or "ost0" not in e.vm_q
                else: e.wait_all_vm()
            if R == "C" and sg == 62:
                while extras: extras.popleft()()
                e.wait_vm("fl0")
                flag_test(g.sHP)
                e.branch("s_cbranch_scc1", "L_poll0x")
                e.salu("s_cmp_lg_u32", None, g.sFAIL, 0)
                e.branch("s_cbranch_scc1", "L_poll0x")
                q_ = list(e.vm_q)
                poll(sF1, 0, "L_poll0", g.sHP)
                e.vm_q = q_
            if e.lds_q: e.wait_all_lds()
            if not cfg.dbg_hot & 2: e.barrier()
            for _ in range(cfg.trickle):
                if later and sg > 32: extras.extend(later.popleft())
            if fb and R == "C" and sg % 4 == 0:
                e.salu("s_add_u32", sTRIP, sTRIP, 1)
                e.valu("v_and_b32", vT2, 15, vL); e.valu("v_lshlrev_b32", vT2, 3, vT2)
                e.bload("buffer_load_dwordx2", PG, vT2, sWS, sPL, pol="sc1", tag="prg")
                e.valu("v_mov_b32", V(110), sTAG); e.valu("v_mov_b32", V(111), sTRIP); e.valu("v_mov_b32", vT1, sPS)
                e.salu("s_mov_b64", "exec", 1)
                e.bstore("buffer_store_dwordx2", V(110, 2), vT1, sWS, sPL, pol="sc1")
                e.salu("s_mov_b64", "exec", -1)
            if fb and R == "B" and sg % 4 == 2:
                e.valu("v_mov_b32", vT1, LFLAG)
                e.ds_read("ds_read_b32", vD1, vT1, 36)
            if fb and R == "B" and sg % 4 == 3:
                e.readfirstlane(sT, vD1)
                e.salu("s_cmp_ge_u32", None, sT, cfg.fb)
                e.salu("s_cselect_b64", "vcc", -1, 0)
            if R == "B" and not cfg.dbg_hot & 8:
                if 4 <= sg + cfg.la < 64: extras.extend(ld_items(sg + cfg.la))
            if R == "A" and sg in (33, 34): extras.extend(full_w_items(sg - 33))
            if sg == 2:
                e.salu("s_cmp_lg_u32", None, g.sRETRY, 0)
                e.branch("s_cbranch_scc1", "6f")
                for f in qf_reads(1, QA): f()
                e.lds_q = []
                e.label("6")
            if R == "B" and 60 <= sg < 64: extras.extend(tail_items(sg))
            if R == "A" and cfg.cw and sg % 4 == 0 and 4 <= sg % 32 < 28:
                e.salu("s_cmp_lg_u32", None, g.sCNT, cfg.cw_trip)
                e.branch("s_cbranch_scc1", "1f")
                q_ = list(e.vm_q)
                code_touch()
                e.vm_q = q_
                e.label("1")
            if R == "C":
                if hook:
                    e.salu("s_cmp_lg_u32", None, g.sCNT, cfg.sig_trip)
                    e.branch("s_cbranch_scc1", "1f")
                    read_fail(1)
                    e.salu("s_andn2_b32", g.sFAIL, sT, g.sRETRY)
                    e.salu("s_or_b32", sT, g.sFAIL, g.sPUB)
                    e.salu("s_cmp_lg_u32", None, sT, 0)
                    e.branch("s_cbranch_scc1", "1f")
                    flag_store(sF1, 0, g.sHP)
                    e.label("1")
                    if cfg.warm == 2:
                        e.salu("s_cmp_lg_u32", None, g.sCNT, cfg.warm_trip)
                        e.branch("s_cbranch_scc1", "2f")
                        for f in warm_items(): f()
                        e.label("2")
                if sg == 60:
                    flag_load(sF1, 0, "fl0")
                if sg == cfg.pre_step and cfg.warm == 1: extras.extend(warm_items())
                if cfg.warm == 3 and sg % cfg.warm_per == 0 and sg < 64: extras.extend(warm_items())
                if sg % 32 == 0 and sg and cfg.alt:
                    rds.append(lambda: e.ds_read("ds_read_b32", V(144), vD0, 8192, tag="x8"))
                    rds.extend([lambda D=D: e.ds_read("ds_read_b128", V(112 + 4 * D, 4), vD0, D * 1024, tag="x8") for D in range(8)])
            if sg + 1 < 64 and not cfg.dbg_hot & 4:
                kr = k_reads(sg + 1); rds.extend(kr); lastk[0] = kr[-1]
                if sg + 1 == 32: rds.extend(kb_reads())
        def slot(h, j):
            e.comment(f"slot")
            mf = []
            jq, jp = j + 1, j - 1
            if jq < NT:
                s, t = seq[jq]
                for kk in range(4):
                    for kt in range(2):
                        def m(kk=kk, kt=kt):
                            d = Sb[jq % 2][4 * kt:4 * kt + 4]
                            e.mfma16(d, Kf(s & 1, kt, kk), Qf(h, t, kk), d if kk else NM(h, t))
                        mf.append(m)
            else:
                mf += [None] * 8
            if jp >= 0:
                s2, t2 = seq[jp]
                acc = any(t_ == t2 for _, t_ in seq[:jp])
                def pv(D):
                    e.mfma16(Oacc(t2, D), Vf(s2 & 1, D), Pb[jp % 2], Oacc(t2, D) if acc else 0)
                    if cfg.l4 and D == cfg.l4pos: e.mfma4(Lb[t2], ONES[0:2], Pb[jp % 2][0:2], Lb[t2] if acc else 0)
                for D in range(8): mf.append(lambda D=D: pv(D))
                if cfg.l4: mf.append(lambda: e.mfma4(Lb[t2], ONES[0:2], Pb[jp % 2][2:4], Lb[t2]))
                else: mf.append((lambda: e.mfma16(Lb[t2], ONES, Pb[jp % 2], Lb[t2] if acc else 0)) if not (cfg.dbg_pw & 1 and acc) else None)
            else:
                mf += [None] * 9
            sm = 0 <= j < NT
            Sx, Px = Sb[j % 2], Pb[j % 2]
            E = lambda i: (lambda: e.valu("v_exp_f32", Sx[i], Sx[i])) if sm else None
            if cfg.dbg_pw & 4:
                for i_ in range(8, 16, 2): mf[i_] = None
            C = lambda i: (lambda: e.valu("v_cvt_pk_bf16_f32", Px[i], Sx[2 * i], Sx[2 * i + 1])) if sm else None
            base = [E(0), None, E(1), C(0), E(2), None, E(3), C(1), E(4), None, E(5), C(2), E(6), None, E(7), C(3), None]
            vre = deque()
            sfirst = [s_ for s_, j_ in first.items() if j_ == j and s_ > 0]
            if sfirst and 32 * h + sfirst[0] + 1 < 64 and not cfg.dbg_hot & 4: vre = deque(v_reads(32 * h + sfirst[0] + 1))
            if R == "A" and j == NT - 1 and cfg.alt:
                rds.extend([lambda D=D: e.ds_write("ds_write_b128", vD0, Oacc(2, D), D * 1024) for D in range(8)])
                rds.append(lambda: e.ds_write("ds_write_b32", vD0, Lb[2][0], 8192))
            for i in range(17):
                if (j, i) in bpos: beta(32 * h + bpos[(j, i)])
                if i == 0 and jq < NT and jq > 0 and seq[jq][1] == 0:
                    while lastk[0] in rds: rds.popleft()()
                    e.wait_lds("kf")
                if mf[i]: mf[i]()
                if 8 <= i < 16 and vre:
                    rds.append(vre.popleft()); rds.append(vre.popleft())
                if base[i]: base[i]()
                cap = CAPS[i] if sm else 2
                if CAPS[i]:
                    nq = len(rds) + (0 if ((j, 8) in bpos and i < 8) else len(vre)) + min(len(extras), 24)
                    nxt = [s_ for s_, j_ in first.items() if j_ == j + 1]
                    if R == "A" and nxt and nxt[0] % 2 == 1 and i >= 8 and cfg.alt: nq += 16
                    left, k = cap_left(j, i)
                    left -= 3
                    if nq > left: cap += -(-(nq - left) // max(1, k - 1))
                    elif cfg.thin and sm and cap == 2 and nq <= k - 2 and not (lastk[0] in rds and jq + 1 < NT and seq[jq + 1][1] == 0): cap = 1
                for c in range(cap):
                    if rds and (not extras or c != 1): rds.popleft()()
                    elif extras: extras.popleft()()
        def epilogue(h):
            NE = 2 if R != ("C" if cfg.alt else "A") else 3
            LV = [V(32 + 2 * t, 2) for t in range(3)]
            bad = cfg.force_fallback >> h & 1
            if h == 0:
                e.valu("v_mov_b32", vT0, LFLAG)
                e.ds_read("ds_read_b32", TG[0], vT0, 32, tag="tg")
            e.salu("s_mov_b32", sT, hex(f2u(0.25 if bad else cfg.lthresh)))
            e.salu("s_mov_b64", sM0, 0)
            for t in range(NE): e.valu("v_accvgpr_read_b32", LV[t][0], Lb[t][0])
            if R == "C" and cfg.alt:
                e.wait_lds("x8")
                e.valu("v_add_f32", LV[2][0], LV[2][0], V(144))
            if cfg.l4:
                for op in ("v_permlane32_swap_b32", "v_permlane16_swap_b32"):
                    for t in range(NE): e.valu("v_mov_b32", LV[t][1], LV[t][0])
                    for t in range(NE): e.perm(op, LV[t][1], LV[t][0])
                    for t in range(NE): e.valu("v_add_f32", LV[t][0], LV[t][0], LV[t][1])
            for t in range(NE):
                e.vcmp("v_cmp_nge_f32", sM1, sT, LV[t][0])
                e.salu("s_or_b64", sM0, sM0, sM1)
            for t in range(NE): e.valu("v_rcp_f32", LV[t][0], LV[t][0])
            e.salu("s_or_b32", sT, sM0[0], sM0[1])
            e.valu("v_mov_b32", vT0, sT)
            e.ds_write("ds_write_b32", vFLG, vT0, 16 * h)
            for t in range(NE): e.valu("v_mov_b32", LV[t][1], LV[t][0])
            if h == 0:
                e.salu("s_cmp_lg_u32", None, g.sPUB, 0)
                e.salu("s_cselect_b32", sM0[0], "0x40000000", g.sOB)
            if R == "C" and cfg.alt:
                for i in range(16): e.valu("v_pk_add_f32", V(224 + 2 * i, 2), V(224 + 2 * i, 2), V(112 + 2 * i, 2))
            if h == 1:
                g0 = deque(ga_reads(0) + gb_reads(0))
                for t in reversed(range(NE)):
                    for blk in reversed(range(4)):
                        for _ in range(4):
                            if g0: g0.popleft()()
                        o = V(160 + (t * 8 + 2 * blk) * 4, 8); d = OPK(t, blk)
                        for i in range(4): e.valu("v_pk_mul_f32", o[2 * i:2 * i + 2], o[2 * i:2 * i + 2], LV[t])
                        for i in reversed(range(4)): e.valu("v_cvt_pk_bf16_f32", d[i], o[2 * i], o[2 * i + 1])
                        if cfg.st_stage < 0:
                            if blk & 1: e.salu("s_add_u32", sT, sOB1, (blk >> 1) * 18432 + t * 2048)
                            e.bstore("buffer_store_dwordx4", d, vL16, sWS, sT, off=(blk & 1) * 1024, pol=cfg.ost_pol, tag="ost")
                return
            n = 0
            for bh in range(2):
                for t in range(NE):
                    for bl in range(2):
                        blk = 2 * bh + bl
                        o = V(160 + (t * 8 + 2 * blk) * 4, 8)
                        d = V(112 + 4 * n, 4)
                        n += 1
                        for i in range(4): e.valu("v_pk_mul_f32", o[2 * i:2 * i + 2], o[2 * i:2 * i + 2], LV[t])
                        for i in range(4): e.valu("v_cvt_pk_bf16_f32", d[i], o[2 * i], o[2 * i + 1])
                        e.ds_write("ds_write_b128", vOW, d, bh * 34816 + toff(t) * 2048 + bl * 1024)
                        st_ = [lambda bh=bh, t=t: e.salu("s_add_u32", sT, sM0[0], bh * 18432 + toff(t) * 2048),
                               lambda d=d, bl=bl: e.bstore("buffer_store_dwordx4", d, vL16, sWS, sT, off=bl * 1024, pol=cfg.ost_pol, tag="ost0")]
                        if cfg.trickle and n > cfg.trickle0: later.append(st_)
                        else:
                            for f in st_: f()
                        for _ in range(3):
                            if rds: rds.popleft()()
                            elif extras: extras.popleft()()
        for h in range(2):
            if h == 0:
                beta(0); rds.extend(v_reads(1))
                for _ in range(6):
                    if extras: extras.popleft()()
            prepass(h)
            if h == 0: stamp(3)
            chunks = []; save = e.lines
            bounds = [-1] + [first[s] for s in range(cfg.chunk0, 32, 4)] + [NT + 1]
            for a_, b_ in zip(bounds[:-1], bounds[1:]):
                e.lines = []
                for j in range(a_, b_): slot(h, j)
                chunks.append(e.lines)
            e.lines = save
            i = 0; nl = 0
            while i < len(chunks):
                k = i
                while k + 1 < len(chunks) and chunks[k + 1] == chunks[i]: k += 1
                if k > i:
                    nl += 1; lab = f"L_loop_{R}{h}{nl}"
                    e.lines.append(f"    s_mov_b32 {g.sCNT}, {k - i + 1}")
                    e.lines.append(lab + ":")
                    e.lines += chunks[i]
                    e.lines += [f"    s_sub_u32 {g.sCNT}, {g.sCNT}, 1", f"    s_cmp_lg_u32 {g.sCNT}, 0", f"    s_cbranch_scc1 {lab}"]
                else:
                    e.lines += chunks[i]
                i = k + 1
            if h:
                while extras: extras.popleft()()
            stamp(4 if h else 12)
            epilogue(h)
            if h == 0:
                e.wait_lds("tg")
                e.readfirstlane(sTAG, TG[0])
                if cfg.inband and cfg.poison_at < 100:
                    assert "pz" not in e.vm_q
                    flag_store(sF2, 32, g.sHG); e.vm_q.append("fs")
                stamp(13)
        while extras: extras.popleft()()
        e.wait_vm("pre")
        e.wait_all_lds(); e.barrier()
        read_fail(2)
        e.salu("s_andn2_b32", sT, sT, g.sRETRY)
        e.salu("s_cmp_eq_u32", None, sT, 0)
        e.branch("s_cbranch_scc1", "L_gemm")
        read_fail(1)
        e.salu("s_cmp_eq_u32", None, sT, 0)
        e.salu("s_cselect_b32", g.sPUB, 1, 0)
        e.salu("s_mov_b32", g.sRETRY, -1)
        e.wait_all()
        kv_addr_init()
        for h in range(2):
            MX = [V(48 + t) for t in range(3)]
            for t in range(NTW): e.valu("v_mov_b32", MX[t], "0xff800000")
            e.salu("s_mov_b32", g.sCNT, 32)
            e.salu("s_xor_b32", g.sKP, g.sKVB0, h * 262144); e.salu("s_mov_b32", g.sLS, 0)
            e.label(f"L_max_{R}{h}")
            e.barrier()
            if R == "A":
                for f in kv4_items("m")[:12]: f()
                e.wait_all_vm()
            e.salu("s_add_u32", g.sKP, g.sKP, 8192)
            e.barrier()
            for f in k_reads(0): f()
            e.wait_all_lds()
            for t in range(NTW):
                for kk in range(4):
                    for kt in range(2):
                        d = Sb[0][4 * kt:4 * kt + 4]
                        e.mfma16(d, Kf(0, kt, kk), Qf(h, t, kk), d if kk else 0)
                for i in range(4): e.valu("v_max3_f32", MX[t], Sb[0][2 * i], Sb[0][2 * i + 1], MX[t])
            e.salu("s_sub_u32", g.sCNT, g.sCNT, 1)
            e.salu("s_cmp_lg_u32", None, g.sCNT, 0)
            e.branch("s_cbranch_scc1", f"L_max_{R}{h}")
            for t in range(NTW):
                for op in ("v_permlane32_swap_b32", "v_permlane16_swap_b32"):
                    e.valu("v_mov_b32", vT0, MX[t])
                    e.perm(op, vT0, MX[t])
                    e.valu("v_max_f32", MX[t], vT0, MX[t])
                for i in range(4): e.valu("v_sub_f32", NM(h, t)[i], 0, MX[t])
        e.barrier()
        kv4_setup()
        for f in kv4_items("m"): f()
        ld_setup()
        e.wait_all_vm(); e.barrier()
        for f in k_reads(0) + v_reads(0): f()
        e.wait_all_lds()
        e.flush_hazards(8)
        e.branch("s_branch", f"L_main_{R}")

    e.label("L_gemm")
    e.hist = []; e.lds_q = []; e.vm_q = ["ost"]
    stamp(5)
    e.vm_q = [("g", 2)] + (["ost"] * 8 if cfg.st_stage < 0 else [])
    PS = cfg.poll_stage
    mark = [0]
    assert cfg.st_stage < cfg.sig_stage < PS and 6 <= PS <= 8 and (cfg.own_lds or cfg.sig_stage <= 4)
    def o2_items(kind, bh):
        def one(t, bl):
            if kind == "st":
                if bl == 0: e.salu("s_add_u32", sT, sOB1, bh * 18432 + t * 2048)
                e.bstore("buffer_store_dwordx4", OPK(t, 2 * bh + bl), vL16, sWS, sT, off=bl * 1024, pol=cfg.ost_pol, tag="ost")
            else:
                e.ds_write("ds_write_b128", vOW, OPK(t, 2 * bh + bl), bh * 34816 + t * 2048 + bl * 1024)
        def third():
            e.salu("s_cmp_lg_u32", None, sW, 3)
            e.branch("s_cbranch_scc1", "5f")
            q_ = (list(e.vm_q), list(e.lds_q))
            one(2, 0); one(2, 1)
            e.vm_q, e.lds_q = q_
            e.label("5")
        return [third] + [lambda t=t, bl=bl: one(t, bl) for t in range(2) for bl in range(2)]
    for st in range(16):
        e.comment(f"o-proj stage {st}")
        if st == cfg.sig_stage:
            if cfg.sig_drain: e.wait_all_vm()
            else: e.wait_vm("ost")
        if st == PS:
            e.salu("s_cmp_lg_u32", None, sW, 0)
            e.branch("s_cbranch_scc1", "L_poll1x")
            q_ = list(e.vm_q)
            e._wait(vm=len(e.vm_q) - mark[0])
            flag_test(g.sHP)
            e.branch("s_cbranch_scc1", "L_poll1x")
            poll(sF1, 32, "L_poll1", g.sHP)
            e.vm_q = q_
        if cfg.inband and st == cfg.poison_at - 100 + 4:
            e.wait_vm("pz")
            flag_store(sF2, 32, g.sHG)
        if cfg.inband and st == cfg.ann_stage:
            e.wait_vm("f3")
            flag_test(g.sHG)
            e.branch("s_cbranch_scc1", "L_poll3x")
            q_ = list(e.vm_q)
            poll(sF2, 32, "L_poll3", g.sHG)
            e.vm_q = q_
        if st + 1 < 16: e.wait_vm(("g", st + 1))
        if st:
            e.wait_all_lds(); e.barrier()
        if st == cfg.sig_stage:
            e.salu("s_cmp_lg_u32", None, sW, 3)
            e.branch("s_cbranch_scc1", "L_sig1")
            flag_store(sF1, 32, g.sHP)
            e.label("L_sig1")
            stamp(6)
        if st == PS: stamp(7)
        if st == 2: stamp(14)
        if cfg.gst and 1 <= st <= 11: stamp((1, 2, 3, 6, 7, 9, 10, 11, 12, 13, 14)[st - 1], True)
        fill = deque()
        if st == PS - 1:
            def fl1():
                e.salu("s_cmp_lg_u32", None, sW, 0)
                e.branch("s_cbranch_scc1", "7f")
                flag_load(sF1, 32, None); e.vm_q.pop()
                e.label("7")
                mark[0] = len(e.vm_q)
            fill.append(fl1)
        if cfg.inband and st == cfg.poison_at - 100: poison(fill)
        if cfg.inband and st == cfg.ann_stage - 2: fill.append(lambda: flag_load(sF2, 32, "f3"))
        if cfg.inband and st == cfg.ann_stage: fill.append(lambda: flag_store(sF2, 0, g.sHG))
        if cfg.inband and st == 15: fill.extend([lambda: None] * 2 + [lambda: flag_load(sF2, 0, "f2")])
        if st == PS:
            for s2 in range(10, st + 4): fill.extend(go_items(s2))
        if st == cfg.st_stage: fill.extend(o2_items("st", 0))
        if st == cfg.st_stage + cfg.st_split: fill.extend(o2_items("st", 1))
        if st + 4 < 16:
            if st + 4 in (8, 9) and cfg.own_lds: fill.extend(gw_items(st + 4) + o2_items("lds", st - 4))
            elif st + 4 < 10 or st >= PS: fill.extend(gwo_items(st + 4))
            else: fill.extend(gw_items(st + 4))
        rd = deque(ga_reads(st + 1) + gb_reads(st + 1)) if st + 1 < 16 else deque()
        mfs = [lambda qt=qt, kb=kb, ee=ee: e.mfma16(GC(qt, ee), GA(st & 1, kb * 2 + ee), GB(st & 1, qt * 2 + kb), GC(qt, ee) if (st or kb) else 0)
               for kb in range(2) for qt in range(9) for ee in range(2)]
        run_stage(mfs, rd, fill, span=20 if (st + 1 == cfg.sig_stage and cfg.sig_drain) else None)
    stamp(8)
    e.salu("s_mul_i32", sU0, g.sB, 144 * 2048); e.salu("s_lshl_b32", sT, g.sBR, 10); e.salu("s_add_u32", sU0, sU0, sT)
    e.salu("s_lshl_b32", sT, g.sHP, 8); e.salu("s_add_u32", sU0, sU0, sT); e.salu("s_lshl_b32", sT, sW, 6); e.salu("s_add_u32", sU0, sU0, sT)
    e.salu("s_mov_b32", sT1, "0xffff0000")
    for j in range(1, 4):
        e.salu("s_cmp_eq_u32", None, g.sHG, j)
        e.branch("s_cbranch_scc1", f"L_fin{j}")
    h1 = list(e.hist)
    for j in range(4):
        if j: e.label(f"L_fin{j}")
        e.hist = list(h1); e.vm_q = []; e.lds_q = []
        own = [qt for qt in range(9) if qt % 4 == j]
        if cfg.inband: e.vm_q = ["f2"]
        else: flag_load(sF2, 0, "f2")
        for qt in range(9):
            if qt in own: continue
            o = V(112 + qt * 8, 8)
            for i in range(4): e.valu("v_cvt_pk_bf16_f32", o[i], o[2 * i], o[2 * i + 1])
            if cfg.inband:
                for i in range(4): e.valu("v_min_u32", o[i], -2, o[i])
            e.salu("s_add_u32", sT2, g.sPB, j * 36864 + qt * 1024)
            e.bstore("buffer_store_dwordx4", o[0:4], vL16, sWS, sT2, pol="sc1")
        if cfg.inband: e.wait_vm("f2")
        else:
            e.wait_all_vm()
            flag_store(sF2, 0, g.sHG)
        stamp(9)
        flag_test(g.sHG)
        e.branch("s_cbranch_scc1", f"L_poll2{j}x")
        poll(sF2, 0, f"L_poll2{j}", g.sHG)
        PB = lambda s, n: V(184 + (s * 3 + n) * 4, 4)
        srcs = [s for s in range(4) if s != j]
        if cfg.inband:
            e.salu("s_mov_b32", g.sSP, 1 << 20)
            e.label(f"L_get{j}")
        else: stamp(10)
        for n, qt in enumerate(own):
            for si, s in enumerate(srcs):
                e.salu("s_add_u32", sT2, g.sPB, s * 36864 + qt * 1024)
                e.bload("buffer_load_dwordx4", PB(si, n), vL16, sWS, sT2, pol="sc1", tag=(si, n))
        if cfg.inband:
            e.wait_all_vm()
            ws_ = [PB(si, n)[i] for n in range(len(own)) for si in range(3) for i in range(4)]
            e.valu("v_max_u32", vT0, ws_[0], ws_[1])
            for i in range(2, len(ws_), 2): e.valu("v_max3_u32", vT0, ws_[i], ws_[i + 1], vT0)
            e.vcmp("v_cmp_eq_u32", "vcc", -1, vT0)
            e.salu("s_cmp_eq_u64", None, "vcc", 0)
            e.branch("s_cbranch_scc1", f"L_get{j}x")
            e.salu("s_sub_u32", g.sSP, g.sSP, 1)
            e.salu("s_cmp_lg_u32", None, g.sSP, 0)
            e.branch("s_cbranch_scc1", f"L_get{j}")
            e.label(f"L_get{j}x")
            stamp(10)
        for n, qt in enumerate(own):
            o = V(112 + qt * 8, 8)
            for si in range(3):
                p = PB(si, n)
                e.wait_vm((si, n))
                for i in range(4):
                    e.valu("v_lshlrev_b32", vT0, 16, p[i]); e.valu("v_and_b32", vT1, sT1, p[i])
                    e.valu("v_add_f32", o[2 * i], o[2 * i], vT0); e.valu("v_add_f32", o[2 * i + 1], o[2 * i + 1], vT1)
            for i in range(4): e.valu("v_cvt_pk_bf16_f32", o[i], o[2 * i], o[2 * i + 1])
            e.salu("s_add_u32", sT2, sU0, qt * 32768)
            e.bstore("buffer_store_dwordx4", o[0:4], vST, sOUT, sT2, pol=cfg.out_pol)
        stamp(11)
        stamp_flush()
        e.other("s_endpgm")
    e.label("L_done")
    e.other("s_endpgm")
    e.label("L_end")

def generate(cfg, fn):
    e = Em()
    e.raw('.amdgcn_target "amdgcn-amd-amdhsa--gfx950"'); e.raw(".text")
    gen(e, cfg, NAME + "_kernel")
    top = ("; attention block in one launch: q-projection, attention, output projection; generated by dev/gen9.py\n"
           "; @launch grid=(256,1,1) block=(256,1,1) lds=163840\n")
    tail = '.section .rodata,"a"\n' + descriptor(NAME + "_kernel", 512, 102, 256)
    open(fn, "w").write(top + e.text() + tail)
    return e

if __name__ == "__main__":
    cfg = Cfg()
    fn = sys.argv[1] if len(sys.argv) > 1 else "k.s"
    for kv in sys.argv[2:]:
        k, v = kv.split("=", 1)
        cur = getattr(cfg, k)
        setattr(cfg, k, type(cur)(int(v)) if isinstance(cur, (bool, int)) and not isinstance(cur, float) else (float(v) if isinstance(cur, float) else v))
    e = generate(cfg, fn)
    print(fn, "lines", len(e.lines), "nop states", e.nops)
```

```python
import sys, struct
from collections import deque
from asmlib import *

NAME = "concat_heads__mha_block_cached__gqa_block_cached__near_ridge"
def f2u(x): return struct.unpack("<I", struct.pack("<f", x))[0]
QSCALE = 1.4426950408889634 / (128 ** 0.5)

class Cfg:
    kv_pol = "nt"
    xw_pol = ""
    wo_pol = ""
    lthresh = 2.0 ** 40
    force_fallback = 0
    stamps = False
    poll_sleep = 2
    kv0_stage = 13
    win = 11
    wing = 1
    win2 = 0
    dbg_tail = 0
    ost_pol = "sc1"
    chunk0 = 4
    swap = 0
    alt = 1
    out_pol = "sc1"
    rotmul = "0x9e3779b1"
    trickle = 0
    trickle0 = 3
    sig_trip = 5
    warm_trip = 3
    warm_w = 1
    qst = 0
    gst = 0
    st_split = 0
    sig_drain = 0
    own_lds = 0
    tagpos = 0
    plate = 1
    kv0_at = "10,12,14,15"
    l2pre = 0
    la = 4
    thin = 0
    qrot = 4
    xwarm = 0
    stride = 0
    tpace = 0
    hswap = 0
    tail_at = "60,61,62,63"
    bonly = 1
    opre = -1
    opre_pol = ""
    qbar2 = 1
    l4 = 0
    l4pos = 3
    l4cap = 1
    dbg_pw = 0
    inband = 0
    poison_at = 13
    ann_stage = 14
    l2pre_at = 13
    fb = 0
    open_trip = 1
    warm0 = -1
    warm_per = 4
    qov = 3
    kv0_rate = 2
    warm_o = 0
    warm_opol = "sc1"
    cw = 3
    cw_trip = 2
    sig1_step = 35
    pre_step = 63
    warm = 1
    dbg_hot = 0
    st_stage = -1
    sig_stage = 3
    poll_stage = 6
    probe = -2
    probe_a = 0
    probe_cyc = 0
    probe_wg = -1

OWS_BYTES = 16 * 64 * 18432
PWS_OFF = OWS_BYTES
PWS_BYTES = 64 * 16 * 9216
FLG_OFF = OWS_BYTES + PWS_BYTES
PRG_OFF = FLG_OFF + (64 + 256) * 256
WS_USED = PRG_OFF + 16 * 256
STAMP_OFF = 32 << 20
NSTAMP = 16

def descriptor(label, vgpr, sgpr, accum):
    return f""".p2align 6
.amdhsa_kernel {label}
  .amdhsa_next_free_vgpr {vgpr}
  .amdhsa_next_free_sgpr {sgpr}
  .amdhsa_accum_offset {accum}
  .amdhsa_group_segment_fixed_size 0
  .amdhsa_kernarg_size 104
  .amdhsa_user_sgpr_count 2
  .amdhsa_user_sgpr_kernarg_segment_ptr 1
  .amdhsa_system_sgpr_workgroup_id_x 1
.end_amdhsa_kernel
"""

def gen(e, cfg, label):
    e.raw(f".globl {label}"); e.raw(".p2align 8"); e.raw(f".type {label},@function"); e.label(label)
    sX, sWQ, sK, sV, sWS, sWO, sOUT, sDBG = (S(4 * i + 4, 4) for i in range(8))
    sLD = sX
    names = ("W XCD IDX T T1 T2 B HP HG BR KVB KP KO LS XS WS2 XL WL CNT RETRY SC ROT OB OKP WB OL PB FL1 FL2 SP WLG FAIL PUB KVB0").split()
    sr = {n: S(36 + i) for i, n in enumerate(names)}
    assert 36 + len(names) <= 70
    g = type("G", (), {"s" + n: r for n, r in sr.items()})
    sM0, sM1 = S(70, 2), S(72, 2)
    KARG = 76
    def kp(i): return S(KARG + 2 * i), S(KARG + 2 * i + 1)
    sW, sT, sT1, sT2 = g.sW, g.sT, g.sT1, g.sT2
    sU0, sU1 = S(76), S(77)
    sWBw, sOKw = S(79), S(80)
    sPC = S(82, 2)
    sSTR = S(89)
    sPL, sTRIP, sPS = S(86), S(87), S(88)
    sF1, sF2 = S(84), S(85)
    sTAG = S(81)
    TG = V(108, 2)
    sSW2, sOB1 = S(3), S(78)
    vL, vL16, vT0, vT1, vT2 = V(1), V(2), V(3), V(4), V(5)
    KA = [V(6 + i) for i in range(4)]; VA = [V(10 + i) for i in range(8)]
    oK = [V(18 + i) for i in range(4)]; oV = [V(22 + i) for i in range(2)]
    oWo = [V(24 + i) for i in range(4)]
    XA = [V(28), V(29)]; WA = [V(30), V(31)]
    oLD = [V(28 + i) for i in range(4)]
    Sb = [V(32 + i * 8, 8) for i in range(2)]
    Pb = [V(48 + i * 4, 4) for i in range(2)]
    NM = lambda h, t: V(56 + (h * 3 + t) * 4, 4)
    oX = [V(56 + i) for i in range(5)]; oWQ = [V(61 + i) for i in range(4)]
    Kb = [V(80 + kk * 4, 4) for kk in range(4)]
    KBA, QA, QW = V(96), V(97), V(98)
    GWA = [V(99), V(100)]; GOA = [V(101), V(102)]; vST, vFLG, stamp_reg, vD0, vD1 = V(103), V(104), V(105), V(106), V(107)
    PG = V(28, 2)
    vOW = V(98)
    Oacc = lambda t, D: V(160 + (t * 8 + D) * 4, 4)
    OPK = lambda t, blk: V(208 + (t * 4 + blk) * 4, 4)
    QACC = lambda D, qt: V(112 + (qt * 4 + D) * 4, 4)
    XF = lambda buf, qt: A(buf * 36 + qt * 4, 4)
    WF = lambda buf, D: A(108 + buf * 16 + D * 4, 4)
    Qf = lambda h, t, kk: A((h * 12 + t * 4 + kk) * 4, 4)
    Lb = [A(96 + t * 4, 4) for t in range(3)]
    ONES = A(108, 4)
    Kf = lambda b, kt, kk: A(144 - b * 32 + (kt * 4 + kk) * 4, 4)
    Vf = lambda b, D: A(176 + b * 32 + D * 4, 4)
    GB = lambda buf, i: A((0 if buf else 112) + i * 4, 4)
    GA = lambda buf, i: A((72 if buf else 184) + i * 4, 4)
    GC = lambda qt, ee: V(112 + (qt * 2 + ee) * 4, 4)
    LQ = 65536; XS0, WS0 = LQ, LQ + 36864
    GSL = [69632, 104448, 0, 34816]; LFLAG = 163840 - 64
    WOF = [69632, 104448, 0, 16384]; OOF = [86016, 120832, 32768, 51200]

    pl = [0]
    def stamp(i, q=False):
        if cfg.qst and not q and i in (6, 7, 9, 10, 11, 12, 13, 14): return
        if cfg.gst and not q and i in (1, 2, 3, 6, 7, 9, 10, 11, 12, 13, 14): return
        if cfg.stamps:
            e.other("s_memrealtime s[74:75]"); e._wait(lg=0); e.lds_q = []
            e.ins(f"v_writelane_b32 {stamp_reg}, s74, {i}", 'valu', [], [stamp_reg])
            if cfg.probe_cyc:
                e.other("s_memtime s[74:75]"); e._wait(lg=0)
                e.ins(f"v_writelane_b32 {stamp_reg}, s74, {i + 16}", 'valu', [], [stamp_reg])
    def stamp_flush():
        if not cfg.stamps: return
        e.wait_all_vm(); stamp(NSTAMP - 1)
        if cfg.probe >= 0:
            pl[0] += 1
            e.nop(2)
            e.ins(f"v_readlane_b32 {sT1}, {stamp_reg}, {cfg.probe}", 'readlane', [stamp_reg], [sT1])
            e.nop(4)
            e.salu("s_cmp_eq_u32", None, sT1, 0)
            e.branch("s_cbranch_scc1", f"L_pe{pl[0]}")
            if cfg.probe_wg >= 0:
                e.salu("s_and_b32", sT, S(2), 7)
                e.salu("s_cmp_lg_u32", None, sT, cfg.probe_wg)
                e.branch("s_cbranch_scc1", f"L_pe{pl[0]}")
            o_ = 16 if cfg.probe_cyc else 0
            e.ins(f"v_readlane_b32 {sT1}, {stamp_reg}, {cfg.probe + o_}", 'readlane', [stamp_reg], [sT1])
            e.ins(f"v_readlane_b32 {sT2}, {stamp_reg}, {cfg.probe_a + o_}", 'readlane', [stamp_reg], [sT2])
            e.ins(f"v_readlane_b32 {sT}, {stamp_reg}, 0", 'readlane', [stamp_reg], [sT])
            e.nop(4)
            e.salu("s_sub_u32", sT1, sT1, sT2)
            if cfg.probe_cyc: e.salu("s_lshr_b32", sT1, sT1, 4)
            e.salu("s_add_u32", sT1, sT1, sT)
            e.salu("s_add_u32", sT1, sT1, 12000)
            e.label(f"L_pr{pl[0]}")
            e.other("s_memrealtime s[74:75]"); e._wait(lg=0)
            e.salu("s_sub_u32", sT, S(74), sT1)
            e.salu("s_cmp_lt_i32", None, sT, 0)
            e.branch("s_cbranch_scc1", f"L_pr{pl[0]}")
            e.label(f"L_pe{pl[0]}")
            return
        e.salu("s_lshl_b32", sT, S(2), 2); e.salu("s_add_u32", sT, sT, sW); e.salu("s_lshl_b32", sT, sT, 8)
        e.salu("s_add_u32", sT, sT, STAMP_OFF)
        e.valu("v_lshlrev_b32", vT0, 2, vL)
        e.bstore("buffer_store_dword", stamp_reg, vT0, sWS, sT)

    e.salu("s_cmp_ge_u32", None, S(2), 256)
    e.branch("s_cbranch_scc1", "L_done")
    e.other(f"s_load_dwordx16 s[{KARG}:{KARG+15}], s[0:1], 0")
    e.other(f"s_load_dwordx8 s[{KARG+16}:{KARG+23}], s[0:1], 64")
    e.other(f"s_load_dwordx2 s[{KARG+24}:{KARG+25}], s[0:1], 96")
    e.other("s_memrealtime s[72:73]")
    if cfg.cw & 4:
        e.other("s_getpc_b64 s[70:71]")
        e.label("L_pc")
        e.salu("s_lshr_b32", sT, S(2), 3); e.salu("s_lshl_b32", sT, sT, 12)
        e.valu("v_lshl_add_u32", V(109), V(0), 4, sT)
        e.valu("v_min_u32", V(109), "L_end-L_pc-4", V(109))
        e.ins("v_add_co_u32 v110, vcc, s70, v109", 'valu', [V(109)], [V(110), 'vcc'])
        e.valu("v_mov_b32", V(111), S(71))
        e.ins("v_addc_co_u32 v111, vcc, 0, v111, vcc", 'valu', [V(111), 'vcc'], [V(111), 'vcc'])
        e.ins(f"global_load_dword {vD1}, v[110:111], off", 'vmem', [V(110, 2)], [vD1]); e.vm_q.append("cw")
    e.valu("v_lshrrev_b32", vT0, 6, V(0))
    e.valu("v_and_b32", vL, 63, V(0))
    e.readfirstlane(sW, vT0)
    if cfg.stamps: e.valu("v_mov_b32", stamp_reg, 0)
    e.salu("s_and_b32", g.sXCD, S(2), 7)
    e.salu("s_lshr_b32", g.sIDX, S(2), 3)
    e.salu("s_lshr_b32", g.sB, g.sIDX, 2); e.salu("s_and_b32", g.sHP, g.sIDX, 3)
    e.salu("s_and_b32", g.sHG, g.sXCD, 3); e.salu("s_lshr_b32", g.sBR, g.sXCD, 2)
    e.valu("v_lshlrev_b32", vL16, 4, vL)
    e.valu("v_lshrrev_b32", vT1, 4, vL); e.valu("v_lshrrev_b32", vT0, 3, vL)
    e.salu("s_lshl_b32", sT, g.sHP, 1); e.salu("s_add_u32", sT, sT, g.sB); e.salu("s_and_b32", sT, sT, cfg.qrot)
    e.salu("s_lshl_b32", g.sXS, sT, 7); e.salu("s_lshl_b32", g.sWS2, sT, 19)
    e.salu("s_mul_i32", sT, sW, 9); e.salu("s_lshr_b32", sT, sT, 1)
    e.salu("s_lshl_b32", g.sOL, sT, 10); e.salu("s_add_u32", g.sXL, g.sOL, XS0)
    e.salu("s_mul_i32", sT1, g.sB, 147456); e.salu("s_lshl_b32", sT2, sT, 13); e.salu("s_add_u32", sT1, sT1, sT2)
    e.salu("s_and_b32", sT, sT, 1); e.salu("s_lshl_b32", sT, sT, 6)
    e.valu("v_and_b32", vT2, 7, vL); e.valu("v_xor_b32", vT2, vT2, vT1); e.valu("v_lshlrev_b32", vT2, 4, vT2)
    e.valu("v_lshl_add_u32", vT2, vT0, 10, vT2); e.valu("v_xor_b32", vT2, sT, vT2)
    e.valu("v_add_u32", oX[0], sT1, vT2); e.valu("v_xor_b32", vT2, 64, oX[0])
    for i in range(1, 5): e.valu("v_add_u32", oX[i], i * 8192 - (i % 3) * 1024, vT2 if i & 1 else oX[0])
    e.salu("s_lshl_b32", sT1, g.sHG, 11); e.salu("s_lshl_b32", sT2, g.sHP, 9); e.salu("s_add_u32", sT1, sT1, sT2)
    e.salu("s_lshl_b32", sT2, sW, 7); e.salu("s_add_u32", sT1, sT1, sT2)
    e.valu("v_and_b32", vT2, 1, vT1); e.valu("v_lshlrev_b32", vT2, 2, vT2)
    e.valu("v_and_b32", oWQ[0], 7, vL); e.valu("v_xor_b32", vT2, oWQ[0], vT2); e.valu("v_lshlrev_b32", vT2, 4, vT2)
    e.valu("v_lshl_add_u32", vT2, vT0, 13, vT2); e.valu("v_add_u32", oWQ[0], sT1, vT2)
    for i in range(1, 4): e.valu("v_add_u32", oWQ[i], i * (65536 - 1024), oWQ[0])
    e.salu("s_lshl_b32", g.sWLG, sW, 12); e.salu("s_add_u32", g.sWL, g.sWLG, WS0)
    e._wait(lg=0)
    e.salu("s_cmp_lg_u32", None, g.sBR, 0)
    def srd(d, a, b, size):
        if b is None:
            e.salu("s_mov_b32", d[0], kp(a)[0]); e.salu("s_mov_b32", d[1], kp(a)[1])
        else:
            e.salu("s_cselect_b32", d[0], kp(b)[0], kp(a)[0]); e.salu("s_cselect_b32", d[1], kp(b)[1], kp(a)[1])
        e.salu("s_mov_b32", d[2], hex(size)); e.salu("s_mov_b32", d[3], "0x20000")
    srd(sX, 0, 5, 8 * 147456); srd(sWQ, 3, 8, 512 * 8192)
    srd(sK, 1, 6, 1 << 26); srd(sV, 2, 7, 1 << 26); srd(sWO, 4, 9, 4096 * 1024)
    srd(sDBG, 11, None, 256)
    def tag_propose():
        e.salu("s_cmp_lg_u32", None, sW, 3)
        e.branch("s_cbranch_scc1", "1f")
        e.salu("s_or_b32", S(72), S(72), 1)
        e.salu("s_lshl_b32", sT, g.sBR, 3); e.salu("s_add_u32", sT, sT, g.sB); e.salu("s_lshl_b32", sT, sT, 4)
        e.valu("v_mov_b32", TG[0], S(72)); e.valu("v_mov_b32", TG[1], 0); e.valu("v_mov_b32", V(110), 0)
        e.salu("s_mov_b64", "exec", 1)
        e.ins(f"buffer_atomic_cmpswap {TG}, v110, {sDBG}, {sT} offen sc0 sc1", 'vmem', [TG, V(110), sDBG, sT], [TG[0]])
        e.salu("s_mov_b64", "exec", -1)
        e.label("1")
    if cfg.tagpos == 0: tag_propose()
    stamp(0)

    def x_items(D, part, tag):
        its = [lambda: e.salu("s_add_u32", "m0", g.sXL, (D & 1) * 18432 + part * 3072)]
        for i in range(3 * part, min(5, 3 * part + 3)):
            its.append(lambda i=i: e.dma(oX[i], sX, g.sXS, off=(i % 3) * 1024, pol=cfg.xw_pol, tag=tag))
        if part == 1:
            its.append(lambda: e.salu("s_add_u32", g.sXS, g.sXS, 128))
            its.append(lambda: e.salu("s_and_b32", g.sXS, g.sXS, 1023))
        return its
    def w_items(st, tag):
        its = [lambda: e.salu("s_add_u32", "m0", g.sWL, (st % 3) * 16384)]
        for i in range(4):
            its.append(lambda i=i: e.dma(oWQ[i], sWQ, g.sWS2, off=i * 1024, pol=cfg.xw_pol, tag=tag))
        its.append(lambda: e.salu("s_add_u32", g.sWS2, g.sWS2, 1 << 18))
        its.append(lambda: e.salu("s_and_b32", g.sWS2, g.sWS2, "0x3fffff"))
        return its
    pro = [w_items(0, "p0") + x_items(0, 0, "p0") + x_items(0, 1, "p0"), w_items(1, "p1"), x_items(1, 0, "p2") + x_items(1, 1, "p2") + w_items(2, "p2")]
    for f in pro[0]: f()
    if not cfg.plate:
        for f in pro[1] + pro[2]: f()
    if cfg.tagpos == 1: tag_propose()

    if cfg.qst: stamp(12, True)
    srd(sWS, 12, None, 64 << 20 if cfg.stamps else WS_USED); srd(sOUT, 10, None, 8 * 144 * 2048)
    e.salu("s_lshl_b32", sT, g.sHG, 3); e.salu("s_lshl_b32", sT1, g.sHP, 1); e.salu("s_add_u32", sT, sT, sT1)
    e.salu("s_lshl_b32", g.sKVB0, g.sB, 5); e.salu("s_add_u32", g.sKVB0, g.sKVB0, sT); e.salu("s_lshl_b32", g.sKVB0, g.sKVB0, 18)
    e.salu("s_lshl_b32", sT1, g.sBR, 3); e.salu("s_add_u32", sT1, sT1, g.sB)
    e.salu("s_lshl_b32", sT2, sT1, 5); e.salu("s_add_u32", sT2, sT2, sT); e.salu("s_mul_i32", g.sOB, sT2, 36864)
    e.salu("s_add_u32", g.sOB, g.sOB, g.sWLG)
    if cfg.swap == 1: e.salu("s_xor_b32", sSW2, g.sB, g.sHG)
    elif cfg.swap == 2:
        e.salu("s_lshr_b32", sSW2, g.sB, 1); e.salu("s_xor_b32", sSW2, sSW2, g.sB); e.salu("s_lshr_b32", sT2, g.sHG, 1); e.salu("s_xor_b32", sSW2, sSW2, sT2)
    e.salu("s_and_b32", sSW2, sSW2, 1 if cfg.swap else 0)
    e.salu("s_lshl_b32", sT2, sSW2, 18); e.salu("s_add_u32", g.sKVB0, g.sKVB0, sT2)
    e.salu("s_mul_i32", sT2, sSW2, 36864); e.salu("s_add_u32", sOB1, g.sOB, 36864); e.salu("s_sub_u32", sOB1, sOB1, sT2); e.salu("s_add_u32", g.sOB, g.sOB, sT2)
    e.salu("s_lshl_b32", sSW2, sSW2, 1)
    if cfg.dbg_tail & 1: e.salu("s_mov_b32", sOB1, "0x40000000")
    e.salu("s_lshl_b32", sT2, sT1, 2); e.salu("s_add_u32", g.sFL1, sT2, g.sHG); e.salu("s_add_u32", g.sFL2, sT2, g.sHP)
    e.salu("s_mul_i32", g.sOKP, g.sFL1, 16 * 18432)
    e.salu("s_mul_i32", g.sPB, g.sFL2, 16 * 9216); e.salu("s_add_u32", g.sPB, g.sPB, PWS_OFF)
    e.salu("s_lshl_b32", sF1, g.sFL1, 8); e.salu("s_add_u32", sF1, sF1, FLG_OFF)
    e.salu("s_lshl_b32", sF2, g.sFL2, 10); e.salu("s_add_u32", sF2, sF2, FLG_OFF + 64 * 256)
    e.salu("s_mul_i32", sT, sW, 9216); e.salu("s_add_u32", g.sPB, g.sPB, sT)
    e.salu("s_lshl_b32", sT, sW, 8); e.salu("s_add_u32", sF2, sF2, sT)
    e.salu("s_lshl_b32", sPL, sT1, 8); e.salu("s_add_u32", sPL, sPL, PRG_OFF)
    e.salu("s_lshl_b32", sPS, g.sHG, 2); e.salu("s_add_u32", sPS, sPS, g.sHP); e.salu("s_lshl_b32", sPS, sPS, 3)
    e.salu("s_mov_b32", sTRIP, 0)
    e.salu("s_lshl_b32", g.sWB, g.sHG, 20); e.salu("s_lshl_b32", sT, g.sHP, 8); e.salu("s_add_u32", g.sWB, g.sWB, sT)
    e.salu("s_lshl_b32", sT, sW, 14); e.salu("s_add_u32", sWBw, g.sWB, sT)
    e.salu("s_add_u32", sOKw, g.sOKP, g.sOL)
    if cfg.dbg_tail & 2: e.salu("s_mov_b32", sOKw, "0x40000000"); e.salu("s_mov_b32", sWBw, "0x40000000")
    if cfg.dbg_tail & 4: e.salu("s_mov_b32", g.sOKP, "0x40000000"); e.salu("s_mov_b32", g.sWB, "0x40000000")
    if cfg.cw & 4: e.salu("s_mov_b64", sPC, S(70, 2))
    else:
        e.other(f"s_getpc_b64 {sPC}")
        e.label("L_pc")
    e.salu("s_mul_i32", g.sROT, S(2), cfg.rotmul)
    if cfg.stride == 1:
        e.salu("s_lshr_b32", sSTR, g.sROT, 22); e.salu("s_and_b32", sSTR, sSTR, 30); e.salu("s_or_b32", sSTR, sSTR, 1); e.salu("s_lshl_b32", sSTR, sSTR, 13)
    else: e.salu("s_mov_b32", sSTR, 8192 * (cfg.stride | 1))
    e.salu("s_lshr_b32", g.sROT, g.sROT, 27); e.salu("s_lshl_b32", g.sROT, g.sROT, 13)
    e.salu("s_mov_b32", g.sRETRY, 0); e.salu("s_mov_b32", g.sPUB, 0)
    e.salu("s_mov_b32", g.sSC, hex(f2u(QSCALE)))
    e.valu("v_and_b32", vT0, 15, vL); e.valu("v_lshrrev_b32", vT1, 4, vL)
    e.valu("v_xor_b32", vT2, vT0, vT1)
    e.valu("v_lshlrev_b32", vT2, 4, vT2); e.valu("v_lshl_add_u32", oK[0], vT1, 8, vT2)
    for n in range(1, 4): e.valu("v_xor_b32", oK[n], n << 6, oK[0])
    e.valu("v_lshlrev_b32", vT2, 1, vT1); e.valu("v_xor_b32", vT2, vT0, vT2)
    e.valu("v_lshlrev_b32", vT2, 4, vT2); e.valu("v_lshl_add_u32", oV[0], vT1, 8, vT2)
    e.valu("v_xor_b32", oV[1], 128, oV[0])
    e.valu("v_lshlrev_b32", vT2, 2, vT1); e.valu("v_xor_b32", vT2, vT0, vT2)
    e.valu("v_lshlrev_b32", vT2, 4, vT2); e.valu("v_lshl_add_u32", oWo[0], vT1, 10, vT2)
    for i in range(1, 4): e.valu("v_add_u32", oWo[i], i * 3072, oWo[0])
    def kv_addr_init():
        e.valu("v_and_b32", vT0, 15, vL); e.valu("v_lshrrev_b32", vT1, 4, vL)
        e.valu("v_xor_b32", vT2, vT0, vT1); e.valu("v_lshlrev_b32", vT2, 4, vT2)
        e.valu("v_lshl_add_u32", KA[0], vT0, 8, vT2)
        for kk in range(1, 4): e.valu("v_xor_b32", KA[kk], kk << 6, KA[0])
        e.valu("v_lshlrev_b32", KBA, 4, vT1)
        e.valu("v_lshrrev_b32", vT0, 2, vL)
        e.valu("v_and_b32", vT2, 7, vT0); e.valu("v_lshlrev_b32", vT2, 5, vT2)
        e.valu("v_lshl_add_u32", vT2, vT0, 8, vT2)
        e.valu("v_and_b32", vT0, 3, vL); e.valu("v_lshl_add_u32", vT2, vT0, 3, vT2)
        e.valu("v_add_u32", VA[0], 8192, vT2)
        for D in range(1, 8): e.valu("v_xor_b32", VA[D], D << 5, VA[0])
    kv_addr_init()
    e.valu("v_and_b32", vT0, 15, vL)
    e.valu("v_lshrrev_b32", vT2, 1, vT0); e.valu("v_xor_b32", vT2, vT2, vT1); e.valu("v_lshlrev_b32", vT2, 4, vT2)
    e.valu("v_lshl_add_u32", vT2, vT0, 7, vT2); e.valu("v_add_u32", XA[0], XS0, vT2); e.valu("v_xor_b32", XA[1], 64, XA[0])
    e.valu("v_lshlrev_b32", vST, 11, vT0); e.valu("v_lshl_add_u32", vST, vT1, 4, vST)
    e.valu("v_lshrrev_b32", vT0, 2, vL); e.valu("v_and_b32", vT0, 3, vT0)
    e.valu("v_lshl_add_u32", vT2, vT1, 3, vT0); e.valu("v_lshlrev_b32", vT2, 7, vT2)
    e.valu("v_lshrrev_b32", WA[1], 1, vT0); e.valu("v_lshl_add_u32", vT2, WA[1], 6, vT2)
    e.valu("v_and_b32", WA[1], 3, vL); e.valu("v_lshl_add_u32", vT2, WA[1], 4, vT2)
    e.valu("v_add_u32", WA[0], g.sWL, vT2); e.valu("v_xor_b32", WA[1], 64, WA[0])
    e.valu("v_xor_b32", vT0, sW, vT0); e.valu("v_lshlrev_b32", vT0, 6, vT0)
    e.valu("v_and_b32", vT2, 3, vL); e.valu("v_lshl_add_u32", vT0, vT2, 4, vT0)
    e.valu("v_lshrrev_b32", vT2, 2, vL); e.valu("v_lshl_add_u32", GWA[1], vT2, 8, vT0)
    e.valu("v_add_u32", GWA[0], GSL[0], GWA[1])
    e.valu("v_add_u32", GOA[1], OOF[2], vL16); e.valu("v_add_u32", GOA[0], GSL[0] + 16384, vL16)
    e.salu("s_lshr_b32", sT1, sW, 1); e.salu("s_mul_i32", sT1, sT1, 36864)
    e.salu("s_and_b32", sT2, sW, 1); e.salu("s_lshl_b32", sT2, sT2, 11); e.salu("s_add_u32", sT2, sT2, sT1); e.salu("s_add_u32", sT2, sT2, LQ)
    e.valu("v_add_u32", QW, sT2, vL16)
    e.salu("s_lshl_b32", sT2, sW, 13); e.salu("s_add_u32", sT2, sT2, LQ)
    e.valu("v_add_u32", QA, sT2, vL16)
    e.salu("s_lshl_b32", sT2, sW, 2); e.salu("s_add_u32", sT2, sT2, LFLAG)
    e.valu("v_mov_b32", vFLG, sT2)

    def kv4_setup():
        e.salu("s_mul_i32", sT, sW, sSTR); e.salu("s_add_u32", g.sKP, g.sROT, sT); e.salu("s_and_b32", g.sKP, g.sKP, "0x3ffff")
        e.salu("s_add_u32", g.sKP, g.sKP, g.sKVB0); e.salu("s_lshl_b32", g.sLS, sW, 14)
    def kv4_items(tag, base=None):
        its = []
        for srd_, voff, b_ in ((sK, oK, 0), (sV, oV, 8192)):
            for n in range(8):
                if n % 4 == 0:
                    its.append(lambda n=n, b_=b_: e.salu("s_add_u32", "m0", g.sLS, b_ + n * 1024))
                    its.append(lambda n=n: e.salu("s_add_u32", g.sKO, g.sKP, n * 1024))
                its.append(lambda n=n, srd_=srd_, voff=voff: e.dma(voff[n % len(voff)], srd_, g.sKO, off=(n & 3) * 1024, pol=cfg.kv_pol, tag=tag))
        return its
    oKq = [V(32), V(33)]
    def kvq_setup():
        e.salu("s_and_b32", sT, sW, 1); e.salu("s_lshl_b32", sT, sT, 7)
        e.valu("v_xor_b32", oKq[0], sT, oK[0]); e.valu("v_xor_b32", oKq[1], sT, oK[1])
        e.salu("s_lshl_b32", g.sLS, sW, 11); e.salu("s_add_u32", g.sKVB, g.sKVB0, g.sLS); e.salu("s_mov_b32", g.sKP, g.sROT)
    def kvq_items(step):
        its = [lambda: e.salu("s_add_u32", "m0", g.sLS, step * 16384), lambda: e.salu("s_add_u32", g.sKO, g.sKVB, g.sKP)]
        its += [lambda i=i: e.dma(oKq[i], sK, g.sKO, off=i * 1024, pol=cfg.kv_pol, tag=("kv", step)) for i in range(2)]
        its += [lambda: e.salu("s_add_u32", "m0", g.sLS, step * 16384 + 8192), lambda: e.salu("s_add_u32", g.sKP, g.sKP, sSTR)]
        its += [lambda i=i: e.dma(oV[i], sV, g.sKO, off=i * 1024, pol=cfg.kv_pol, tag=("kv", step)) for i in range(2)]
        its += [lambda: e.salu("s_and_b32", g.sKP, g.sKP, "0x3ffff")]
        return its
    kvq_setup()
    def window():
        if cfg.win2:
            e.branch("s_cbranch_vccnz", "4f")
            e._wait(vm=cfg.win2 - cfg.wing)
            e.label("4")
        if cfg.win and len(e.vm_q) > cfg.win - cfg.wing:
            n = cfg.win - cfg.wing
            e._wait(vm=n); e.vm_q = e.vm_q[len(e.vm_q) - n:]
    def ld_setup():
        e.salu("s_cmp_eq_u32", None, sW, 2)
        e.salu("s_cselect_b32", sLD[0], sV[0], sK[0]); e.salu("s_cselect_b32", sLD[1], sV[1], sK[1])
        e.salu("s_mov_b32", sLD[2], hex(1 << 26)); e.salu("s_mov_b32", sLD[3], "0x20000")
        e.salu("s_cselect_b32", g.sLS, 8192, 0)
        e.salu("s_cselect_b64", "vcc", -1, 0)
        e.nop(2)
        for n in range(4): e.ins(f"v_cndmask_b32 {oLD[n]}, {oK[n]}, {oV[n & 1]}, vcc", 'valu', [oK[n], oV[n & 1], 'vcc'], [oLD[n]])
        e.salu("s_lshl_b32", g.sKP, sSTR, 2); e.salu("s_add_u32", g.sKP, g.sROT, g.sKP); e.salu("s_and_b32", g.sKP, g.sKP, "0x3ffff")
        e.salu("s_mov_b32", g.sKVB, g.sKVB0)
        if cfg.hswap:
            if cfg.hswap == 1: e.salu("s_lshr_b32", sT, g.sLS, 1)
            else:
                e.salu("s_add_u32", sT, g.sIDX, sW); e.salu("s_and_b32", sT, sT, 1); e.salu("s_lshl_b32", sT, sT, 12)
            e.salu("s_add_u32", g.sLS, g.sLS, sT); e.salu("s_add_u32", g.sKVB, g.sKVB, sT)
        if cfg.win2:
            e.salu("s_mov_b64", "vcc", 0)
    def ld_items(step):
        its = []
        if step == 32:
            its.append(lambda: e.salu("s_xor_b32", g.sKVB, g.sKVB, 262144))
        for n in range(8):
            if n == 0:
                its.append(lambda: e.salu("s_add_u32", "m0", g.sLS, (step & 3) * 16384)); its.append(lambda: e.salu("s_add_u32", g.sKO, g.sKVB, g.sKP))
            if n == 4:
                its.append(lambda: e.salu("s_xor_b32", "m0", "m0", 4096)); its.append(lambda: e.salu("s_xor_b32", g.sKO, g.sKO, 4096))
            if n % cfg.wing == 0: its.append(window)
            its.append(lambda n=n: e.dma(oLD[n & 3], sLD, g.sKO, off=(n & 3) * 1024, pol=cfg.kv_pol, tag=("kv", step)))
        its.append(lambda: e.salu("s_add_u32", g.sKP, g.sKP, 0 if cfg.dbg_hot else sSTR)); its.append(lambda: e.salu("s_and_b32", g.sKP, g.sKP, "0x3ffff"))
        return its
    def k_reads(step):
        return [lambda kk=kk, kt=kt: e.ds_read("ds_read_b128", Kf(step & 1, kt, kk), KA[kk], (step & 3) * 16384 + kt * 4096, tag="kf")
                for kk in range(4) for kt in range(2)][:(4 if cfg.dbg_pw & 2 and step > 1 else 8)]
    def v_reads(step):
        return [lambda D=D, hi=hi: e.ds_read("ds_read_b64_tr_b16", Vf(step & 1, D)[2 * hi:2 * hi + 2], VA[D], (step & 3) * 16384 + hi * 4096, tag="vf")
                for D in range(8) for hi in range(2)][:(8 if cfg.dbg_pw & 2 and step > 1 else 16)]
    def kb_reads():
        return [lambda kk=kk: e.ds_read("ds_read_b128", Kb[kk], KBA, kk * 64, tag="kf") for kk in range(4)]
    def w_reads(st):
        return [lambda D=D, hi=hi: e.ds_read("ds_read_b64_tr_b16", WF(st & 1, D)[2 * hi:2 * hi + 2], WA[D >> 1],
                                            (st % 3) * 16384 + hi * 512 + (D & 1) * 8, tag="qf") for D in range(4) for hi in range(2)]
    def x_reads(D):
        return [lambda qt=qt, kh=kh: e.ds_read("ds_read_b128", XF((2 * D + kh) % 3, qt), XA[kh], (D & 1) * 18432 + qt * 2048, tag="qf")
                for kh in range(2) for qt in range(9)]
    def run_stage(mfs, rd, fill, span=None):
        nf, n, done = len(fill), span or len(mfs), 0
        for i, m in enumerate(mfs):
            m()
            if rd: rd.popleft()()
            while fill and done * n <= i * nf:
                fill.popleft()(); done += 1
        while rd: rd.popleft()()
        while fill: fill.popleft()()
    GORD = [(dp, 0, i) for dp in range(4) for i in range(2)] + [(0, 1, 0), (0, 1, 1)] + [(dp, 1, i) for i in range(2) for dp in (1, 2, 3)]
    def kpl_items(st, dst):
        dp, h, i = GORD[st]
        return [lambda: e.salu("s_add_u32", dst, g.sHP, dp), lambda: e.salu("s_and_b32", dst, dst, 3),
                lambda: e.salu("s_lshl_b32", dst, dst, 2), lambda: e.salu("s_add_u32", dst, dst, 2 * h + i),
                lambda: e.salu("s_xor_b32", dst, dst, sSW2)]
    def ga_reads(st):
        return [lambda kb=kb, ee=ee, hi=hi: e.ds_read("ds_read_b64_tr_b16", GA(st & 1, kb * 2 + ee)[2 * hi:2 * hi + 2], GWA[st >> 1 & 1],
                                                     WOF[st % 4] - WOF[st & 2] + kb * 8192 + hi * 4096 + ee * 8, tag="g") for kb in range(2) for ee in range(2) for hi in range(2)]
    def gb_reads(st):
        return [lambda i=i: e.ds_read("ds_read_b128", GB(st & 1, i), GOA[st >> 1 & 1], OOF[st % 4] - OOF[st & 2] + i * 1024, tag="g") for i in range(18)]
    def full_w_items(st):
        its = kpl_items(st, sU1)
        its += [lambda: e.salu("s_lshl_b32", sU1, sU1, 16), lambda: e.salu("s_add_u32", sU1, sU1, g.sWB)]
        for n in range(16):
            if n % 4 == 0:
                its.append(lambda n=n: e.salu("s_mov_b32", "m0", GSL[st % 4] + n * 1024))
                if n: its.append(lambda: e.salu("s_add_u32", sU1, sU1, 16384))
            its.append(lambda n=n: e.dma(oWo[n & 3], sWO, sU1, off=(n & 3) * 1024, pol=cfg.wo_pol, tag="pre"))
        return its
    def gw_items(st):
        its = kpl_items(st, sU1)
        its += [lambda: e.salu("s_lshl_b32", sU1, sU1, 16), lambda: e.salu("s_add_u32", sU1, sU1, sWBw),
                lambda: e.salu("s_add_u32", "m0", g.sWLG, WOF[st % 4])]
        for i in range(4): its.append(lambda i=i: e.dma(oWo[i], sWO, sU1, off=i * 1024, pol=cfg.wo_pol, tag=("g", st)))
        return its
    def go_items(st):
        its = kpl_items(st, sU0)
        its += [lambda: e.salu("s_mul_i32", sU0, sU0, 18432), lambda: e.salu("s_add_u32", sU0, sU0, sOKw),
                lambda: e.salu("s_add_u32", "m0", g.sOL, OOF[st % 4])]
        for i in range(4): its.append(lambda i=i: e.dma(vL16, sWS, sU0, off=i * 1024, pol="sc1", tag=("g", st)))
        its += [lambda: e.salu("s_add_u32", "m0", g.sOL, OOF[st % 4] + 4096), lambda: e.salu("s_add_u32", sU0, sU0, 4096),
                lambda: e.dma(vL16, sWS, sU0, pol="sc1", tag=("g", st))]
        return its
    def tail_items(sg):
        its = [lambda: e.salu("s_sub_u32", sT1, sW, 1)]
        if sg < 62:
            st = sg - 58
            its += kpl_items(st, sU1)
            its += [lambda: e.salu("s_lshl_b32", sU1, sU1, 16), lambda: e.salu("s_add_u32", sU1, sU1, g.sWB),
                    lambda: e.salu("s_lshl_b32", sT2, sT1, 15), lambda: e.salu("s_add_u32", sU1, sU1, sT2), lambda: e.salu("s_lshl_b32", sT2, sT1, 13)]
            for n in range(8):
                if n % 4 == 0:
                    its.append(lambda n=n: e.salu("s_add_u32", "m0", sT2, WOF[st] + n * 1024))
                    if n: its.append(lambda: e.salu("s_add_u32", sU1, sU1, 16384))
                if cfg.tpace: its.append(window)
                its.append(lambda n=n: e.dma(oWo[n & 3], sWO, sU1, off=(n & 3) * 1024, pol=cfg.wo_pol, tag="pre"))
        else:
            cnt, p0 = (8, 0) if sg == 62 else (10, 16)
            its += kpl_items(2, sU0)
            its += [lambda: e.salu("s_mul_i32", sU0, sU0, 18432), lambda: e.salu("s_add_u32", sU0, sU0, g.sOKP),
                    lambda: e.salu("s_mul_i32", sT2, sT1, cnt * 1024), lambda: e.salu("s_add_u32", sU0, sU0, sT2), lambda: e.salu("s_add_u32", sU0, sU0, p0 * 1024)]
            for n in range(cnt):
                if n % 4 == 0:
                    its.append(lambda n=n: e.salu("s_add_u32", "m0", sT2, OOF[2] + (p0 + n) * 1024))
                    if n: its.append(lambda: e.salu("s_add_u32", sU0, sU0, 4096))
                if cfg.tpace: its.append(window)
                its.append(lambda n=n: e.dma(vL16, sWS, sU0, off=(n & 3) * 1024, pol="sc1", tag="tl"))
        return its
    def gwo_items(st):
        w = gw_items(st); o = go_items(st)
        return o[:5] + [lambda: e.salu("s_lshl_b32", sU1, sU0, 16)] + o[5:] + w[6:]
    def code_touch():
        e.salu("s_lshl_b32", sT, g.sIDX, 12)
        e.valu("v_lshlrev_b32", V(109), 6, vL)
        e.valu("v_add_u32", V(109), sT, V(109))
        e.valu("v_min_u32", V(109), "L_end-L_pc-4", V(109))
        e.ins(f"v_add_co_u32 v110, vcc, {sPC[0]}, v109", 'valu', [V(109)], [V(110), 'vcc'])
        e.valu("v_mov_b32", V(111), sPC[1])
        e.ins(f"v_addc_co_u32 v111, vcc, 0, v111, vcc", 'valu', [V(111), 'vcc'], [V(111), 'vcc'])
        e.ins(f"global_load_dword {vD1}, v[110:111], off", 'vmem', [V(110, 2)], [vD1]); e.vm_q.append("cw")
    def warm_items():
        its = [lambda: e.salu("s_lshl_b32", sU0, g.sHG, 5), lambda: e.salu("s_add_u32", sU0, sU0, g.sIDX), lambda: e.salu("s_lshl_b32", sU0, sU0, 15),
               lambda: e.valu("v_lshlrev_b32", vT2, 7, vL)]
        for n in range(4):
            if n: its.append(lambda: e.salu("s_add_u32", sU0, sU0, 8192))
            its.append(lambda n=n: e.bload("buffer_load_dword", vD1, vT2, sWO, sU0, pol=cfg.wo_pol, tag="wm"))
        if not cfg.warm_w: its = []
        its += [lambda: e.salu("s_sub_u32", sU0, g.sOB, g.sWLG), lambda: e.valu("v_lshlrev_b32", vT2, 7, vL)]
        for n in range(5 if cfg.warm_o else 0):
            if n: its.append(lambda n=n: e.salu("s_add_u32", sU0, sU0, 8192 if n < 4 else 4096))
            its.append(lambda: e.bload("buffer_load_dword", vD1, vT2, sWS, sU0, pol=cfg.warm_opol, tag="pre"))
        return its
    def atomic_add(flag, val):
        e.valu("v_mov_b32", vT0, val); e.valu("v_mov_b32", vT1, 0)
        e.salu("s_mov_b64", "exec", 1)
        e.ins(f"buffer_atomic_add {vT0}, {vT1}, {sDBG}, {flag} offen sc1", 'vmem', [vT0, vT1, sDBG, flag], [])
        e.salu("s_mov_b64", "exec", -1)
    def flag_store(line, off, who):
        e.salu("s_lshl_b32", sT, who, 3)
        e.valu("v_mov_b32", V(110), sTAG); e.valu("v_not_b32", V(111), sTAG); e.valu("v_mov_b32", vT1, sT)
        e.salu("s_mov_b64", "exec", 1)
        e.ins(f"buffer_store_dwordx2 v[110:111], {vT1}, {sWS}, {line} offen offset:{off} sc1", 'vmem', [V(110, 2), vT1, sWS, line], [])
        e.salu("s_mov_b64", "exec", -1)
    def flag_load(line, off, tag):
        e.valu("v_and_b32", vT2, 3, vL); e.valu("v_lshlrev_b32", vT2, 3, vT2)
        e.bload("buffer_load_dwordx2", TG, vT2, sWS, line, off=off, pol="sc1", tag=tag)
    def flag_test(who):
        e.valu("v_not_b32", TG[1], TG[1])
        e.valu("v_xor_b32", TG[0], sTAG, TG[0]); e.valu("v_xor_b32", TG[1], sTAG, TG[1]); e.valu("v_or_b32", TG[0], TG[0], TG[1])
        e.vcmp("v_cmp_ne_u32", "vcc", 0, TG[0])
        e.salu("s_lshl_b32", sT, 1, who); e.salu("s_xor_b32", sT, sT, 15)
        e.salu("s_and_b32", sT, sT, "vcc_lo")
        e.salu("s_cmp_eq_u32", None, sT, 0)
    def poll(line, off, lab, who):
        e.salu("s_mov_b32", g.sSP, 1 << 20)
        e.label(lab)
        flag_load(line, off, None)
        e.wait_all_vm()
        flag_test(who)
        e.branch("s_cbranch_scc1", lab + "x")
        e.other(f"s_sleep {cfg.poll_sleep}")
        e.salu("s_sub_u32", g.sSP, g.sSP, 1)
        e.salu("s_cmp_lg_u32", None, g.sSP, 0)
        e.branch("s_cbranch_scc1", lab)
        e.label(lab + "x")
    def read_fail(n):
        e.valu("v_mov_b32", vT1, LFLAG)
        for i in range(n): e.ds_read("ds_read_b128", V(80 + 4 * i, 4), vT1, 16 * i)
        e.wait_all_lds()
        e.valu("v_or_b32", V(80), V(80), V(81)); e.valu("v_or3_b32", V(80), V(80), V(82), V(83))
        if n == 2:
            e.valu("v_or3_b32", V(80), V(80), V(84), V(85)); e.valu("v_or3_b32", V(80), V(80), V(86), V(87))
        e.readfirstlane(sT, V(80))

    if cfg.cw & 2:
        e.salu("s_cmp_lg_u32", None, sW, 2)
        e.branch("s_cbranch_scc1", "1f")
        q_ = list(e.vm_q)
        code_touch()
        e.vm_q = q_
        e.label("1")
    def warm0():
        return [lambda: e.salu("s_lshl_b32", sT, g.sHG, 5), lambda: e.salu("s_add_u32", sT, sT, g.sIDX), lambda: e.salu("s_lshl_b32", sT, sT, 2),
                lambda: e.salu("s_add_u32", sT, sT, sW), lambda: e.salu("s_lshl_b32", sT, sT, 13),
                lambda: e.valu("v_lshlrev_b32", vT0, 7, vL),
                lambda: e.bload("buffer_load_dword", vD1, vT0, sWO, sT, pol=cfg.wo_pol, tag="ww")]
    if cfg.warm == 3 and cfg.warm0 == -1:
        for f in warm0(): f()
    if cfg.plate:
        for f in pro[1]: f()
    if cfg.plate == 1:
        for f in pro[2]: f()
    def xw_warm():
        e.salu("s_lshl_b32", sT, g.sIDX, 2); e.salu("s_add_u32", sT, sT, sW)
        e.salu("s_mul_i32", sT1, sT, 9216); e.valu("v_lshlrev_b32", vT0, 7, vL)
        e.bload("buffer_load_dword", vD1, vT0, sX, sT1, tag="xw"); e.bload("buffer_load_dword", vD1, vT0, sX, sT1, off=1024, tag="xw")
        e.salu("s_lshl_b32", sT1, sT, 15); e.salu("s_lshl_b32", sT2, g.sHG, 11); e.salu("s_add_u32", sT1, sT1, sT2)
        e.valu("v_and_b32", vT0, 15, vL); e.valu("v_lshlrev_b32", vT0, 7, vT0)
        e.valu("v_lshrrev_b32", vT1, 4, vL); e.valu("v_lshl_add_u32", vT0, vT1, 13, vT0)
        e.bload("buffer_load_dword", vD1, vT0, sWQ, sT1, tag="xw")
    def poison(fill):
        PZ = V(36, 4)
        fill.extend([lambda i=i: e.valu("v_mov_b32", PZ[i], -1) for i in range(4)])
        def third():
            e.salu("s_mov_b32", sU1, "0x40000000"); e.salu("s_cmp_eq_u32", None, g.sHG, 0); e.salu("s_cmov_b32", sU1, 8192)
        fill.append(third)
        for s_ in range(1, 4):
            def base(s_=s_):
                e.salu("s_add_u32", sU0, g.sHG, s_); e.salu("s_and_b32", sU0, sU0, 3); e.salu("s_mul_i32", sU0, sU0, 36)
            fill.append(base)
            fill.append(lambda: e.salu("s_add_u32", sU0, sU0, g.sHG))
            fill.append(lambda: e.salu("s_lshl_b32", sU0, sU0, 10))
            fill.append(lambda: e.salu("s_add_u32", sU0, sU0, g.sPB))
            fill.append(lambda: e.bstore("buffer_store_dwordx4", PZ, vL16, sWS, sU0, pol="sc1", tag="pz"))
            fill.append(lambda: e.salu("s_add_u32", sT, sU0, 4096))
            fill.append(lambda: e.bstore("buffer_store_dwordx4", PZ, vL16, sWS, sT, pol="sc1", tag="pz"))
            fill.append(lambda: e.salu("s_add_u32", sT, sU0, sU1))
            fill.append(lambda: e.bstore("buffer_store_dwordx4", PZ, vL16, sWS, sT, pol="sc1", tag="pz"))
    if cfg.inband and cfg.poison_at == -1:
        pz = []; poison(pz)
        for f in pz: f()
    if cfg.xwarm == 1: xw_warm()
    if cfg.qst: stamp(13, True)
    e.wait_vm("p0")
    if cfg.qst: stamp(14, True)
    e.barrier()
    stamp(1)
    for f in w_reads(0) + x_reads(0): f()
    if cfg.plate == 2:
        for f in pro[2]: f()
    if cfg.xwarm == 2: xw_warm()
    kvq = deque(kvq_items(s_) for s_ in range(4))
    def q_out(qt):
        its = []
        for P in range(2):
            src = V(112 + (qt * 4 + 2 * P) * 4, 8)
            its += [lambda i=i, src=src: e.valu("v_pk_mul_f32", src[2 * i:2 * i + 2], src[2 * i:2 * i + 2], V(34, 2)) for i in range(4)]
            its += [lambda i=i, src=src: e.valu("v_cvt_pk_bf16_f32", src[i], src[2 * i], src[2 * i + 1]) for i in range(4)]
            its.append(lambda src=src, P=P: e.ds_write("ds_write_b128", QW, src[0:4], (qt * 4 + P) * 1024))
        return its
    e.valu("v_mov_b32", V(34), g.sSC); e.valu("v_mov_b32", V(35), g.sSC)
    for st in range(16):
        e.comment(f"q-proj stage {st}")
        e.wait_vm({0: "p1", 1: "p2"}.get(st, ("iss", st - 2)))
        if st == (13 if cfg.qbar2 else 14): e.wait_vm(("kv", 0))
        e.wait_all_lds()
        if st & 1 or not cfg.qbar2: e.barrier()
        if cfg.qst and st in (1, 3, 6, 9, 13): stamp({1: 6, 3: 7, 6: 9, 9: 10, 13: 11}[st], True)
        fill = deque()
        if cfg.plate == 3 and st == 0: fill.extend(pro[2])
        if st // 2 + 2 < 8:
            if not cfg.qbar2: fill.extend(x_items(st // 2 + 2, st & 1, ("iss", st)))
            elif st & 1: fill.extend(x_items(st // 2 + 2, 0, ("iss", st)) + x_items(st // 2 + 2, 1, ("iss", st)))
        if st + 3 < 16: fill.extend(w_items(st + 3, ("iss", st)))
        if cfg.warm == 3 and cfg.warm0 == st: fill.extend(warm0())
        if cfg.tagpos == 2 and st == 13: tag_propose()
        for _ in range(cfg.kv0_at.split(",").count(str(st))): fill.extend(kvq.popleft())
        if cfg.inband and st == cfg.poison_at: poison(fill)
        if st == cfg.opre:
            fill.extend([lambda: e.salu("s_sub_u32", sU0, g.sOB, g.sWLG), lambda: e.salu("s_mul_i32", sU1, sW, 18432),
                         lambda: e.salu("s_add_u32", sU0, sU0, sU1), lambda: e.valu("v_lshlrev_b32", vT0, 7, vL)])
            for n in range(3):
                if n: fill.append(lambda n=n: e.salu("s_add_u32", sU0, sU0, 8192 if n == 1 else 2048))
                fill.append(lambda: e.bload("buffer_load_dword", vD1, vT0, sWS, sU0, pol=cfg.opre_pol, tag="op"))
        if cfg.l2pre and st == cfg.l2pre_at:
            for r in range(cfg.l2pre):
                fill.extend([lambda r=r: e.salu("s_add_u32", sT, sW, 4 + 4 * r), lambda: e.salu("s_lshl_b32", sT, sT, 13), lambda: e.salu("s_add_u32", sT, sT, g.sROT),
                             lambda: e.salu("s_and_b32", sT, sT, "0x3ffff"), lambda: e.salu("s_add_u32", sT, sT, g.sKVB0),
                             lambda: e.valu("v_lshlrev_b32", vT0, 7, vL),
                             lambda: e.bload("buffer_load_dword", vD1, vT0, sK, sT, tag="l2"), lambda: e.bload("buffer_load_dword", vD1, vT0, sV, sT, tag="l2")])
        rd = deque()
        if st + 1 < 16: rd.extend(w_reads(st + 1))
        if st & 1 and st + 1 < 16: rd.extend(x_reads((st + 1) // 2))
        if st == 14: rd.extend(kb_reads() + k_reads(0) + v_reads(0))
        if st == 15:
            fill.append(lambda: e.salu("s_mov_b32", sT1, "0x80008000"))
            fill.extend([lambda kk=kk, i=i: e.valu("v_xor_b32", Kb[kk][i], sT1, Kb[kk][i]) for kk in range(4) for i in range(4)])
        mfs = [lambda qt=qt, D=D: e.mfma16(QACC(D, qt), WF(st & 1, D), XF(st % 3, qt), QACC(D, qt) if st else 0)
               for qt in range(9) for D in range(4)]
        if st < 15 or not cfg.qov: run_stage(mfs, rd, fill)
        else:
            out = deque()
            for i, m in enumerate(mfs):
                m()
                if i % 4 == 3 and i >= 7: out.extend(q_out(i // 4 - 1))
                for _ in range(cfg.qov):
                    if fill: fill.popleft()()
                    elif out: out.popleft()()
            out.extend(q_out(8))
    while kvq:
        for f in kvq.popleft(): f()
    stamp(2)
    if not cfg.qov: out = deque(f for qt in range(9) for f in q_out(qt))
    while out: out.popleft()()
    e.valu("v_mov_b32", vT0, "0x3f803f80")
    for i in range(4): e.valu("v_accvgpr_write_b32", ONES[i], vT0)
    ld_setup()
    e.salu("s_cmp_eq_u32", None, sW, 3)
    e.branch("s_cbranch_scc1", "L_rC")
    e.salu("s_cmp_lg_u32", None, sW, 0)
    e.branch("s_cbranch_scc1", "L_rB")
    hist0 = list(e.hist); vmq0 = list(e.vm_q)

    X8 = 139264
    CAPS = [0, 2, 0, 1, 0, 2, 0, 1, 0, 2, 0, 1, 0, 2, 0, 1, cfg.l4cap if cfg.l4 else 2]
    for R in "ABC":
        NTW = 2 if R == "B" else 3
        toff = lambda t: ({"A": 8, "C": 2}[R] if t == 2 else t)
        e.hist = list(hist0)
        if R != "A": e.label(f"L_r{R}")
        e.lds_q = ["x"]; e.vm_q = list(vmq0)
        e.salu("s_mul_i32", sT, sSW2, 18432)
        e.valu("v_add_u32", vD1, sT, QA); e.valu("v_add_u32", QA, 36864, QA); e.valu("v_subrev_u32", QA, sT, QA)
        e.valu("v_add_u32", vD0, X8, vL16)
        e.valu("v_add_u32", vOW, g.sWLG, GOA[0])
        def qf_reads(h, addr):
            return [lambda t=t, kk=kk: e.ds_read("ds_read_b128", Qf(h, t, kk), addr, (toff(t) * 4 + kk) * 1024, tag="q") for t in range(NTW) for kk in range(4)]
        def prepass(h):
            e.comment("stand-in for the row max: minus the score of the first key, per row")
            e.salu("s_cmp_lg_u32", None, g.sRETRY, 0)
            e.branch("s_cbranch_scc1", f"L_np{h}{R}")
            if h == 0:
                for f in qf_reads(0, vD1): f()
                e.wait_all_lds()
            else:
                e.salu("s_mov_b32", sT1, "0x80008000")
                for kk in range(4):
                    for i in range(4): e.valu("v_xor_b32", Kb[kk][i], sT1, Kb[kk][i])
            for t in range(NTW):
                for kk in range(4): e.mfma16(NM(h, t), Kb[kk], Qf(h, t, kk), NM(h, t) if kk else 0)
            e.label(f"L_np{h}{R}")
        e.label(f"L_main_{R}")
        e.lds_q = ["x"]
        e.salu("s_mov_b32", g.sFAIL, 0)
        seq = [(s, t) for s in range(32) for t in range(3 if (R == "A" and s % 2 == 0) or (R == "C" and s % 2 == 1) else 2)]
        if not cfg.alt: seq = [(s, t) for s in range(32) for t in range(3 if R == "A" else 2)]
        NT = len(seq)
        first = {s: j for j, (s, t) in reversed(list(enumerate(seq)))}; first[32] = NT
        bpos = {}
        for s in range(1, 33):
            if s % 2 == 0 or R == "B" or not cfg.alt: bpos[(first[s], 0)] = s
            elif R == "A": bpos[(first[s] - 1, 8)] = s
            else: bpos[(first[s], 8)] = s
        def cap_left(j, i):
            n = k = 0
            while True:
                n += CAPS[i]; k += CAPS[i] > 0
                i += 1
                if i == 17: i = 0; j += 1
                if (j, i) in bpos or j > NT: return n, k
        extras = deque(); rds = deque(); lastk = [None]; later = deque()
        def beta(sg):
            while rds: rds.popleft()()
            if sg < 64:
                while extras: extras.popleft()()
            if sg + 1 < 64: e.wait_vm(("kv", sg + 1))
            if R == "C" and sg == 3:
                e.wait_all_vm()
                e.salu("s_cmp_lg_u32", None, g.sRETRY, 0)
                e.branch("s_cbranch_scc1", "6f")
                e.readfirstlane(sT, TG[0])
                e.salu("s_cmp_eq_u32", None, sT, 0)
                e.salu("s_cselect_b32", sT, S(72), sT)
                e.salu("s_mov_b32", sTAG, sT)
                e.valu("v_mov_b32", vT0, sT); e.valu("v_mov_b32", vT1, LFLAG)
                e.ds_write("ds_write_b32", vT1, vT0, 32)
                e.label("6")
            fb = cfg.fb and 4 <= sg < 60
            if fb and R == "C" and sg % 4 == 2:
                e.wait_vm("prg")
                e.vcmp("v_cmp_eq_u32", sM0, sTAG, PG[0]); e.vcmp("v_cmp_le_u32", "vcc", sTRIP, PG[1])
                e.salu("s_and_b32", sT, sM0[0], "vcc_lo"); e.salu("s_and_b32", sT, sT, "0xffff"); e.salu("s_bcnt1_i32_b32", sT, sT)
                e.valu("v_mov_b32", vT0, sT); e.valu("v_mov_b32", vT1, LFLAG)
                e.ds_write("ds_write_b32", vT1, vT0, 36)
            hook = 36 <= sg < 60 and sg % 4 == 0
            if hook:
                if R == "B": assert sg == 36 or "ost0" not in e.vm_q
                else: e.wait_all_vm()
            if R == "C" and sg == 62:
                while extras: extras.popleft()()
                e.wait_vm("fl0")
                flag_test(g.sHP)
                e.branch("s_cbranch_scc1", "L_poll0x")
                e.salu("s_cmp_lg_u32", None, g.sFAIL, 0)
                e.branch("s_cbranch_scc1", "L_poll0x")
                q_ = list(e.vm_q)
                poll(sF1, 0, "L_poll0", g.sHP)
                e.vm_q = q_
            if e.lds_q: e.wait_all_lds()
            if not cfg.dbg_hot & 2: e.barrier()
            for _ in range(cfg.trickle):
                if later and sg > 32: extras.extend(later.popleft())
            if fb and R == "C" and sg % 4 == 0:
                e.salu("s_add_u32", sTRIP, sTRIP, 1)
                e.valu("v_and_b32", vT2, 15, vL); e.valu("v_lshlrev_b32", vT2, 3, vT2)
                e.bload("buffer_load_dwordx2", PG, vT2, sWS, sPL, pol="sc1", tag="prg")
                e.valu("v_mov_b32", V(110), sTAG); e.valu("v_mov_b32", V(111), sTRIP); e.valu("v_mov_b32", vT1, sPS)
                e.salu("s_mov_b64", "exec", 1)
                e.bstore("buffer_store_dwordx2", V(110, 2), vT1, sWS, sPL, pol="sc1")
                e.salu("s_mov_b64", "exec", -1)
            if fb and R == "B" and sg % 4 == 2:
                e.valu("v_mov_b32", vT1, LFLAG)
                e.ds_read("ds_read_b32", vD1, vT1, 36)
            if fb and R == "B" and sg % 4 == 3:
                e.readfirstlane(sT, vD1)
                e.salu("s_cmp_ge_u32", None, sT, cfg.fb)
                e.salu("s_cselect_b64", "vcc", -1, 0)
            if R == "B" and not cfg.dbg_hot & 8:
                if 4 <= sg + cfg.la < 64: extras.extend(ld_items(sg + cfg.la))
            if R == "A" and sg in (33, 34): extras.extend(full_w_items(sg - 33))
            if sg == 2:
                e.salu("s_cmp_lg_u32", None, g.sRETRY, 0)
                e.branch("s_cbranch_scc1", "6f")
                for f in qf_reads(1, QA): f()
                e.lds_q = []
                e.label("6")
            if R == "B" and 60 <= sg < 64:
                for k_, at in enumerate(cfg.tail_at.split(",")):
                    if int(at) == sg:
                        assert sg >= 60 + k_
                        extras.extend(tail_items(60 + k_))
            if cfg.warm == 6 and sg == 60 + {"A": 0, "C": 3}.get(R, 9): extras.extend(warm0())
            if cfg.warm == 6 and R == "B" and sg == 61: extras.extend(warm0())
            if R == "A" and cfg.cw and sg % 4 == 0 and 4 <= sg % 32 < 28:
                e.salu("s_cmp_lg_u32", None, g.sCNT, cfg.cw_trip)
                e.branch("s_cbranch_scc1", "1f")
                q_ = list(e.vm_q)
                code_touch()
                e.vm_q = q_
                e.label("1")
            if R == "C":
                if hook:
                    e.salu("s_cmp_lg_u32", None, g.sCNT, cfg.sig_trip)
                    e.branch("s_cbranch_scc1", "1f")
                    read_fail(1)
                    e.salu("s_andn2_b32", g.sFAIL, sT, g.sRETRY)
                    e.salu("s_or_b32", sT, g.sFAIL, g.sPUB)
                    e.salu("s_cmp_lg_u32", None, sT, 0)
                    e.branch("s_cbranch_scc1", "1f")
                    flag_store(sF1, 0, g.sHP)
                    e.label("1")
                    if cfg.warm == 2:
                        e.salu("s_cmp_lg_u32", None, g.sCNT, cfg.warm_trip)
                        e.branch("s_cbranch_scc1", "2f")
                        for f in warm_items(): f()
                        e.label("2")
                if sg == 60:
                    flag_load(sF1, 0, "fl0")
                if sg == cfg.pre_step and cfg.warm == 1: extras.extend(warm_items())
                if cfg.warm == 3 and sg % cfg.warm_per == 0 and sg < 64: extras.extend(warm_items())
                if sg % 32 == 0 and sg and cfg.alt:
                    rds.append(lambda: e.ds_read("ds_read_b32", V(144), vD0, 8192, tag="x8"))
                    rds.extend([lambda D=D: e.ds_read("ds_read_b128", V(112 + 4 * D, 4), vD0, D * 1024, tag="x8") for D in range(8)])
            if sg + 1 < 64 and not cfg.dbg_hot & 4:
                kr = k_reads(sg + 1); rds.extend(kr); lastk[0] = kr[-1]
                if sg + 1 == 32: rds.extend(kb_reads())
        def slot(h, j):
            e.comment(f"slot")
            mf = []
            jq, jp = j + 1, j - 1
            if jq < NT:
                s, t = seq[jq]
                for kk in range(4):
                    for kt in range(2):
                        def m(kk=kk, kt=kt):
                            d = Sb[jq % 2][4 * kt:4 * kt + 4]
                            e.mfma16(d, Kf(s & 1, kt, kk), Qf(h, t, kk), d if kk else NM(h, t))
                        mf.append(m)
            else:
                mf += [None] * 8
            if jp >= 0:
                s2, t2 = seq[jp]
                acc = any(t_ == t2 for _, t_ in seq[:jp])
                def pv(D):
                    e.mfma16(Oacc(t2, D), Vf(s2 & 1, D), Pb[jp % 2], Oacc(t2, D) if acc else 0)
                    if cfg.l4 and D == cfg.l4pos: e.mfma4(Lb[t2], ONES[0:2], Pb[jp % 2][0:2], Lb[t2] if acc else 0)
                for D in range(8): mf.append(lambda D=D: pv(D))
                if cfg.l4: mf.append(lambda: e.mfma4(Lb[t2], ONES[0:2], Pb[jp % 2][2:4], Lb[t2]))
                else: mf.append((lambda: e.mfma16(Lb[t2], ONES, Pb[jp % 2], Lb[t2] if acc else 0)) if not (cfg.dbg_pw & 1 and acc) else None)
            else:
                mf += [None] * 9
            sm = 0 <= j < NT
            Sx, Px = Sb[j % 2], Pb[j % 2]
            E = lambda i: (lambda: e.valu("v_exp_f32", Sx[i], Sx[i])) if sm else None
            if cfg.dbg_pw & 4:
                for i_ in range(8, 16, 2): mf[i_] = None
            C = lambda i: (lambda: e.valu("v_cvt_pk_bf16_f32", Px[i], Sx[2 * i], Sx[2 * i + 1])) if sm else None
            base = [E(0), None, E(1), C(0), E(2), None, E(3), C(1), E(4), None, E(5), C(2), E(6), None, E(7), C(3), None]
            vre = deque()
            sfirst = [s_ for s_, j_ in first.items() if j_ == j and s_ > 0]
            if sfirst and 32 * h + sfirst[0] + 1 < 64 and not cfg.dbg_hot & 4: vre = deque(v_reads(32 * h + sfirst[0] + 1))
            if R == "A" and j == NT - 1 and cfg.alt:
                rds.extend([lambda D=D: e.ds_write("ds_write_b128", vD0, Oacc(2, D), D * 1024) for D in range(8)])
                rds.append(lambda: e.ds_write("ds_write_b32", vD0, Lb[2][0], 8192))
            for i in range(17):
                if (j, i) in bpos: beta(32 * h + bpos[(j, i)])
                if i == 0 and jq < NT and jq > 0 and seq[jq][1] == 0:
                    while lastk[0] in rds: rds.popleft()()
                    e.wait_lds("kf")
                if mf[i]: mf[i]()
                if 8 <= i < 16 and vre:
                    rds.append(vre.popleft()); rds.append(vre.popleft())
                if base[i]: base[i]()
                cap = CAPS[i] if sm else 2
                if CAPS[i]:
                    nq = len(rds) + (0 if ((j, 8) in bpos and i < 8) else len(vre)) + min(len(extras), 24)
                    nxt = [s_ for s_, j_ in first.items() if j_ == j + 1]
                    if R == "A" and nxt and nxt[0] % 2 == 1 and i >= 8 and cfg.alt: nq += 16
                    left, k = cap_left(j, i)
                    left -= 3
                    if nq > left: cap += -(-(nq - left) // max(1, k - 1))
                    elif cfg.thin and sm and cap == 2 and nq <= k - 2 and not (lastk[0] in rds and jq + 1 < NT and seq[jq + 1][1] == 0): cap = 1
                for c in range(cap):
                    if rds and (not extras or c != 1): rds.popleft()()
                    elif extras: extras.popleft()()
        def epilogue(h):
            NE = 2 if R != ("C" if cfg.alt else "A") else 3
            LV = [V(32 + 2 * t, 2) for t in range(3)]
            bad = cfg.force_fallback >> h & 1
            if h == 0:
                e.valu("v_mov_b32", vT0, LFLAG)
                e.ds_read("ds_read_b32", TG[0], vT0, 32, tag="tg")
            e.salu("s_mov_b32", sT, hex(f2u(0.25 if bad else cfg.lthresh)))
            e.salu("s_mov_b64", sM0, 0)
            for t in range(NE): e.valu("v_accvgpr_read_b32", LV[t][0], Lb[t][0])
            if R == "C" and cfg.alt:
                e.wait_lds("x8")
                e.valu("v_add_f32", LV[2][0], LV[2][0], V(144))
            if cfg.l4:
                for op in ("v_permlane32_swap_b32", "v_permlane16_swap_b32"):
                    for t in range(NE): e.valu("v_mov_b32", LV[t][1], LV[t][0])
                    for t in range(NE): e.perm(op, LV[t][1], LV[t][0])
                    for t in range(NE): e.valu("v_add_f32", LV[t][0], LV[t][0], LV[t][1])
            for t in range(NE):
                e.vcmp("v_cmp_nge_f32", sM1, sT, LV[t][0])
                e.salu("s_or_b64", sM0, sM0, sM1)
            for t in range(NE): e.valu("v_rcp_f32", LV[t][0], LV[t][0])
            e.salu("s_or_b32", sT, sM0[0], sM0[1])
            e.valu("v_mov_b32", vT0, sT)
            e.ds_write("ds_write_b32", vFLG, vT0, 16 * h)
            for t in range(NE): e.valu("v_mov_b32", LV[t][1], LV[t][0])
            if h == 0:
                e.salu("s_cmp_lg_u32", None, g.sPUB, 0)
                e.salu("s_cselect_b32", sM0[0], "0x40000000", g.sOB)
            if R == "C" and cfg.alt:
                for i in range(16): e.valu("v_pk_add_f32", V(224 + 2 * i, 2), V(224 + 2 * i, 2), V(112 + 2 * i, 2))
            if h == 1:
                g0 = deque(ga_reads(0) + gb_reads(0))
                for t in reversed(range(NE)):
                    for blk in reversed(range(4)):
                        for _ in range(4):
                            if g0: g0.popleft()()
                        o = V(160 + (t * 8 + 2 * blk) * 4, 8); d = OPK(t, blk)
                        for i in range(4): e.valu("v_pk_mul_f32", o[2 * i:2 * i + 2], o[2 * i:2 * i + 2], LV[t])
                        for i in reversed(range(4)): e.valu("v_cvt_pk_bf16_f32", d[i], o[2 * i], o[2 * i + 1])
                        if cfg.st_stage < 0:
                            if blk & 1: e.salu("s_add_u32", sT, sOB1, (blk >> 1) * 18432 + t * 2048)
                            e.bstore("buffer_store_dwordx4", d, vL16, sWS, sT, off=(blk & 1) * 1024, pol=cfg.ost_pol, tag="ost")
                return
            n = 0
            for bh in range(2):
                for t in range(NE):
                    for bl in range(2):
                        blk = 2 * bh + bl
                        o = V(160 + (t * 8 + 2 * blk) * 4, 8)
                        d = V(112 + 4 * n, 4)
                        n += 1
                        for i in range(4): e.valu("v_pk_mul_f32", o[2 * i:2 * i + 2], o[2 * i:2 * i + 2], LV[t])
                        for i in range(4): e.valu("v_cvt_pk_bf16_f32", d[i], o[2 * i], o[2 * i + 1])
                        e.ds_write("ds_write_b128", vOW, d, bh * 34816 + toff(t) * 2048 + bl * 1024)
                        st_ = [lambda bh=bh, t=t: e.salu("s_add_u32", sT, sM0[0], bh * 18432 + toff(t) * 2048),
                               lambda d=d, bl=bl: e.bstore("buffer_store_dwordx4", d, vL16, sWS, sT, off=bl * 1024, pol=cfg.ost_pol, tag="ost0")]
                        if cfg.trickle and n > cfg.trickle0: later.append(st_)
                        else:
                            for f in st_: f()
                        for _ in range(3):
                            if rds: rds.popleft()()
                            elif extras: extras.popleft()()
        for h in range(2):
            if h == 0:
                beta(0); rds.extend(v_reads(1))
                for _ in range(6):
                    if extras: extras.popleft()()
            prepass(h)
            if h == 0: stamp(3)
            chunks = []; save = e.lines
            bounds = [-1] + [first[s] for s in range(cfg.chunk0, 32, 4)] + [NT + 1]
            for a_, b_ in zip(bounds[:-1], bounds[1:]):
                e.lines = []
                for j in range(a_, b_): slot(h, j)
                chunks.append(e.lines)
            e.lines = save
            i = 0; nl = 0
            while i < len(chunks):
                k = i
                while k + 1 < len(chunks) and chunks[k + 1] == chunks[i]: k += 1
                if k > i:
                    nl += 1; lab = f"L_loop_{R}{h}{nl}"
                    e.lines.append(f"    s_mov_b32 {g.sCNT}, {k - i + 1}")
                    e.lines.append(lab + ":")
                    e.lines += chunks[i]
                    e.lines += [f"    s_sub_u32 {g.sCNT}, {g.sCNT}, 1", f"    s_cmp_lg_u32 {g.sCNT}, 0", f"    s_cbranch_scc1 {lab}"]
                else:
                    e.lines += chunks[i]
                i = k + 1
            if h:
                while extras: extras.popleft()()
            stamp(4 if h else 12)
            epilogue(h)
            if h == 0:
                e.wait_lds("tg")
                e.readfirstlane(sTAG, TG[0])
                if cfg.inband and cfg.poison_at < 100:
                    assert "pz" not in e.vm_q
                    flag_store(sF2, 32, g.sHG); e.vm_q.append("fs")
                stamp(13)
        while extras: extras.popleft()()
        e.wait_vm("pre")
        if cfg.warm == 5:
            for f in warm0(): f()
        e.wait_all_lds(); e.barrier()
        read_fail(2)
        e.salu("s_andn2_b32", sT, sT, g.sRETRY)
        e.salu("s_cmp_eq_u32", None, sT, 0)
        e.branch("s_cbranch_scc1", "L_gemm")
        read_fail(1)
        e.salu("s_cmp_eq_u32", None, sT, 0)
        e.salu("s_cselect_b32", g.sPUB, 1, 0)
        e.salu("s_mov_b32", g.sRETRY, -1)
        e.wait_all()
        kv_addr_init()
        for h in range(2):
            MX = [V(48 + t) for t in range(3)]
            for t in range(NTW): e.valu("v_mov_b32", MX[t], "0xff800000")
            e.salu("s_mov_b32", g.sCNT, 32)
            e.salu("s_xor_b32", g.sKP, g.sKVB0, h * 262144); e.salu("s_mov_b32", g.sLS, 0)
            e.label(f"L_max_{R}{h}")
            e.barrier()
            if R == "A":
                for f in kv4_items("m")[:12]: f()
                e.wait_all_vm()
            e.salu("s_add_u32", g.sKP, g.sKP, 8192)
            e.barrier()
            for f in k_reads(0): f()
            e.wait_all_lds()
            for t in range(NTW):
                for kk in range(4):
                    for kt in range(2):
                        d = Sb[0][4 * kt:4 * kt + 4]
                        e.mfma16(d, Kf(0, kt, kk), Qf(h, t, kk), d if kk else 0)
                for i in range(4): e.valu("v_max3_f32", MX[t], Sb[0][2 * i], Sb[0][2 * i + 1], MX[t])
            e.salu("s_sub_u32", g.sCNT, g.sCNT, 1)
            e.salu("s_cmp_lg_u32", None, g.sCNT, 0)
            e.branch("s_cbranch_scc1", f"L_max_{R}{h}")
            for t in range(NTW):
                for op in ("v_permlane32_swap_b32", "v_permlane16_swap_b32"):
                    e.valu("v_mov_b32", vT0, MX[t])
                    e.perm(op, vT0, MX[t])
                    e.valu("v_max_f32", MX[t], vT0, MX[t])
                for i in range(4): e.valu("v_sub_f32", NM(h, t)[i], 0, MX[t])
        e.barrier()
        kv4_setup()
        for f in kv4_items("m"): f()
        ld_setup()
        e.wait_all_vm(); e.barrier()
        for f in k_reads(0) + v_reads(0): f()
        e.wait_all_lds()
        e.flush_hazards(8)
        e.branch("s_branch", f"L_main_{R}")

    e.label("L_gemm")
    e.hist = []; e.lds_q = []; e.vm_q = ["ost"]
    stamp(5)
    e.vm_q = [("g", 2)] + (["ost"] * 8 if cfg.st_stage < 0 else [])
    PS = cfg.poll_stage
    mark = [0]
    assert cfg.st_stage < cfg.sig_stage < PS and 6 <= PS <= 8 and (cfg.own_lds or cfg.sig_stage <= 4)
    def o2_items(kind, bh):
        def one(t, bl):
            if kind == "st":
                if bl == 0: e.salu("s_add_u32", sT, sOB1, bh * 18432 + t * 2048)
                e.bstore("buffer_store_dwordx4", OPK(t, 2 * bh + bl), vL16, sWS, sT, off=bl * 1024, pol=cfg.ost_pol, tag="ost")
            else:
                e.ds_write("ds_write_b128", vOW, OPK(t, 2 * bh + bl), bh * 34816 + t * 2048 + bl * 1024)
        def third():
            e.salu("s_cmp_lg_u32", None, sW, 3)
            e.branch("s_cbranch_scc1", "5f")
            q_ = (list(e.vm_q), list(e.lds_q))
            one(2, 0); one(2, 1)
            e.vm_q, e.lds_q = q_
            e.label("5")
        return [third] + [lambda t=t, bl=bl: one(t, bl) for t in range(2) for bl in range(2)]
    for st in range(16):
        e.comment(f"o-proj stage {st}")
        if st == cfg.sig_stage:
            if cfg.sig_drain: e.wait_all_vm()
            else: e.wait_vm("ost")
        if st == PS:
            e.salu("s_cmp_lg_u32", None, sW, 0)
            e.branch("s_cbranch_scc1", "L_poll1x")
            q_ = list(e.vm_q)
            e._wait(vm=len(e.vm_q) - mark[0])
            flag_test(g.sHP)
            e.branch("s_cbranch_scc1", "L_poll1x")
            poll(sF1, 32, "L_poll1", g.sHP)
            e.vm_q = q_
        if cfg.inband and st == cfg.poison_at - 100 + 4:
            e.wait_vm("pz")
            flag_store(sF2, 32, g.sHG)
        if cfg.inband and st == cfg.ann_stage:
            e.wait_vm("f3")
            flag_test(g.sHG)
            e.branch("s_cbranch_scc1", "L_poll3x")
            q_ = list(e.vm_q)
            poll(sF2, 32, "L_poll3", g.sHG)
            e.vm_q = q_
        if st == 1 and cfg.bonly:
            e.salu("s_add_u32", sT, sW, 1); e.salu("s_and_b32", sT, sT, 2)
            e.branch("s_cbranch_scc0", "9f")
            q_ = list(e.vm_q)
            e.wait_vm(("g", 2))
            e.vm_q = q_[1:]
            e.label("9")
        if st + 1 < 16: e.wait_vm(("g", st + 1))
        if st:
            e.wait_all_lds(); e.barrier()
        if st == cfg.sig_stage:
            e.salu("s_cmp_lg_u32", None, sW, 3)
            e.branch("s_cbranch_scc1", "L_sig1")
            flag_store(sF1, 32, g.sHP)
            e.label("L_sig1")
            stamp(6)
        if st == PS: stamp(7)
        if st == 2: stamp(14)
        if cfg.gst and 1 <= st <= 11: stamp((1, 2, 3, 6, 7, 9, 10, 11, 12, 13, 14)[st - 1], True)
        fill = deque()
        if st == PS - 1:
            def fl1():
                e.salu("s_cmp_lg_u32", None, sW, 0)
                e.branch("s_cbranch_scc1", "7f")
                flag_load(sF1, 32, None); e.vm_q.pop()
                e.label("7")
                mark[0] = len(e.vm_q)
            fill.append(fl1)
        if cfg.inband and st == cfg.poison_at - 100: poison(fill)
        if cfg.inband and st == cfg.ann_stage - 2: fill.append(lambda: flag_load(sF2, 32, "f3"))
        if cfg.inband and st == cfg.ann_stage: fill.append(lambda: flag_store(sF2, 0, g.sHG))
        if cfg.inband and st == 15: fill.extend([lambda: None] * 2 + [lambda: flag_load(sF2, 0, "f2")])
        if st == PS:
            for s2 in range(10, st + 4): fill.extend(go_items(s2))
        if cfg.warm == 4 and st == 0: fill.extend(warm0())
        if st == cfg.st_stage: fill.extend(o2_items("st", 0))
        if st == cfg.st_stage + cfg.st_split: fill.extend(o2_items("st", 1))
        if st + 4 < 16:
            if st + 4 in (8, 9) and cfg.own_lds: fill.extend(gw_items(st + 4) + o2_items("lds", st - 4))
            elif st + 4 < 10 or st >= PS: fill.extend(gwo_items(st + 4))
            else: fill.extend(gw_items(st + 4))
        rd = deque(ga_reads(st + 1) + gb_reads(st + 1)) if st + 1 < 16 else deque()
        mfs = [lambda qt=qt, kb=kb, ee=ee: e.mfma16(GC(qt, ee), GA(st & 1, kb * 2 + ee), GB(st & 1, qt * 2 + kb), GC(qt, ee) if (st or kb) else 0)
               for kb in range(2) for qt in range(9) for ee in range(2)]
        run_stage(mfs, rd, fill, span=20 if (st + 1 == cfg.sig_stage and cfg.sig_drain) else None)
    stamp(8)
    e.salu("s_mul_i32", sU0, g.sB, 144 * 2048); e.salu("s_lshl_b32", sT, g.sBR, 10); e.salu("s_add_u32", sU0, sU0, sT)
    e.salu("s_lshl_b32", sT, g.sHP, 8); e.salu("s_add_u32", sU0, sU0, sT); e.salu("s_lshl_b32", sT, sW, 6); e.salu("s_add_u32", sU0, sU0, sT)
    e.salu("s_mov_b32", sT1, "0xffff0000")
    for j in range(1, 4):
        e.salu("s_cmp_eq_u32", None, g.sHG, j)
        e.branch("s_cbranch_scc1", f"L_fin{j}")
    h1 = list(e.hist)
    for j in range(4):
        if j: e.label(f"L_fin{j}")
        e.hist = list(h1); e.vm_q = []; e.lds_q = []
        own = [qt for qt in range(9) if qt % 4 == j]
        if cfg.inband: e.vm_q = ["f2"]
        else: flag_load(sF2, 0, "f2")
        for qt in range(9):
            if qt in own: continue
            o = V(112 + qt * 8, 8)
            for i in range(4): e.valu("v_cvt_pk_bf16_f32", o[i], o[2 * i], o[2 * i + 1])
            if cfg.inband:
                for i in range(4): e.valu("v_min_u32", o[i], -2, o[i])
            e.salu("s_add_u32", sT2, g.sPB, j * 36864 + qt * 1024)
            e.bstore("buffer_store_dwordx4", o[0:4], vL16, sWS, sT2, pol="sc1")
        if cfg.inband: e.wait_vm("f2")
        else:
            e.wait_all_vm()
            flag_store(sF2, 0, g.sHG)
        stamp(9)
        flag_test(g.sHG)
        e.branch("s_cbranch_scc1", f"L_poll2{j}x")
        poll(sF2, 0, f"L_poll2{j}", g.sHG)
        PB = lambda s, n: V(184 + (s * 3 + n) * 4, 4)
        srcs = [s for s in range(4) if s != j]
        if cfg.inband:
            e.salu("s_mov_b32", g.sSP, 1 << 20)
            e.label(f"L_get{j}")
        else: stamp(10)
        for n, qt in enumerate(own):
            for si, s in enumerate(srcs):
                e.salu("s_add_u32", sT2, g.sPB, s * 36864 + qt * 1024)
                e.bload("buffer_load_dwordx4", PB(si, n), vL16, sWS, sT2, pol="sc1", tag=(si, n))
        if cfg.inband:
            e.wait_all_vm()
            ws_ = [PB(si, n)[i] for n in range(len(own)) for si in range(3) for i in range(4)]
            e.valu("v_max_u32", vT0, ws_[0], ws_[1])
            for i in range(2, len(ws_), 2): e.valu("v_max3_u32", vT0, ws_[i], ws_[i + 1], vT0)
            e.vcmp("v_cmp_eq_u32", "vcc", -1, vT0)
            e.salu("s_cmp_eq_u64", None, "vcc", 0)
            e.branch("s_cbranch_scc1", f"L_get{j}x")
            e.salu("s_sub_u32", g.sSP, g.sSP, 1)
            e.salu("s_cmp_lg_u32", None, g.sSP, 0)
            e.branch("s_cbranch_scc1", f"L_get{j}")
            e.label(f"L_get{j}x")
            stamp(10)
        for n, qt in enumerate(own):
            o = V(112 + qt * 8, 8)
            for si in range(3):
                p = PB(si, n)
                e.wait_vm((si, n))
                for i in range(4):
                    e.valu("v_lshlrev_b32", vT0, 16, p[i]); e.valu("v_and_b32", vT1, sT1, p[i])
                    e.valu("v_add_f32", o[2 * i], o[2 * i], vT0); e.valu("v_add_f32", o[2 * i + 1], o[2 * i + 1], vT1)
            for i in range(4): e.valu("v_cvt_pk_bf16_f32", o[i], o[2 * i], o[2 * i + 1])
            e.salu("s_add_u32", sT2, sU0, qt * 32768)
            e.bstore("buffer_store_dwordx4", o[0:4], vST, sOUT, sT2, pol=cfg.out_pol)
        stamp(11)
        stamp_flush()
        e.other("s_endpgm")
    e.label("L_done")
    e.other("s_endpgm")
    e.label("L_end")

def generate(cfg, fn):
    e = Em()
    e.raw('.amdgcn_target "amdgcn-amd-amdhsa--gfx950"'); e.raw(".text")
    gen(e, cfg, NAME + "_kernel")
    top = ("; attention block in one launch: q-projection, attention, output projection; generated by dev/gen9.py\n"
           "; @launch grid=(256,1,1) block=(256,1,1) lds=163840\n")
    tail = '.section .rodata,"a"\n' + descriptor(NAME + "_kernel", 512, 102, 256)
    open(fn, "w").write(top + e.text() + tail)
    return e

if __name__ == "__main__":
    cfg = Cfg()
    fn = sys.argv[1] if len(sys.argv) > 1 else "k.s"
    for kv in sys.argv[2:]:
        k, v = kv.split("=", 1)
        cur = getattr(cfg, k)
        setattr(cfg, k, type(cur)(int(v)) if isinstance(cur, (bool, int)) and not isinstance(cur, float) else (float(v) if isinstance(cur, float) else v))
    e = generate(cfg, fn)
    print(fn, "lines", len(e.lines), "nop states", e.nops)
```

```python
import sys, struct
from collections import deque
from asmlib import *

NAME = "concat_heads__mha_block_cached__gqa_block_cached__near_ridge"
def f2u(x): return struct.unpack("<I", struct.pack("<f", x))[0]
QSCALE = 1.4426950408889634 / (128 ** 0.5)

class Cfg:
    kv_pol = "nt"
    xw_pol = ""
    wo_pol = ""
    lthresh = 2.0 ** 40
    force_fallback = 0
    stamps = False
    poll_sleep = 2
    kv0_stage = 13
    win = 11
    wing = 1
    win2 = 0
    dbg_tail = 0
    ost_pol = "sc1"
    chunk0 = 4
    swap = 0
    alt = 1
    out_pol = "sc1"
    rotmul = "0x9e3779b1"
    trickle = 0
    trickle0 = 3
    sig_trip = 5
    warm_trip = 3
    warm_w = 1
    qst = 0
    gst = 0
    st_split = 0
    sig_drain = 0
    own_lds = 0
    tagpos = 0
    plate = 1
    kv0_at = "10,12,14,15"
    l2pre = 0
    la = 4
    thin = 0
    qrot = 4
    xwarm = 0
    stride = 0
    tpace = 0
    hswap = 0
    tail_at = "60,61,62,63"
    bonly = 1
    opre = -1
    opre_pol = ""
    qbar2 = 1
    l4 = 0
    l4pos = 3
    l4cap = 1
    dbg_pw = 0
    inband = 0
    poison_at = 13
    ann_stage = 14
    l2pre_at = 13
    fb = 0
    open_trip = 1
    warm0 = -1
    warm_per = 4
    qov = 3
    kv0_rate = 2
    warm_o = 0
    warm_opol = "sc1"
    cw = 3
    cw_trip = 2
    sig1_step = 35
    pre_step = 63
    warm = 1
    dbg_hot = 0
    st_stage = -1
    sig_stage = 3
    poll_stage = 6
    probe = -2
    probe_a = 0
    probe_cyc = 0
    probe_wg = -1

OWS_BYTES = 16 * 64 * 18432
PWS_OFF = OWS_BYTES
PWS_BYTES = 64 * 16 * 9216
FLG_OFF = OWS_BYTES + PWS_BYTES
PRG_OFF = FLG_OFF + (64 + 256) * 256
WS_USED = PRG_OFF + 16 * 256
STAMP_OFF = 32 << 20
NSTAMP = 16

def descriptor(label, vgpr, sgpr, accum):
    return f""".p2align 6
.amdhsa_kernel {label}
  .amdhsa_next_free_vgpr {vgpr}
  .amdhsa_next_free_sgpr {sgpr}
  .amdhsa_accum_offset {accum}
  .amdhsa_group_segment_fixed_size 0
  .amdhsa_kernarg_size 104
  .amdhsa_user_sgpr_count 2
  .amdhsa_user_sgpr_kernarg_segment_ptr 1
  .amdhsa_system_sgpr_workgroup_id_x 1
.end_amdhsa_kernel
"""

def gen(e, cfg, label):
    e.raw(f".globl {label}"); e.raw(".p2align 8"); e.raw(f".type {label},@function"); e.label(label)
    sX, sWQ, sK, sV, sWS, sWO, sOUT, sDBG = (S(4 * i + 4, 4) for i in range(8))
    sLD = sX
    names = ("W XCD IDX T T1 T2 B HP HG BR KVB KP KO LS XS WS2 XL WL CNT RETRY SC ROT OB OKP WB OL PB FL1 FL2 SP WLG FAIL PUB KVB0").split()
    sr = {n: S(36 + i) for i, n in enumerate(names)}
    assert 36 + len(names) <= 70
    g = type("G", (), {"s" + n: r for n, r in sr.items()})
    sM0, sM1 = S(70, 2), S(72, 2)
    KARG = 76
    def kp(i): return S(KARG + 2 * i), S(KARG + 2 * i + 1)
    sW, sT, sT1, sT2 = g.sW, g.sT, g.sT1, g.sT2
    sU0, sU1 = S(76), S(77)
    sWBw, sOKw = S(79), S(80)
    sPC = S(82, 2)
    sSTR = S(89)
    sPL, sTRIP, sPS = S(86), S(87), S(88)
    sF1, sF2 = S(84), S(85)
    sTAG = S(81)
    TG = V(108, 2)
    sSW2, sOB1 = S(3), S(78)
    vL, vL16, vT0, vT1, vT2 = V(1), V(2), V(3), V(4), V(5)
    KA = [V(6 + i) for i in range(4)]; VA = [V(10 + i) for i in range(8)]
    oK = [V(18 + i) for i in range(4)]; oV = [V(22 + i) for i in range(2)]
    oWo = [V(24 + i) for i in range(4)]
    XA = [V(28), V(29)]; WA = [V(30), V(31)]
    oLD = [V(28 + i) for i in range(4)]
    Sb = [V(32 + i * 8, 8) for i in range(2)]
    Pb = [V(48 + i * 4, 4) for i in range(2)]
    NM = lambda h, t: V(56 + (h * 3 + t) * 4, 4)
    oX = [V(56 + i) for i in range(5)]; oWQ = [V(61 + i) for i in range(4)]
    Kb = [V(80 + kk * 4, 4) for kk in range(4)]
    KBA, QA, QW = V(96), V(97), V(98)
    GWA = [V(99), V(100)]; GOA = [V(101), V(102)]; vST, vFLG, stamp_reg, vD0, vD1 = V(103), V(104), V(105), V(106), V(107)
    PG = V(28, 2)
    vOW = V(98)
    Oacc = lambda t, D: V(160 + (t * 8 + D) * 4, 4)
    OPK = lambda t, blk: V(208 + (t * 4 + blk) * 4, 4)
    QACC = lambda D, qt: V(112 + (qt * 4 + D) * 4, 4)
    XF = lambda buf, qt: A(buf * 36 + qt * 4, 4)
    WF = lambda buf, D: A(108 + buf * 16 + D * 4, 4)
    Qf = lambda h, t, kk: A((h * 12 + t * 4 + kk) * 4, 4)
    Lb = [A(96 + t * 4, 4) for t in range(3)]
    ONES = A(108, 4)
    Kf = lambda b, kt, kk: A(144 - b * 32 + (kt * 4 + kk) * 4, 4)
    Vf = lambda b, D: A(176 + b * 32 + D * 4, 4)
    GB = lambda buf, i: A((0 if buf else 112) + i * 4, 4)
    GA = lambda buf, i: A((72 if buf else 184) + i * 4, 4)
    GC = lambda qt, ee: V(112 + (qt * 2 + ee) * 4, 4)
    LQ = 65536; XS0, WS0 = LQ, LQ + 36864
    GSL = [69632, 104448, 0, 34816]; LFLAG = 163840 - 64
    WOF = [69632, 104448, 0, 16384]; OOF = [86016, 120832, 32768, 51200]

    pl = [0]
    def stamp(i, q=False):
        if cfg.qst and not q and i in (6, 7, 9, 10, 11, 12, 13, 14): return
        if cfg.gst and not q and i in (1, 2, 3, 6, 7, 9, 10, 11, 12, 13, 14): return
        if cfg.stamps:
            e.other("s_memrealtime s[74:75]"); e._wait(lg=0); e.lds_q = []
            e.ins(f"v_writelane_b32 {stamp_reg}, s74, {i}", 'valu', [], [stamp_reg])
            if cfg.probe_cyc:
                e.other("s_memtime s[74:75]"); e._wait(lg=0)
                e.ins(f"v_writelane_b32 {stamp_reg}, s74, {i + 16}", 'valu', [], [stamp_reg])
    def stamp_flush():
        if not cfg.stamps: return
        e.wait_all_vm(); stamp(NSTAMP - 1)
        if cfg.probe >= 0:
            pl[0] += 1
            e.nop(2)
            e.ins(f"v_readlane_b32 {sT1}, {stamp_reg}, {cfg.probe}", 'readlane', [stamp_reg], [sT1])
            e.nop(4)
            e.salu("s_cmp_eq_u32", None, sT1, 0)
            e.branch("s_cbranch_scc1", f"L_pe{pl[0]}")
            if cfg.probe_wg >= 0:
                e.salu("s_and_b32", sT, S(2), 7)
                e.salu("s_cmp_lg_u32", None, sT, cfg.probe_wg)
                e.branch("s_cbranch_scc1", f"L_pe{pl[0]}")
            o_ = 16 if cfg.probe_cyc else 0
            e.ins(f"v_readlane_b32 {sT1}, {stamp_reg}, {cfg.probe + o_}", 'readlane', [stamp_reg], [sT1])
            e.ins(f"v_readlane_b32 {sT2}, {stamp_reg}, {cfg.probe_a + o_}", 'readlane', [stamp_reg], [sT2])
            e.ins(f"v_readlane_b32 {sT}, {stamp_reg}, 0", 'readlane', [stamp_reg], [sT])
            e.nop(4)
            e.salu("s_sub_u32", sT1, sT1, sT2)
            if cfg.probe_cyc: e.salu("s_lshr_b32", sT1, sT1, 4)
            e.salu("s_add_u32", sT1, sT1, sT)
            e.salu("s_add_u32", sT1, sT1, 12000)
            e.label(f"L_pr{pl[0]}")
            e.other("s_memrealtime s[74:75]"); e._wait(lg=0)
            e.salu("s_sub_u32", sT, S(74), sT1)
            e.salu("s_cmp_lt_i32", None, sT, 0)
            e.branch("s_cbranch_scc1", f"L_pr{pl[0]}")
            e.label(f"L_pe{pl[0]}")
            return
        e.salu("s_lshl_b32", sT, S(2), 2); e.salu("s_add_u32", sT, sT, sW); e.salu("s_lshl_b32", sT, sT, 8)
        e.salu("s_add_u32", sT, sT, STAMP_OFF)
        e.valu("v_lshlrev_b32", vT0, 2, vL)
        e.bstore("buffer_store_dword", stamp_reg, vT0, sWS, sT)

    e.salu("s_cmp_ge_u32", None, S(2), 256)
    e.branch("s_cbranch_scc1", "L_done")
    e.other(f"s_load_dwordx16 s[{KARG}:{KARG+15}], s[0:1], 0")
    e.other(f"s_load_dwordx8 s[{KARG+16}:{KARG+23}], s[0:1], 64")
    e.other(f"s_load_dwordx2 s[{KARG+24}:{KARG+25}], s[0:1], 96")
    e.other("s_memrealtime s[72:73]")
    if cfg.cw & 4:
        e.other("s_getpc_b64 s[70:71]")
        e.label("L_pc")
        e.salu("s_lshr_b32", sT, S(2), 3); e.salu("s_lshl_b32", sT, sT, 12)
        e.valu("v_lshl_add_u32", V(109), V(0), 4, sT)
        e.valu("v_min_u32", V(109), "L_end-L_pc-4", V(109))
        e.ins("v_add_co_u32 v110, vcc, s70, v109", 'valu', [V(109)], [V(110), 'vcc'])
        e.valu("v_mov_b32", V(111), S(71))
        e.ins("v_addc_co_u32 v111, vcc, 0, v111, vcc", 'valu', [V(111), 'vcc'], [V(111), 'vcc'])
        e.ins(f"global_load_dword {vD1}, v[110:111], off", 'vmem', [V(110, 2)], [vD1]); e.vm_q.append("cw")
    e.valu("v_lshrrev_b32", vT0, 6, V(0))
    e.valu("v_and_b32", vL, 63, V(0))
    e.readfirstlane(sW, vT0)
    if cfg.stamps: e.valu("v_mov_b32", stamp_reg, 0)
    e.salu("s_and_b32", g.sXCD, S(2), 7)
    e.salu("s_lshr_b32", g.sIDX, S(2), 3)
    e.salu("s_lshr_b32", g.sB, g.sIDX, 2); e.salu("s_and_b32", g.sHP, g.sIDX, 3)
    e.salu("s_and_b32", g.sHG, g.sXCD, 3); e.salu("s_lshr_b32", g.sBR, g.sXCD, 2)
    e.valu("v_lshlrev_b32", vL16, 4, vL)
    e.valu("v_lshrrev_b32", vT1, 4, vL); e.valu("v_lshrrev_b32", vT0, 3, vL)
    e.salu("s_lshl_b32", sT, g.sHP, 1); e.salu("s_add_u32", sT, sT, g.sB); e.salu("s_and_b32", sT, sT, cfg.qrot)
    e.salu("s_lshl_b32", g.sXS, sT, 7); e.salu("s_lshl_b32", g.sWS2, sT, 19)
    e.salu("s_mul_i32", sT, sW, 9); e.salu("s_lshr_b32", sT, sT, 1)
    e.salu("s_lshl_b32", g.sOL, sT, 10); e.salu("s_add_u32", g.sXL, g.sOL, XS0)
    e.salu("s_mul_i32", sT1, g.sB, 147456); e.salu("s_lshl_b32", sT2, sT, 13); e.salu("s_add_u32", sT1, sT1, sT2)
    e.salu("s_and_b32", sT, sT, 1); e.salu("s_lshl_b32", sT, sT, 6)
    e.valu("v_and_b32", vT2, 7, vL); e.valu("v_xor_b32", vT2, vT2, vT1); e.valu("v_lshlrev_b32", vT2, 4, vT2)
    e.valu("v_lshl_add_u32", vT2, vT0, 10, vT2); e.valu("v_xor_b32", vT2, sT, vT2)
    e.valu("v_add_u32", oX[0], sT1, vT2); e.valu("v_xor_b32", vT2, 64, oX[0])
    for i in range(1, 5): e.valu("v_add_u32", oX[i], i * 8192 - (i % 3) * 1024, vT2 if i & 1 else oX[0])
    e.salu("s_lshl_b32", sT1, g.sHG, 11); e.salu("s_lshl_b32", sT2, g.sHP, 9); e.salu("s_add_u32", sT1, sT1, sT2)
    e.salu("s_lshl_b32", sT2, sW, 7); e.salu("s_add_u32", sT1, sT1, sT2)
    e.valu("v_and_b32", vT2, 1, vT1); e.valu("v_lshlrev_b32", vT2, 2, vT2)
    e.valu("v_and_b32", oWQ[0], 7, vL); e.valu("v_xor_b32", vT2, oWQ[0], vT2); e.valu("v_lshlrev_b32", vT2, 4, vT2)
    e.valu("v_lshl_add_u32", vT2, vT0, 13, vT2); e.valu("v_add_u32", oWQ[0], sT1, vT2)
    for i in range(1, 4): e.valu("v_add_u32", oWQ[i], i * (65536 - 1024), oWQ[0])
    e.salu("s_lshl_b32", g.sWLG, sW, 12); e.salu("s_add_u32", g.sWL, g.sWLG, WS0)
    e._wait(lg=0)
    e.salu("s_cmp_lg_u32", None, g.sBR, 0)
    def srd(d, a, b, size):
        if b is None:
            e.salu("s_mov_b32", d[0], kp(a)[0]); e.salu("s_mov_b32", d[1], kp(a)[1])
        else:
            e.salu("s_cselect_b32", d[0], kp(b)[0], kp(a)[0]); e.salu("s_cselect_b32", d[1], kp(b)[1], kp(a)[1])
        e.salu("s_mov_b32", d[2], hex(size)); e.salu("s_mov_b32", d[3], "0x20000")
    srd(sX, 0, 5, 8 * 147456); srd(sWQ, 3, 8, 512 * 8192)
    srd(sK, 1, 6, 1 << 26); srd(sV, 2, 7, 1 << 26); srd(sWO, 4, 9, 4096 * 1024)
    srd(sDBG, 11, None, 256)
    def tag_propose():
        e.salu("s_cmp_lg_u32", None, sW, 3)
        e.branch("s_cbranch_scc1", "1f")
        e.salu("s_or_b32", S(72), S(72), 1)
        e.salu("s_lshl_b32", sT, g.sBR, 3); e.salu("s_add_u32", sT, sT, g.sB); e.salu("s_lshl_b32", sT, sT, 4)
        e.valu("v_mov_b32", TG[0], S(72)); e.valu("v_mov_b32", TG[1], 0); e.valu("v_mov_b32", V(110), 0)
        e.salu("s_mov_b64", "exec", 1)
        e.ins(f"buffer_atomic_cmpswap {TG}, v110, {sDBG}, {sT} offen sc0 sc1", 'vmem', [TG, V(110), sDBG, sT], [TG[0]])
        e.salu("s_mov_b64", "exec", -1)
        e.label("1")
    if cfg.tagpos == 0: tag_propose()
    stamp(0)

    def x_items(D, part, tag):
        its = [lambda: e.salu("s_add_u32", "m0", g.sXL, (D & 1) * 18432 + part * 3072)]
        for i in range(3 * part, min(5, 3 * part + 3)):
            its.append(lambda i=i: e.dma(oX[i], sX, g.sXS, off=(i % 3) * 1024, pol=cfg.xw_pol, tag=tag))
        if part == 1:
            its.append(lambda: e.salu("s_add_u32", g.sXS, g.sXS, 128))
            its.append(lambda: e.salu("s_and_b32", g.sXS, g.sXS, 1023))
        return its
    def w_items(st, tag):
        its = [lambda: e.salu("s_add_u32", "m0", g.sWL, (st % 3) * 16384)]
        for i in range(4):
            its.append(lambda i=i: e.dma(oWQ[i], sWQ, g.sWS2, off=i * 1024, pol=cfg.xw_pol, tag=tag))
        its.append(lambda: e.salu("s_add_u32", g.sWS2, g.sWS2, 1 << 18))
        its.append(lambda: e.salu("s_and_b32", g.sWS2, g.sWS2, "0x3fffff"))
        return its
    pro = [w_items(0, "p0") + x_items(0, 0, "p0") + x_items(0, 1, "p0"), w_items(1, "p1"), x_items(1, 0, "p2") + x_items(1, 1, "p2") + w_items(2, "p2")]
    for f in pro[0]: f()
    if not cfg.plate:
        for f in pro[1] + pro[2]: f()
    if cfg.tagpos == 1: tag_propose()

    if cfg.qst: stamp(12, True)
    srd(sWS, 12, None, 64 << 20 if cfg.stamps else WS_USED); srd(sOUT, 10, None, 8 * 144 * 2048)
    e.salu("s_lshl_b32", sT, g.sHG, 3); e.salu("s_lshl_b32", sT1, g.sHP, 1); e.salu("s_add_u32", sT, sT, sT1)
    e.salu("s_lshl_b32", g.sKVB0, g.sB, 5); e.salu("s_add_u32", g.sKVB0, g.sKVB0, sT); e.salu("s_lshl_b32", g.sKVB0, g.sKVB0, 18)
    e.salu("s_lshl_b32", sT1, g.sBR, 3); e.salu("s_add_u32", sT1, sT1, g.sB)
    e.salu("s_lshl_b32", sT2, sT1, 5); e.salu("s_add_u32", sT2, sT2, sT); e.salu("s_mul_i32", g.sOB, sT2, 36864)
    e.salu("s_add_u32", g.sOB, g.sOB, g.sWLG)
    if cfg.swap == 1: e.salu("s_xor_b32", sSW2, g.sB, g.sHG)
    elif cfg.swap == 2:
        e.salu("s_lshr_b32", sSW2, g.sB, 1); e.salu("s_xor_b32", sSW2, sSW2, g.sB); e.salu("s_lshr_b32", sT2, g.sHG, 1); e.salu("s_xor_b32", sSW2, sSW2, sT2)
    e.salu("s_and_b32", sSW2, sSW2, 1 if cfg.swap else 0)
    e.salu("s_lshl_b32", sT2, sSW2, 18); e.salu("s_add_u32", g.sKVB0, g.sKVB0, sT2)
    e.salu("s_mul_i32", sT2, sSW2, 36864); e.salu("s_add_u32", sOB1, g.sOB, 36864); e.salu("s_sub_u32", sOB1, sOB1, sT2); e.salu("s_add_u32", g.sOB, g.sOB, sT2)
    e.salu("s_lshl_b32", sSW2, sSW2, 1)
    if cfg.dbg_tail & 1: e.salu("s_mov_b32", sOB1, "0x40000000")
    e.salu("s_lshl_b32", sT2, sT1, 2); e.salu("s_add_u32", g.sFL1, sT2, g.sHG); e.salu("s_add_u32", g.sFL2, sT2, g.sHP)
    e.salu("s_mul_i32", g.sOKP, g.sFL1, 16 * 18432)
    e.salu("s_mul_i32", g.sPB, g.sFL2, 16 * 9216); e.salu("s_add_u32", g.sPB, g.sPB, PWS_OFF)
    e.salu("s_lshl_b32", sF1, g.sFL1, 8); e.salu("s_add_u32", sF1, sF1, FLG_OFF)
    e.salu("s_lshl_b32", sF2, g.sFL2, 10); e.salu("s_add_u32", sF2, sF2, FLG_OFF + 64 * 256)
    e.salu("s_mul_i32", sT, sW, 9216); e.salu("s_add_u32", g.sPB, g.sPB, sT)
    e.salu("s_lshl_b32", sT, sW, 8); e.salu("s_add_u32", sF2, sF2, sT)
    e.salu("s_lshl_b32", sPL, sT1, 8); e.salu("s_add_u32", sPL, sPL, PRG_OFF)
    e.salu("s_lshl_b32", sPS, g.sHG, 2); e.salu("s_add_u32", sPS, sPS, g.sHP); e.salu("s_lshl_b32", sPS, sPS, 3)
    e.salu("s_mov_b32", sTRIP, 0)
    e.salu("s_lshl_b32", g.sWB, g.sHG, 20); e.salu("s_lshl_b32", sT, g.sHP, 8); e.salu("s_add_u32", g.sWB, g.sWB, sT)
    e.salu("s_lshl_b32", sT, sW, 14); e.salu("s_add_u32", sWBw, g.sWB, sT)
    e.salu("s_add_u32", sOKw, g.sOKP, g.sOL)
    if cfg.dbg_tail & 2: e.salu("s_mov_b32", sOKw, "0x40000000"); e.salu("s_mov_b32", sWBw, "0x40000000")
    if cfg.dbg_tail & 4: e.salu("s_mov_b32", g.sOKP, "0x40000000"); e.salu("s_mov_b32", g.sWB, "0x40000000")
    if cfg.cw & 4: e.salu("s_mov_b64", sPC, S(70, 2))
    else:
        e.other(f"s_getpc_b64 {sPC}")
        e.label("L_pc")
    e.salu("s_mul_i32", g.sROT, S(2), cfg.rotmul)
    if cfg.stride == 1:
        e.salu("s_lshr_b32", sSTR, g.sROT, 22); e.salu("s_and_b32", sSTR, sSTR, 30); e.salu("s_or_b32", sSTR, sSTR, 1); e.salu("s_lshl_b32", sSTR, sSTR, 13)
    else: e.salu("s_mov_b32", sSTR, 8192 * (cfg.stride | 1))
    e.salu("s_lshr_b32", g.sROT, g.sROT, 27); e.salu("s_lshl_b32", g.sROT, g.sROT, 13)
    e.salu("s_mov_b32", g.sRETRY, 0); e.salu("s_mov_b32", g.sPUB, 0)
    e.salu("s_mov_b32", g.sSC, hex(f2u(QSCALE)))
    e.valu("v_and_b32", vT0, 15, vL); e.valu("v_lshrrev_b32", vT1, 4, vL)
    e.valu("v_xor_b32", vT2, vT0, vT1)
    e.valu("v_lshlrev_b32", vT2, 4, vT2); e.valu("v_lshl_add_u32", oK[0], vT1, 8, vT2)
    for n in range(1, 4): e.valu("v_xor_b32", oK[n], n << 6, oK[0])
    e.valu("v_lshlrev_b32", vT2, 1, vT1); e.valu("v_xor_b32", vT2, vT0, vT2)
    e.valu("v_lshlrev_b32", vT2, 4, vT2); e.valu("v_lshl_add_u32", oV[0], vT1, 8, vT2)
    e.valu("v_xor_b32", oV[1], 128, oV[0])
    e.valu("v_lshlrev_b32", vT2, 2, vT1); e.valu("v_xor_b32", vT2, vT0, vT2)
    e.valu("v_lshlrev_b32", vT2, 4, vT2); e.valu("v_lshl_add_u32", oWo[0], vT1, 10, vT2)
    for i in range(1, 4): e.valu("v_add_u32", oWo[i], i * 3072, oWo[0])
    def kv_addr_init():
        e.valu("v_and_b32", vT0, 15, vL); e.valu("v_lshrrev_b32", vT1, 4, vL)
        e.valu("v_xor_b32", vT2, vT0, vT1); e.valu("v_lshlrev_b32", vT2, 4, vT2)
        e.valu("v_lshl_add_u32", KA[0], vT0, 8, vT2)
        for kk in range(1, 4): e.valu("v_xor_b32", KA[kk], kk << 6, KA[0])
        e.valu("v_lshlrev_b32", KBA, 4, vT1)
        e.valu("v_lshrrev_b32", vT0, 2, vL)
        e.valu("v_and_b32", vT2, 7, vT0); e.valu("v_lshlrev_b32", vT2, 5, vT2)
        e.valu("v_lshl_add_u32", vT2, vT0, 8, vT2)
        e.valu("v_and_b32", vT0, 3, vL); e.valu("v_lshl_add_u32", vT2, vT0, 3, vT2)
        e.valu("v_add_u32", VA[0], 8192, vT2)
        for D in range(1, 8): e.valu("v_xor_b32", VA[D], D << 5, VA[0])
    kv_addr_init()
    e.valu("v_and_b32", vT0, 15, vL)
    e.valu("v_lshrrev_b32", vT2, 1, vT0); e.valu("v_xor_b32", vT2, vT2, vT1); e.valu("v_lshlrev_b32", vT2, 4, vT2)
    e.valu("v_lshl_add_u32", vT2, vT0, 7, vT2); e.valu("v_add_u32", XA[0], XS0, vT2); e.valu("v_xor_b32", XA[1], 64, XA[0])
    e.valu("v_lshlrev_b32", vST, 11, vT0); e.valu("v_lshl_add_u32", vST, vT1, 4, vST)
    e.valu("v_lshrrev_b32", vT0, 2, vL); e.valu("v_and_b32", vT0, 3, vT0)
    e.valu("v_lshl_add_u32", vT2, vT1, 3, vT0); e.valu("v_lshlrev_b32", vT2, 7, vT2)
    e.valu("v_lshrrev_b32", WA[1], 1, vT0); e.valu("v_lshl_add_u32", vT2, WA[1], 6, vT2)
    e.valu("v_and_b32", WA[1], 3, vL); e.valu("v_lshl_add_u32", vT2, WA[1], 4, vT2)
    e.valu("v_add_u32", WA[0], g.sWL, vT2); e.valu("v_xor_b32", WA[1], 64, WA[0])
    e.valu("v_xor_b32", vT0, sW, vT0); e.valu("v_lshlrev_b32", vT0, 6, vT0)
    e.valu("v_and_b32", vT2, 3, vL); e.valu("v_lshl_add_u32", vT0, vT2, 4, vT0)
    e.valu("v_lshrrev_b32", vT2, 2, vL); e.valu("v_lshl_add_u32", GWA[1], vT2, 8, vT0)
    e.valu("v_add_u32", GWA[0], GSL[0], GWA[1])
    e.valu("v_add_u32", GOA[1], OOF[2], vL16); e.valu("v_add_u32", GOA[0], GSL[0] + 16384, vL16)
    e.salu("s_lshr_b32", sT1, sW, 1); e.salu("s_mul_i32", sT1, sT1, 36864)
    e.salu("s_and_b32", sT2, sW, 1); e.salu("s_lshl_b32", sT2, sT2, 11); e.salu("s_add_u32", sT2, sT2, sT1); e.salu("s_add_u32", sT2, sT2, LQ)
    e.valu("v_add_u32", QW, sT2, vL16)
    e.salu("s_lshl_b32", sT2, sW, 13); e.salu("s_add_u32", sT2, sT2, LQ)
    e.valu("v_add_u32", QA, sT2, vL16)
    e.salu("s_lshl_b32", sT2, sW, 2); e.salu("s_add_u32", sT2, sT2, LFLAG)
    e.valu("v_mov_b32", vFLG, sT2)

    def kv4_setup():
        e.salu("s_mul_i32", sT, sW, sSTR); e.salu("s_add_u32", g.sKP, g.sROT, sT); e.salu("s_and_b32", g.sKP, g.sKP, "0x3ffff")
        e.salu("s_add_u32", g.sKP, g.sKP, g.sKVB0); e.salu("s_lshl_b32", g.sLS, sW, 14)
    def kv4_items(tag, base=None):
        its = []
        for srd_, voff, b_ in ((sK, oK, 0), (sV, oV, 8192)):
            for n in range(8):
                if n % 4 == 0:
                    its.append(lambda n=n, b_=b_: e.salu("s_add_u32", "m0", g.sLS, b_ + n * 1024))
                    its.append(lambda n=n: e.salu("s_add_u32", g.sKO, g.sKP, n * 1024))
                its.append(lambda n=n, srd_=srd_, voff=voff: e.dma(voff[n % len(voff)], srd_, g.sKO, off=(n & 3) * 1024, pol=cfg.kv_pol, tag=tag))
        return its
    oKq = [V(32), V(33)]
    def kvq_setup():
        e.salu("s_and_b32", sT, sW, 1); e.salu("s_lshl_b32", sT, sT, 7)
        e.valu("v_xor_b32", oKq[0], sT, oK[0]); e.valu("v_xor_b32", oKq[1], sT, oK[1])
        e.salu("s_lshl_b32", g.sLS, sW, 11); e.salu("s_add_u32", g.sKVB, g.sKVB0, g.sLS); e.salu("s_mov_b32", g.sKP, g.sROT)
    def kvq_items(step):
        its = [lambda: e.salu("s_add_u32", "m0", g.sLS, step * 16384), lambda: e.salu("s_add_u32", g.sKO, g.sKVB, g.sKP)]
        its += [lambda i=i: e.dma(oKq[i], sK, g.sKO, off=i * 1024, pol=cfg.kv_pol, tag=("kv", step)) for i in range(2)]
        its += [lambda: e.salu("s_add_u32", "m0", g.sLS, step * 16384 + 8192), lambda: e.salu("s_add_u32", g.sKP, g.sKP, sSTR)]
        its += [lambda i=i: e.dma(oV[i], sV, g.sKO, off=i * 1024, pol=cfg.kv_pol, tag=("kv", step)) for i in range(2)]
        its += [lambda: e.salu("s_and_b32", g.sKP, g.sKP, "0x3ffff")]
        return its
    kvq_setup()
    def window():
        if cfg.win2:
            e.branch("s_cbranch_vccnz", "4f")
            e._wait(vm=cfg.win2 - cfg.wing)
            e.label("4")
        if cfg.win and len(e.vm_q) > cfg.win - cfg.wing:
            n = cfg.win - cfg.wing
            e._wait(vm=n); e.vm_q = e.vm_q[len(e.vm_q) - n:]
    def ld_setup():
        e.salu("s_cmp_eq_u32", None, sW, 2)
        e.salu("s_cselect_b32", sLD[0], sV[0], sK[0]); e.salu("s_cselect_b32", sLD[1], sV[1], sK[1])
        e.salu("s_mov_b32", sLD[2], hex(1 << 26)); e.salu("s_mov_b32", sLD[3], "0x20000")
        e.salu("s_cselect_b32", g.sLS, 8192, 0)
        e.salu("s_cselect_b64", "vcc", -1, 0)
        e.nop(2)
        for n in range(4): e.ins(f"v_cndmask_b32 {oLD[n]}, {oK[n]}, {oV[n & 1]}, vcc", 'valu', [oK[n], oV[n & 1], 'vcc'], [oLD[n]])
        e.salu("s_lshl_b32", g.sKP, sSTR, 2); e.salu("s_add_u32", g.sKP, g.sROT, g.sKP); e.salu("s_and_b32", g.sKP, g.sKP, "0x3ffff")
        e.salu("s_mov_b32", g.sKVB, g.sKVB0)
        if cfg.hswap:
            if cfg.hswap == 1: e.salu("s_lshr_b32", sT, g.sLS, 1)
            else:
                e.salu("s_add_u32", sT, g.sIDX, sW); e.salu("s_and_b32", sT, sT, 1); e.salu("s_lshl_b32", sT, sT, 12)
            e.salu("s_add_u32", g.sLS, g.sLS, sT); e.salu("s_add_u32", g.sKVB, g.sKVB, sT)
        if cfg.win2:
            e.salu("s_mov_b64", "vcc", 0)
    def ld_items(step):
        its = []
        if step == 32:
            its.append(lambda: e.salu("s_xor_b32", g.sKVB, g.sKVB, 262144))
        for n in range(8):
            if n == 0:
                its.append(lambda: e.salu("s_add_u32", "m0", g.sLS, (step & 3) * 16384)); its.append(lambda: e.salu("s_add_u32", g.sKO, g.sKVB, g.sKP))
            if n == 4:
                its.append(lambda: e.salu("s_xor_b32", "m0", "m0", 4096)); its.append(lambda: e.salu("s_xor_b32", g.sKO, g.sKO, 4096))
            if n % cfg.wing == 0: its.append(window)
            its.append(lambda n=n: e.dma(oLD[n & 3], sLD, g.sKO, off=(n & 3) * 1024, pol=cfg.kv_pol, tag=("kv", step)))
        its.append(lambda: e.salu("s_add_u32", g.sKP, g.sKP, 0 if cfg.dbg_hot else sSTR)); its.append(lambda: e.salu("s_and_b32", g.sKP, g.sKP, "0x3ffff"))
        return its
    def k_reads(step):
        return [lambda kk=kk, kt=kt: e.ds_read("ds_read_b128", Kf(step & 1, kt, kk), KA[kk], (step & 3) * 16384 + kt * 4096, tag="kf")
                for kk in range(4) for kt in range(2)][:(4 if cfg.dbg_pw & 2 and step > 1 else 8)]
    def v_reads(step):
        return [lambda D=D, hi=hi: e.ds_read("ds_read_b64_tr_b16", Vf(step & 1, D)[2 * hi:2 * hi + 2], VA[D], (step & 3) * 16384 + hi * 4096, tag="vf")
                for D in range(8) for hi in range(2)][:(8 if cfg.dbg_pw & 2 and step > 1 else 16)]
    def kb_reads():
        return [lambda kk=kk: e.ds_read("ds_read_b128", Kb[kk], KBA, kk * 64, tag="kf") for kk in range(4)]
    def w_reads(st):
        return [lambda D=D, hi=hi: e.ds_read("ds_read_b64_tr_b16", WF(st & 1, D)[2 * hi:2 * hi + 2], WA[D >> 1],
                                            (st % 3) * 16384 + hi * 512 + (D & 1) * 8, tag="qf") for D in range(4) for hi in range(2)]
    def x_reads(D):
        return [lambda qt=qt, kh=kh: e.ds_read("ds_read_b128", XF((2 * D + kh) % 3, qt), XA[kh], (D & 1) * 18432 + qt * 2048, tag="qf")
                for kh in range(2) for qt in range(9)]
    def run_stage(mfs, rd, fill, span=None):
        nf, n, done = len(fill), span or len(mfs), 0
        for i, m in enumerate(mfs):
            m()
            if rd: rd.popleft()()
            while fill and done * n <= i * nf:
                fill.popleft()(); done += 1
        while rd: rd.popleft()()
        while fill: fill.popleft()()
    GORD = [(dp, 0, i) for dp in range(4) for i in range(2)] + [(0, 1, 0), (0, 1, 1)] + [(dp, 1, i) for i in range(2) for dp in (1, 2, 3)]
    def kpl_items(st, dst):
        dp, h, i = GORD[st]
        return [lambda: e.salu("s_add_u32", dst, g.sHP, dp), lambda: e.salu("s_and_b32", dst, dst, 3),
                lambda: e.salu("s_lshl_b32", dst, dst, 2), lambda: e.salu("s_add_u32", dst, dst, 2 * h + i),
                lambda: e.salu("s_xor_b32", dst, dst, sSW2)]
    def ga_reads(st):
        return [lambda kb=kb, ee=ee, hi=hi: e.ds_read("ds_read_b64_tr_b16", GA(st & 1, kb * 2 + ee)[2 * hi:2 * hi + 2], GWA[st >> 1 & 1],
                                                     WOF[st % 4] - WOF[st & 2] + kb * 8192 + hi * 4096 + ee * 8, tag="g") for kb in range(2) for ee in range(2) for hi in range(2)]
    def gb_reads(st):
        return [lambda i=i: e.ds_read("ds_read_b128", GB(st & 1, i), GOA[st >> 1 & 1], OOF[st % 4] - OOF[st & 2] + i * 1024, tag="g") for i in range(18)]
    def full_w_items(st):
        its = kpl_items(st, sU1)
        its += [lambda: e.salu("s_lshl_b32", sU1, sU1, 16), lambda: e.salu("s_add_u32", sU1, sU1, g.sWB)]
        for n in range(16):
            if n % 4 == 0:
                its.append(lambda n=n: e.salu("s_mov_b32", "m0", GSL[st % 4] + n * 1024))
                if n: its.append(lambda: e.salu("s_add_u32", sU1, sU1, 16384))
            its.append(lambda n=n: e.dma(oWo[n & 3], sWO, sU1, off=(n & 3) * 1024, pol=cfg.wo_pol, tag="pre"))
        return its
    def gw_items(st):
        its = kpl_items(st, sU1)
        its += [lambda: e.salu("s_lshl_b32", sU1, sU1, 16), lambda: e.salu("s_add_u32", sU1, sU1, sWBw),
                lambda: e.salu("s_add_u32", "m0", g.sWLG, WOF[st % 4])]
        for i in range(4): its.append(lambda i=i: e.dma(oWo[i], sWO, sU1, off=i * 1024, pol=cfg.wo_pol, tag=("g", st)))
        return its
    def go_items(st):
        its = kpl_items(st, sU0)
        its += [lambda: e.salu("s_mul_i32", sU0, sU0, 18432), lambda: e.salu("s_add_u32", sU0, sU0, sOKw),
                lambda: e.salu("s_add_u32", "m0", g.sOL, OOF[st % 4])]
        for i in range(4): its.append(lambda i=i: e.dma(vL16, sWS, sU0, off=i * 1024, pol="sc1", tag=("g", st)))
        its += [lambda: e.salu("s_add_u32", "m0", g.sOL, OOF[st % 4] + 4096), lambda: e.salu("s_add_u32", sU0, sU0, 4096),
                lambda: e.dma(vL16, sWS, sU0, pol="sc1", tag=("g", st))]
        return its
    def tail_items(sg):
        its = [lambda: e.salu("s_sub_u32", sT1, sW, 1)]
        if sg < 62:
            st = sg - 58
            its += kpl_items(st, sU1)
            its += [lambda: e.salu("s_lshl_b32", sU1, sU1, 16), lambda: e.salu("s_add_u32", sU1, sU1, g.sWB),
                    lambda: e.salu("s_lshl_b32", sT2, sT1, 15), lambda: e.salu("s_add_u32", sU1, sU1, sT2), lambda: e.salu("s_lshl_b32", sT2, sT1, 13)]
            for n in range(8):
                if n % 4 == 0:
                    its.append(lambda n=n: e.salu("s_add_u32", "m0", sT2, WOF[st] + n * 1024))
                    if n: its.append(lambda: e.salu("s_add_u32", sU1, sU1, 16384))
                if cfg.tpace: its.append(window)
                its.append(lambda n=n: e.dma(oWo[n & 3], sWO, sU1, off=(n & 3) * 1024, pol=cfg.wo_pol, tag="pre"))
        else:
            cnt, p0 = (8, 0) if sg == 62 else (10, 16)
            its += kpl_items(2, sU0)
            its += [lambda: e.salu("s_mul_i32", sU0, sU0, 18432), lambda: e.salu("s_add_u32", sU0, sU0, g.sOKP),
                    lambda: e.salu("s_mul_i32", sT2, sT1, cnt * 1024), lambda: e.salu("s_add_u32", sU0, sU0, sT2), lambda: e.salu("s_add_u32", sU0, sU0, p0 * 1024)]
            for n in range(cnt):
                if n % 4 == 0:
                    its.append(lambda n=n: e.salu("s_add_u32", "m0", sT2, OOF[2] + (p0 + n) * 1024))
                    if n: its.append(lambda: e.salu("s_add_u32", sU0, sU0, 4096))
                if cfg.tpace: its.append(window)
                its.append(lambda n=n: e.dma(vL16, sWS, sU0, off=(n & 3) * 1024, pol="sc1", tag="tl"))
        return its
    def gwo_items(st):
        w = gw_items(st); o = go_items(st)
        return o[:5] + [lambda: e.salu("s_lshl_b32", sU1, sU0, 16)] + o[5:] + w[6:]
    def code_touch():
        e.salu("s_lshl_b32", sT, g.sIDX, 12)
        e.valu("v_lshlrev_b32", V(109), 6, vL)
        e.valu("v_add_u32", V(109), sT, V(109))
        e.valu("v_min_u32", V(109), "L_end-L_pc-4", V(109))
        e.ins(f"v_add_co_u32 v110, vcc, {sPC[0]}, v109", 'valu', [V(109)], [V(110), 'vcc'])
        e.valu("v_mov_b32", V(111), sPC[1])
        e.ins(f"v_addc_co_u32 v111, vcc, 0, v111, vcc", 'valu', [V(111), 'vcc'], [V(111), 'vcc'])
        e.ins(f"global_load_dword {vD1}, v[110:111], off", 'vmem', [V(110, 2)], [vD1]); e.vm_q.append("cw")
    def warm_items():
        its = [lambda: e.salu("s_lshl_b32", sU0, g.sHG, 5), lambda: e.salu("s_add_u32", sU0, sU0, g.sIDX), lambda: e.salu("s_lshl_b32", sU0, sU0, 15),
               lambda: e.valu("v_lshlrev_b32", vT2, 7, vL)]
        for n in range(4):
            if n: its.append(lambda: e.salu("s_add_u32", sU0, sU0, 8192))
            its.append(lambda n=n: e.bload("buffer_load_dword", vD1, vT2, sWO, sU0, pol=cfg.wo_pol, tag="wm"))
        if not cfg.warm_w: its = []
        its += [lambda: e.salu("s_sub_u32", sU0, g.sOB, g.sWLG), lambda: e.valu("v_lshlrev_b32", vT2, 7, vL)]
        for n in range(5 if cfg.warm_o else 0):
            if n: its.append(lambda n=n: e.salu("s_add_u32", sU0, sU0, 8192 if n < 4 else 4096))
            its.append(lambda: e.bload("buffer_load_dword", vD1, vT2, sWS, sU0, pol=cfg.warm_opol, tag="pre"))
        return its
    def atomic_add(flag, val):
        e.valu("v_mov_b32", vT0, val); e.valu("v_mov_b32", vT1, 0)
        e.salu("s_mov_b64", "exec", 1)
        e.ins(f"buffer_atomic_add {vT0}, {vT1}, {sDBG}, {flag} offen sc1", 'vmem', [vT0, vT1, sDBG, flag], [])
        e.salu("s_mov_b64", "exec", -1)
    def flag_store(line, off, who):
        e.salu("s_lshl_b32", sT, who, 3)
        e.valu("v_mov_b32", V(110), sTAG); e.valu("v_not_b32", V(111), sTAG); e.valu("v_mov_b32", vT1, sT)
        e.salu("s_mov_b64", "exec", 1)
        e.ins(f"buffer_store_dwordx2 v[110:111], {vT1}, {sWS}, {line} offen offset:{off} sc1", 'vmem', [V(110, 2), vT1, sWS, line], [])
        e.salu("s_mov_b64", "exec", -1)
    def flag_load(line, off, tag):
        e.valu("v_and_b32", vT2, 3, vL); e.valu("v_lshlrev_b32", vT2, 3, vT2)
        e.bload("buffer_load_dwordx2", TG, vT2, sWS, line, off=off, pol="sc1", tag=tag)
    def flag_test(who):
        e.valu("v_not_b32", TG[1], TG[1])
        e.valu("v_xor_b32", TG[0], sTAG, TG[0]); e.valu("v_xor_b32", TG[1], sTAG, TG[1]); e.valu("v_or_b32", TG[0], TG[0], TG[1])
        e.vcmp("v_cmp_ne_u32", "vcc", 0, TG[0])
        e.salu("s_lshl_b32", sT, 1, who); e.salu("s_xor_b32", sT, sT, 15)
        e.salu("s_and_b32", sT, sT, "vcc_lo")
        e.salu("s_cmp_eq_u32", None, sT, 0)
    def poll(line, off, lab, who):
        e.salu("s_mov_b32", g.sSP, 1 << 20)
        e.label(lab)
        flag_load(line, off, None)
        e.wait_all_vm()
        flag_test(who)
        e.branch("s_cbranch_scc1", lab + "x")
        e.other(f"s_sleep {cfg.poll_sleep}")
        e.salu("s_sub_u32", g.sSP, g.sSP, 1)
        e.salu("s_cmp_lg_u32", None, g.sSP, 0)
        e.branch("s_cbranch_scc1", lab)
        e.label(lab + "x")
    def read_fail(n):
        e.valu("v_mov_b32", vT1, LFLAG)
        for i in range(n): e.ds_read("ds_read_b128", V(80 + 4 * i, 4), vT1, 16 * i)
        e.wait_all_lds()
        e.valu("v_or_b32", V(80), V(80), V(81)); e.valu("v_or3_b32", V(80), V(80), V(82), V(83))
        if n == 2:
            e.valu("v_or3_b32", V(80), V(80), V(84), V(85)); e.valu("v_or3_b32", V(80), V(80), V(86), V(87))
        e.readfirstlane(sT, V(80))

    if cfg.cw & 2:
        e.salu("s_cmp_lg_u32", None, sW, 2)
        e.branch("s_cbranch_scc1", "1f")
        q_ = list(e.vm_q)
        code_touch()
        e.vm_q = q_
        e.label("1")
    def warm0():
        return [lambda: e.salu("s_lshl_b32", sT, g.sHG, 5), lambda: e.salu("s_add_u32", sT, sT, g.sIDX), lambda: e.salu("s_lshl_b32", sT, sT, 2),
                lambda: e.salu("s_add_u32", sT, sT, sW), lambda: e.salu("s_lshl_b32", sT, sT, 13),
                lambda: e.valu("v_lshlrev_b32", vT0, 7, vL),
                lambda: e.bload("buffer_load_dword", vD1, vT0, sWO, sT, pol=cfg.wo_pol, tag="ww")]
    if cfg.warm == 3 and cfg.warm0 == -1:
        for f in warm0(): f()
    if cfg.plate:
        for f in pro[1]: f()
    if cfg.plate == 1:
        for f in pro[2]: f()
    def xw_warm():
        e.salu("s_lshl_b32", sT, g.sIDX, 2); e.salu("s_add_u32", sT, sT, sW)
        e.salu("s_mul_i32", sT1, sT, 9216); e.valu("v_lshlrev_b32", vT0, 7, vL)
        e.bload("buffer_load_dword", vD1, vT0, sX, sT1, tag="xw"); e.bload("buffer_load_dword", vD1, vT0, sX, sT1, off=1024, tag="xw")
        e.salu("s_lshl_b32", sT1, sT, 15); e.salu("s_lshl_b32", sT2, g.sHG, 11); e.salu("s_add_u32", sT1, sT1, sT2)
        e.valu("v_and_b32", vT0, 15, vL); e.valu("v_lshlrev_b32", vT0, 7, vT0)
        e.valu("v_lshrrev_b32", vT1, 4, vL); e.valu("v_lshl_add_u32", vT0, vT1, 13, vT0)
        e.bload("buffer_load_dword", vD1, vT0, sWQ, sT1, tag="xw")
    def poison(fill):
        PZ = V(36, 4)
        fill.extend([lambda i=i: e.valu("v_mov_b32", PZ[i], -1) for i in range(4)])
        def third():
            e.salu("s_mov_b32", sU1, "0x40000000"); e.salu("s_cmp_eq_u32", None, g.sHG, 0); e.salu("s_cmov_b32", sU1, 8192)
        fill.append(third)
        for s_ in range(1, 4):
            def base(s_=s_):
                e.salu("s_add_u32", sU0, g.sHG, s_); e.salu("s_and_b32", sU0, sU0, 3); e.salu("s_mul_i32", sU0, sU0, 36)
            fill.append(base)
            fill.append(lambda: e.salu("s_add_u32", sU0, sU0, g.sHG))
            fill.append(lambda: e.salu("s_lshl_b32", sU0, sU0, 10))
            fill.append(lambda: e.salu("s_add_u32", sU0, sU0, g.sPB))
            fill.append(lambda: e.bstore("buffer_store_dwordx4", PZ, vL16, sWS, sU0, pol="sc1", tag="pz"))
            fill.append(lambda: e.salu("s_add_u32", sT, sU0, 4096))
            fill.append(lambda: e.bstore("buffer_store_dwordx4", PZ, vL16, sWS, sT, pol="sc1", tag="pz"))
            fill.append(lambda: e.salu("s_add_u32", sT, sU0, sU1))
            fill.append(lambda: e.bstore("buffer_store_dwordx4", PZ, vL16, sWS, sT, pol="sc1", tag="pz"))
    if cfg.inband and cfg.poison_at == -1:
        pz = []; poison(pz)
        for f in pz: f()
    if cfg.xwarm == 1: xw_warm()
    if cfg.qst: stamp(13, True)
    e.wait_vm("p0")
    if cfg.qst: stamp(14, True)
    e.barrier()
    stamp(1)
    for f in w_reads(0) + x_reads(0): f()
    if cfg.plate == 2:
        for f in pro[2]: f()
    if cfg.xwarm == 2: xw_warm()
    kvq = deque(kvq_items(s_) for s_ in range(4))
    def q_out(qt):
        its = []
        for P in range(2):
            src = V(112 + (qt * 4 + 2 * P) * 4, 8)
            its += [lambda i=i, src=src: e.valu("v_pk_mul_f32", src[2 * i:2 * i + 2], src[2 * i:2 * i + 2], V(34, 2)) for i in range(4)]
            its += [lambda i=i, src=src: e.valu("v_cvt_pk_bf16_f32", src[i], src[2 * i], src[2 * i + 1]) for i in range(4)]
            its.append(lambda src=src, P=P: e.ds_write("ds_write_b128", QW, src[0:4], (qt * 4 + P) * 1024))
        return its
    e.valu("v_mov_b32", V(34), g.sSC); e.valu("v_mov_b32", V(35), g.sSC)
    for st in range(16):
        e.comment(f"q-proj stage {st}")
        e.wait_vm({0: "p1", 1: "p2"}.get(st, ("iss", st - 2)))
        if st == (13 if cfg.qbar2 else 14): e.wait_vm(("kv", 0))
        e.wait_all_lds()
        if st & 1 or not cfg.qbar2: e.barrier()
        if cfg.qst and st in (1, 3, 6, 9, 13): stamp({1: 6, 3: 7, 6: 9, 9: 10, 13: 11}[st], True)
        fill = deque()
        if cfg.plate == 3 and st == 0: fill.extend(pro[2])
        if st // 2 + 2 < 8:
            if not cfg.qbar2: fill.extend(x_items(st // 2 + 2, st & 1, ("iss", st)))
            elif st & 1: fill.extend(x_items(st // 2 + 2, 0, ("iss", st)) + x_items(st // 2 + 2, 1, ("iss", st)))
        if st + 3 < 16: fill.extend(w_items(st + 3, ("iss", st)))
        if cfg.warm == 3 and cfg.warm0 == st: fill.extend(warm0())
        if cfg.tagpos == 2 and st == 13: tag_propose()
        for _ in range(cfg.kv0_at.split(",").count(str(st))): fill.extend(kvq.popleft())
        if cfg.inband and st == cfg.poison_at: poison(fill)
        if st == cfg.opre:
            fill.extend([lambda: e.salu("s_sub_u32", sU0, g.sOB, g.sWLG), lambda: e.salu("s_mul_i32", sU1, sW, 18432),
                         lambda: e.salu("s_add_u32", sU0, sU0, sU1), lambda: e.valu("v_lshlrev_b32", vT0, 7, vL)])
            for n in range(3):
                if n: fill.append(lambda n=n: e.salu("s_add_u32", sU0, sU0, 8192 if n == 1 else 2048))
                fill.append(lambda: e.bload("buffer_load_dword", vD1, vT0, sWS, sU0, pol=cfg.opre_pol, tag="op"))
        if cfg.l2pre and st == cfg.l2pre_at:
            for r in range(cfg.l2pre):
                fill.extend([lambda r=r: e.salu("s_add_u32", sT, sW, 4 + 4 * r), lambda: e.salu("s_lshl_b32", sT, sT, 13), lambda: e.salu("s_add_u32", sT, sT, g.sROT),
                             lambda: e.salu("s_and_b32", sT, sT, "0x3ffff"), lambda: e.salu("s_add_u32", sT, sT, g.sKVB0),
                             lambda: e.valu("v_lshlrev_b32", vT0, 7, vL),
                             lambda: e.bload("buffer_load_dword", vD1, vT0, sK, sT, tag="l2"), lambda: e.bload("buffer_load_dword", vD1, vT0, sV, sT, tag="l2")])
        rd = deque()
        if st + 1 < 16: rd.extend(w_reads(st + 1))
        if st & 1 and st + 1 < 16: rd.extend(x_reads((st + 1) // 2))
        if st == 14: rd.extend(kb_reads() + k_reads(0) + v_reads(0))
        if st == 15:
            fill.append(lambda: e.salu("s_mov_b32", sT1, "0x80008000"))
            fill.extend([lambda kk=kk, i=i: e.valu("v_xor_b32", Kb[kk][i], sT1, Kb[kk][i]) for kk in range(4) for i in range(4)])
        mfs = [lambda qt=qt, D=D: e.mfma16(QACC(D, qt), WF(st & 1, D), XF(st % 3, qt), QACC(D, qt) if st else 0)
               for qt in range(9) for D in range(4)]
        if st < 15 or not cfg.qov: run_stage(mfs, rd, fill)
        else:
            out = deque()
            for i, m in enumerate(mfs):
                m()
                if i % 4 == 3 and i >= 7: out.extend(q_out(i // 4 - 1))
                for _ in range(cfg.qov):
                    if fill: fill.popleft()()
                    elif out: out.popleft()()
            out.extend(q_out(8))
    while kvq:
        for f in kvq.popleft(): f()
    stamp(2)
    if not cfg.qov: out = deque(f for qt in range(9) for f in q_out(qt))
    while out: out.popleft()()
    e.valu("v_mov_b32", vT0, "0x3f803f80")
    for i in range(4): e.valu("v_accvgpr_write_b32", ONES[i], vT0)
    ld_setup()
    e.salu("s_cmp_eq_u32", None, sW, 3)
    e.branch("s_cbranch_scc1", "L_rC")
    e.salu("s_cmp_lg_u32", None, sW, 0)
    e.branch("s_cbranch_scc1", "L_rB")
    hist0 = list(e.hist); vmq0 = list(e.vm_q)

    X8 = 139264
    CAPS = [0, 2, 0, 1, 0, 2, 0, 1, 0, 2, 0, 1, 0, 2, 0, 1, cfg.l4cap if cfg.l4 else 2]
    for R in "ABC":
        NTW = 2 if R == "B" else 3
        toff = lambda t: ({"A": 8, "C": 2}[R] if t == 2 else t)
        e.hist = list(hist0)
        if R != "A": e.label(f"L_r{R}")
        e.lds_q = ["x"]; e.vm_q = list(vmq0)
        e.salu("s_mul_i32", sT, sSW2, 18432)
        e.valu("v_add_u32", vD1, sT, QA); e.valu("v_add_u32", QA, 36864, QA); e.valu("v_subrev_u32", QA, sT, QA)
        e.valu("v_add_u32", vD0, X8, vL16)
        e.valu("v_add_u32", vOW, g.sWLG, GOA[0])
        def qf_reads(h, addr):
            return [lambda t=t, kk=kk: e.ds_read("ds_read_b128", Qf(h, t, kk), addr, (toff(t) * 4 + kk) * 1024, tag="q") for t in range(NTW) for kk in range(4)]
        def prepass(h):
            e.comment("stand-in for the row max: minus the score of the first key, per row")
            e.salu("s_cmp_lg_u32", None, g.sRETRY, 0)
            e.branch("s_cbranch_scc1", f"L_np{h}{R}")
            if h == 0:
                for f in qf_reads(0, vD1): f()
                e.wait_all_lds()
            else:
                e.salu("s_mov_b32", sT1, "0x80008000")
                for kk in range(4):
                    for i in range(4): e.valu("v_xor_b32", Kb[kk][i], sT1, Kb[kk][i])
            for t in range(NTW):
                for kk in range(4): e.mfma16(NM(h, t), Kb[kk], Qf(h, t, kk), NM(h, t) if kk else 0)
            e.label(f"L_np{h}{R}")
        e.label(f"L_main_{R}")
        e.lds_q = ["x"]
        e.salu("s_mov_b32", g.sFAIL, 0)
        seq = [(s, t) for s in range(32) for t in range(3 if (R == "A" and s % 2 == 0) or (R == "C" and s % 2 == 1) else 2)]
        if not cfg.alt: seq = [(s, t) for s in range(32) for t in range(3 if R == "A" else 2)]
        NT = len(seq)
        first = {s: j for j, (s, t) in reversed(list(enumerate(seq)))}; first[32] = NT
        bpos = {}
        for s in range(1, 33):
            if s % 2 == 0 or R == "B" or not cfg.alt: bpos[(first[s], 0)] = s
            elif R == "A": bpos[(first[s] - 1, 8)] = s
            else: bpos[(first[s], 8)] = s
        def cap_left(j, i):
            n = k = 0
            while True:
                n += CAPS[i]; k += CAPS[i] > 0
                i += 1
                if i == 17: i = 0; j += 1
                if (j, i) in bpos or j > NT: return n, k
        extras = deque(); rds = deque(); lastk = [None]; later = deque()
        def beta(sg):
            while rds: rds.popleft()()
            if sg < 64:
                while extras: extras.popleft()()
            if sg + 1 < 64: e.wait_vm(("kv", sg + 1))
            if R == "C" and sg == 3:
                e.wait_all_vm()
                e.salu("s_cmp_lg_u32", None, g.sRETRY, 0)
                e.branch("s_cbranch_scc1", "6f")
                e.readfirstlane(sT, TG[0])
                e.salu("s_cmp_eq_u32", None, sT, 0)
                e.salu("s_cselect_b32", sT, S(72), sT)
                e.salu("s_mov_b32", sTAG, sT)
                e.valu("v_mov_b32", vT0, sT); e.valu("v_mov_b32", vT1, LFLAG)
                e.ds_write("ds_write_b32", vT1, vT0, 32)
                e.label("6")
            fb = cfg.fb and 4 <= sg < 60
            if fb and R == "C" and sg % 4 == 2:
                e.wait_vm("prg")
                e.vcmp("v_cmp_eq_u32", sM0, sTAG, PG[0]); e.vcmp("v_cmp_le_u32", "vcc", sTRIP, PG[1])
                e.salu("s_and_b32", sT, sM0[0], "vcc_lo"); e.salu("s_and_b32", sT, sT, "0xffff"); e.salu("s_bcnt1_i32_b32", sT, sT)
                e.valu("v_mov_b32", vT0, sT); e.valu("v_mov_b32", vT1, LFLAG)
                e.ds_write("ds_write_b32", vT1, vT0, 36)
            hook = 36 <= sg < 60 and sg % 4 == 0
            if hook:
                if R == "B": assert sg == 36 or "ost0" not in e.vm_q
                else: e.wait_all_vm()
            if R == "C" and sg == 62:
                while extras: extras.popleft()()
                e.wait_vm("fl0")
                flag_test(g.sHP)
                e.branch("s_cbranch_scc1", "L_poll0x")
                e.salu("s_cmp_lg_u32", None, g.sFAIL, 0)
                e.branch("s_cbranch_scc1", "L_poll0x")
                q_ = list(e.vm_q)
                poll(sF1, 0, "L_poll0", g.sHP)
                e.vm_q = q_
            if e.lds_q: e.wait_all_lds()
            if not cfg.dbg_hot & 2: e.barrier()
            for _ in range(cfg.trickle):
                if later and sg > 32: extras.extend(later.popleft())
            if fb and R == "C" and sg % 4 == 0:
                e.salu("s_add_u32", sTRIP, sTRIP, 1)
                e.valu("v_and_b32", vT2, 15, vL); e.valu("v_lshlrev_b32", vT2, 3, vT2)
                e.bload("buffer_load_dwordx2", PG, vT2, sWS, sPL, pol="sc1", tag="prg")
                e.valu("v_mov_b32", V(110), sTAG); e.valu("v_mov_b32", V(111), sTRIP); e.valu("v_mov_b32", vT1, sPS)
                e.salu("s_mov_b64", "exec", 1)
                e.bstore("buffer_store_dwordx2", V(110, 2), vT1, sWS, sPL, pol="sc1")
                e.salu("s_mov_b64", "exec", -1)
            if fb and R == "B" and sg % 4 == 2:
                e.valu("v_mov_b32", vT1, LFLAG)
                e.ds_read("ds_read_b32", vD1, vT1, 36)
            if fb and R == "B" and sg % 4 == 3:
                e.readfirstlane(sT, vD1)
                e.salu("s_cmp_ge_u32", None, sT, cfg.fb)
                e.salu("s_cselect_b64", "vcc", -1, 0)
            if R == "B" and not cfg.dbg_hot & 8:
                if 4 <= sg + cfg.la < 64: extras.extend(ld_items(sg + cfg.la))
            if R == "A" and sg in (33, 34): extras.extend(full_w_items(sg - 33))
            if sg == 2:
                e.salu("s_cmp_lg_u32", None, g.sRETRY, 0)
                e.branch("s_cbranch_scc1", "6f")
                for f in qf_reads(1, QA): f()
                e.lds_q = []
                e.label("6")
            if R == "B" and 60 <= sg < 64:
                for k_, at in enumerate(cfg.tail_at.split(",")):
                    if int(at) == sg:
                        assert sg >= 60 + k_
                        extras.extend(tail_items(60 + k_))
            if cfg.warm == 6 and sg == 60 + {"A": 0, "C": 3}.get(R, 9): extras.extend(warm0())
            if cfg.warm == 6 and R == "B" and sg == 61: extras.extend(warm0())
            if R == "A" and cfg.cw and sg % 4 == 0 and 4 <= sg % 32 < 28:
                e.salu("s_cmp_lg_u32", None, g.sCNT, cfg.cw_trip)
                e.branch("s_cbranch_scc1", "1f")
                q_ = list(e.vm_q)
                code_touch()
                e.vm_q = q_
                e.label("1")
            if R == "C":
                if hook:
                    e.salu("s_cmp_lg_u32", None, g.sCNT, cfg.sig_trip)
                    e.branch("s_cbranch_scc1", "1f")
                    read_fail(1)
                    e.salu("s_andn2_b32", g.sFAIL, sT, g.sRETRY)
                    e.salu("s_or_b32", sT, g.sFAIL, g.sPUB)
                    e.salu("s_cmp_lg_u32", None, sT, 0)
                    e.branch("s_cbranch_scc1", "1f")
                    flag_store(sF1, 0, g.sHP)
                    e.label("1")
                    if cfg.warm == 2:
                        e.salu("s_cmp_lg_u32", None, g.sCNT, cfg.warm_trip)
                        e.branch("s_cbranch_scc1", "2f")
                        for f in warm_items(): f()
                        e.label("2")
                if sg == 60:
                    flag_load(sF1, 0, "fl0")
                if sg == cfg.pre_step and cfg.warm == 1: extras.extend(warm_items())
                if cfg.warm == 3 and sg % cfg.warm_per == 0 and sg < 64: extras.extend(warm_items())
                if sg % 32 == 0 and sg and cfg.alt:
                    rds.append(lambda: e.ds_read("ds_read_b32", V(144), vD0, 8192, tag="x8"))
                    rds.extend([lambda D=D: e.ds_read("ds_read_b128", V(112 + 4 * D, 4), vD0, D * 1024, tag="x8") for D in range(8)])
            if sg + 1 < 64 and not cfg.dbg_hot & 4:
                kr = k_reads(sg + 1); rds.extend(kr); lastk[0] = kr[-1]
                if sg + 1 == 32: rds.extend(kb_reads())
        def slot(h, j):
            e.comment(f"slot")
            mf = []
            jq, jp = j + 1, j - 1
            if jq < NT:
                s, t = seq[jq]
                for kk in range(4):
                    for kt in range(2):
                        def m(kk=kk, kt=kt):
                            d = Sb[jq % 2][4 * kt:4 * kt + 4]
                            e.mfma16(d, Kf(s & 1, kt, kk), Qf(h, t, kk), d if kk else NM(h, t))
                        mf.append(m)
            else:
                mf += [None] * 8
            if jp >= 0:
                s2, t2 = seq[jp]
                acc = any(t_ == t2 for _, t_ in seq[:jp])
                def pv(D):
                    e.mfma16(Oacc(t2, D), Vf(s2 & 1, D), Pb[jp % 2], Oacc(t2, D) if acc else 0)
                    if cfg.l4 and D == cfg.l4pos: e.mfma4(Lb[t2], ONES[0:2], Pb[jp % 2][0:2], Lb[t2] if acc else 0)
                for D in range(8): mf.append(lambda D=D: pv(D))
                if cfg.l4: mf.append(lambda: e.mfma4(Lb[t2], ONES[0:2], Pb[jp % 2][2:4], Lb[t2]))
                else: mf.append((lambda: e.mfma16(Lb[t2], ONES, Pb[jp % 2], Lb[t2] if acc else 0)) if not (cfg.dbg_pw & 1 and acc) else None)
            else:
                mf += [None] * 9
            sm = 0 <= j < NT
            Sx, Px = Sb[j % 2], Pb[j % 2]
            E = lambda i: (lambda: e.valu("v_exp_f32", Sx[i], Sx[i])) if sm else None
            if cfg.dbg_pw & 4:
                for i_ in range(8, 16, 2): mf[i_] = None
            C = lambda i: (lambda: e.valu("v_cvt_pk_bf16_f32", Px[i], Sx[2 * i], Sx[2 * i + 1])) if sm else None
            base = [E(0), None, E(1), C(0), E(2), None, E(3), C(1), E(4), None, E(5), C(2), E(6), None, E(7), C(3), None]
            vre = deque()
            sfirst = [s_ for s_, j_ in first.items() if j_ == j and s_ > 0]
            if sfirst and 32 * h + sfirst[0] + 1 < 64 and not cfg.dbg_hot & 4: vre = deque(v_reads(32 * h + sfirst[0] + 1))
            if R == "A" and j == NT - 1 and cfg.alt:
                rds.extend([lambda D=D: e.ds_write("ds_write_b128", vD0, Oacc(2, D), D * 1024) for D in range(8)])
                rds.append(lambda: e.ds_write("ds_write_b32", vD0, Lb[2][0], 8192))
            for i in range(17):
                if (j, i) in bpos: beta(32 * h + bpos[(j, i)])
                if i == 0 and jq < NT and jq > 0 and seq[jq][1] == 0:
                    while lastk[0] in rds: rds.popleft()()
                    e.wait_lds("kf")
                if mf[i]: mf[i]()
                if 8 <= i < 16 and vre:
                    rds.append(vre.popleft()); rds.append(vre.popleft())
                if base[i]: base[i]()
                cap = CAPS[i] if sm else 2
                if CAPS[i]:
                    nq = len(rds) + (0 if ((j, 8) in bpos and i < 8) else len(vre)) + min(len(extras), 24)
                    nxt = [s_ for s_, j_ in first.items() if j_ == j + 1]
                    if R == "A" and nxt and nxt[0] % 2 == 1 and i >= 8 and cfg.alt: nq += 16
                    left, k = cap_left(j, i)
                    left -= 3
                    if nq > left: cap += -(-(nq - left) // max(1, k - 1))
                    elif cfg.thin and sm and cap == 2 and nq <= k - 2 and not (lastk[0] in rds and jq + 1 < NT and seq[jq + 1][1] == 0): cap = 1
                for c in range(cap):
                    if rds and (not extras or c != 1): rds.popleft()()
                    elif extras: extras.popleft()()
        def epilogue(h):
            NE = 2 if R != ("C" if cfg.alt else "A") else 3
            LV = [V(32 + 2 * t, 2) for t in range(3)]
            bad = cfg.force_fallback >> h & 1
            if h == 0:
                e.valu("v_mov_b32", vT0, LFLAG)
                e.ds_read("ds_read_b32", TG[0], vT0, 32, tag="tg")
            e.salu("s_mov_b32", sT, hex(f2u(0.25 if bad else cfg.lthresh)))
            e.salu("s_mov_b64", sM0, 0)
            for t in range(NE): e.valu("v_accvgpr_read_b32", LV[t][0], Lb[t][0])
            if R == "C" and cfg.alt:
                e.wait_lds("x8")
                e.valu("v_add_f32", LV[2][0], LV[2][0], V(144))
            if cfg.l4:
                for op in ("v_permlane32_swap_b32", "v_permlane16_swap_b32"):
                    for t in range(NE): e.valu("v_mov_b32", LV[t][1], LV[t][0])
                    for t in range(NE): e.perm(op, LV[t][1], LV[t][0])
                    for t in range(NE): e.valu("v_add_f32", LV[t][0], LV[t][0], LV[t][1])
            for t in range(NE):
                e.vcmp("v_cmp_nge_f32", sM1, sT, LV[t][0])
                e.vcmp("v_cmp_nle_f32", "vcc", 0.5, LV[t][0])
                e.salu("s_or_b64", sM0, sM0, sM1)
                e.salu("s_or_b64", sM0, sM0, "vcc")
            for t in range(NE): e.valu("v_rcp_f32", LV[t][0], LV[t][0])
            e.salu("s_or_b32", sT, sM0[0], sM0[1])
            e.valu("v_mov_b32", vT0, sT)
            e.ds_write("ds_write_b32", vFLG, vT0, 16 * h)
            for t in range(NE): e.valu("v_mov_b32", LV[t][1], LV[t][0])
            if h == 0:
                e.salu("s_cmp_lg_u32", None, g.sPUB, 0)
                e.salu("s_cselect_b32", sM0[0], "0x40000000", g.sOB)
            if R == "C" and cfg.alt:
                for i in range(16): e.valu("v_pk_add_f32", V(224 + 2 * i, 2), V(224 + 2 * i, 2), V(112 + 2 * i, 2))
            if h == 1:
                g0 = deque(ga_reads(0) + gb_reads(0))
                for t in reversed(range(NE)):
                    for blk in reversed(range(4)):
                        for _ in range(4):
                            if g0: g0.popleft()()
                        o = V(160 + (t * 8 + 2 * blk) * 4, 8); d = OPK(t, blk)
                        for i in range(4): e.valu("v_pk_mul_f32", o[2 * i:2 * i + 2], o[2 * i:2 * i + 2], LV[t])
                        for i in reversed(range(4)): e.valu("v_cvt_pk_bf16_f32", d[i], o[2 * i], o[2 * i + 1])
                        if cfg.st_stage < 0:
                            if blk & 1: e.salu("s_add_u32", sT, sOB1, (blk >> 1) * 18432 + t * 2048)
                            e.bstore("buffer_store_dwordx4", d, vL16, sWS, sT, off=(blk & 1) * 1024, pol=cfg.ost_pol, tag="ost")
                return
            n = 0
            for bh in range(2):
                for t in range(NE):
                    for bl in range(2):
                        blk = 2 * bh + bl
                        o = V(160 + (t * 8 + 2 * blk) * 4, 8)
                        d = V(112 + 4 * n, 4)
                        n += 1
                        for i in range(4): e.valu("v_pk_mul_f32", o[2 * i:2 * i + 2], o[2 * i:2 * i + 2], LV[t])
                        for i in range(4): e.valu("v_cvt_pk_bf16_f32", d[i], o[2 * i], o[2 * i + 1])
                        e.ds_write("ds_write_b128", vOW, d, bh * 34816 + toff(t) * 2048 + bl * 1024)
                        st_ = [lambda bh=bh, t=t: e.salu("s_add_u32", sT, sM0[0], bh * 18432 + toff(t) * 2048),
                               lambda d=d, bl=bl: e.bstore("buffer_store_dwordx4", d, vL16, sWS, sT, off=bl * 1024, pol=cfg.ost_pol, tag="ost0")]
                        if cfg.trickle and n > cfg.trickle0: later.append(st_)
                        else:
                            for f in st_: f()
                        for _ in range(3):
                            if rds: rds.popleft()()
                            elif extras: extras.popleft()()
        for h in range(2):
            if h == 0:
                beta(0); rds.extend(v_reads(1))
                for _ in range(6):
                    if extras: extras.popleft()()
            prepass(h)
            if h == 0: stamp(3)
            chunks = []; save = e.lines
            bounds = [-1] + [first[s] for s in range(cfg.chunk0, 32, 4)] + [NT + 1]
            for a_, b_ in zip(bounds[:-1], bounds[1:]):
                e.lines = []
                for j in range(a_, b_): slot(h, j)
                chunks.append(e.lines)
            e.lines = save
            i = 0; nl = 0
            while i < len(chunks):
                k = i
                while k + 1 < len(chunks) and chunks[k + 1] == chunks[i]: k += 1
                if k > i:
                    nl += 1; lab = f"L_loop_{R}{h}{nl}"
                    e.lines.append(f"    s_mov_b32 {g.sCNT}, {k - i + 1}")
                    e.lines.append(lab + ":")
                    e.lines += chunks[i]
                    e.lines += [f"    s_sub_u32 {g.sCNT}, {g.sCNT}, 1", f"    s_cmp_lg_u32 {g.sCNT}, 0", f"    s_cbranch_scc1 {lab}"]
                else:
                    e.lines += chunks[i]
                i = k + 1
            if h:
                while extras: extras.popleft()()
            stamp(4 if h else 12)
            epilogue(h)
            if h == 0:
                e.wait_lds("tg")
                e.readfirstlane(sTAG, TG[0])
                if cfg.inband and cfg.poison_at < 100:
                    assert "pz" not in e.vm_q
                    flag_store(sF2, 32, g.sHG); e.vm_q.append("fs")
                stamp(13)
        while extras: extras.popleft()()
        e.wait_vm("pre")
        if cfg.warm == 5:
            for f in warm0(): f()
        e.wait_all_lds(); e.barrier()
        read_fail(2)
        e.salu("s_andn2_b32", sT, sT, g.sRETRY)
        e.salu("s_cmp_eq_u32", None, sT, 0)
        e.branch("s_cbranch_scc1", "L_gemm")
        read_fail(1)
        e.salu("s_cmp_eq_u32", None, sT, 0)
        e.salu("s_cselect_b32", g.sPUB, 1, 0)
        e.salu("s_mov_b32", g.sRETRY, -1)
        e.wait_all()
        kv_addr_init()
        for h in range(2):
            MX = [V(48 + t) for t in range(3)]
            for t in range(NTW): e.valu("v_mov_b32", MX[t], "0xff800000")
            e.salu("s_mov_b32", g.sCNT, 32)
            e.salu("s_xor_b32", g.sKP, g.sKVB0, h * 262144); e.salu("s_mov_b32", g.sLS, 0)
            e.label(f"L_max_{R}{h}")
            e.barrier()
            if R == "A":
                for f in kv4_items("m")[:12]: f()
                e.wait_all_vm()
            e.salu("s_add_u32", g.sKP, g.sKP, 8192)
            e.barrier()
            for f in k_reads(0): f()
            e.wait_all_lds()
            for t in range(NTW):
                for kk in range(4):
                    for kt in range(2):
                        d = Sb[0][4 * kt:4 * kt + 4]
                        e.mfma16(d, Kf(0, kt, kk), Qf(h, t, kk), d if kk else 0)
                for i in range(4): e.valu("v_max3_f32", MX[t], Sb[0][2 * i], Sb[0][2 * i + 1], MX[t])
            e.salu("s_sub_u32", g.sCNT, g.sCNT, 1)
            e.salu("s_cmp_lg_u32", None, g.sCNT, 0)
            e.branch("s_cbranch_scc1", f"L_max_{R}{h}")
            for t in range(NTW):
                for op in ("v_permlane32_swap_b32", "v_permlane16_swap_b32"):
                    e.valu("v_mov_b32", vT0, MX[t])
                    e.perm(op, vT0, MX[t])
                    e.valu("v_max_f32", MX[t], vT0, MX[t])
                for i in range(4): e.valu("v_sub_f32", NM(h, t)[i], 0, MX[t])
        e.barrier()
        kv4_setup()
        for f in kv4_items("m"): f()
        ld_setup()
        e.wait_all_vm(); e.barrier()
        for f in k_reads(0) + v_reads(0): f()
        e.wait_all_lds()
        e.flush_hazards(8)
        e.branch("s_branch", f"L_main_{R}")

    e.label("L_gemm")
    e.hist = []; e.lds_q = []; e.vm_q = ["ost"]
    stamp(5)
    e.vm_q = [("g", 2)] + (["ost"] * 8 if cfg.st_stage < 0 else [])
    PS = cfg.poll_stage
    mark = [0]
    assert cfg.st_stage < cfg.sig_stage < PS and 6 <= PS <= 8 and (cfg.own_lds or cfg.sig_stage <= 4)
    def o2_items(kind, bh):
        def one(t, bl):
            if kind == "st":
                if bl == 0: e.salu("s_add_u32", sT, sOB1, bh * 18432 + t * 2048)
                e.bstore("buffer_store_dwordx4", OPK(t, 2 * bh + bl), vL16, sWS, sT, off=bl * 1024, pol=cfg.ost_pol, tag="ost")
            else:
                e.ds_write("ds_write_b128", vOW, OPK(t, 2 * bh + bl), bh * 34816 + t * 2048 + bl * 1024)
        def third():
            e.salu("s_cmp_lg_u32", None, sW, 3)
            e.branch("s_cbranch_scc1", "5f")
            q_ = (list(e.vm_q), list(e.lds_q))
            one(2, 0); one(2, 1)
            e.vm_q, e.lds_q = q_
            e.label("5")
        return [third] + [lambda t=t, bl=bl: one(t, bl) for t in range(2) for bl in range(2)]
    for st in range(16):
        e.comment(f"o-proj stage {st}")
        if st == cfg.sig_stage:
            if cfg.sig_drain: e.wait_all_vm()
            else: e.wait_vm("ost")
        if st == PS:
            e.salu("s_cmp_lg_u32", None, sW, 0)
            e.branch("s_cbranch_scc1", "L_poll1x")
            q_ = list(e.vm_q)
            e._wait(vm=len(e.vm_q) - mark[0])
            flag_test(g.sHP)
            e.branch("s_cbranch_scc1", "L_poll1x")
            poll(sF1, 32, "L_poll1", g.sHP)
            e.vm_q = q_
        if cfg.inband and st == cfg.poison_at - 100 + 4:
            e.wait_vm("pz")
            flag_store(sF2, 32, g.sHG)
        if cfg.inband and st == cfg.ann_stage:
            e.wait_vm("f3")
            flag_test(g.sHG)
            e.branch("s_cbranch_scc1", "L_poll3x")
            q_ = list(e.vm_q)
            poll(sF2, 32, "L_poll3", g.sHG)
            e.vm_q = q_
        if st == 1 and cfg.bonly:
            e.salu("s_add_u32", sT, sW, 1); e.salu("s_and_b32", sT, sT, 2)
            e.branch("s_cbranch_scc0", "9f")
            q_ = list(e.vm_q)
            e.wait_vm(("g", 2))
            e.vm_q = q_[1:]
            e.label("9")
        if st + 1 < 16: e.wait_vm(("g", st + 1))
        if st:
            e.wait_all_lds(); e.barrier()
        if st == cfg.sig_stage:
            e.salu("s_cmp_lg_u32", None, sW, 3)
            e.branch("s_cbranch_scc1", "L_sig1")
            flag_store(sF1, 32, g.sHP)
            e.label("L_sig1")
            stamp(6)
        if st == PS: stamp(7)
        if st == 2: stamp(14)
        if cfg.gst and 1 <= st <= 11: stamp((1, 2, 3, 6, 7, 9, 10, 11, 12, 13, 14)[st - 1], True)
        fill = deque()
        if st == PS - 1:
            def fl1():
                e.salu("s_cmp_lg_u32", None, sW, 0)
                e.branch("s_cbranch_scc1", "7f")
                flag_load(sF1, 32, None); e.vm_q.pop()
                e.label("7")
                mark[0] = len(e.vm_q)
            fill.append(fl1)
        if cfg.inband and st == cfg.poison_at - 100: poison(fill)
        if cfg.inband and st == cfg.ann_stage - 2: fill.append(lambda: flag_load(sF2, 32, "f3"))
        if cfg.inband and st == cfg.ann_stage: fill.append(lambda: flag_store(sF2, 0, g.sHG))
        if cfg.inband and st == 15: fill.extend([lambda: None] * 2 + [lambda: flag_load(sF2, 0, "f2")])
        if st == PS:
            for s2 in range(10, st + 4): fill.extend(go_items(s2))
        if cfg.warm == 4 and st == 0: fill.extend(warm0())
        if st == cfg.st_stage: fill.extend(o2_items("st", 0))
        if st == cfg.st_stage + cfg.st_split: fill.extend(o2_items("st", 1))
        if st + 4 < 16:
            if st + 4 in (8, 9) and cfg.own_lds: fill.extend(gw_items(st + 4) + o2_items("lds", st - 4))
            elif st + 4 < 10 or st >= PS: fill.extend(gwo_items(st + 4))
            else: fill.extend(gw_items(st + 4))
        rd = deque(ga_reads(st + 1) + gb_reads(st + 1)) if st + 1 < 16 else deque()
        mfs = [lambda qt=qt, kb=kb, ee=ee: e.mfma16(GC(qt, ee), GA(st & 1, kb * 2 + ee), GB(st & 1, qt * 2 + kb), GC(qt, ee) if (st or kb) else 0)
               for kb in range(2) for qt in range(9) for ee in range(2)]
        run_stage(mfs, rd, fill, span=20 if (st + 1 == cfg.sig_stage and cfg.sig_drain) else None)
    stamp(8)
    e.salu("s_mul_i32", sU0, g.sB, 144 * 2048); e.salu("s_lshl_b32", sT, g.sBR, 10); e.salu("s_add_u32", sU0, sU0, sT)
    e.salu("s_lshl_b32", sT, g.sHP, 8); e.salu("s_add_u32", sU0, sU0, sT); e.salu("s_lshl_b32", sT, sW, 6); e.salu("s_add_u32", sU0, sU0, sT)
    e.salu("s_mov_b32", sT1, "0xffff0000")
    for j in range(1, 4):
        e.salu("s_cmp_eq_u32", None, g.sHG, j)
        e.branch("s_cbranch_scc1", f"L_fin{j}")
    h1 = list(e.hist)
    for j in range(4):
        if j: e.label(f"L_fin{j}")
        e.hist = list(h1); e.vm_q = []; e.lds_q = []
        own = [qt for qt in range(9) if qt % 4 == j]
        if cfg.inband: e.vm_q = ["f2"]
        else: flag_load(sF2, 0, "f2")
        for qt in range(9):
            if qt in own: continue
            o = V(112 + qt * 8, 8)
            for i in range(4): e.valu("v_cvt_pk_bf16_f32", o[i], o[2 * i], o[2 * i + 1])
            if cfg.inband:
                for i in range(4): e.valu("v_min_u32", o[i], -2, o[i])
            e.salu("s_add_u32", sT2, g.sPB, j * 36864 + qt * 1024)
            e.bstore("buffer_store_dwordx4", o[0:4], vL16, sWS, sT2, pol="sc1")
        if cfg.inband: e.wait_vm("f2")
        else:
            e.wait_all_vm()
            flag_store(sF2, 0, g.sHG)
        stamp(9)
        flag_test(g.sHG)
        e.branch("s_cbranch_scc1", f"L_poll2{j}x")
        poll(sF2, 0, f"L_poll2{j}", g.sHG)
        PB = lambda s, n: V(184 + (s * 3 + n) * 4, 4)
        srcs = [s for s in range(4) if s != j]
        if cfg.inband:
            e.salu("s_mov_b32", g.sSP, 1 << 20)
            e.label(f"L_get{j}")
        else: stamp(10)
        for n, qt in enumerate(own):
            for si, s in enumerate(srcs):
                e.salu("s_add_u32", sT2, g.sPB, s * 36864 + qt * 1024)
                e.bload("buffer_load_dwordx4", PB(si, n), vL16, sWS, sT2, pol="sc1", tag=(si, n))
        if cfg.inband:
            e.wait_all_vm()
            ws_ = [PB(si, n)[i] for n in range(len(own)) for si in range(3) for i in range(4)]
            e.valu("v_max_u32", vT0, ws_[0], ws_[1])
            for i in range(2, len(ws_), 2): e.valu("v_max3_u32", vT0, ws_[i], ws_[i + 1], vT0)
            e.vcmp("v_cmp_eq_u32", "vcc", -1, vT0)
            e.salu("s_cmp_eq_u64", None, "vcc", 0)
            e.branch("s_cbranch_scc1", f"L_get{j}x")
            e.salu("s_sub_u32", g.sSP, g.sSP, 1)
            e.salu("s_cmp_lg_u32", None, g.sSP, 0)
            e.branch("s_cbranch_scc1", f"L_get{j}")
            e.label(f"L_get{j}x")
            stamp(10)
        for n, qt in enumerate(own):
            o = V(112 + qt * 8, 8)
            for si in range(3):
                p = PB(si, n)
                e.wait_vm((si, n))
                for i in range(4):
                    e.valu("v_lshlrev_b32", vT0, 16, p[i]); e.valu("v_and_b32", vT1, sT1, p[i])
                    e.valu("v_add_f32", o[2 * i], o[2 * i], vT0); e.valu("v_add_f32", o[2 * i + 1], o[2 * i + 1], vT1)
            for i in range(4): e.valu("v_cvt_pk_bf16_f32", o[i], o[2 * i], o[2 * i + 1])
            e.salu("s_add_u32", sT2, sU0, qt * 32768)
            e.bstore("buffer_store_dwordx4", o[0:4], vST, sOUT, sT2, pol=cfg.out_pol)
        stamp(11)
        stamp_flush()
        e.other("s_endpgm")
    e.label("L_done")
    e.other("s_endpgm")
    e.label("L_end")

HEADER = """; Attention block (two branches) in one launch; text produced by the generator dev/gen9.py (+ dev/asmlib.py).
; One workgroup per CU, 4 waves x 512 registers, two heads of one batch row block per workgroup, one after the other.
;  1. q projection of both heads (x and wq staged in LDS by LDS-DMA), scaled by log2(e)/sqrt(128), kept as MFMA fragments.
;  2. attention: K/V tiles of 32 keys stream through an LDS ring; q tiles are split over the waves.
;     Softmax shift: per row, the score of the first key processed is subtracted (through the MFMA C operand). After each
; Hand-offs: sc1 stores, vmcnt, then a flag pair (tag, ~tag) in d_ws; sc1 loads after the flags. The tag is a per-launch
; nonce agreed through d_debug (first proposal wins; the clock is read once, only as that nonce). All waits are bounded.
"""

def generate(cfg, fn):
    e = Em()
    e.raw('.amdgcn_target "amdgcn-amd-amdhsa--gfx950"'); e.raw(".text")
    gen(e, cfg, NAME + "_kernel")
    top = HEADER + "; @launch grid=(256,1,1) block=(256,1,1) lds=163840\n"
    tail = '.section .rodata,"a"\n' + descriptor(NAME + "_kernel", 512, 102, 256)
    open(fn, "w").write(top + e.text() + tail)
    return e

if __name__ == "__main__":
    cfg = Cfg()
    fn = sys.argv[1] if len(sys.argv) > 1 else "k.s"
    for kv in sys.argv[2:]:
        k, v = kv.split("=", 1)
        cur = getattr(cfg, k)
        setattr(cfg, k, type(cur)(int(v)) if isinstance(cur, (bool, int)) and not isinstance(cur, float) else (float(v) if isinstance(cur, float) else v))
    e = generate(cfg, fn)
    print(fn, "lines", len(e.lines), "nop states", e.nops)
```
